```python
import torch

def _softmax(x, axis=-1):
    return torch.softmax(x, dim=axis)

def _gelu(x):
    return torch.nn.functional.gelu(x, approximate='tanh')

def _silu(x):
    return torch.nn.functional.silu(x)

def _sigmoid(x):
    return torch.sigmoid(x)

def _layernorm(x, axis=-1, eps=1e-05):
    m = x.mean(dim=axis, keepdim=True)
    v = x.var(dim=axis, keepdim=True, unbiased=False)
    return (x - m) / torch.sqrt(v + eps)

def _scatter_add(tgt, idx, src, axis=0):
    return tgt.clone().index_add_(axis, idx, src)

def _segment_sum(src, seg, n):
    out = torch.zeros((n,) + src.shape[1:], dtype=src.dtype)
    return out.index_add_(0, seg, src)

def _pad(x, pw):
    flat = tuple((v for pair in reversed(pw) for v in pair))
    return torch.nn.functional.pad(x, flat)
kernel_name = 'interleave_layers__memory_aug_recurrent_mem_tr__geglu_ffn__prompt'

def setup_inputs():

    _w = lambda a: (lambda t: t.to(torch.bfloat16) if t.is_floating_point() else t)(torch.as_tensor(a))

    def _A_setup():
        B, S, Dm = (1, 2048, 512)
        H, Dh = (32, 128)
        M, seg = (8, 32)
        seg = min(seg, S)
        S = S // seg * seg
        return {'x': _w((lambda *s: torch.randn(*s, dtype=torch.bfloat16) * 0.05)(B, S, Dm)), 'mem0': _w((lambda *s: torch.randn(*s, dtype=torch.bfloat16) * 0.8)(B, M, Dm)), 'Wq': _w((lambda *s: torch.randn(*s, dtype=torch.bfloat16) * 0.8)(Dm, H, Dh) * Dm ** (-0.5)), 'Wk': _w((lambda *s: torch.randn(*s, dtype=torch.bfloat16) * 0.8)(Dm, H, Dh) * Dm ** (-0.5)), 'Wv': _w((lambda *s: torch.randn(*s, dtype=torch.bfloat16) * 0.8)(Dm, H, Dh) * Dm ** (-0.5)), 'Wo': _w((lambda *s: torch.randn(*s, dtype=torch.bfloat16) * 0.8)(H, Dh, Dm) * (H * Dh) ** (-0.5)), 'seg_len': seg}
    _A_in = _A_setup()

    def _B_setup():
        B, S, D, F = (1, 2048, 512, 1792)
        return {'x': _w((lambda *s: torch.randn(*s, dtype=torch.bfloat16) * 0.05)(B, S, D)), 'w_gate': _w((lambda *s: torch.randn(*s, dtype=torch.bfloat16) * 0.05)(D, F)), 'w_up': _w((lambda *s: torch.randn(*s, dtype=torch.bfloat16) * 0.05)(D, F)), 'w_down': _w((lambda *s: torch.randn(*s, dtype=torch.bfloat16) * 0.05)(F, D))}
    _B_in = _B_setup()
    return {'A_x': _A_in['x'], 'A_mem0': _A_in['mem0'], 'A_Wq': _A_in['Wq'], 'A_Wk': _A_in['Wk'], 'A_Wv': _A_in['Wv'], 'A_Wo': _A_in['Wo'], 'A_seg_len': _A_in['seg_len'], 'B_x': _B_in['x'], 'B_w_gate': _B_in['w_gate'], 'B_w_up': _B_in['w_up'], 'B_w_down': _B_in['w_down']}

def reference(A_x, A_mem0, A_Wq, A_Wk, A_Wv, A_Wo, A_seg_len, B_x, B_w_gate, B_w_up, B_w_down):

    def _A_ref(x, mem0, Wq, Wk, Wv, Wo, seg_len):
        B, S, Dm = x.shape
        H, Dh = (Wq.shape[1], Wq.shape[2])
        M = mem0.shape[1]
        scale = Dh ** (-0.5)
        n_seg = S // seg_len
        L = M + seg_len
        idx = torch.arange(L)
        mask = (idx[:, None] < M) | (idx[:, None] >= idx[None, :])
        mem = mem0
        outs = []
        for s in range(n_seg):
            xs = x[:, s * seg_len:(s + 1) * seg_len, :].clone()
            h = torch.concatenate([mem, xs], axis=1)
            q = torch.einsum('btd,dhe->bhte', h, Wq)
            k = torch.einsum('btd,dhe->bhte', h, Wk)
            v = torch.einsum('btd,dhe->bhte', h, Wv)
            scores = torch.einsum('bhqe,bhke->bhqk', q, k) * scale
            scores = torch.where(mask[None, None], scores, -1000000000.0)
            p = _softmax(scores, axis=-1)
            o = torch.einsum('bhqk,bhke->bhqe', p, v)
            o = torch.einsum('bhte,hed->btd', o, Wo)
            mem = o[:, :M, :].clone()
            outs.append(o[:, M:, :])
        return torch.concatenate(outs, axis=1)

    def _B_ref(x, w_gate, w_up, w_down):
        return _gelu(x @ w_gate) * (x @ w_up) @ w_down
    x = A_x
    x = x + _A_ref(_layernorm(x, axis=-1), A_mem0, A_Wq, A_Wk, A_Wv, A_Wo, A_seg_len)
    x = x + _B_ref(_layernorm(x, axis=-1), B_w_gate, B_w_up, B_w_down)
    x = x + _A_ref(_layernorm(x, axis=-1), A_mem0, A_Wq, A_Wk, A_Wv, A_Wo, A_seg_len)
    x = x + _B_ref(_layernorm(x, axis=-1), B_w_gate, B_w_up, B_w_down)
    return x
```

```python
import re

def v(i, n=1):
    return f"v{i}" if n == 1 else f"v[{i}:{i+n-1}]"
def a(i, n=1):
    return f"a{i}" if n == 1 else f"a[{i}:{i+n-1}]"
def s(i, n=1):
    return f"s{i}" if n == 1 else f"s[{i}:{i+n-1}]"

_REG = re.compile(r"\b([vas])(\d+)\b|\b([vas])\[(\d+):(\d+)\]|\b(vcc|exec|m0|scc)\b")
TRANS = ("v_exp_f32", "v_log_f32", "v_rcp_f32", "v_rsq_f32", "v_sqrt_f32", "v_sin_f32", "v_cos_f32", "v_rcp_iflag_f32")

def regs_of(op):
    out = set()
    for m in _REG.finditer(op):
        if m.group(1):
            out.add((m.group(1), int(m.group(2))))
        elif m.group(3):
            for i in range(int(m.group(4)), int(m.group(5)) + 1):
                out.add((m.group(3), i))
        else:
            out.add((m.group(6), 0))
    return out

def split_ops(text):
    ops, depth, cur = [], 0, ""
    for ch in text:
        if ch in "[(":
            depth += 1
        if ch in "])":
            depth -= 1
        if ch == "," and depth == 0:
            ops.append(cur.strip()); cur = ""
        else:
            cur += ch
    if cur.strip():
        ops.append(cur.strip())
    return ops

class Ins:
    __slots__ = ("text", "op", "cls", "wr", "rd", "srcC", "dstD", "ab", "wide_data", "dpp", "pos")

def classify(text):
    t = text.strip()
    parts = t.split(None, 1)
    op = parts[0]
    rest = parts[1] if len(parts) > 1 else ""
    ops = split_ops(rest)
    I = Ins(); I.text = t; I.op = op; I.wr = set(); I.rd = set(); I.srcC = set(); I.dstD = set(); I.ab = set(); I.wide_data = set(); I.dpp = False
    if op.startswith("v_mfma"):
        I.cls = "mfma"
        I.dstD = regs_of(ops[0]); I.wr = set(I.dstD)
        I.ab = regs_of(ops[1]) | regs_of(ops[2]); I.srcC = regs_of(ops[3].split()[0])
        I.rd = I.ab | I.srcC
    elif op.startswith("v_"):
        I.cls = "valu"
        I.dpp = any(k in t for k in ("row_ror", "row_shr", "row_shl", "quad_perm", "row_bcast", "row_mirror", "row_half_mirror", "wave_"))
        if op.startswith("v_permlane") and "swap" in op:
            I.wr = regs_of(ops[0]) | regs_of(ops[1]); I.rd = set(I.wr)
        elif op.startswith("v_cmp"):
            I.wr = regs_of(ops[0])
            for o in ops[1:]: I.rd |= regs_of(o)
        elif "_co_" in op or op.startswith("v_div_scale"):
            I.wr = regs_of(ops[0]) | regs_of(ops[1])
            for o in ops[2:]: I.rd |= regs_of(o)
        elif op == "v_nop":
            pass
        else:
            I.wr = regs_of(ops[0])
            for o in ops[1:]: I.rd |= regs_of(o)
            if op.startswith(("v_fmac", "v_mac", "v_pk_fmac", "v_dot2c")) or op.startswith("v_writelane"):
                I.rd |= I.wr
            if op.startswith("v_cndmask") and len(ops) == 3:
                I.rd.add(("vcc", 0))
            if op.startswith("v_div_fmas"):
                I.rd.add(("vcc", 0))
    elif op.startswith(("buffer_", "global_", "flat_", "scratch_")):
        I.cls = "vmem"
        is_store = "store" in op
        is_atomic = "atomic" in op
        lds = re.search(r"\blds\b", t) is not None or "load_lds" in op
        if is_store or is_atomic:
            for o in ops: I.rd |= regs_of(o)
            if op.startswith("buffer_"):
                data = regs_of(ops[0])
            else:
                data = regs_of(ops[1]) if len(ops) > 1 else set()
            if "x4" in op or "x3" in op: I.wide_data = data
            if is_atomic and (" sc0" in t or " glc" in t):
                I.wr = regs_of(ops[0])
        elif lds:
            for o in ops: I.rd |= regs_of(o)
            I.rd.add(("m0", 0))
        else:
            I.wr = regs_of(ops[0])
            for o in ops[1:]: I.rd |= regs_of(o)
    elif op.startswith("ds_"):
        I.cls = "ds"
        if op.startswith(("ds_read", "ds_bpermute", "ds_permute", "ds_swizzle")) or "_rtn" in op:
            I.wr = regs_of(ops[0])
            for o in ops[1:]: I.rd |= regs_of(o)
        else:
            for o in ops: I.rd |= regs_of(o)
    elif op.startswith("s_"):
        I.cls = "salu"
        if op in ("s_waitcnt", "s_barrier", "s_nop", "s_endpgm", "s_sleep", "s_setprio") or op.startswith(("s_branch", "s_cbranch", "s_cmp")):
            for o in ops: I.rd |= regs_of(o)
        else:
            if ops: I.wr = regs_of(ops[0])
            for o in ops[1:]: I.rd |= regs_of(o)
            if "saveexec" in op: I.wr.add(("exec", 0))
    else:
        raise ValueError("unknown instr: " + t)
    return I

def isv(r): return r[0] in ("v", "a")
def issg(r): return r[0] in ("s", "vcc")

class Asm:
    def __init__(self):
        self.lines = []
        self.hist = []
        self.pos = 0
        self.nops_inserted = 0

    def raw(self, text):
        self.lines.append(text)

    def comment(self, text):
        self.lines.append("    ; " + text)

    def label(self, name):
        self.lines.append(f"{name}:")

    def fence(self, n=16):
        while n > 0:
            k = min(n, 16)
            self.emit(f"s_nop {k-1}")
            n -= k

    def need(self, I):
        req = 0
        for P, ppos in reversed(self.hist):
            dist = self.pos - ppos - 1
            if dist >= 20: break
            r = 0
            if P.cls == "valu":
                pw_v = {x for x in P.wr if isv(x)}
                pw_s = {x for x in P.wr if issg(x)}
                if I.cls == "mfma" and pw_v & I.rd: r = max(r, 2)
                if I.cls == "valu":
                    if I.dpp and pw_v & I.rd: r = max(r, 2)
                    if I.op.startswith("v_permlane") and pw_v & I.rd: r = max(r, 2)
                    if I.op.startswith(("v_readlane", "v_readfirstlane")) and pw_v & I.rd: r = max(r, 1)
                    if P.op.split("_e")[0] in TRANS and pw_v & (I.rd | I.wr) and I.op.split("_e")[0] not in TRANS: r = max(r, 1)
                    if pw_s & I.rd:
                        r = max(r, 4 if I.op.startswith(("v_readlane", "v_writelane", "v_div_fmas")) else 2)
                if I.cls == "vmem" and pw_s & I.rd: r = max(r, 5)
                if I.cls == "salu" and pw_s & I.rd: r = max(r, 1)
            if P.cls == "mfma":
                D = P.dstD
                if I.cls == "mfma":
                    if D & I.ab: r = max(r, 8)
                    if D & I.srcC and D != I.srcC: r = max(r, 6)
                    if D & I.dstD and D != I.srcC: r = max(r, 8)
                elif I.cls in ("valu", "vmem", "ds"):
                    if D & (I.rd | I.wr): r = max(r, 8)
                if I.cls == "valu" and P.srcC & I.wr: r = max(r, 3)
            if P.cls == "vmem" and P.wide_data:
                if P.wide_data & I.wr: r = max(r, 2 if I.cls in ("valu", "mfma") else 1)
            if P.cls == "salu" and ("m0", 0) in P.wr and ("m0", 0) in I.rd: r = max(r, 1)
            if r - dist > req: req = r - dist
        return req

    def emit(self, text):
        for line in text.strip().split("\n"):
            line = line.strip()
            if not line or line.startswith(";"):
                continue
            I = classify(line.split(";")[0])
            if I.op != "s_nop":
                n = self.need(I)
                if n > 0:
                    self.nops_inserted += n
                    N = classify(f"s_nop {n-1}")
                    self.lines.append(f"    s_nop {n-1}")
                    self.hist.append((N, self.pos)); self.pos += n
            self.lines.append("    " + line)
            self.hist.append((I, self.pos))
            if I.op == "s_nop":
                self.pos += int(line.split()[1], 0) + 1
            else:
                self.pos += 1
            if len(self.hist) > 64: self.hist = self.hist[-40:]

    def __call__(self, text):
        self.emit(text)

    def text(self):
        return "\n".join(self.lines) + "\n"

def kernel_header(name):
    return f""".globl {name}
.p2align 8
.type {name},@function
{name}:"""

def kernel_desc(name, vgpr, sgpr, accum):
    return f""".p2align 6
.amdhsa_kernel {name}
  .amdhsa_next_free_vgpr {vgpr}
  .amdhsa_next_free_sgpr {sgpr}
  .amdhsa_accum_offset {accum}
  .amdhsa_group_segment_fixed_size 0
  .amdhsa_kernarg_size 112
  .amdhsa_user_sgpr_count 2
  .amdhsa_user_sgpr_kernarg_segment_ptr 1
  .amdhsa_system_sgpr_workgroup_id_x 1
.end_amdhsa_kernel
"""
```

```python
import sys
from asmlib import *
from layout import *

NAME = "interleave_layers__memory_aug_recurrent_mem_tr__geglu_ffn__prompt"
KA = dict(x=0, mem0=8, wq=16, wk=24, wv=32, wo=40, seg=48, bx=56, wg=64, wu=72, wd=80, out=88, dbg=96, ws=104)

def srd(A, sd, sbase, nbytes):
    A(f"s_mov_b32 s{sd}, s{sbase}")
    A(f"s_and_b32 s{sd+1}, s{sbase+1}, 0xffff")
    A(f"s_mov_b32 s{sd+2}, {nbytes}")
    A(f"s_mov_b32 s{sd+3}, 0x00020000")

def load_ptr_srd(A, key, sd, nbytes, tmp):
    A(f"s_load_dwordx2 s[{tmp}:{tmp+1}], s[0:1], {KA[key]}")
    A("s_waitcnt lgkmcnt(0)")
    srd(A, sd, tmp, nbytes)

def magic_div(d, maxn):
    for sh in range(0, 32):
        m = -(-(1 << sh) // d)
        if m * maxn < (1 << 32) and all((n * m) >> sh == n // d for n in range(maxn)):
            return m, sh
    raise ValueError

def gen_prep():
    A = Asm()
    name = "prep_kernel"
    A.raw(kernel_header(name))
    mats = [("wq", 512, 4096, "qkv0"), ("wk", 512, 4096, "qkv1"), ("wv", 512, 4096, "qkv2"), ("wo", 4096, 512, "wo"),
            ("wg", 512, 1792, "gu0"), ("wu", 512, 1792, "gu1"), ("wd", 1792, 512, "wd")]
    load_ptr_srd(A, "ws", 4, WS_BYTES, 20)
    A("s_mov_b32 s16, 0x05040100")
    A("s_mov_b32 s17, 0x07060302")
    start = 0
    ranges = []
    for (key, K, N, kind) in mats:
        nunits = (K // 8) * (N // 4)
        nwg = nunits // 256
        ranges.append((start, nwg)); start += nwg
    fill_start = start
    FILL_WG_BYTES = 65536
    nfill = (64 * MB) // FILL_WG_BYTES
    memx_start = fill_start + nfill
    memx_total = 2 * MEMX_LAYER
    nmemx = -(-memx_total // 4096)
    total_wg = memx_start + nmemx
    for idx, (key, K, N, kind) in enumerate(mats):
        st, nwg = ranges[idx]
        A(f"s_cmp_lt_u32 s2, {st + nwg}")
        A(f"s_cbranch_scc1 L_prep_{key}")
    A(f"s_cmp_lt_u32 s2, {memx_start}")
    A("s_cbranch_scc1 L_prep_fill")
    A(f"s_cmp_lt_u32 s2, {total_wg}")
    A("s_cbranch_scc1 L_prep_memx")
    A("s_endpgm")
    for idx, (key, K, N, kind) in enumerate(mats):
        st, nwg = ranges[idx]
        A.label(f"L_prep_{key}")
        load_ptr_srd(A, key, 8, K * N * 2, 20)
        NQ = N // 4
        A(f"s_sub_u32 s3, s2, {st}")
        A("s_lshl_b32 s3, s3, 8")
        A("v_add_u32 v1, s3, v0")
        if NQ & (NQ - 1) == 0:
            sh = NQ.bit_length() - 1
            A(f"v_lshrrev_b32 v2, {sh}, v1")
            A(f"v_and_b32 v3, {NQ-1}, v1")
        else:
            m, sh = magic_div(NQ, (K // 8) * NQ)
            A(f"s_mov_b32 s18, {m}")
            A("v_mul_lo_u32 v2, s18, v1")
            A(f"v_lshrrev_b32 v2, {sh}, v2")
            A(f"s_mov_b32 s18, {NQ}")
            A("v_mul_lo_u32 v3, s18, v2")
            A("v_sub_u32 v3, v1, v3")
        A(f"s_mov_b32 s18, {N*16}")
        A("v_mul_lo_u32 v4, s18, v2")
        A("v_lshl_add_u32 v4, v3, 3, v4")
        for j in range(8):
            A(f"s_mov_b32 s19, {j*N*2}")
            A(f"buffer_load_dwordx2 v[{16+2*j}:{17+2*j}], v4, s[8:11], s19 offen")
        A("v_lshrrev_b32 v5, 2, v2")
        A("v_and_b32 v6, 3, v2")
        A("v_lshrrev_b32 v7, 3, v3")
        A("v_and_b32 v8, 1, v3")
        A("v_bfe_u32 v9, v3, 1, 2")
        A("v_lshlrev_b32 v10, 6, v9")
        A("v_lshl_add_u32 v10, v6, 8, v10")
        if kind.startswith("qkv"):
            region = int(kind[3])
            A("v_lshrrev_b32 v11, 1, v7")
            A("v_and_b32 v12, 1, v7")
            A("v_lshl_add_u32 v12, v12, 1, v8")
            A("v_mul_u32_u24 v11, 3, v11")
            A(f"v_add_u32 v11, {region}, v11")
            A("v_lshl_add_u32 v11, v11, 4, v5")
            A("v_lshl_add_u32 v11, v11, 2, v12")
            base = WQKV_F
        elif kind in ("wo", "wd"):
            KS = K // 32
            A("v_lshrrev_b32 v11, 1, v7")
            A("v_and_b32 v12, 1, v7")
            A("v_lshl_add_u32 v12, v12, 1, v8")
            A(f"v_mul_u32_u24 v11, {KS}, v11")
            A("v_add_u32 v11, v11, v5")
            A("v_lshl_add_u32 v11, v11, 2, v12")
            base = WO_F if kind == "wo" else WD_F
        else:
            gu = int(kind[2])
            A("v_lshl_add_u32 v11, v7, 4, v5")
            A("v_lshl_add_u32 v11, v11, 2, v8")
            A(f"v_add_u32 v11, {2*gu}, v11")
            base = WGU_F
        A("v_lshl_add_u32 v10, v11, 10, v10")
        A(f"s_mov_b32 s19, {base}")
        A("s_waitcnt vmcnt(0)")
        for r in range(4):
            half = r >> 1; sel = "s16" if (r & 1) == 0 else "s17"
            for d in range(4):
                lo = 16 + 2 * (2 * d) + half; hi = 16 + 2 * (2 * d + 1) + half
                A(f"v_perm_b32 v{32+4*r+d}, v{hi}, v{lo}, {sel}")
        for r in range(4):
            A(f"buffer_store_dwordx4 v[{32+4*r}:{35+4*r}], v10, s[4:7], s19 offen offset:{16*r}")
        A("s_endpgm")
    A.label("L_prep_fill")
    A(f"s_sub_u32 s3, s2, {fill_start}")
    A("s_lshl_b32 s3, s3, 16")
    A(f"s_add_u32 s3, s3, {PART}")
    A("v_lshlrev_b32 v1, 4, v0")
    for i in range(4): A(f"v_mov_b32 v{4+i}, -1")
    for i in range(16):
        A(f"buffer_store_dwordx4 v[4:7], v1, s[4:7], s3 offen")
        if i < 15: A("s_add_u32 s3, s3, 4096")
    A("s_endpgm")
    A.label("L_prep_memx")
    load_ptr_srd(A, "mem0", 8, 8192, 20)
    A(f"s_sub_u32 s3, s2, {memx_start}")
    A("s_lshl_b32 s3, s3, 12")
    A("v_lshlrev_b32 v1, 4, v0")
    A("v_add_u32 v1, s3, v1")
    A(f"v_subrev_u32 v2, {MEMX_LAYER}, v1")
    A(f"v_cmp_gt_u32 vcc, {MEMX_LAYER}, v1")
    A("v_cndmask_b32 v2, v2, v1, vcc")
    A("v_lshrrev_b32 v3, 6, v2")
    A("v_bfe_u32 v4, v2, 3, 3")
    A("v_lshlrev_b32 v5, 10, v4")
    A("v_lshl_add_u32 v5, v3, 3, v5")
    A("buffer_load_dwordx2 v[8:9], v5, s[8:11], 0 offen")
    A("buffer_load_dwordx2 v[10:11], v5, s[8:11], 0 offen offset:1024")
    A("s_waitcnt vmcnt(0)")
    A(f"v_cmp_gt_u32 vcc, 8192, v2")
    for i in range(4):
        A(f"v_min_u32 v{8+i}, -2, v{8+i}")
        A(f"v_cndmask_b32 v{8+i}, -1, v{8+i}, vcc")
    A(f"v_cmp_gt_u32 vcc, {memx_total}, v1")
    A("s_and_saveexec_b64 s[22:23], vcc")
    A("s_cbranch_execz L_prep_end")
    A(f"s_mov_b32 s19, {MEMX}")
    A("buffer_store_dwordx4 v[8:11], v1, s[4:7], s19 offen")
    A.label("L_prep_end")
    A("s_endpgm")
    return name, A, total_wg, 64

def bf16_round(A, dst, src, tmp):
    A(f"v_cvt_pk_bf16_f32 v{tmp}, v{src}, v{src}")
    A(f"v_lshlrev_b32 v{dst}, 16, v{tmp}")

def gen_ln(name, src):
    A = Asm()
    A.raw(kernel_header(name))
    A("s_cmp_ge_u32 s2, 128")
    A("s_cbranch_scc1 L_end_" + name)
    load_ptr_srd(A, "ws", 4, WS_BYTES, 20)
    if src[0] == "in":
        load_ptr_srd(A, src[1], 8, 2 * MB, 20)
        sr, soff = "s[8:11]", 0
    else:
        sr, soff = "s[4:7]", src[1]
    A("v_lshrrev_b32 v1, 4, v0")
    A("s_lshl_b32 s3, s2, 4")
    A("v_add_u32 v1, s3, v1")
    A("v_and_b32 v2, 15, v0")
    A("v_lshlrev_b32 v3, 10, v1")
    A("v_lshl_add_u32 v3, v2, 4, v3")
    A(f"s_mov_b32 s19, {soff}")
    for q in range(4):
        A(f"buffer_load_dwordx4 v[{16+4*q}:{19+4*q}], v3, {sr}, s19 offen offset:{q*256}")
    A("v_bfe_u32 v4, v1, 3, 2")
    A("v_and_b32 v5, 3, v1")
    A("v_lshl_add_u32 v4, v4, 2, v5")
    A("v_and_b32 v5, 3, v2")
    A("v_lshl_add_u32 v4, v5, 4, v4")
    A("v_lshlrev_b32 v4, 4, v4")
    A("v_bfe_u32 v5, v1, 2, 1")
    A("v_bfe_u32 v6, v1, 5, 2")
    A("v_lshl_add_u32 v5, v6, 1, v5")
    A("v_lshl_add_u32 v4, v5, 10, v4")
    A("v_lshrrev_b32 v5, 7, v1")
    A("v_lshrrev_b32 v6, 2, v2")
    A("v_lshl_add_u32 v5, v5, 4, v6")
    A("v_lshl_add_u32 v4, v5, 13, v4")
    A("s_waitcnt vmcnt(0)")
    for i in range(16):
        A(f"v_lshlrev_b32 v{32+2*i}, 16, v{16+i}")
        A(f"v_and_b32 v{33+2*i}, 0xffff0000, v{16+i}")
    A("v_add_f32 v7, v32, v33")
    for i in range(2, 32): A(f"v_add_f32 v7, v7, v{32+i}")
    for sh in (8, 4, 2, 1):
        A(f"v_add_f32_dpp v7, v7, v7 row_ror:{sh}")
    A("v_mul_f32 v7, 0x3b000000, v7")
    A("v_sub_f32 v8, v32, v7")
    A("v_mul_f32 v9, v8, v8")
    for i in range(1, 32):
        A(f"v_sub_f32 v8, v{32+i}, v7")
        A("v_fmac_f32 v9, v8, v8")
    for sh in (8, 4, 2, 1):
        A(f"v_add_f32_dpp v9, v9, v9 row_ror:{sh}")
    A("v_mul_f32 v9, 0x3b000000, v9")
    bf16_round(A, 7, 7, 10)
    bf16_round(A, 9, 9, 10)
    A("v_add_f32 v9, 0x3727c5ac, v9")
    bf16_round(A, 9, 9, 10)
    A("v_sqrt_f32 v9, v9")
    bf16_round(A, 9, 9, 10)
    A("v_rcp_f32 v9, v9")
    for i in range(16):
        A(f"v_sub_f32 v{32+2*i}, v{32+2*i}, v7")
        A(f"v_sub_f32 v{33+2*i}, v{33+2*i}, v7")
        A(f"v_cvt_pk_bf16_f32 v10, v{32+2*i}, v{33+2*i}")
        A(f"v_lshlrev_b32 v{32+2*i}, 16, v10")
        A(f"v_and_b32 v{33+2*i}, 0xffff0000, v10")
        A(f"v_mul_f32 v{32+2*i}, v{32+2*i}, v9")
        A(f"v_mul_f32 v{33+2*i}, v{33+2*i}, v9")
        A(f"v_cvt_pk_bf16_f32 v{16+i}, v{32+2*i}, v{33+2*i}")
    A(f"s_mov_b32 s19, {XF}")
    for q in range(4):
        if q: A(f"s_add_u32 s19, s19, {4*8192}")
        A(f"buffer_store_dwordx4 v[{16+4*q}:{19+4*q}], v4, s[4:7], s19 offen")
    A.label("L_end_" + name)
    A("s_endpgm")
    return name, A, 128, 64

def copy_x_to_lds(A, mg_sreg, tmpv):
    A("v_lshlrev_b32 v1, 4, v0")
    A(f"s_lshl_b32 s19, s{mg_sreg}, 17")
    A(f"s_add_u32 s19, s19, {XF}")
    for rnd in range(4):
        for i in range(8):
            A(f"buffer_load_dwordx4 v[{tmpv+4*i}:{tmpv+4*i+3}], v1, s[4:7], s19 offen")
            A("s_add_u32 s19, s19, 4096")
        for i in range(8):
            A(f"s_waitcnt vmcnt({7-i})")
            off = (rnd * 8 + i) * 4096
            if off < 65536:
                A(f"ds_write_b128 v1, v[{tmpv+4*i}:{tmpv+4*i+3}] offset:{off}")
            else:
                A(f"ds_write_b128 v2, v[{tmpv+4*i}:{tmpv+4*i+3}] offset:{off-65536}")
            if rnd == 0 and i < 2:
                A(f"ds_write_b128 v3, v[{tmpv+4*i}:{tmpv+4*i+3}] offset:{i*4096}")

def gen_qkv(name):
    A = Asm()
    A.raw(kernel_header(name))
    A("s_cmp_ge_u32 s2, 256")
    A("s_cbranch_scc1 L_end_" + name)
    load_ptr_srd(A, "ws", 4, WS_BYTES, 20)
    A("s_and_b32 s12, s2, 7")
    A("s_lshl_b32 s12, s12, 1")
    A("s_bfe_u32 s13, s2, 0x10003")
    A("s_add_u32 s12, s12, s13")
    A("s_lshr_b32 s13, s2, 4")
    A("v_lshlrev_b32 v1, 4, v0")
    A("v_add_u32 v2, 0x10000, v1")
    A("v_add_u32 v3, 0x20000, v1")
    ACC = 0 + 128
    XB = 8
    WB = 72
    XB = 8; WB = 64
    XB = 8; WB = 72; PK = 136
    copy_x_to_lds(A, 13, WB)
    A("v_lshrrev_b32 v4, 6, v0")
    A("v_readfirstlane_b32 s14, v4")
    A("v_and_b32 v4, 63, v0")
    A("v_lshlrev_b32 v4, 4, v4")
    A("v_mov_b32 v5, v4")
    A("s_lshl_b32 s15, s12, 2")
    A("s_add_u32 s15, s15, s14")
    A("s_mul_i32 s15, s15, 196608")
    A(f"s_add_u32 s15, s15, {WQKV_F}")
    A("s_waitcnt lgkmcnt(0)")
    A("s_barrier")
    def wload(setidx):
        for t in range(4):
            A(f"buffer_load_dwordx4 v[{WB+16*setidx+4*t}:{WB+16*setidx+4*t+3}], v4, s[4:7], s15 offen offset:{t*1024}")
        A("s_add_u32 s15, s15, 4096")
    def xread(buf, koff):
        for mt in range(8):
            A(f"ds_read_b128 v[{XB+32*buf+4*mt}:{XB+32*buf+4*mt+3}], v5 offset:{koff*8192+mt*1024}")
    for st in range(3): wload(st)
    xread(0, 0)
    A("s_lshl_b32 s16, s13, 3")
    A("s_lshl_b32 s16, s16, 5")
    A("s_lshl_b32 s17, s12, 1")
    A("s_lshr_b32 s18, s14, 1")
    A("s_add_u32 s17, s17, s18")
    A("s_add_u32 s16, s16, s17")
    A("s_lshl_b32 s16, s16, 2")
    A("s_and_b32 s18, s14, 1")
    A("s_lshl_b32 s18, s18, 1")
    A("s_add_u32 s16, s16, s18")
    A("s_lshl_b32 s16, s16, 10")
    A(f"s_add_u32 s16, s16, {QF}")
    A("s_lshl_b32 s20, s13, 2")
    A("s_lshl_b32 s20, s20, 5")
    A("s_add_u32 s20, s20, s17")
    A("s_lshl_b32 s20, s20, 3")
    A("s_lshl_b32 s18, s18, 1")
    A("s_add_u32 s20, s20, s18")
    A("s_lshl_b32 s20, s20, 10")
    A(f"s_add_u32 s20, s20, {VF}")
    A("s_mov_b32 s21, 0")
    def zero_acc():
        for i in range(128): A(f"v_accvgpr_write_b32 a{i}, 0")
    def kloop(tag, vtype):
        A("s_mov_b32 s22, 0")
        A.label(f"L_k_{tag}_{name}")
        for u in range(4):
            wload((u + 3) % 4)
            xread((u + 1) % 2, u + 1)
            A("s_waitcnt vmcnt(12) lgkmcnt(8)")
            for ct in range(4):
                for mt in range(8):
                    w = v(WB + 16 * u + 4 * ct, 4); x = v(XB + 32 * (u % 2) + 4 * mt, 4)
                    acc = a((ct * 8 + mt) * 4, 4)
                    if vtype: A(f"v_mfma_f32_16x16x32_bf16 {acc}, {x}, {w}, {acc}")
                    else:     A(f"v_mfma_f32_16x16x32_bf16 {acc}, {w}, {x}, {acc}")
        A("v_add_u32 v5, 0x8000, v5")
        A("v_and_b32 v5, 0x1ffff, v5")
        A("s_add_u32 s22, s22, 1")
        A("s_cmp_lt_u32 s22, 4")
        A(f"s_cbranch_scc1 L_k_{tag}_{name}")
    zero_acc()
    A.label(f"L_pass_{name}")
    kloop("qk", False)
    A.fence(10)
    A("s_mov_b32 s19, s16")
    n = 0
    for mt in range(8):
        for cp in range(2):
            pk = PK + 4 * (n % 8); n += 1
            for half in range(2):
                base = ((2 * cp + half) * 8 + mt) * 4
                for i in range(4): A(f"v_accvgpr_read_b32 v{168+i}, a{base+i}")
                A(f"v_cvt_pk_bf16_f32 v{pk+2*half}, v168, v169")
                A(f"v_cvt_pk_bf16_f32 v{pk+2*half+1}, v170, v171")
            A(f"buffer_store_dwordx4 v[{pk}:{pk+3}], v4, s[4:7], s19 offen offset:{cp*1024}")
        if mt < 7: A("s_add_u32 s19, s19, 131072")
    zero_acc()
    A(f"s_add_u32 s16, s16, {KF-QF}")
    A("s_add_u32 s21, s21, 1")
    A("s_cmp_lt_u32 s21, 2")
    A(f"s_cbranch_scc1 L_pass_{name}")
    kloop("v", True)
    A.fence(10)
    A("s_mov_b32 s19, s20")
    n = 0
    for sg in range(4):
        for ct in range(4):
            pk = PK + 4 * (n % 8); n += 1
            for half in range(2):
                base = (ct * 8 + 2 * sg + half) * 4
                for i in range(4): A(f"v_accvgpr_read_b32 v{168+i}, a{base+i}")
                A(f"v_cvt_pk_bf16_f32 v{pk+2*half}, v168, v169")
                A(f"v_cvt_pk_bf16_f32 v{pk+2*half+1}, v170, v171")
            A(f"buffer_store_dwordx4 v[{pk}:{pk+3}], v4, s[4:7], s19 offen offset:{ct*1024}")
        if sg < 3: A("s_add_u32 s19, s19, 262144")
    A.label("L_end_" + name)
    A("s_endpgm")
    return name, A, 256, (176, 128)

def build(kernels, launches):
    out = []
    hdr = open("cdna_kernels/" + NAME + ".s.ref").read().split("\n")
    for l in hdr:
        if l.startswith(";") and "@launch" not in l and "Override" not in l and "grid=ceil" not in l:
            out.append(l)
    for (k, g, lds) in launches:
        out.append(f"; @launch kernel={k} grid=({g},1,1) block=(256,1,1) lds={lds}")
    out.append('.amdgcn_target "amdgcn-amd-amdhsa--gfx950"')
    out.append(".text")
    for (name, A, g, regs) in kernels:
        out.append(A.text())
    out.append('.section .rodata,"a"')
    for (name, A, g, regs) in kernels:
        if isinstance(regs, tuple):
            nv, na = regs
            acc = (nv + 3) // 4 * 4
            out.append(kernel_desc(name, acc + na, 102, acc))
        else:
            acc = (regs + 3) // 4 * 4
            out.append(kernel_desc(name, regs, 102, acc))
    return "\n".join(out) + "\n"

if __name__ == "__main__":
    ks = [gen_prep(), gen_ln("ln1_kernel", ("in", "x")), gen_qkv("qkv1_kernel")]
    launches = [("prep_kernel", ks[0][2], 0), ("ln1_kernel", 128, 0), ("qkv1_kernel", 256, 136 * 1024)]
    txt = build(ks, launches)
    open("cdna_kernels/" + NAME + ".s", "w").write(txt)
    print("bytes", len(txt))
```

```python
from asmlib import *
from layout import *
from gen import load_ptr_srd, KA

WOL = 0
MEML = 131072
MROW = 1088
ZROW = MEML + 8 * MROW
SCL = ZROW + 1024
OL = SCL + 12288
CHAIN_LDS = OL + 4096
assert CHAIN_LDS <= 163840

SCALE_HEX = 0x3db504f3
LOG2E_HEX = 0x3fb8aa3b

def xlane_add(A, r, t, ops=("ror8", "p16", "p32"), op="v_add_f32"):
    for o in ops:
        if o == "ror8":
            A(f"{op}_dpp v{r}, v{r}, v{r} row_ror:8")
        else:
            A(f"v_mov_b32 v{t}, v{r}")
            A(f"v_permlane{'16' if o=='p16' else '32'}_swap_b32 v{r}, v{t}")
            A(f"{op} v{r}, v{r}, v{t}")

def gen_chain(name, layer):
    A = Asm()
    A.raw(kernel_header(name))
    A("s_cmp_ge_u32 s2, 32")
    A("s_cbranch_scc1 L_end_" + name)
    load_ptr_srd(A, "ws", 4, WS_BYTES, 20)
    MEMF = 16; ACC = 80; KX = 104; VX = 112; T = 120
    A("s_mov_b32 s12, s2")
    A("v_lshrrev_b32 v1, 6, v0")
    A("v_readfirstlane_b32 s13, v1")
    A("v_and_b32 v14, 63, v0")
    A("v_lshlrev_b32 v1, 4, v14")
    A("v_lshlrev_b32 v13, 3, v14")
    A("v_and_b32 v15, 15, v14")
    A("v_lshrrev_b32 v120, 4, v14")
    A("s_lshr_b32 s14, s13, 1")
    A("s_lshl_b32 s15, s12, 1")
    A("s_add_u32 s14, s14, s15")
    A("s_mul_i32 s14, s14, 196608")
    A("s_and_b32 s15, s13, 1")
    A("s_lshl_b32 s15, s15, 11")
    A("s_add_u32 s14, s14, s15")
    A(f"s_add_u32 s14, s14, {WQKV_F}")
    def wreg(ti, kk):
        if ti < 4: return a((ti * 16 + kk) * 4, 4)
        return v(128 + ((ti - 4) * 16 + kk) * 4, 4)
    cnt = 0
    for region in range(3):
        for kk in range(16):
            for t in range(2):
                A(f"buffer_load_dwordx4 {wreg(region*2+t, kk)}, v1, s[4:7], s14 offen offset:{t*1024}")
            A("s_add_u32 s14, s14, 4096")
            cnt += 2
            if cnt % 32 == 0: A("s_waitcnt vmcnt(16)")
    A("s_lshl_b32 s14, s13, 8")
    A("s_lshl_b32 s15, s12, 2")
    A("s_add_u32 s14, s14, s15")
    A("s_lshl_b32 s14, s14, 12")
    A(f"s_add_u32 s14, s14, {WO_F}")
    A("s_lshl_b32 s15, s13, 15")
    A("v_add_u32 v9, s15, v1")
    for ngl in range(2):
        for j in range(4):
            for t4 in range(4):
                A(f"buffer_load_dwordx4 v[{MEMF+16*j+4*t4}:{MEMF+16*j+4*t4+3}], v1, s[4:7], s14 offen offset:{t4*1024}")
            A(f"s_add_u32 s14, s14, {4096 if j < 3 else (128-3)*4096}")
        A("s_waitcnt vmcnt(0)")
        for j in range(4):
            for t4 in range(4):
                A(f"ds_write_b128 v9, v[{MEMF+16*j+4*t4}:{MEMF+16*j+4*t4+3}] offset:{((ngl*4+t4)*4+j)*1024}")
    for i in range(4): A(f"v_mov_b32 v{T+i}, 0")
    A(f"v_add_u32 v2, {ZROW}, v1")
    A(f"ds_write_b128 v2, v[{T}:{T+3}]")
    A("v_lshrrev_b32 v120, 4, v14")
    A("s_lshl_b32 s15, s13, 11")
    A("v_add_u32 v2, s15, v1")
    A("v_and_b32 v3, 3, v14")
    A(f"v_mul_u32_u24 v3, {2*MROW}, v3")
    A("v_lshrrev_b32 v4, 2, v14")
    A("v_lshl_add_u32 v3, v4, 3, v3")
    A("s_lshl_b32 s15, s13, 8")
    A(f"s_add_u32 s15, s15, {MEML}")
    A("v_add_u32 v3, s15, v3")
    A(f"v_mul_u32_u24 v4, {MROW}, v15")
    A(f"v_add_u32 v4, {MEML}, v4")
    A(f"v_mov_b32 v5, {ZROW}")
    A("v_cmp_gt_u32 vcc, 8, v15")
    A("v_cndmask_b32 v4, v5, v4, vcc")
    A("v_lshl_add_u32 v4, v120, 4, v4")
    A("s_mul_i32 s15, s13, 3072")
    A(f"s_add_u32 s15, s15, {SCL}")
    A("v_add_u32 v5, s15, v1")
    A(f"v_add_u32 v6, {SCL}, v1")
    A("s_lshl_b32 s15, s13, 10")
    A(f"s_add_u32 s15, s15, {OL}")
    A("v_add_u32 v7, s15, v1")
    A(f"v_add_u32 v8, {OL}, v1")
    A("s_lshl_b32 s15, s13, 17")
    A("s_lshl_b32 s14, s12, 7")
    A("s_add_u32 s15, s15, s14")
    A("v_lshlrev_b32 v10, 13, v120")
    A("v_lshl_add_u32 v10, v15, 4, v10")
    A("v_add_u32 v10, s15, v10")
    A("s_lshl_b32 s14, s12, 2")
    A("s_add_u32 s14, s14, s13")
    A("s_lshl_b32 s15, s14, 12")
    A("v_add_u32 v11, s15, v1")
    A("s_lshl_b32 s15, s14, 6")
    A("v_add_u32 v12, s15, v13")
    A(f"s_mov_b32 s16, {MEMX + layer*MEMX_LAYER}")
    A(f"s_mov_b32 s17, {PART + layer*32*MB}")
    A("s_lshl_b32 s14, s12, 2")
    A("s_add_u32 s14, s14, s13")
    A("s_lshl_b32 s14, s14, 10")
    A(f"s_add_u32 s18, s14, {KF}")
    A(f"s_add_u32 s20, s14, {KM}")
    A("s_lshl_b32 s15, s14, 1")
    A(f"s_add_u32 s19, s15, {VF}")
    A(f"s_add_u32 s21, s14, {VM}")
    A("s_mov_b32 s24, 0x00ff00ff")
    A("s_mov_b32 s25, 0x00ff00ff")
    A(f"s_mov_b32 s28, {SCALE_HEX}")
    A(f"s_mov_b32 s29, {LOG2E_HEX}")
    A("s_mov_b32 s14, 0")
    A("s_waitcnt vmcnt(0) lgkmcnt(0)")
    A("s_barrier")
    L = lambda x: f"L_{x}_{name}"
    A.label(L("step"))
    A(f"buffer_load_dwordx4 v[{KX}:{KX+3}], v1, s[4:7], s18 offen")
    A("s_add_u32 s22, s18, 131072")
    A(f"buffer_load_dwordx4 v[{KX+4}:{KX+7}], v1, s[4:7], s22 offen")
    A(f"buffer_load_dwordx4 v[{VX}:{VX+3}], v1, s[4:7], s19 offen")
    A(f"buffer_load_dwordx4 v[{VX+4}:{VX+7}], v1, s[4:7], s19 offen offset:1024")
    A("s_mov_b32 s26, 0")
    A.label(L("poll_mem"))
    A(f"buffer_load_dwordx4 v[{T}:{T+3}], v2, s[4:7], s16 offen sc1")
    A(f"buffer_load_dwordx4 v[{T+4}:{T+7}], v2, s[4:7], s16 offen offset:1024 sc1")
    A("s_add_u32 s26, s26, 1")
    A("s_cmp_gt_u32 s26, 0x100000")
    A(f"s_cbranch_scc1 {L('end')}")
    A("s_waitcnt vmcnt(0)")
    A(f"v_max3_u32 v{ACC}, v{T}, v{T+1}, v{T+2}")
    A(f"v_max3_u32 v{ACC}, v{ACC}, v{T+3}, v{T+4}")
    A(f"v_max3_u32 v{ACC}, v{ACC}, v{T+5}, v{T+6}")
    A(f"v_max_u32 v{ACC}, v{ACC}, v{T+7}")
    A(f"v_cmp_eq_u32 vcc, -1, v{ACC}")
    A("s_nop 4")
    A(f"s_cbranch_vccnz {L('poll_mem')}")
    A(f"ds_write_b64 v3, v[{T}:{T+1}]")
    A(f"ds_write_b64 v3, v[{T+2}:{T+3}] offset:{MROW}")
    A(f"ds_write_b64 v3, v[{T+4}:{T+5}] offset:128")
    A(f"ds_write_b64 v3, v[{T+6}:{T+7}] offset:{MROW+128}")
    A("s_waitcnt lgkmcnt(0)")
    A("s_barrier")
    for kk in range(16):
        A(f"ds_read_b128 v[{MEMF+4*kk}:{MEMF+4*kk+3}], v4 offset:{kk*64}")
    for kk in range(16):
        A(f"s_waitcnt lgkmcnt({15-kk})")
        for ti in range(6):
            acc = v(ACC + 4 * ti, 4); m = v(MEMF + 4 * kk, 4); w = wreg(ti, kk)
            c = "0" if kk == 0 else acc
            if ti < 4: A(f"v_mfma_f32_16x16x32_bf16 {acc}, {w}, {m}, {c}")
            else:      A(f"v_mfma_f32_16x16x32_bf16 {acc}, {m}, {w}, {c}")
    QP = 16; KP = 20; VP = 24; S = 28
    for i, dst in enumerate((QP, KP)):
        for half in range(2):
            b = ACC + 8 * i + 4 * half
            A(f"v_cvt_pk_bf16_f32 v{dst+2*half}, v{b}, v{b+1}")
            A(f"v_cvt_pk_bf16_f32 v{dst+2*half+1}, v{b+2}, v{b+3}")
    A(f"v_mfma_f32_16x16x32_bf16 v[{S}:{S+3}], v[{KP}:{KP+3}], v[{QP}:{QP+3}], 0")
    A(f"v_mfma_f32_16x16x32_bf16 v[{S+4}:{S+7}], v[{KX}:{KX+3}], v[{QP}:{QP+3}], 0")
    A(f"v_mfma_f32_16x16x32_bf16 v[{S+8}:{S+11}], v[{KX+4}:{KX+7}], v[{QP}:{QP+3}], 0")
    for half in range(2):
        b = ACC + 16 + 4 * half
        A(f"v_cvt_pk_bf16_f32 v{VP+2*half}, v{b}, v{b+1}")
        A(f"v_cvt_pk_bf16_f32 v{VP+2*half+1}, v{b+2}, v{b+3}")
    A(f"buffer_store_dwordx4 v[{KP}:{KP+3}], v1, s[4:7], s20 offen")
    A(f"buffer_store_dwordx2 v[{VP}:{VP+1}], v13, s[4:7], s21 offen")
    A(f"buffer_store_dwordx2 v[{VP+2}:{VP+3}], v13, s[4:7], s21 offen offset:512")
    for i in range(3):
        A(f"ds_write_b128 v5, v[{S+4*i}:{S+4*i+3}] offset:{i*1024}")
    A("s_waitcnt lgkmcnt(0)")
    A("s_barrier")
    R = 40
    for w in range(4):
        for i in range(3):
            A(f"ds_read_b128 v[{R+12*w+4*i}:{R+12*w+4*i+3}], v6 offset:{w*3072+i*1024}")
    A("s_waitcnt lgkmcnt(6)")
    for i in range(12): A(f"v_add_f32 v{S+i}, v{R+i}, v{R+12+i}")
    A("s_waitcnt lgkmcnt(3)")
    for i in range(12): A(f"v_add_f32 v{S+i}, v{S+i}, v{R+24+i}")
    A("s_waitcnt lgkmcnt(0)")
    for i in range(12): A(f"v_add_f32 v{S+i}, v{S+i}, v{R+36+i}")
    WOF = 40
    for t in range(4):
        for j in range(4):
            A(f"ds_read_b128 v[{WOF+16*t+4*j}:{WOF+16*t+4*j+3}], v9 offset:{(t*4+j)*1024}")
    for i in range(0, 12, 2):
        A(f"v_cvt_pk_bf16_f32 v{T}, v{S+i}, v{S+i+1}")
        A(f"v_lshlrev_b32 v{S+i}, 16, v{T}")
        A(f"v_and_b32 v{S+i+1}, 0xffff0000, v{T}")
        A(f"v_mul_f32 v{S+i}, s28, v{S+i}")
        A(f"v_mul_f32 v{S+i+1}, s28, v{S+i+1}")
        A(f"v_cvt_pk_bf16_f32 v{T}, v{S+i}, v{S+i+1}")
        A(f"v_lshlrev_b32 v{S+i}, 16, v{T}")
        A(f"v_and_b32 v{S+i+1}, 0xffff0000, v{T}")
    A("v_cmp_gt_u32 vcc, 32, v14")
    A(f"v_mov_b32 v{T}, 0xf149f2ca")
    for i in range(4): A(f"v_cndmask_b32 v{S+i}, v{T}, v{S+i}, vcc")
    A(f"v_max3_f32 v{T+1}, v{S}, v{S+1}, v{S+2}")
    for i in range(3, 11, 2): A(f"v_max3_f32 v{T+1}, v{T+1}, v{S+i}, v{S+i+1}")
    A(f"v_max_f32 v{T+1}, v{T+1}, v{S+11}")
    xlane_add(A, T + 1, T + 2, ("p16", "p32"), "v_max_f32")
    for i in range(12):
        A(f"v_sub_f32 v{S+i}, v{S+i}, v{T+1}")
        A(f"v_mul_f32 v{S+i}, s29, v{S+i}")
        A(f"v_exp_f32 v{S+i}, v{S+i}")
    A(f"v_add_f32 v{T+1}, v{S}, v{S+1}")
    for i in range(2, 12): A(f"v_add_f32 v{T+1}, v{T+1}, v{S+i}")
    xlane_add(A, T + 1, T + 2, ("p16", "p32"))
    A(f"v_rcp_f32 v{T+1}, v{T+1}")
    for i in range(12): A(f"v_mul_f32 v{S+i}, v{S+i}, v{T+1}")
    PM = 16; PT = 18
    PM = T + 2; PT = T + 4
    A(f"v_cvt_pk_bf16_f32 v{PM}, v{S}, v{S+1}")
    A(f"v_cvt_pk_bf16_f32 v{PM+1}, v{S+2}, v{S+3}")
    for i in range(4): A(f"v_cvt_pk_bf16_f32 v{PT+i}, v{S+4+2*i}, v{S+5+2*i}")
    O = 28
    for t in range(2):
        A(f"v_mfma_f32_16x16x32_bf16 v[{O+4*t}:{O+4*t+3}], v[{VX+4*t}:{VX+4*t+3}], v[{PT}:{PT+3}], 0")
    for t in range(2):
        A(f"v_mfma_f32_16x16x16_bf16 v[{O+4*t}:{O+4*t+3}], v[{VP+2*t}:{VP+2*t+1}], v[{PM}:{PM+1}], v[{O+4*t}:{O+4*t+3}]")
    OP = 16
    for t in range(2):
        A(f"v_cvt_pk_bf16_f32 v{OP+2*t}, v{O+4*t}, v{O+4*t+1}")
        A(f"v_cvt_pk_bf16_f32 v{OP+2*t+1}, v{O+4*t+2}, v{O+4*t+3}")
    A(f"ds_write_b128 v7, v[{OP}:{OP+3}]")
    A("s_waitcnt lgkmcnt(0)")
    A("s_barrier")
    OFR = 20
    for j in range(4):
        A(f"ds_read_b128 v[{OFR+4*j}:{OFR+4*j+3}], v8 offset:{j*1024}")
    A("s_waitcnt lgkmcnt(0)")
    RES = 104
    for j in range(4):
        for t in range(4):
            acc = v(RES + 4 * t, 4)
            A(f"v_mfma_f32_16x16x32_bf16 {acc}, v[{WOF+16*t+4*j}:{WOF+16*t+4*j+3}], v[{OFR+4*j}:{OFR+4*j+3}], {'0' if j==0 else acc}")
        if j == 0:
            pass
    for t in range(4, 8):
        for j in range(4):
            A(f"ds_read_b128 v[{WOF+16*(t-4)+4*j}:{WOF+16*(t-4)+4*j+3}], v9 offset:{(t*4+j)*1024}")
    A("s_mov_b64 exec, s[24:25]")
    def store_part(t, reg):
        for i in range(4): A(f"v_min_u32 v{reg+i}, -2, v{reg+i}")
        A(f"s_add_u32 s22, s17, {(8*(t>>1)+(t&1))*4096}")
        A(f"buffer_store_dwordx4 v[{reg}:{reg+3}], v10, s[4:7], s22 offen sc1")
    for t in range(4): store_part(t, RES + 4 * t)
    A("s_mov_b64 exec, -1")
    RES2 = 120 - 0
    res2 = [120, 124, 16, 36]
    A("s_waitcnt lgkmcnt(0)")
    for j in range(4):
        for t in range(4):
            acc = v(res2[t], 4)
            A(f"v_mfma_f32_16x16x32_bf16 {acc}, v[{WOF+16*t+4*j}:{WOF+16*t+4*j+3}], v[{OFR+4*j}:{OFR+4*j+3}], {'0' if j==0 else acc}")
    A("s_mov_b64 exec, s[24:25]")
    for t in range(4): store_part(4 + t, res2[t])
    A("s_mov_b64 exec, -1")
    P = 40
    A("s_mov_b32 s26, 0")
    A.label(L("poll_part"))
    for i in range(4):
        A(f"buffer_load_dwordx4 v[{P+4*i}:{P+4*i+3}], v11, s[4:7], s17 offen offset:{i*1024} sc1")
    A("s_add_u32 s26, s26, 1")
    A("s_cmp_gt_u32 s26, 0x100000")
    A(f"s_cbranch_scc1 {L('end')}")
    A("s_waitcnt vmcnt(0)")
    A(f"v_max3_u32 v{P+16}, v{P}, v{P+1}, v{P+2}")
    for i in range(3, 15, 2): A(f"v_max3_u32 v{P+16}, v{P+16}, v{P+i}, v{P+i+1}")
    A(f"v_max_u32 v{P+16}, v{P+16}, v{P+15}")
    A(f"v_cmp_eq_u32 vcc, -1, v{P+16}")
    A("s_nop 4")
    A(f"s_cbranch_vccnz {L('poll_part')}")
    for c in range(4):
        A(f"v_add_f32 v{P+c}, v{P+c}, v{P+4+c}")
        A(f"v_add_f32 v{P+8+c}, v{P+8+c}, v{P+12+c}")
    for c in range(4): A(f"v_add_f32 v{P+c}, v{P+c}, v{P+8+c}")
    for c in range(4): xlane_add(A, P + c, P + 16 + c)
    A(f"v_cvt_pk_bf16_f32 v{P+20}, v{P}, v{P+1}")
    A(f"v_cvt_pk_bf16_f32 v{P+21}, v{P+2}, v{P+3}")
    A(f"v_min_u32 v{P+20}, -2, v{P+20}")
    A(f"v_min_u32 v{P+21}, -2, v{P+21}")
    A("s_add_u32 s16, s16, 8192")
    A("s_mov_b64 exec, 0xff")
    A(f"buffer_store_dwordx2 v[{P+20}:{P+21}], v12, s[4:7], s16 offen sc1")
    A("s_mov_b64 exec, -1")
    A(f"s_add_u32 s17, s17, {512*1024}")
    A("s_add_u32 s18, s18, 262144")
    A("s_add_u32 s19, s19, 262144")
    A("s_add_u32 s20, s20, 131072")
    A("s_add_u32 s21, s21, 131072")
    A("s_add_u32 s14, s14, 1")
    A("s_cmp_lt_u32 s14, 64")
    A(f"s_cbranch_scc1 {L('step')}")
    A.label("L_end_" + name)
    A("s_endpgm")
    return name, A, 32, (256, 256)
```

```python
from asmlib import *
from layout import *
from gen import load_ptr_srd, KA, copy_x_to_lds
from gen_chain import xlane_add, SCALE_HEX, LOG2E_HEX

def gen_attn(name):
    A = Asm()
    A.raw(kernel_header(name))
    A("s_cmp_ge_u32 s2, 512")
    A("s_cbranch_scc1 L_end_" + name)
    load_ptr_srd(A, "ws", 4, WS_BYTES, 20)
    A("v_lshrrev_b32 v1, 6, v0")
    A("v_readfirstlane_b32 s13, v1")
    A("s_lshr_b32 s12, s2, 3")
    A("s_and_b32 s14, s2, 7")
    A("s_lshl_b32 s14, s14, 2")
    A("s_add_u32 s14, s14, s13")
    A("v_and_b32 v14, 63, v0")
    A("v_lshlrev_b32 v1, 4, v14")
    A("v_lshlrev_b32 v13, 3, v14")
    Q = 16; K = 48; KMr = 80; V = 96; VMr = 128; S = 144; T = 168; O = 176
    A("s_lshl_b32 s15, s12, 6")
    A("s_add_u32 s15, s15, s14")
    A("s_lshl_b32 s15, s15, 12")
    A(f"s_add_u32 s16, s15, {QF}")
    A(f"s_add_u32 s17, s15, {KF}")
    for t in range(2):
        for j in range(4):
            A(f"buffer_load_dwordx4 v[{Q+16*t+4*j}:{Q+16*t+4*j+3}], v1, s[4:7], s16 offen offset:{j*1024}")
            A(f"buffer_load_dwordx4 v[{K+16*t+4*j}:{K+16*t+4*j+3}], v1, s[4:7], s17 offen offset:{j*1024}")
        if t == 0:
            A("s_add_u32 s16, s16, 131072")
            A("s_add_u32 s17, s17, 131072")
    A("s_lshl_b32 s15, s12, 5")
    A("s_add_u32 s15, s15, s14")
    A("s_lshl_b32 s16, s15, 12")
    A(f"s_add_u32 s16, s16, {KM}")
    for j in range(4):
        A(f"buffer_load_dwordx4 v[{KMr+4*j}:{KMr+4*j+3}], v1, s[4:7], s16 offen offset:{j*1024}")
    A("s_lshl_b32 s16, s15, 13")
    A(f"s_add_u32 s16, s16, {VF}")
    for et in range(8):
        if et == 4: A("s_add_u32 s16, s16, 4096")
        A(f"buffer_load_dwordx4 v[{V+4*et}:{V+4*et+3}], v1, s[4:7], s16 offen offset:{(et&3)*1024}")
    A("s_lshl_b32 s16, s15, 12")
    A(f"s_add_u32 s16, s16, {VM}")
    for et in range(8):
        A(f"buffer_load_dwordx2 v[{VMr+2*et}:{VMr+2*et+1}], v13, s[4:7], s16 offen offset:{et*512}")
    A(f"s_mov_b32 s28, {SCALE_HEX}")
    A(f"s_mov_b32 s29, {LOG2E_HEX}")
    A("v_and_b32 v15, 15, v14")
    A("v_lshrrev_b32 v2, 2, v15")
    A("v_and_b32 v3, 3, v15")
    A("v_lshl_add_u32 v2, v2, 3, v3")
    A("v_lshrrev_b32 v3, 4, v14")
    A("v_lshlrev_b32 v3, 3, v3")
    A("v_sub_u32 v2, v2, v3")
    A("s_lshr_b32 s16, s12, 1")
    A("s_lshl_b32 s16, s16, 7")
    A("s_lshl_b32 s17, s14, 2")
    A("s_add_u32 s16, s16, s17")
    A("s_lshl_b32 s16, s16, 2")
    A("s_and_b32 s17, s12, 1")
    A("s_lshl_b32 s17, s17, 1")
    A("s_add_u32 s16, s16, s17")
    A("s_lshl_b32 s16, s16, 10")
    A(f"s_add_u32 s16, s16, {OF}")
    A("s_waitcnt vmcnt(16)")
    for tq in range(2):
        for j in range(4):
            for kt in range(3):
                src = (KMr + 4 * j) if kt == 0 else (K + 16 * (kt - 1) + 4 * j)
                acc = v(S + 12 * tq + 4 * kt, 4)
                A(f"v_mfma_f32_16x16x32_bf16 {acc}, v[{src}:{src+3}], v[{Q+16*tq+4*j}:{Q+16*tq+4*j+3}], {'0' if j==0 else acc}")
    A(f"v_mov_b32 v{T+7}, 0xf149f2ca")
    A("s_waitcnt vmcnt(0)")
    for tq in range(2):
        Sq = S + 12 * tq
        for i in range(0, 12, 2):
            A(f"v_cvt_pk_bf16_f32 v{T}, v{Sq+i}, v{Sq+i+1}")
            A(f"v_lshlrev_b32 v{Sq+i}, 16, v{T}")
            A(f"v_and_b32 v{Sq+i+1}, 0xffff0000, v{T}")
            A(f"v_mul_f32 v{Sq+i}, s28, v{Sq+i}")
            A(f"v_mul_f32 v{Sq+i+1}, s28, v{Sq+i+1}")
            A(f"v_cvt_pk_bf16_f32 v{T}, v{Sq+i}, v{Sq+i+1}")
            A(f"v_lshlrev_b32 v{Sq+i}, 16, v{T}")
            A(f"v_and_b32 v{Sq+i+1}, 0xffff0000, v{T}")
        A("v_cmp_gt_u32 vcc, 32, v14")
        for i in range(4): A(f"v_cndmask_b32 v{Sq+i}, v{T+7}, v{Sq+i}, vcc")
        for tk in range(2):
            for r in range(4):
                A(f"v_cmp_le_i32 vcc, {r + 4*tk - 4*tq}, v2")
                A(f"v_cndmask_b32 v{Sq+4+4*tk+r}, v{T+7}, v{Sq+4+4*tk+r}, vcc")
        A(f"v_max3_f32 v{T+1}, v{Sq}, v{Sq+1}, v{Sq+2}")
        for i in range(3, 11, 2): A(f"v_max3_f32 v{T+1}, v{T+1}, v{Sq+i}, v{Sq+i+1}")
        A(f"v_max_f32 v{T+1}, v{T+1}, v{Sq+11}")
        xlane_add(A, T + 1, T + 2, ("p16", "p32"), "v_max_f32")
        for i in range(12):
            A(f"v_sub_f32 v{Sq+i}, v{Sq+i}, v{T+1}")
            A(f"v_mul_f32 v{Sq+i}, s29, v{Sq+i}")
            A(f"v_exp_f32 v{Sq+i}, v{Sq+i}")
        A(f"v_add_f32 v{T+1}, v{Sq}, v{Sq+1}")
        for i in range(2, 12): A(f"v_add_f32 v{T+1}, v{T+1}, v{Sq+i}")
        xlane_add(A, T + 1, T + 2, ("p16", "p32"))
        A(f"v_rcp_f32 v{T+1}, v{T+1}")
        for i in range(12): A(f"v_mul_f32 v{Sq+i}, v{Sq+i}, v{T+1}")
        PM = T + 2; PT = 4
        A(f"v_cvt_pk_bf16_f32 v{PM}, v{Sq}, v{Sq+1}")
        A(f"v_cvt_pk_bf16_f32 v{PM+1}, v{Sq+2}, v{Sq+3}")
        for i in range(4): A(f"v_cvt_pk_bf16_f32 v{PT+i}, v{Sq+4+2*i}, v{Sq+5+2*i}")
        for et in range(8):
            A(f"v_mfma_f32_16x16x32_bf16 v[{O+4*et}:{O+4*et+3}], v[{V+4*et}:{V+4*et+3}], v[{PT}:{PT+3}], 0")
        for et in range(8):
            A(f"v_mfma_f32_16x16x16_bf16 v[{O+4*et}:{O+4*et+3}], v[{VMr+2*et}:{VMr+2*et+1}], v[{PM}:{PM+1}], v[{O+4*et}:{O+4*et+3}]")
        PKO = 208 + 16 * tq
        for j in range(4):
            for half in range(2):
                b = O + 8 * j + 4 * half
                A(f"v_cvt_pk_bf16_f32 v{PKO+4*j+2*half}, v{b}, v{b+1}")
                A(f"v_cvt_pk_bf16_f32 v{PKO+4*j+2*half+1}, v{b+2}, v{b+3}")
            A(f"s_add_u32 s17, s16, {j*4096 + tq*1024}")
            A(f"buffer_store_dwordx4 v[{PKO+4*j}:{PKO+4*j+3}], v1, s[4:7], s17 offen")
    A.label("L_end_" + name)
    A("s_endpgm")
    return name, A, 512, 240

def gen_tb(name, WF, AF, KS, res, dst):
    A = Asm()
    A.raw(kernel_header(name))
    A("s_cmp_ge_u32 s2, 256")
    A("s_cbranch_scc1 L_end_" + name)
    load_ptr_srd(A, "ws", 4, WS_BYTES, 20)
    def mk(spec, sd):
        if spec[0] == "ws": return "s[4:7]", spec[1]
        load_ptr_srd(A, spec[1], sd, 2 * MB, 20)
        return f"s[{sd}:{sd+3}]", 0
    rs, roff = mk(res, 8)
    ds_, doff = mk(dst, 12 + 12)
    KW = KS // 4
    A("s_and_b32 s12, s2, 7")
    A("s_lshr_b32 s13, s2, 3")
    A("v_lshrrev_b32 v1, 6, v0")
    A("v_readfirstlane_b32 s14, v1")
    A("v_and_b32 v14, 63, v0")
    A("v_lshlrev_b32 v1, 4, v14")
    A(f"s_mul_i32 s15, s14, {KW}")
    A(f"s_mul_i32 s16, s12, {KS}")
    A("s_add_u32 s16, s16, s15")
    A("s_lshl_b32 s16, s16, 12")
    A(f"s_add_u32 s16, s16, {WF}")
    A(f"s_mul_i32 s17, s13, {KS}")
    A("s_add_u32 s17, s17, s15")
    A("s_lshl_b32 s17, s17, 12")
    A(f"s_add_u32 s17, s17, {AF}")
    RB = 16; ACC = 144
    def ld(si):
        for t in range(4):
            A(f"buffer_load_dwordx4 v[{RB+32*si+4*t}:{RB+32*si+4*t+3}], v1, s[4:7], s16 offen offset:{t*1024}")
        for t in range(4):
            A(f"buffer_load_dwordx4 v[{RB+32*si+16+4*t}:{RB+32*si+16+4*t+3}], v1, s[4:7], s17 offen offset:{t*1024}")
        A("s_add_u32 s16, s16, 4096")
        A("s_add_u32 s17, s17, 4096")
    def mm(si, first):
        for ct in range(4):
            for tt in range(4):
                acc = v(ACC + (ct * 4 + tt) * 4, 4)
                A(f"v_mfma_f32_16x16x32_bf16 {acc}, v[{RB+32*si+4*ct}:{RB+32*si+4*ct+3}], v[{RB+32*si+16+4*tt}:{RB+32*si+16+4*tt+3}], {'0' if first else acc}")
    for si in range(3): ld(si)
    if KW % 4 == 0 and KW > 8:
        for u in range(4):
            ld((u + 3) % 4); A("s_waitcnt vmcnt(24)"); mm(u, u == 0)
        A(f"s_mov_b32 s18, {KW//4 - 2}")
        A.label("L_k_" + name)
        for u in range(4):
            ld((u + 3) % 4); A("s_waitcnt vmcnt(24)"); mm(u, False)
        A("s_sub_u32 s18, s18, 1")
        A("s_cmp_gt_u32 s18, 0")
        A("s_cbranch_scc1 L_k_" + name)
        ld(3); A("s_waitcnt vmcnt(24)"); mm(0, False)
        A("s_waitcnt vmcnt(16)"); mm(1, False)
        A("s_waitcnt vmcnt(8)"); mm(2, False)
        A("s_waitcnt vmcnt(0)"); mm(3, False)
    else:
        for kk in range(KW):
            if kk + 3 < KW:
                ld((kk + 3) % 4); A("s_waitcnt vmcnt(24)")
            else:
                A(f"s_waitcnt vmcnt({8*(KW-1-kk)})")
            mm(kk % 4, kk == 0)
    A("s_lshl_b32 s15, s14, 14")
    A("v_add_u32 v2, s15, v1")
    for i in range(16):
        A(f"ds_write_b128 v2, v[{ACC+4*i}:{ACC+4*i+3}] offset:{i*1024}")
    A("s_lshl_b32 s15, s14, 10")
    A("v_add_u32 v3, s15, v1")
    A("v_and_b32 v4, 15, v14")
    A("v_lshrrev_b32 v5, 2, v4")
    A("v_and_b32 v4, 3, v4")
    A("v_lshl_add_u32 v4, v5, 3, v4")
    A("s_lshl_b32 s15, s13, 6")
    A("s_lshr_b32 s18, s14, 1")
    A("s_lshl_b32 s18, s18, 5")
    A("s_add_u32 s15, s15, s18")
    A("s_and_b32 s18, s14, 1")
    A("s_lshl_b32 s18, s18, 2")
    A("s_add_u32 s15, s15, s18")
    A("v_add_u32 v4, s15, v4")
    A("v_lshlrev_b32 v4, 10, v4")
    A("v_lshrrev_b32 v5, 4, v14")
    A("v_lshl_add_u32 v4, v5, 4, v4")
    A("s_lshl_b32 s15, s12, 7")
    A("v_add_u32 v4, s15, v4")
    A(f"s_mov_b32 s18, {roff}")
    A(f"buffer_load_dwordx4 v[8:11], v4, {rs}, s18 offen")
    A(f"buffer_load_dwordx4 v[12:15], v4, {rs}, s18 offen offset:64")
    A("s_waitcnt lgkmcnt(0)")
    A("s_barrier")
    R = 16
    for ww in range(4):
        for ct in range(4):
            A(f"ds_read_b128 v[{R+16*ww+4*ct}:{R+16*ww+4*ct+3}], v3 offset:{ww*16384+ct*4096}")
    A("s_waitcnt lgkmcnt(8)")
    for i in range(16): A(f"v_add_f32 v{R+i}, v{R+i}, v{R+16+i}")
    A("s_waitcnt lgkmcnt(4)")
    for i in range(16): A(f"v_add_f32 v{R+i}, v{R+i}, v{R+32+i}")
    A("s_waitcnt lgkmcnt(0) vmcnt(0)")
    for i in range(16): A(f"v_add_f32 v{R+i}, v{R+i}, v{R+48+i}")
    for i in range(8):
        A(f"v_cvt_pk_bf16_f32 v6, v{R+2*i}, v{R+2*i+1}")
        A(f"v_lshlrev_b32 v{R+2*i}, 16, v6")
        A(f"v_and_b32 v{R+2*i+1}, 0xffff0000, v6")
        A(f"v_lshlrev_b32 v6, 16, v{8+i}")
        A(f"v_and_b32 v7, 0xffff0000, v{8+i}")
        A(f"v_add_f32 v{R+2*i}, v{R+2*i}, v6")
        A(f"v_add_f32 v{R+2*i+1}, v{R+2*i+1}, v7")
        A(f"v_cvt_pk_bf16_f32 v{R+32+i}, v{R+2*i}, v{R+2*i+1}")
    A(f"s_mov_b32 s18, {doff}")
    A(f"buffer_store_dwordx4 v[{R+32}:{R+35}], v4, {ds_}, s18 offen")
    A(f"buffer_store_dwordx4 v[{R+36}:{R+39}], v4, {ds_}, s18 offen offset:64")
    A.label("L_end_" + name)
    A("s_endpgm")
    return name, A, 256, 208

def gen_gu(name):
    A = Asm()
    A.raw(kernel_header(name))
    A("s_cmp_ge_u32 s2, 224")
    A("s_cbranch_scc1 L_end_" + name)
    load_ptr_srd(A, "ws", 4, WS_BYTES, 20)
    A("s_mul_i32 s13, s2, 4682")
    A("s_lshr_b32 s13, s13, 16")
    A("s_mul_i32 s12, s13, 14")
    A("s_sub_u32 s12, s2, s12")
    A("v_lshlrev_b32 v1, 4, v0")
    A("v_add_u32 v2, 0x10000, v1")
    A("v_add_u32 v3, 0x20000, v1")
    XB = 8; WB = 72; PK = 136
    copy_x_to_lds(A, 13, WB)
    A("v_lshrrev_b32 v4, 6, v0")
    A("v_readfirstlane_b32 s14, v4")
    A("v_and_b32 v4, 63, v0")
    A("v_lshlrev_b32 v4, 4, v4")
    A("v_mov_b32 v5, v4")
    A("s_lshl_b32 s15, s12, 2")
    A("s_add_u32 s15, s15, s14")
    A("s_mov_b32 s23, s15")
    A("s_lshl_b32 s15, s15, 16")
    A(f"s_add_u32 s15, s15, {WGU_F}")
    A("s_waitcnt lgkmcnt(0)")
    A("s_barrier")
    def wload(setidx):
        for t in range(4):
            A(f"buffer_load_dwordx4 v[{WB+16*setidx+4*t}:{WB+16*setidx+4*t+3}], v4, s[4:7], s15 offen offset:{t*1024}")
        A("s_add_u32 s15, s15, 4096")
    def xread(buf, koff):
        for mt in range(8):
            A(f"ds_read_b128 v[{XB+32*buf+4*mt}:{XB+32*buf+4*mt+3}], v5 offset:{koff*8192+mt*1024}")
    for st in range(3): wload(st)
    xread(0, 0)
    for i in range(128): A(f"v_accvgpr_write_b32 a{i}, 0")
    A("s_mov_b32 s22, 0")
    A.label("L_k_" + name)
    for u in range(4):
        wload((u + 3) % 4)
        xread((u + 1) % 2, u + 1)
        A("s_waitcnt vmcnt(12) lgkmcnt(8)")
        for ct in range(4):
            for mt in range(8):
                w = v(WB + 16 * u + 4 * ct, 4); x = v(XB + 32 * (u % 2) + 4 * mt, 4)
                acc = a((ct * 8 + mt) * 4, 4)
                A(f"v_mfma_f32_16x16x32_bf16 {acc}, {w}, {x}, {acc}")
    A("v_add_u32 v5, 0x8000, v5")
    A("v_and_b32 v5, 0x1ffff, v5")
    A("s_add_u32 s22, s22, 1")
    A("s_cmp_lt_u32 s22, 4")
    A("s_cbranch_scc1 L_k_" + name)
    A.fence(10)
    A("s_mul_i32 s16, s13, 112")
    A("s_add_u32 s16, s16, s23")
    A("s_lshl_b32 s16, s16, 12")
    A(f"s_add_u32 s16, s16, {HF}")
    C1 = 0x3d372713
    import math, struct
    c2 = struct.unpack("<I", struct.pack("<f", -2.0 * math.sqrt(2.0 / math.pi) * math.log2(math.e)))[0]
    A(f"s_mov_b32 s28, {C1}")
    A(f"s_mov_b32 s29, {c2}")
    G = 168; U = 176; Tm = 184
    for mt in range(8):
        pk = PK + 4 * (mt % 8)
        for half in range(2):
            for i in range(4):
                A(f"v_accvgpr_read_b32 v{G+4*half+i}, a{((half)*8+mt)*4+i}")
                A(f"v_accvgpr_read_b32 v{U+4*half+i}, a{((2+half)*8+mt)*4+i}")
        for i in range(0, 8, 2):
            A(f"v_cvt_pk_bf16_f32 v{Tm}, v{G+i}, v{G+i+1}")
            A(f"v_lshlrev_b32 v{G+i}, 16, v{Tm}")
            A(f"v_and_b32 v{G+i+1}, 0xffff0000, v{Tm}")
            A(f"v_cvt_pk_bf16_f32 v{Tm}, v{U+i}, v{U+i+1}")
            A(f"v_lshlrev_b32 v{U+i}, 16, v{Tm}")
            A(f"v_and_b32 v{U+i+1}, 0xffff0000, v{Tm}")
        for i in range(8):
            t = Tm + 1 + i
            A(f"v_mul_f32 v{t}, v{G+i}, v{G+i}")
            A(f"v_mul_f32 v{t}, s28, v{t}")
            A(f"v_fma_f32 v{t}, v{t}, v{G+i}, v{G+i}")
            A(f"v_mul_f32 v{t}, s29, v{t}")
            A(f"v_exp_f32 v{t}, v{t}")
        for i in range(8):
            t = Tm + 1 + i
            A(f"v_add_f32 v{t}, 1.0, v{t}")
            A(f"v_rcp_f32 v{t}, v{t}")
        for i in range(8):
            t = Tm + 1 + i
            A(f"v_mul_f32 v{G+i}, v{G+i}, v{t}")
        for i in range(0, 8, 2):
            A(f"v_cvt_pk_bf16_f32 v{Tm}, v{G+i}, v{G+i+1}")
            A(f"v_lshlrev_b32 v{G+i}, 16, v{Tm}")
            A(f"v_and_b32 v{G+i+1}, 0xffff0000, v{Tm}")
            A(f"v_mul_f32 v{G+i}, v{G+i}, v{U+i}")
            A(f"v_mul_f32 v{G+i+1}, v{G+i+1}, v{U+i+1}")
            A(f"v_cvt_pk_bf16_f32 v{pk+i//2}, v{G+i}, v{G+i+1}")
        if mt == 4: A(f"s_add_u32 s16, s16, {56*4096}")
        A(f"buffer_store_dwordx4 v[{pk}:{pk+3}], v4, s[4:7], s16 offen offset:{(mt&3)*1024}")
    A.label("L_end_" + name)
    A("s_endpgm")
    return name, A, 224, (196, 128)
```

```python
MB = 1 << 20
WQKV_F = 0
WO_F = 12 * MB
WGU_F = 16 * MB
WD_F = 20 * MB
XF = 24 * MB
QF = 32 * MB
KF = 48 * MB
VF = 64 * MB
OF = 80 * MB
HF = 96 * MB
X1 = 104 * MB
X2 = 106 * MB
X3 = 108 * MB
KM = 112 * MB
VM = 120 * MB
PART = 128 * MB
MEMX = 192 * MB
MEMX_LAYER = 65 * 8192
WS_BYTES = 256 * MB
```

```python
from gen import *
from gen_chain import gen_chain, CHAIN_LDS
from gen_rest import *
ks = [gen_prep()]
launches = [("prep_kernel", ks[0][2], 0)]
def add(k, lds):
    ks.append(k); launches.append((k[0], k[2], lds))
for layer in range(2):
    L = layer + 1
    xin = ("in", "x") if layer == 0 else ("ws", X2)
    xmid = ("ws", X1) if layer == 0 else ("ws", X3)
    xout = ("ws", X2) if layer == 0 else ("out", "out")
    add(gen_ln(f"lnA{L}_kernel", xin), 0)
    add(gen_qkv(f"qkv{L}_kernel"), 136 * 1024)
    add(gen_chain(f"chain{L}_kernel", layer), CHAIN_LDS)
    add(gen_attn(f"attn{L}_kernel"), 0)
    add(gen_tb(f"wo{L}_kernel", WO_F, OF, 128, xin, xmid), 65536)
    add(gen_ln(f"lnB{L}_kernel", xmid), 0)
    add(gen_gu(f"gu{L}_kernel"), 136 * 1024)
    add(gen_tb(f"down{L}_kernel", WD_F, HF, 56, xmid, xout), 65536)
txt = build(ks, launches)
open("cdna_kernels/" + NAME + ".s", "w").write(txt)
print("bytes", len(txt))
```

```python
MB = 1 << 20
WQKV_F = 0
WO_F = 12 * MB
WGU_F = 16 * MB
WD_F = 20 * MB
XFA = 24 * MB
XR = 32 * MB
MEMX = 40 * MB
MEMX_LAYER = 65 * 8192
PART = 42 * MB
CNT = 46 * MB
CNT_BYTES = 65536
LBASE = 48 * MB
LSTRIDE = 100 * MB
QF = LBASE
KF = LBASE + 16 * MB
VF = LBASE + 32 * MB
OF = LBASE + 48 * MB
HF = LBASE + 64 * MB
KM = LBASE + 72 * MB
VM = LBASE + 80 * MB
WS_BYTES = 256 * MB
PROFB = 250 * MB
def cnt_off(layer, stage, blk): return CNT + ((layer * 8 + stage) * 32 + blk) * 64
CHAIN_CNT = CNT + 0x8000
```

```python
import sys, math, struct
from asmlib import *
from layout2 import *

NAME = "interleave_layers__memory_aug_recurrent_mem_tr__geglu_ffn__prompt"
KA = dict(x=0, mem0=8, wq=16, wk=24, wv=32, wo=40, seg=48, bx=56, wg=64, wu=72, wd=80, out=88, dbg=96, ws=104)
SCALE_HEX = 0x3db504f3
LOG2E_HEX = 0x3fb8aa3b
PROF = False

def srd(A, sd, sbase, nbytes):
    A(f"s_mov_b32 s{sd}, s{sbase}")
    A(f"s_and_b32 s{sd+1}, s{sbase+1}, 0xffff")
    A(f"s_mov_b32 s{sd+2}, {nbytes}")
    A(f"s_mov_b32 s{sd+3}, 0x00020000")

def load_ptr_srd(A, key, sd, nbytes, tmp):
    A(f"s_load_dwordx2 s[{tmp}:{tmp+1}], s[0:1], {KA[key]}")
    A("s_waitcnt lgkmcnt(0)")
    srd(A, sd, tmp, nbytes)

def magic_div(d, maxn):
    for sh in range(0, 32):
        m = -(-(1 << sh) // d)
        if m * maxn < (1 << 32) and all((n * m) >> sh == n // d for n in range(maxn)):
            return m, sh
    raise ValueError

def xlane(A, r, t, ops=("ror8", "p16", "p32"), op="v_add_f32"):
    for o in ops:
        if o == "ror8":
            A(f"{op}_dpp v{r}, v{r}, v{r} row_ror:8")
        else:
            A(f"v_mov_b32 v{t}, v{r}")
            A(f"v_permlane{'16' if o=='p16' else '32'}_swap_b32 v{r}, v{t}")
            A(f"{op} v{r}, v{r}, v{t}")

def bf16_round(A, dst, src, tmp):
    A(f"v_cvt_pk_bf16_f32 v{tmp}, v{src}, v{src}")
    A(f"v_lshlrev_b32 v{dst}, 16, v{tmp}")

def ln_math(A):
    for i in range(16):
        A(f"v_lshlrev_b32 v{32+2*i}, 16, v{16+i}")
        A(f"v_and_b32 v{33+2*i}, 0xffff0000, v{16+i}")
    A("v_add_f32 v7, v32, v33")
    for i in range(2, 32): A(f"v_add_f32 v7, v7, v{32+i}")
    for sh in (8, 4, 2, 1): A(f"v_add_f32_dpp v7, v7, v7 row_ror:{sh}")
    A("v_mul_f32 v7, 0x3b000000, v7")
    A("v_sub_f32 v8, v32, v7")
    A("v_mul_f32 v9, v8, v8")
    for i in range(1, 32):
        A(f"v_sub_f32 v8, v{32+i}, v7")
        A("v_fmac_f32 v9, v8, v8")
    for sh in (8, 4, 2, 1): A(f"v_add_f32_dpp v9, v9, v9 row_ror:{sh}")
    A("v_mul_f32 v9, 0x3b000000, v9")
    bf16_round(A, 7, 7, 10)
    bf16_round(A, 9, 9, 10)
    A("v_add_f32 v9, 0x3727c5ac, v9")
    bf16_round(A, 9, 9, 10)
    A("v_sqrt_f32 v9, v9")
    bf16_round(A, 9, 9, 10)
    A("v_rcp_f32 v9, v9")
    for i in range(16):
        A(f"v_sub_f32 v{32+2*i}, v{32+2*i}, v7")
        A(f"v_sub_f32 v{33+2*i}, v{33+2*i}, v7")
        A(f"v_cvt_pk_bf16_f32 v10, v{32+2*i}, v{33+2*i}")
        A(f"v_lshlrev_b32 v{32+2*i}, 16, v10")
        A(f"v_and_b32 v{33+2*i}, 0xffff0000, v10")
        A(f"v_mul_f32 v{32+2*i}, v{32+2*i}, v9")
        A(f"v_mul_f32 v{33+2*i}, v{33+2*i}, v9")
        A(f"v_cvt_pk_bf16_f32 v{16+i}, v{32+2*i}, v{33+2*i}")

def ln_body(A, sr, soff, sc1):
    A("v_lshrrev_b32 v1, 4, v0")
    A("s_lshl_b32 s3, s3, 4")
    A("v_add_u32 v1, s3, v1")
    A("v_and_b32 v2, 15, v0")
    A("v_lshlrev_b32 v3, 10, v1")
    A("v_lshl_add_u32 v3, v2, 4, v3")
    A(f"s_mov_b32 s19, {soff}")
    for q in range(4):
        A(f"buffer_load_dwordx4 v[{16+4*q}:{19+4*q}], v3, {sr}, s19 offen offset:{q*256}")
    A("v_bfe_u32 v4, v1, 3, 2")
    A("v_and_b32 v5, 3, v1")
    A("v_lshl_add_u32 v4, v4, 2, v5")
    A("v_and_b32 v5, 3, v2")
    A("v_lshl_add_u32 v4, v5, 4, v4")
    A("v_lshlrev_b32 v4, 4, v4")
    A("v_bfe_u32 v5, v1, 2, 1")
    A("v_bfe_u32 v6, v1, 5, 2")
    A("v_lshl_add_u32 v5, v6, 1, v5")
    A("v_lshl_add_u32 v4, v5, 10, v4")
    A("v_lshrrev_b32 v5, 7, v1")
    A("v_lshrrev_b32 v6, 2, v2")
    A("v_lshl_add_u32 v5, v5, 4, v6")
    A("v_lshl_add_u32 v4, v5, 13, v4")
    A("s_waitcnt vmcnt(0)")
    ln_math(A)
    A(f"s_mov_b32 s19, {XFA}")
    for q in range(4):
        if q: A(f"s_add_u32 s19, s19, {4*8192}")
        A(f"buffer_store_dwordx4 v[{16+4*q}:{19+4*q}], v4, s[4:7], s19 offen")

def gen_prep():
    A = Asm()
    name = "prep_kernel"
    A.raw(kernel_header(name))
    mats = [("wq", 512, 4096, "qkv0"), ("wk", 512, 4096, "qkv1"), ("wv", 512, 4096, "qkv2"), ("wo", 4096, 512, "wo"),
            ("wg", 512, 1792, "gu0"), ("wu", 512, 1792, "gu1"), ("wd", 1792, 512, "wd")]
    load_ptr_srd(A, "ws", 4, WS_BYTES, 20)
    A("s_mov_b32 s16, 0x05040100")
    A("s_mov_b32 s17, 0x07060302")
    start = 0; ranges = []
    for (key, K, N, kind) in mats:
        nwg = (K // 8) * (N // 4) // 256
        ranges.append((start, nwg)); start += nwg
    fill_start = start
    nfill = (4 * MB) // 65536
    memx_start = fill_start + nfill
    memx_total = 2 * MEMX_LAYER
    nmemx = -(-memx_total // 4096)
    xcopy_start = memx_start + nmemx
    nxcopy = (2 * MB) // 65536
    cnt_start = xcopy_start + nxcopy
    ln_start = cnt_start + 1
    total_wg = ln_start + 128
    for idx, (key, K, N, kind) in enumerate(mats):
        st, nwg = ranges[idx]
        A(f"s_cmp_lt_u32 s2, {st + nwg}")
        A(f"s_cbranch_scc1 L_prep_{key}")
    A(f"s_cmp_lt_u32 s2, {memx_start}")
    A("s_cbranch_scc1 L_prep_fill")
    A(f"s_cmp_lt_u32 s2, {xcopy_start}")
    A("s_cbranch_scc1 L_prep_memx")
    A(f"s_cmp_lt_u32 s2, {cnt_start}")
    A("s_cbranch_scc1 L_prep_xcopy")
    A(f"s_cmp_lt_u32 s2, {ln_start}")
    A("s_cbranch_scc1 L_prep_cnt")
    A(f"s_cmp_lt_u32 s2, {total_wg}")
    A("s_cbranch_scc1 L_prep_ln")
    A("s_endpgm")
    for idx, (key, K, N, kind) in enumerate(mats):
        st, nwg = ranges[idx]
        A.label(f"L_prep_{key}")
        load_ptr_srd(A, key, 8, K * N * 2, 20)
        NQ = N // 4
        A(f"s_sub_u32 s3, s2, {st}")
        A("s_lshl_b32 s3, s3, 8")
        A("v_add_u32 v1, s3, v0")
        if NQ & (NQ - 1) == 0:
            sh = NQ.bit_length() - 1
            A(f"v_lshrrev_b32 v2, {sh}, v1")
            A(f"v_and_b32 v3, {NQ-1}, v1")
        else:
            m, sh = magic_div(NQ, (K // 8) * NQ)
            A(f"s_mov_b32 s18, {m}")
            A("v_mul_lo_u32 v2, s18, v1")
            A(f"v_lshrrev_b32 v2, {sh}, v2")
            A(f"s_mov_b32 s18, {NQ}")
            A("v_mul_lo_u32 v3, s18, v2")
            A("v_sub_u32 v3, v1, v3")
        A(f"s_mov_b32 s18, {N*16}")
        A("v_mul_lo_u32 v4, s18, v2")
        A("v_lshl_add_u32 v4, v3, 3, v4")
        for j in range(8):
            A(f"s_mov_b32 s19, {j*N*2}")
            A(f"buffer_load_dwordx2 v[{16+2*j}:{17+2*j}], v4, s[8:11], s19 offen")
        A("v_lshrrev_b32 v5, 2, v2")
        A("v_and_b32 v6, 3, v2")
        A("v_lshrrev_b32 v7, 3, v3")
        A("v_and_b32 v8, 1, v3")
        A("v_bfe_u32 v9, v3, 1, 2")
        A("v_lshlrev_b32 v10, 6, v9")
        A("v_lshl_add_u32 v10, v6, 8, v10")
        if kind.startswith("qkv"):
            region = int(kind[3])
            A("v_lshrrev_b32 v11, 1, v7")
            A("v_and_b32 v12, 1, v7")
            A("v_lshl_add_u32 v12, v12, 1, v8")
            A("v_mul_u32_u24 v11, 3, v11")
            A(f"v_add_u32 v11, {region}, v11")
            A("v_lshl_add_u32 v11, v11, 4, v5")
            A("v_lshl_add_u32 v11, v11, 2, v12")
            base = WQKV_F
        elif kind in ("wo", "wd"):
            KS = K // 32
            A("v_lshrrev_b32 v11, 1, v7")
            A("v_and_b32 v12, 1, v7")
            A("v_lshl_add_u32 v12, v12, 1, v8")
            A(f"v_mul_u32_u24 v11, {KS}, v11")
            A("v_add_u32 v11, v11, v5")
            A("v_lshl_add_u32 v11, v11, 2, v12")
            base = WO_F if kind == "wo" else WD_F
        else:
            gu = int(kind[2])
            A("v_lshl_add_u32 v11, v7, 4, v5")
            A("v_lshl_add_u32 v11, v11, 2, v8")
            A(f"v_add_u32 v11, {2*gu}, v11")
            base = WGU_F
        A("v_lshl_add_u32 v10, v11, 10, v10")
        A(f"s_mov_b32 s19, {base}")
        A("s_waitcnt vmcnt(0)")
        for r in range(4):
            half = r >> 1; sel = "s16" if (r & 1) == 0 else "s17"
            for d in range(4):
                lo = 16 + 2 * (2 * d) + half; hi = 16 + 2 * (2 * d + 1) + half
                A(f"v_perm_b32 v{32+4*r+d}, v{hi}, v{lo}, {sel}")
        for r in range(4):
            A(f"buffer_store_dwordx4 v[{32+4*r}:{35+4*r}], v10, s[4:7], s19 offen offset:{16*r}")
        A("s_endpgm")
    A.label("L_prep_fill")
    A(f"s_sub_u32 s3, s2, {fill_start}")
    A("s_lshl_b32 s3, s3, 16")
    A(f"s_add_u32 s3, s3, {PART}")
    A("v_lshlrev_b32 v1, 4, v0")
    for i in range(4): A(f"v_mov_b32 v{4+i}, -1")
    for i in range(16):
        A(f"buffer_store_dwordx4 v[4:7], v1, s[4:7], s3 offen")
        if i < 15: A("s_add_u32 s3, s3, 4096")
    A("s_endpgm")
    A.label("L_prep_cnt")
    A(f"s_mov_b32 s3, {CNT}")
    A("v_lshlrev_b32 v1, 4, v0")
    for i in range(4): A(f"v_mov_b32 v{4+i}, 0")
    for i in range(16):
        if i == 0:
            A("v_cmp_le_u32 vcc, 128, v0")
            A("v_cndmask_b32 v4, 0, 16, vcc")
        elif i == 3:
            A("v_cmp_le_u32 vcc, 128, v0")
            A("v_cndmask_b32 v4, 0, 32, vcc")
        elif i in (1, 4):
            A("v_mov_b32 v4, 0")
        A(f"buffer_store_dwordx4 v[4:7], v1, s[4:7], s3 offen")
        if i < 15: A("s_add_u32 s3, s3, 4096")
    A("s_endpgm")
    A.label("L_prep_ln")
    load_ptr_srd(A, "x", 8, 2 * MB, 20)
    A(f"s_sub_u32 s3, s2, {ln_start}")
    ln_body(A, "s[8:11]", 0, False)
    A("s_endpgm")
    A.label("L_prep_xcopy")
    load_ptr_srd(A, "x", 8, 2 * MB, 20)
    A(f"s_sub_u32 s3, s2, {xcopy_start}")
    A("s_lshl_b32 s3, s3, 16")
    A(f"s_add_u32 s18, s3, {XR}")
    A("v_lshlrev_b32 v1, 4, v0")
    for i in range(16):
        A(f"buffer_load_dwordx4 v[{4+4*i}:{7+4*i}], v1, s[8:11], s3 offen")
        if i < 15: A("s_add_u32 s3, s3, 4096")
    for i in range(16):
        A(f"s_waitcnt vmcnt({15-i})" if i == 0 else "s_nop 0")
        A(f"s_waitcnt vmcnt(15)")
        A(f"buffer_store_dwordx4 v[{4+4*i}:{7+4*i}], v1, s[4:7], s18 offen")
        if i < 15: A("s_add_u32 s18, s18, 4096")
    A("s_endpgm")
    A.label("L_prep_memx")
    load_ptr_srd(A, "mem0", 8, 8192, 20)
    A(f"s_sub_u32 s3, s2, {memx_start}")
    A("s_lshl_b32 s3, s3, 12")
    A("v_lshlrev_b32 v1, 4, v0")
    A("v_add_u32 v1, s3, v1")
    A(f"v_subrev_u32 v2, {MEMX_LAYER}, v1")
    A(f"v_cmp_gt_u32 vcc, {MEMX_LAYER}, v1")
    A("v_cndmask_b32 v2, v2, v1, vcc")
    A("v_lshrrev_b32 v3, 6, v2")
    A("v_bfe_u32 v4, v2, 3, 3")
    A("v_lshlrev_b32 v5, 10, v4")
    A("v_lshl_add_u32 v5, v3, 3, v5")
    A("buffer_load_dwordx2 v[8:9], v5, s[8:11], 0 offen")
    A("buffer_load_dwordx2 v[10:11], v5, s[8:11], 0 offen offset:1024")
    A("s_waitcnt vmcnt(0)")
    A(f"v_cmp_gt_u32 vcc, 8192, v2")
    for i in range(4):
        A(f"v_min_u32 v{8+i}, -2, v{8+i}")
        A(f"v_cndmask_b32 v{8+i}, -1, v{8+i}, vcc")
    A(f"v_cmp_gt_u32 vcc, {memx_total}, v1")
    A("s_and_saveexec_b64 s[22:23], vcc")
    A("s_cbranch_execz L_prep_end")
    A(f"s_mov_b32 s19, {MEMX}")
    A("buffer_store_dwordx4 v[8:11], v1, s[4:7], s19 offen")
    A.label("L_prep_end")
    A("s_endpgm")
    return name, A, total_wg, 72

WOL = 0
MEML = 131072
MROW = 1088
ZROW = MEML + 8 * MROW
SCL = ZROW + 1024
OL = SCL + 12288
MEGA_LDS = OL + 4096
assert MEGA_LDS <= 163840
END = "L_mega_end"
TMO = 0x400000

def stamp(A, idx):
    if not PROF: return
    A("s_memtime s[44:45]")
    A("s_waitcnt lgkmcnt(0)")
    A("s_sub_u32 s46, s44, s47")
    A(f"s_add_u32 s{80+idx}, s{80+idx}, s46")
    A("s_mov_b32 s47, s44")

def rendezvous(A, nwg=256):
    load_ptr_srd(A, "dbg", 8, 256, 20)
    A("s_getreg_b32 s14, hwreg(HW_REG_XCC_ID)")
    A("s_and_b32 s14, s14, 7")
    A("v_lshrrev_b32 v1, 6, v0")
    A("v_readfirstlane_b32 s13, v1")
    A("s_cmp_lg_u32 s13, 0")
    A("s_cbranch_scc1 L_rv_wait")
    A("s_lshl_b32 s15, s14, 2")
    A("v_mov_b32 v1, s15")
    A("v_mov_b32 v2, 1")
    A("s_mov_b64 exec, 1")
    A("buffer_atomic_add v2, v1, s[8:11], 0 offen sc0")
    A("s_waitcnt vmcnt(0)")
    A("v_mov_b32 v1, 0")
    A("ds_write_b32 v1, v2")
    A("s_mov_b64 exec, -1")
    A("s_waitcnt lgkmcnt(0)")
    A.label("L_rv_wait")
    A("s_barrier")
    A("v_mov_b32 v1, 0")
    A("ds_read_b32 v3, v1")
    A("v_and_b32 v4, 7, v0")
    A("v_lshlrev_b32 v4, 2, v4")
    A("s_mov_b32 s26, 0")
    A.label("L_rv_poll")
    A("buffer_load_dword v5, v4, s[8:11], 0 offen sc1")
    A("s_add_u32 s26, s26, 1")
    A(f"s_cmp_gt_u32 s26, {TMO}")
    A(f"s_cbranch_scc1 {END}")
    A("s_waitcnt vmcnt(0) lgkmcnt(0)")
    for x in range(8): A(f"v_readlane_b32 s{32+x}, v5, {x}")
    A("s_add_u32 s15, s32, s33")
    for x in range(2, 8): A(f"s_add_u32 s15, s15, s{32+x}")
    A(f"s_cmp_lg_u32 s15, {nwg}")
    A("s_cbranch_scc1 L_rv_poll")
    A("v_readfirstlane_b32 s12, v3")
    A("s_mov_b32 s30, 0")
    A("s_mov_b32 s31, 0")
    for x in range(8):
        A(f"s_cmp_lt_u32 {x}, s14")
        A(f"s_cselect_b32 s15, s{32+x}, 0")
        A("s_add_u32 s12, s12, s15")
        A(f"s_add_u32 s16, s31, s{32+x}")
        for c in range(2):
            A(f"s_cmp_le_u32 s31, {32*c}")
            A(f"s_cselect_b32 s15, {1<<c}, 0")
            A(f"s_cmp_ge_u32 s16, {32*c+32}")
            A(f"s_cselect_b32 s15, s15, 0")
            A("s_or_b32 s30, s30, s15")
        A("s_mov_b32 s31, s16")
    A("s_barrier")

def poll_counter(A, tag, soff_reg, expected, only_wave0=True):
    if only_wave0:
        A("s_cmp_lg_u32 s13, 0")
        A(f"s_cbranch_scc1 L_pc_done_{tag}")
    A("s_mov_b32 s26, 0")
    A("v_mov_b32 v126, 0")
    A.label(f"L_pc_{tag}")
    A(f"buffer_load_dword v127, v126, s[4:7], {soff_reg} offen sc1")
    A("s_add_u32 s26, s26, 1")
    A(f"s_cmp_gt_u32 s26, {TMO}")
    A(f"s_cbranch_scc1 {END}")
    A("s_waitcnt vmcnt(0)")
    A("v_readfirstlane_b32 s27, v127")
    A(f"s_cmp_ge_u32 s27, {expected}")
    A(f"s_cbranch_scc1 L_pc_done_{tag}")
    A("s_sleep 4" if only_wave0 else "s_sleep 1")
    A(f"s_branch L_pc_{tag}")
    A.label(f"L_pc_done_{tag}")
    if only_wave0:
        A("s_barrier")
        if PROF:
            A("s_memtime s[76:77]")
            A("s_waitcnt lgkmcnt(0)")

def gen_chain_role(A):
    MEMF = 16; ACC = 80; KX = 104; VX = 112; T = 120
    A("s_lshr_b32 s42, s12, 5")
    A("s_and_b32 s12, s12, 31")
    A(f"s_mul_i32 s43, s42, {LSTRIDE}")
    A("v_and_b32 v14, 63, v0")
    A("v_lshlrev_b32 v1, 4, v14")
    A("v_lshlrev_b32 v13, 3, v14")
    A("v_and_b32 v15, 15, v14")
    A("s_lshr_b32 s14, s13, 1")
    A("s_lshl_b32 s15, s12, 1")
    A("s_add_u32 s14, s14, s15")
    A("s_mul_i32 s14, s14, 196608")
    A("s_and_b32 s15, s13, 1")
    A("s_lshl_b32 s15, s15, 11")
    A("s_add_u32 s14, s14, s15")
    A(f"s_add_u32 s14, s14, {WQKV_F}")
    def wreg(ti, kk):
        if ti < 4: return a((ti * 16 + kk) * 4, 4)
        return v(128 + ((ti - 4) * 16 + kk) * 4, 4)
    cnt = 0
    for region in range(3):
        for kk in range(16):
            for t in range(2):
                A(f"buffer_load_dwordx4 {wreg(region*2+t, kk)}, v1, s[4:7], s14 offen offset:{t*1024}")
            A("s_add_u32 s14, s14, 4096")
            cnt += 2
            if cnt % 32 == 0: A("s_waitcnt vmcnt(16)")
    A("s_lshl_b32 s14, s13, 8")
    A("s_lshl_b32 s15, s12, 2")
    A("s_add_u32 s14, s14, s15")
    A("s_lshl_b32 s14, s14, 12")
    A(f"s_add_u32 s14, s14, {WO_F}")
    A("s_lshl_b32 s15, s13, 15")
    A("v_add_u32 v9, s15, v1")
    for ngl in range(2):
        for j in range(4):
            for t4 in range(4):
                A(f"buffer_load_dwordx4 v[{MEMF+16*j+4*t4}:{MEMF+16*j+4*t4+3}], v1, s[4:7], s14 offen offset:{t4*1024}")
            A(f"s_add_u32 s14, s14, {4096 if j < 3 else (128-3)*4096}")
        A("s_waitcnt vmcnt(0)")
        for j in range(4):
            for t4 in range(4):
                A(f"ds_write_b128 v9, v[{MEMF+16*j+4*t4}:{MEMF+16*j+4*t4+3}] offset:{((ngl*4+t4)*4+j)*1024}")
    for i in range(4): A(f"v_mov_b32 v{T+i}, 0")
    A(f"v_add_u32 v2, {ZROW}, v1")
    A(f"ds_write_b128 v2, v[{T}:{T+3}]")
    A("v_lshrrev_b32 v120, 4, v14")
    A("s_lshl_b32 s15, s13, 11")
    A("v_add_u32 v2, s15, v1")
    A("v_and_b32 v3, 3, v14")
    A(f"v_mul_u32_u24 v3, {2*MROW}, v3")
    A("v_lshrrev_b32 v4, 2, v14")
    A("v_lshl_add_u32 v3, v4, 3, v3")
    A("s_lshl_b32 s15, s13, 8")
    A(f"s_add_u32 s15, s15, {MEML}")
    A("v_add_u32 v3, s15, v3")
    A(f"v_mul_u32_u24 v4, {MROW}, v15")
    A(f"v_add_u32 v4, {MEML}, v4")
    A(f"v_mov_b32 v5, {ZROW}")
    A("v_cmp_gt_u32 vcc, 8, v15")
    A("v_cndmask_b32 v4, v5, v4, vcc")
    A("v_lshl_add_u32 v4, v120, 4, v4")
    A("s_mul_i32 s15, s13, 3072")
    A(f"s_add_u32 s15, s15, {SCL}")
    A("v_add_u32 v5, s15, v1")
    for (x, reg) in ((1, 6), (2, 122), (3, 123)):
        A(f"s_xor_b32 s15, s13, {x}")
        A("s_mul_i32 s15, s15, 3072")
        A(f"s_add_u32 s15, s15, {SCL}")
        A(f"v_add_u32 v{reg}, s15, v1")
    A("s_lshl_b32 s15, s13, 10")
    A(f"s_add_u32 s15, s15, {OL}")
    A("v_add_u32 v7, s15, v1")
    A(f"v_add_u32 v8, {OL}, v1")
    A("s_lshl_b32 s15, s13, 17")
    A("s_lshl_b32 s14, s12, 7")
    A("s_add_u32 s15, s15, s14")
    A("v_lshlrev_b32 v10, 13, v120")
    A("v_lshl_add_u32 v10, v15, 4, v10")
    A("v_add_u32 v10, s15, v10")
    A("s_lshl_b32 s14, s12, 2")
    A("s_add_u32 s14, s14, s13")
    A("s_lshl_b32 s15, s14, 12")
    A("v_add_u32 v11, s15, v1")
    A("s_lshl_b32 s15, s14, 6")
    A("v_add_u32 v12, s15, v13")
    A(f"s_mul_i32 s16, s42, {MEMX_LAYER}")
    A(f"s_add_u32 s16, s16, {MEMX}")
    A("s_lshl_b32 s38, s42, 21")
    A(f"s_add_u32 s38, s38, {PART}")
    A("s_mov_b32 s17, s38")
    A("s_lshl_b32 s14, s12, 2")
    A("s_add_u32 s14, s14, s13")
    A("s_lshl_b32 s14, s14, 10")
    A("s_add_u32 s14, s14, s43")
    A(f"s_add_u32 s18, s14, {KF}")
    A(f"s_add_u32 s20, s14, {KM}")
    A(f"s_add_u32 s21, s14, {VM}")
    A("s_sub_u32 s14, s14, s43")
    A("s_lshl_b32 s15, s14, 1")
    A("s_add_u32 s15, s15, s43")
    A(f"s_add_u32 s19, s15, {VF}")
    A("s_lshl_b32 s39, s42, 12")
    A(f"s_add_u32 s39, s39, {CHAIN_CNT}")
    A("s_lshl_b32 s40, s42, 14")
    A(f"s_add_u32 s40, s40, {cnt_off(0, 7, 0)}")
    A("s_mov_b32 s24, 0x00ff00ff")
    A("s_mov_b32 s25, 0x00ff00ff")
    A(f"s_mov_b32 s28, {SCALE_HEX}")
    A(f"s_mov_b32 s29, {SCALE_HEX}")
    A(f"s_mov_b32 s33, {LOG2E_HEX}")
    A(f"s_mov_b32 s31, {LOG2E_HEX | 0x80000000}")
    A("s_mov_b32 s36, -1")
    A("s_mov_b32 s37, 0")
    A("v_mov_b32 v14, v122")
    A("v_mov_b32 v15, v123")
    A("v_mov_b32 v0, 0xf149f2ca")
    A("s_mov_b32 s14, 0")
    A("s_mov_b32 s48, 0")
    A("s_mov_b32 s41, s17")
    if PROF:
        for i in range(10): A(f"s_mov_b32 s{80+i}, 0")
        A("s_memtime s[44:45]")
        A("s_waitcnt lgkmcnt(0)")
        A("s_mov_b32 s47, s44")
    A("s_waitcnt vmcnt(0) lgkmcnt(0)")
    A("s_barrier")
    A("s_lshr_b32 s15, s30, s42")
    A("s_and_b32 s15, s15, 1")
    A("s_cmp_eq_u32 s15, 1")
    A("s_cbranch_scc1 L_step_loc")
    for mode in ("glb", "loc"):
        SC = " sc1" if mode == "glb" else ""
        L = lambda x: f"L_{x}_{mode}"
        def kvload():
            A(f"buffer_load_dwordx4 v[{KX}:{KX+3}], v1, s[4:7], s18 offen sc1")
            A("s_add_u32 s22, s18, 131072")
            A(f"buffer_load_dwordx4 v[{KX+4}:{KX+7}], v1, s[4:7], s22 offen sc1")
            A(f"buffer_load_dwordx4 v[{VX}:{VX+3}], v1, s[4:7], s19 offen sc1")
            A(f"buffer_load_dwordx4 v[{VX+4}:{VX+7}], v1, s[4:7], s19 offen offset:1024 sc1")
        A.label(L("step"))
        A("s_cmp_eq_u32 s48, 1")
        A(f"s_cbranch_scc1 {L('kvok')}")
        A("s_lshr_b32 s15, s14, 1")
        A("s_lshl_b32 s15, s15, 6")
        A("s_add_u32 s15, s15, s40")
        poll_counter(A, "kv_" + mode, "s15", 32, only_wave0=False)
        kvload()
        A.label(L("kvok"))
        A("s_add_u32 s15, s14, 1")
        A("s_lshr_b32 s15, s15, 1")
        A("s_min_u32 s15, s15, 31")
        A("s_lshl_b32 s15, s15, 6")
        A("s_add_u32 s15, s15, s40")
        A(f"v_mov_b32 v{ACC+1}, 0")
        A(f"buffer_load_dword v{ACC+2}, v{ACC+1}, s[4:7], s15 offen sc1")
        A("s_mov_b32 s26, 0")
        A.label(L("poll_mem"))
        A(f"buffer_load_dwordx4 v[{T}:{T+3}], v2, s[4:7], s16 offen sc1")
        A(f"buffer_load_dwordx4 v[{T+4}:{T+7}], v2, s[4:7], s16 offen offset:1024 sc1")
        A("s_add_u32 s26, s26, 1")
        A(f"s_cmp_gt_u32 s26, {TMO}")
        A(f"s_cbranch_scc1 {END}")
        A("s_waitcnt vmcnt(0)")
        A(f"v_max3_u32 v{ACC}, v{T}, v{T+1}, v{T+2}")
        A(f"v_max3_u32 v{ACC}, v{ACC}, v{T+3}, v{T+4}")
        A(f"v_max3_u32 v{ACC}, v{ACC}, v{T+5}, v{T+6}")
        A(f"v_max_u32 v{ACC}, v{ACC}, v{T+7}")
        A(f"v_cmp_eq_u32 vcc, -1, v{ACC}")
        A("s_nop 4")
        A(f"s_cbranch_vccnz {L('poll_mem')}")
        stamp(A, 0)
        A(f"v_readfirstlane_b32 s49, v{ACC+2}")
        A(f"ds_write_b64 v3, v[{T}:{T+1}]")
        A(f"ds_write_b64 v3, v[{T+2}:{T+3}] offset:{MROW}")
        A(f"ds_write_b64 v3, v[{T+4}:{T+5}] offset:128")
        A(f"ds_write_b64 v3, v[{T+6}:{T+7}] offset:{MROW+128}")
        A("s_waitcnt lgkmcnt(0)")
        A("s_barrier")
        for kk in range(16):
            A(f"ds_read_b128 v[{MEMF+4*kk}:{MEMF+4*kk+3}], v4 offset:{kk*64}")
        A("s_cmp_eq_u32 s14, 0")
        A(f"s_cbranch_scc1 {L('nodefer')}")
        for i in range(4): A(f"v_mov_b32 v{T+i}, -1")
        A(f"v_mov_b32 v{T+4}, 1")
        A(f"v_mov_b32 v{T+5}, 0")
        for i in range(4):
            A(f"buffer_store_dwordx4 v[{T}:{T+3}], v11, s[4:7], s41 offen offset:{i*1024}{SC}")
        A("s_mov_b64 exec, 1")
        A(f"buffer_atomic_add v{T+4}, v{T+5}, s[4:7], s39 offen")
        A("s_mov_b64 exec, -1")
        A("s_add_u32 s39, s39, 64")
        A.label(L("nodefer"))
        def qkv_mfma(ti, kk):
            acc = v(ACC + 4 * ti, 4); m = v(MEMF + 4 * kk, 4); w = wreg(ti, kk)
            c = "0" if kk == 0 else acc
            if ti < 4: return f"v_mfma_f32_16x16x32_bf16 {acc}, {w}, {m}, {c}"
            else:      return f"v_mfma_f32_16x16x32_bf16 {acc}, {m}, {w}, {c}"
        for kk in range(16):
            A(f"s_waitcnt lgkmcnt({15-kk})")
            for ti in range(4): A(qkv_mfma(ti, kk))
        vm = [qkv_mfma(ti, kk) for kk in range(16) for ti in (4, 5)]
        stamp(A, 1)
        QP = 120; KP = 124; S = 80
        A(vm[0]); A(vm[1]); A(vm[2]); A(vm[3])
        for i, dst in enumerate((QP, KP)):
            for half in range(2):
                b = ACC + 8 * i + 4 * half
                A(f"v_cvt_pk_bf16_f32 v{dst+2*half}, v{b}, v{b+1}")
                A(f"v_cvt_pk_bf16_f32 v{dst+2*half+1}, v{b+2}, v{b+3}")
        A(f"v_mfma_f32_16x16x32_bf16 v[{S}:{S+3}], v[{KP}:{KP+3}], v[{QP}:{QP+3}], 0")
        A(f"v_mfma_f32_16x16x32_bf16 v[{S+4}:{S+7}], v[{KX}:{KX+3}], v[{QP}:{QP+3}], 0")
        A(f"v_mfma_f32_16x16x32_bf16 v[{S+8}:{S+11}], v[{KX+4}:{KX+7}], v[{QP}:{QP+3}], 0")
        A(f"buffer_store_dwordx4 v[{KP}:{KP+3}], v1, s[4:7], s20 offen sc1")
        for i in range(4, 8): A(vm[i])
        for i in range(3):
            A(f"ds_write_b128 v5, v[{S+4*i}:{S+4*i+3}] offset:{i*1024}")
        for i in range(8, 16): A(vm[i])
        A("s_waitcnt lgkmcnt(0)")
        A("s_barrier")
        stamp(A, 2)
        R1 = 16; R2 = 28; R3r = [40, 44, 92]
        for i in range(3): A(f"ds_read_b128 v[{R1+4*i}:{R1+4*i+3}], v6 offset:{i*1024}")
        for i in range(3): A(f"ds_read_b128 v[{R2+4*i}:{R2+4*i+3}], v14 offset:{i*1024}")
        for i in range(3): A(f"ds_read_b128 v[{R3r[i]}:{R3r[i]+3}], v15 offset:{i*1024}")
        for i in range(16, 22): A(vm[i])
        va = []
        va.append("s_waitcnt lgkmcnt(6)")
        for i in range(0, 12, 2): va.append(f"v_pk_add_f32 v[{S+i}:{S+i+1}], v[{S+i}:{S+i+1}], v[{R1+i}:{R1+i+1}]")
        va.append("s_waitcnt lgkmcnt(0)")
        for i in range(0, 12, 2):
            r3 = R3r[i // 4] + (i % 4)
            va.append(f"v_pk_add_f32 v[{R2+i}:{R2+i+1}], v[{R2+i}:{R2+i+1}], v[{r3}:{r3+1}]")
        for i in range(0, 12, 2): va.append(f"v_pk_add_f32 v[{S+i}:{S+i+1}], v[{S+i}:{S+i+1}], v[{R2+i}:{R2+i+1}]")
        TT = 16
        for i in range(0, 12, 2): va.append(f"v_cvt_pk_bf16_f32 v{TT+i//2}, v{S+i}, v{S+i+1}")
        for i in range(0, 12, 2):
            va.append(f"v_lshlrev_b32 v{S+i}, 16, v{TT+i//2}")
            va.append(f"v_and_b32 v{S+i+1}, 0xffff0000, v{TT+i//2}")
        for i in range(0, 12, 2): va.append(f"v_pk_mul_f32 v[{S+i}:{S+i+1}], v[{S+i}:{S+i+1}], s[28:29]")
        for i in range(0, 12, 2): va.append(f"v_cvt_pk_bf16_f32 v{TT+i//2}, v{S+i}, v{S+i+1}")
        for i in range(0, 12, 2):
            va.append(f"v_lshlrev_b32 v{S+i}, 16, v{TT+i//2}")
            va.append(f"v_and_b32 v{S+i+1}, 0xffff0000, v{TT+i//2}")
        for i in range(4): va.append(f"v_cndmask_b32 v{S+i}, v0, v{S+i}, s[36:37]")
        MX = 22; MT = 23
        va.append(f"v_max3_f32 v{MX}, v{S}, v{S+1}, v{S+2}")
        va.append(f"v_max3_f32 v{MT}, v{S+3}, v{S+4}, v{S+5}")
        va.append(f"v_max3_f32 v{MX}, v{MX}, v{S+6}, v{S+7}")
        va.append(f"v_max3_f32 v{MT}, v{MT}, v{S+8}, v{S+9}")
        va.append(f"v_max3_f32 v{MX}, v{MX}, v{S+10}, v{S+11}")
        va.append(f"v_max_f32 v{MX}, v{MX}, v{MT}")
        rest = vm[22:]
        k = 0
        for idx, ins in enumerate(va):
            A(ins)
            if idx % 3 == 2 and k < len(rest):
                A(rest[k]); k += 1
        while k < len(rest): A(rest[k]); k += 1
        xlane(A, MX, MT, ("p16", "p32"), "v_max_f32")
        A(f"v_mul_f32 v{MX}, s31, v{MX}")
        for i in range(12): A(f"v_fma_f32 v{S+i}, v{S+i}, s33, v{MX}")
        WOF = 32; VP = 24
        for half in range(2):
            b = ACC + 16 + 4 * half
            A(f"v_cvt_pk_bf16_f32 v{VP+2*half}, v{b}, v{b+1}")
            A(f"v_cvt_pk_bf16_f32 v{VP+2*half+1}, v{b+2}, v{b+3}")
        for i in range(12): A(f"v_exp_f32 v{S+i}, v{S+i}")
        for t in range(3):
            for j in range(4):
                A(f"ds_read_b128 v[{WOF+16*t+4*j}:{WOF+16*t+4*j+3}], v9 offset:{(t*4+j)*1024}")
        A(f"buffer_store_dwordx2 v[{VP}:{VP+1}], v13, s[4:7], s21 offen sc1")
        A(f"buffer_store_dwordx2 v[{VP+2}:{VP+3}], v13, s[4:7], s21 offen offset:512 sc1")
        for i in range(0, 12, 4):
            A(f"v_pk_add_f32 v[{TT+i//2}:{TT+i//2+1}], v[{S+i}:{S+i+1}], v[{S+i+2}:{S+i+3}]")
        A(f"v_pk_add_f32 v[{TT}:{TT+1}], v[{TT}:{TT+1}], v[{TT+2}:{TT+3}]")
        A(f"v_pk_add_f32 v[{TT}:{TT+1}], v[{TT}:{TT+1}], v[{TT+4}:{TT+5}]")
        A(f"v_add_f32 v{MX}, v{TT}, v{TT+1}")
        xlane(A, MX, MT, ("p16", "p32"))
        A(f"v_rcp_f32 v{MX}, v{MX}")
        A(f"v_mov_b32 v{MT}, v{MX}")
        for i in range(0, 12, 2): A(f"v_pk_mul_f32 v[{S+i}:{S+i+1}], v[{S+i}:{S+i+1}], v[{MX}:{MX+1}]")
        PM = 16; PT = 18
        A(f"v_cvt_pk_bf16_f32 v{PM}, v{S}, v{S+1}")
        A(f"v_cvt_pk_bf16_f32 v{PM+1}, v{S+2}, v{S+3}")
        for i in range(4): A(f"v_cvt_pk_bf16_f32 v{PT+i}, v{S+4+2*i}, v{S+5+2*i}")
        O = 96
        for t in range(2):
            A(f"v_mfma_f32_16x16x32_bf16 v[{O+4*t}:{O+4*t+3}], v[{VX+4*t}:{VX+4*t+3}], v[{PT}:{PT+3}], 0")
        for t in range(2):
            A(f"v_mfma_f32_16x16x16_bf16 v[{O+4*t}:{O+4*t+3}], v[{VP+2*t}:{VP+2*t+1}], v[{PM}:{PM+1}], v[{O+4*t}:{O+4*t+3}]")
        for j in range(4):
            A(f"ds_read_b128 v[{80+4*j}:{83+4*j}], v9 offset:{(3*4+j)*1024}")
        A("s_add_u32 s18, s18, 262144")
        A("s_add_u32 s19, s19, 262144")
        A("s_mov_b32 s48, 0")
        A("s_cmp_lt_u32 s49, 32")
        A(f"s_cbranch_scc1 {L('nopref')}")
        A("s_cmp_ge_u32 s14, 63")
        A(f"s_cbranch_scc1 {L('nopref')}")
        A("s_mov_b32 s48, 1")
        A("s_nop 4")
        kvload()
        A.label(L("nopref"))
        OP = 120
        for t in range(2):
            A(f"v_cvt_pk_bf16_f32 v{OP+2*t}, v{O+4*t}, v{O+4*t+1}")
            A(f"v_cvt_pk_bf16_f32 v{OP+2*t+1}, v{O+4*t+2}, v{O+4*t+3}")
        A(f"ds_write_b128 v7, v[{OP}:{OP+3}]")
        A("s_waitcnt lgkmcnt(0)")
        A("s_barrier")
        stamp(A, 3)
        OFR = 16
        for j in range(4):
            A(f"ds_read_b128 v[{OFR+4*j}:{OFR+4*j+3}], v8 offset:{j*1024}")
        wof = lambda t, j: (WOF + 16 * t + 4 * j) if t < 3 else (80 + 4 * j)
        RES = [96, 100, 120, 124]
        def store_part(t, reg):
            A(f"s_add_u32 s22, s17, {(8*(t>>1)+(t&1))*4096}")
            A(f"buffer_store_dwordx4 v[{reg}:{reg+3}], v10, s[4:7], s22 offen{SC}")
        for j in range(4):
            A(f"s_waitcnt lgkmcnt({3-j + 4*j})")
            for t in range(4):
                acc = v(RES[t], 4)
                A(f"v_mfma_f32_16x16x32_bf16 {acc}, v[{wof(t,j)}:{wof(t,j)+3}], v[{OFR+4*j}:{OFR+4*j+3}], {'0' if j==0 else acc}")
            for t in range(4):
                A(f"ds_read_b128 v[{wof(t,j)}:{wof(t,j)+3}], v9 offset:{((t+4)*4+j)*1024}")
        A("s_mov_b64 exec, s[24:25]")
        for t in range(4): store_part(t, RES[t])
        A("s_mov_b64 exec, -1")
        for j in range(4):
            A(f"s_waitcnt lgkmcnt({12-4*j})")
            for t in range(4):
                acc = v(RES[t], 4)
                A(f"v_mfma_f32_16x16x32_bf16 {acc}, v[{wof(t,j)}:{wof(t,j)+3}], v[{OFR+4*j}:{OFR+4*j+3}], {'0' if j==0 else acc}")
        A("s_mov_b64 exec, s[24:25]")
        for t in range(4): store_part(4 + t, RES[t])
        A("s_mov_b64 exec, -1")
        stamp(A, 4)
        P = 40
        A("s_mov_b32 s26, 0")
        A.label(L("poll_part"))
        for i in range(4):
            A(f"buffer_load_dwordx4 v[{P+4*i}:{P+4*i+3}], v11, s[4:7], s17 offen offset:{i*1024} sc1")
        A("s_add_u32 s26, s26, 1")
        A(f"s_cmp_gt_u32 s26, {TMO}")
        A(f"s_cbranch_scc1 {END}")
        A("s_waitcnt vmcnt(0)")
        A(f"v_max3_u32 v{P+16}, v{P}, v{P+1}, v{P+2}")
        for i in range(3, 15, 2): A(f"v_max3_u32 v{P+16}, v{P+16}, v{P+i}, v{P+i+1}")
        A(f"v_max_u32 v{P+16}, v{P+16}, v{P+15}")
        A(f"v_cmp_eq_u32 vcc, -1, v{P+16}")
        A("s_nop 4")
        A(f"s_cbranch_vccnz {L('poll_part')}")
        stamp(A, 5)
        for c in range(4):
            A(f"v_add_f32 v{P+c}, v{P+c}, v{P+4+c}")
            A(f"v_add_f32 v{P+8+c}, v{P+8+c}, v{P+12+c}")
        for c in range(4): A(f"v_add_f32 v{P+c}, v{P+c}, v{P+8+c}")
        for c in range(4): xlane(A, P + c, P + 16 + c)
        A(f"v_cvt_pk_bf16_f32 v{P+20}, v{P}, v{P+1}")
        A(f"v_cvt_pk_bf16_f32 v{P+21}, v{P+2}, v{P+3}")
        A(f"v_min_u32 v{P+20}, -2, v{P+20}")
        A(f"v_min_u32 v{P+21}, -2, v{P+21}")
        A("s_add_u32 s16, s16, 8192")
        A("s_mov_b64 exec, 0xff")
        A(f"buffer_store_dwordx2 v[{P+20}:{P+21}], v12, s[4:7], s16 offen{SC}")
        A("s_mov_b64 exec, -1")
        A("s_mov_b32 s41, s17")
        A("s_add_u32 s14, s14, 1")
        A("s_and_b32 s15, s14, 3")
        A("s_lshl_b32 s15, s15, 19")
        A("s_add_u32 s17, s38, s15")
        A("s_add_u32 s20, s20, 131072")
        A("s_add_u32 s21, s21, 131072")
        stamp(A, 6)
        A("s_cmp_lt_u32 s14, 64")
        A(f"s_cbranch_scc1 {L('step')}")
        A(f"v_mov_b32 v{T+4}, 1")
        A(f"v_mov_b32 v{T+5}, 0")
        A("s_mov_b64 exec, 1")
        A(f"buffer_atomic_add v{T+4}, v{T+5}, s[4:7], s39 offen")
        A("s_mov_b64 exec, -1")
        if PROF:
            A("s_lshl_b32 s15, s12, 2")
            A("s_add_u32 s15, s15, s13")
            A("s_lshl_b32 s15, s15, 6")
            A("s_lshl_b32 s16, s42, 16")
            A("s_add_u32 s15, s15, s16")
            A(f"s_add_u32 s15, s15, {PROFB}")
            A("v_mov_b32 v1, 0")
            for i in range(8):
                A(f"v_mov_b32 v2, s{80+i}")
                A(f"buffer_store_dword v2, v1, s[4:7], s15 offen offset:{4*i}")
                A("s_nop 1")
            A("v_mov_b32 v2, s30")
            A(f"buffer_store_dword v2, v1, s[4:7], s15 offen offset:32")
        A("s_endpgm")

def cnt_addr(A, dst, stage, layer_reg="s42"):
    A(f"s_lshl_b32 s{dst}, {layer_reg}, 8")
    A(f"s_add_u32 s{dst}, s{dst}, s40")
    A(f"s_lshl_b32 s{dst}, s{dst}, 6")
    A(f"s_add_u32 s{dst}, s{dst}, {cnt_off(0, stage, 0)}")

def signal(A, stage):
    A("s_waitcnt vmcnt(0) lgkmcnt(0)")
    A("s_barrier")
    A("s_cmp_lg_u32 s13, 0")
    A("s_cbranch_scc1 L_wloop")
    if PROF:
        A("s_memtime s[78:79]")
        A("s_waitcnt lgkmcnt(0)")
        A("v_mov_b32 v120, s72")
        A("v_mov_b32 v121, s74")
        A("v_mov_b32 v122, s76")
        A("v_mov_b32 v123, s78")
        A("v_mov_b32 v126, 0")
        A("s_mov_b64 exec, 1")
        A("buffer_store_dwordx4 v[120:123], v126, s[4:7], s69 offen")
        A("s_mov_b64 exec, -1")
        A("s_add_u32 s69, s69, 16")
    cnt_addr(A, 22, stage)
    A("v_mov_b32 v126, 0")
    A("v_mov_b32 v127, 1")
    A("s_mov_b64 exec, 1")
    A("buffer_atomic_add v127, v126, s[4:7], s22 offen")
    A("s_mov_b64 exec, -1")
    A("s_branch L_wloop")

def stage_ln(A, which):
    tag = f"ln{which}"
    if which == 0:
        A("s_cmp_eq_u32 s42, 0")
        A(f"s_cbranch_scc1 L_{tag}_nodep")
        A("s_mov_b32 s23, 0")
        cnt_addr(A, 22, 6, "s23")
        poll_counter(A, tag, "s22", 32)
        A.label(f"L_{tag}_nodep")
    else:
        cnt_addr(A, 22, 3)
        poll_counter(A, tag, "s22", 32)
    A("s_lshl_b32 s23, s42, 1")
    A(f"s_add_u32 s23, s23, {which}")
    A("s_lshl_b32 s23, s23, 21")
    A(f"s_add_u32 s19, s23, {XR}")
    A(f"s_add_u32 s18, s23, {XFA}")
    A("v_lshrrev_b32 v1, 4, v0")
    A("s_lshl_b32 s3, s40, 6")
    A("s_lshl_b32 s15, s41, 4")
    A("s_add_u32 s3, s3, s15")
    A("v_add_u32 v1, s3, v1")
    A("v_and_b32 v2, 15, v0")
    A("v_lshlrev_b32 v3, 10, v1")
    A("v_lshl_add_u32 v3, v2, 4, v3")
    for q in range(4):
        A(f"buffer_load_dwordx4 v[{16+4*q}:{19+4*q}], v3, s[4:7], s19 offen offset:{q*256} sc1")
    A("v_bfe_u32 v4, v1, 3, 2")
    A("v_and_b32 v5, 3, v1")
    A("v_lshl_add_u32 v4, v4, 2, v5")
    A("v_and_b32 v5, 3, v2")
    A("v_lshl_add_u32 v4, v5, 4, v4")
    A("v_lshlrev_b32 v4, 4, v4")
    A("v_bfe_u32 v5, v1, 2, 1")
    A("v_bfe_u32 v6, v1, 5, 1")
    A("v_lshl_add_u32 v5, v6, 1, v5")
    A("v_lshl_add_u32 v4, v5, 10, v4")
    A("v_lshrrev_b32 v5, 6, v1")
    A("v_lshrrev_b32 v6, 2, v2")
    A("v_lshl_add_u32 v5, v5, 4, v6")
    A("v_lshl_add_u32 v4, v5, 12, v4")
    A("s_waitcnt vmcnt(0)")
    for i in range(16):
        A(f"v_lshlrev_b32 v{32+2*i}, 16, v{16+i}")
        A(f"v_and_b32 v{33+2*i}, 0xffff0000, v{16+i}")
    A("v_add_f32 v7, v32, v33")
    for i in range(2, 32): A(f"v_add_f32 v7, v7, v{32+i}")
    for sh in (8, 4, 2, 1): A(f"v_add_f32_dpp v7, v7, v7 row_ror:{sh}")
    A("v_mul_f32 v7, 0x3b000000, v7")
    A("v_sub_f32 v8, v32, v7")
    A("v_mul_f32 v9, v8, v8")
    for i in range(1, 32):
        A(f"v_sub_f32 v8, v{32+i}, v7")
        A("v_fmac_f32 v9, v8, v8")
    for sh in (8, 4, 2, 1): A(f"v_add_f32_dpp v9, v9, v9 row_ror:{sh}")
    A("v_mul_f32 v9, 0x3b000000, v9")
    bf16_round(A, 7, 7, 10)
    bf16_round(A, 9, 9, 10)
    A("v_add_f32 v9, 0x3727c5ac, v9")
    bf16_round(A, 9, 9, 10)
    A("v_sqrt_f32 v9, v9")
    bf16_round(A, 9, 9, 10)
    A("v_rcp_f32 v9, v9")
    for i in range(16):
        A(f"v_sub_f32 v{32+2*i}, v{32+2*i}, v7")
        A(f"v_sub_f32 v{33+2*i}, v{33+2*i}, v7")
        A(f"v_cvt_pk_bf16_f32 v10, v{32+2*i}, v{33+2*i}")
        A(f"v_lshlrev_b32 v{32+2*i}, 16, v10")
        A(f"v_and_b32 v{33+2*i}, 0xffff0000, v10")
        A(f"v_mul_f32 v{32+2*i}, v{32+2*i}, v9")
        A(f"v_mul_f32 v{33+2*i}, v{33+2*i}, v9")
        A(f"v_cvt_pk_bf16_f32 v{16+i}, v{32+2*i}, v{33+2*i}")
    for q in range(4):
        if q: A(f"s_add_u32 s18, s18, {4*4096}")
        A(f"buffer_store_dwordx4 v[{16+4*q}:{19+4*q}], v4, s[4:7], s18 offen sc1")
    signal(A, 0 if which == 0 else 4)

XB = 8; WB = 40; TMPX = 104; ACCW = 168

def ta_prologue(A, tag, which, dep_stage):
    A("v_and_b32 v4, 63, v0")
    A("v_lshlrev_b32 v4, 4, v4")
    A("s_bitcmp0_b32 s72, 16")
    A(f"s_cbranch_scc1 L_{tag}_nopre")
    for kk in range(16):
        for t in range(4):
            A(f"buffer_load_dwordx4 a[{(kk*4+t)*4}:{(kk*4+t)*4+3}], v4, s[4:7], s15 offen offset:{t*1024}")
        A("s_add_u32 s15, s15, 4096")
    A.label(f"L_{tag}_nopre")
    cnt_addr(A, 22, dep_stage)
    poll_counter(A, tag, "s22", 4)
    A("v_lshlrev_b32 v1, 4, v0")
    A("s_lshl_b32 s23, s42, 1")
    A(f"s_add_u32 s23, s23, {which}")
    A("s_lshl_b32 s23, s23, 21")
    A("s_lshl_b32 s19, s40, 16")
    A("s_add_u32 s19, s19, s23")
    A(f"s_add_u32 s19, s19, {XFA}")
    for i in range(16):
        A(f"buffer_load_dwordx4 v[{TMPX+4*i}:{TMPX+4*i+3}], v1, s[4:7], s19 offen sc1")
        if i < 15: A("s_add_u32 s19, s19, 4096")
    for i in range(16):
        A(f"s_waitcnt vmcnt({15-i})")
        A(f"ds_write_b128 v1, v[{TMPX+4*i}:{TMPX+4*i+3}] offset:{i*4096}")
    A("v_mov_b32 v5, v4")
    A("s_waitcnt lgkmcnt(0)")
    A("s_barrier")

def ta_xread(A, buf, koff):
    for mt in range(4):
        A(f"ds_read_b128 v[{XB+16*buf+4*mt}:{XB+16*buf+4*mt+3}], v5 offset:{koff*4096+mt*1024}")

def ta_kloop(A, vtype):
    NB = 3
    ta_xread(A, 0, 0); ta_xread(A, 1, 1)
    for kk in range(16):
        if kk + 2 < 16: ta_xread(A, (kk + 2) % NB, kk + 2)
        lg = min(8, 4 * (15 - kk))
        A(f"s_waitcnt lgkmcnt({lg})")
        for ct in range(4):
            for mt in range(4):
                w = a((kk * 4 + ct) * 4, 4); x = v(XB + 16 * (kk % NB) + 4 * mt, 4)
                acc = v(ACCW + (ct * 4 + mt) * 4, 4)
                c = "0" if kk == 0 else acc
                if vtype: A(f"v_mfma_f32_16x16x32_bf16 {acc}, {x}, {w}, {c}")
                else:     A(f"v_mfma_f32_16x16x32_bf16 {acc}, {w}, {x}, {c}")

def stage_q(A):
    A("s_and_b32 s16, s41, 15")
    A("s_lshl_b32 s16, s16, 2")
    A("s_add_u32 s16, s16, s13")
    A("s_lshr_b32 s17, s41, 4")
    A("s_add_u32 s18, s17, 1")
    A("s_cmp_eq_u32 s17, 2")
    A("s_cselect_b32 s18, 0, s18")
    A("s_mul_i32 s15, s16, 3")
    A("s_add_u32 s15, s15, s18")
    A("s_lshl_b32 s15, s15, 16")
    A(f"s_add_u32 s15, s15, {WQKV_F}")
    ta_prologue(A, "q", 0, 0)
    A("s_cmp_eq_u32 s17, 1")
    A("s_cbranch_scc1 L_q_v")
    ta_kloop(A, False)
    A("s_lshl_b32 s19, s40, 7")
    A("s_lshr_b32 s20, s16, 1")
    A("s_add_u32 s19, s19, s20")
    A("s_lshl_b32 s19, s19, 2")
    A("s_and_b32 s20, s16, 1")
    A("s_lshl_b32 s20, s20, 1")
    A("s_add_u32 s19, s19, s20")
    A("s_lshl_b32 s19, s19, 10")
    A("s_add_u32 s19, s19, s43")
    A(f"s_mov_b32 s20, {KF}")
    A("s_cmp_eq_u32 s17, 2")
    A(f"s_cselect_b32 s20, {QF}, s20")
    A("s_add_u32 s19, s19, s20")
    for mt in range(4):
        for cp in range(2):
            pk = TMPX + 4 * (mt * 2 + cp)
            for half in range(2):
                b = ACCW + ((2 * cp + half) * 4 + mt) * 4
                A(f"v_cvt_pk_bf16_f32 v{pk+2*half}, v{b}, v{b+1}")
                A(f"v_cvt_pk_bf16_f32 v{pk+2*half+1}, v{b+2}, v{b+3}")
            A(f"buffer_store_dwordx4 v[{pk}:{pk+3}], v4, s[4:7], s19 offen offset:{cp*1024} sc1")
        if mt < 3: A("s_add_u32 s19, s19, 131072")
    A("s_cmp_eq_u32 s17, 2")
    A("s_cbranch_scc1 L_q_sigq")
    signal(A, 7)
    A.label("L_q_sigq")
    signal(A, 1)
    A.label("L_q_v")
    ta_kloop(A, True)
    A("s_lshl_b32 s19, s40, 6")
    A("s_lshr_b32 s20, s16, 1")
    A("s_add_u32 s19, s19, s20")
    A("s_lshl_b32 s19, s19, 3")
    A("s_and_b32 s20, s16, 1")
    A("s_lshl_b32 s20, s20, 2")
    A("s_add_u32 s19, s19, s20")
    A("s_lshl_b32 s19, s19, 10")
    A("s_add_u32 s19, s19, s43")
    A(f"s_add_u32 s19, s19, {VF}")
    for sg in range(2):
        for ct in range(4):
            pk = TMPX + 4 * (sg * 4 + ct)
            for half in range(2):
                b = ACCW + (ct * 4 + 2 * sg + half) * 4
                A(f"v_cvt_pk_bf16_f32 v{pk+2*half}, v{b}, v{b+1}")
                A(f"v_cvt_pk_bf16_f32 v{pk+2*half+1}, v{b+2}, v{b+3}")
            A(f"buffer_store_dwordx4 v[{pk}:{pk+3}], v4, s[4:7], s19 offen offset:{ct*1024} sc1")
        if sg < 1: A("s_add_u32 s19, s19, 262144")
    signal(A, 7)

def stage_g(A):
    A("s_lshl_b32 s16, s41, 2")
    A("s_add_u32 s16, s16, s13")
    A("s_lshl_b32 s15, s16, 16")
    A(f"s_add_u32 s15, s15, {WGU_F}")
    ta_prologue(A, "g", 1, 4)
    ta_kloop(A, False)
    A("s_mul_i32 s19, s40, 56")
    A("s_add_u32 s19, s19, s16")
    A("s_lshl_b32 s19, s19, 12")
    A("s_add_u32 s19, s19, s43")
    A(f"s_add_u32 s19, s19, {HF}")
    c2 = struct.unpack("<I", struct.pack("<f", -2.0 * math.sqrt(2.0 / math.pi) * math.log2(math.e)))[0]
    A("s_mov_b32 s28, 0x3d372713")
    A(f"s_mov_b32 s29, {c2}")
    Tm = 8
    for mt in range(4):
        pk = TMPX + 4 * mt
        G = [ACCW + (half * 4 + mt) * 4 + i for half in range(2) for i in range(4)]
        U = [ACCW + ((2 + half) * 4 + mt) * 4 + i for half in range(2) for i in range(4)]
        for i in range(0, 8, 2):
            A(f"v_cvt_pk_bf16_f32 v{Tm}, v{G[i]}, v{G[i+1]}")
            A(f"v_lshlrev_b32 v{G[i]}, 16, v{Tm}")
            A(f"v_and_b32 v{G[i+1]}, 0xffff0000, v{Tm}")
            A(f"v_cvt_pk_bf16_f32 v{Tm}, v{U[i]}, v{U[i+1]}")
            A(f"v_lshlrev_b32 v{U[i]}, 16, v{Tm}")
            A(f"v_and_b32 v{U[i+1]}, 0xffff0000, v{Tm}")
        for i in range(8):
            t = Tm + 1 + i
            A(f"v_mul_f32 v{t}, v{G[i]}, v{G[i]}")
            A(f"v_mul_f32 v{t}, s28, v{t}")
            A(f"v_fma_f32 v{t}, v{t}, v{G[i]}, v{G[i]}")
            A(f"v_mul_f32 v{t}, s29, v{t}")
            A(f"v_exp_f32 v{t}, v{t}")
        for i in range(8):
            t = Tm + 1 + i
            A(f"v_add_f32 v{t}, 1.0, v{t}")
            A(f"v_rcp_f32 v{t}, v{t}")
        for i in range(8):
            A(f"v_mul_f32 v{G[i]}, v{G[i]}, v{Tm+1+i}")
        for i in range(0, 8, 2):
            A(f"v_cvt_pk_bf16_f32 v{Tm}, v{G[i]}, v{G[i+1]}")
            A(f"v_lshlrev_b32 v{G[i]}, 16, v{Tm}")
            A(f"v_and_b32 v{G[i+1]}, 0xffff0000, v{Tm}")
            A(f"v_mul_f32 v{G[i]}, v{G[i]}, v{U[i]}")
            A(f"v_mul_f32 v{G[i+1]}, v{G[i+1]}, v{U[i+1]}")
            A(f"v_cvt_pk_bf16_f32 v{pk+i//2}, v{G[i]}, v{G[i+1]}")
        A(f"buffer_store_dwordx4 v[{pk}:{pk+3}], v4, s[4:7], s19 offen offset:{mt*1024} sc1")
    signal(A, 5)

def stage_attn(A):
    A("s_lshl_b32 s12, s40, 1")
    A("s_lshr_b32 s14, s41, 3")
    A("s_add_u32 s12, s12, s14")
    A("s_and_b32 s14, s41, 7")
    A("s_lshl_b32 s14, s14, 2")
    A("s_add_u32 s14, s14, s13")
    cnt_addr(A, 22, 1)
    poll_counter(A, "a1", "s22", 16)
    cnt_addr(A, 22, 7)
    poll_counter(A, "a3", "s22", 32)
    A("v_and_b32 v14, 63, v0")
    A("v_lshlrev_b32 v1, 4, v14")
    A("v_lshlrev_b32 v13, 3, v14")
    Q = 16; K = 48; KMr = 80; V = 96; VMr = 128; S = 144; T = 168; O = 176
    A("s_lshl_b32 s15, s12, 6")
    A("s_add_u32 s15, s15, s14")
    A("s_lshl_b32 s15, s15, 12")
    A("s_add_u32 s15, s15, s43")
    A(f"s_add_u32 s16, s15, {QF}")
    A(f"s_add_u32 s17, s15, {KF}")
    for t in range(2):
        for j in range(4):
            A(f"buffer_load_dwordx4 v[{Q+16*t+4*j}:{Q+16*t+4*j+3}], v1, s[4:7], s16 offen offset:{j*1024} sc1")
            A(f"buffer_load_dwordx4 v[{K+16*t+4*j}:{K+16*t+4*j+3}], v1, s[4:7], s17 offen offset:{j*1024} sc1")
        if t == 0:
            A("s_add_u32 s16, s16, 131072")
            A("s_add_u32 s17, s17, 131072")
    A("s_lshl_b32 s15, s12, 5")
    A("s_add_u32 s15, s15, s14")
    A("s_lshl_b32 s16, s15, 13")
    A("s_add_u32 s16, s16, s43")
    A(f"s_add_u32 s16, s16, {VF}")
    for et in range(8):
        if et == 4: A("s_add_u32 s16, s16, 4096")
        r = V + 4 * et if et < 7 else 240
        A(f"buffer_load_dwordx4 v[{r}:{r+3}], v1, s[4:7], s16 offen offset:{(et&3)*1024} sc1")
    A("s_lshl_b32 s22, s42, 6")
    A("s_add_u32 s22, s22, s12")
    A("s_lshl_b32 s22, s22, 6")
    A(f"s_add_u32 s22, s22, {CHAIN_CNT}")
    poll_counter(A, "a2", "s22", 128)
    A("s_lshl_b32 s16, s15, 12")
    A("s_add_u32 s16, s16, s43")
    A(f"s_add_u32 s18, s16, {VM}")
    A(f"s_add_u32 s16, s16, {KM}")
    for j in range(4):
        A(f"buffer_load_dwordx4 v[{KMr+4*j}:{KMr+4*j+3}], v1, s[4:7], s16 offen offset:{j*1024} sc1")
    for et in range(8):
        A(f"buffer_load_dwordx2 v[{VMr+2*et}:{VMr+2*et+1}], v13, s[4:7], s18 offen offset:{et*512} sc1")
    A(f"s_mov_b32 s28, {SCALE_HEX}")
    A(f"s_mov_b32 s29, {LOG2E_HEX}")
    A("v_and_b32 v15, 15, v14")
    A("v_lshrrev_b32 v2, 2, v15")
    A("v_and_b32 v3, 3, v15")
    A("v_lshl_add_u32 v2, v2, 3, v3")
    A("v_lshrrev_b32 v3, 4, v14")
    A("v_lshlrev_b32 v3, 3, v3")
    A("v_sub_u32 v2, v2, v3")
    A("s_lshl_b32 s16, s40, 7")
    A("s_lshl_b32 s17, s14, 2")
    A("s_add_u32 s16, s16, s17")
    A("s_lshl_b32 s16, s16, 2")
    A("s_and_b32 s17, s12, 1")
    A("s_lshl_b32 s17, s17, 1")
    A("s_add_u32 s16, s16, s17")
    A("s_lshl_b32 s16, s16, 10")
    A("s_add_u32 s16, s16, s43")
    A(f"s_add_u32 s16, s16, {OF}")
    A("s_waitcnt vmcnt(8)")
    for tq in range(2):
        for j in range(4):
            for kt in range(3):
                src = (KMr + 4 * j) if kt == 0 else (K + 16 * (kt - 1) + 4 * j)
                acc = v(S + 12 * tq + 4 * kt, 4)
                A(f"v_mfma_f32_16x16x32_bf16 {acc}, v[{src}:{src+3}], v[{Q+16*tq+4*j}:{Q+16*tq+4*j+3}], {'0' if j==0 else acc}")
    A(f"v_mov_b32 v{T+7}, 0xf149f2ca")
    A("s_waitcnt vmcnt(0)")
    for tq in range(2):
        Sq = S + 12 * tq
        for i in range(0, 12, 2):
            A(f"v_cvt_pk_bf16_f32 v{T}, v{Sq+i}, v{Sq+i+1}")
            A(f"v_lshlrev_b32 v{Sq+i}, 16, v{T}")
            A(f"v_and_b32 v{Sq+i+1}, 0xffff0000, v{T}")
            A(f"v_mul_f32 v{Sq+i}, s28, v{Sq+i}")
            A(f"v_mul_f32 v{Sq+i+1}, s28, v{Sq+i+1}")
            A(f"v_cvt_pk_bf16_f32 v{T}, v{Sq+i}, v{Sq+i+1}")
            A(f"v_lshlrev_b32 v{Sq+i}, 16, v{T}")
            A(f"v_and_b32 v{Sq+i+1}, 0xffff0000, v{T}")
        A("v_cmp_gt_u32 vcc, 32, v14")
        for i in range(4): A(f"v_cndmask_b32 v{Sq+i}, v{T+7}, v{Sq+i}, vcc")
        for tk in range(2):
            for r in range(4):
                A(f"v_cmp_le_i32 vcc, {r + 4*tk - 4*tq}, v2")
                A(f"v_cndmask_b32 v{Sq+4+4*tk+r}, v{T+7}, v{Sq+4+4*tk+r}, vcc")
        A(f"v_max3_f32 v{T+1}, v{Sq}, v{Sq+1}, v{Sq+2}")
        for i in range(3, 11, 2): A(f"v_max3_f32 v{T+1}, v{T+1}, v{Sq+i}, v{Sq+i+1}")
        A(f"v_max_f32 v{T+1}, v{T+1}, v{Sq+11}")
        xlane(A, T + 1, T + 2, ("p16", "p32"), "v_max_f32")
        for i in range(12):
            A(f"v_sub_f32 v{Sq+i}, v{Sq+i}, v{T+1}")
            A(f"v_mul_f32 v{Sq+i}, s29, v{Sq+i}")
            A(f"v_exp_f32 v{Sq+i}, v{Sq+i}")
        A(f"v_add_f32 v{T+1}, v{Sq}, v{Sq+1}")
        for i in range(2, 12): A(f"v_add_f32 v{T+1}, v{T+1}, v{Sq+i}")
        xlane(A, T + 1, T + 2, ("p16", "p32"))
        A(f"v_rcp_f32 v{T+1}, v{T+1}")
        for i in range(12): A(f"v_mul_f32 v{Sq+i}, v{Sq+i}, v{T+1}")
        PM = T + 2; PT = 4
        A(f"v_cvt_pk_bf16_f32 v{PM}, v{Sq}, v{Sq+1}")
        A(f"v_cvt_pk_bf16_f32 v{PM+1}, v{Sq+2}, v{Sq+3}")
        for i in range(4): A(f"v_cvt_pk_bf16_f32 v{PT+i}, v{Sq+4+2*i}, v{Sq+5+2*i}")
        for et in range(8):
            r = V + 4 * et if et < 7 else 240
            A(f"v_mfma_f32_16x16x32_bf16 v[{O+4*et}:{O+4*et+3}], v[{r}:{r+3}], v[{PT}:{PT+3}], 0")
        for et in range(8):
            A(f"v_mfma_f32_16x16x16_bf16 v[{O+4*et}:{O+4*et+3}], v[{VMr+2*et}:{VMr+2*et+1}], v[{PM}:{PM+1}], v[{O+4*et}:{O+4*et+3}]")
        PKO = 208 + 16 * tq
        for j in range(4):
            for half in range(2):
                b = O + 8 * j + 4 * half
                A(f"v_cvt_pk_bf16_f32 v{PKO+4*j+2*half}, v{b}, v{b+1}")
                A(f"v_cvt_pk_bf16_f32 v{PKO+4*j+2*half+1}, v{b+2}, v{b+3}")
            A(f"s_add_u32 s17, s16, {j*4096 + tq*1024}")
            A(f"buffer_store_dwordx4 v[{PKO+4*j}:{PKO+4*j+3}], v1, s[4:7], s17 offen sc1")
    signal(A, 2)

def stage_tb(A, tag, WF, AFB, KS, dep_stage, dep_n, res_idx, sig_stage):
    KW = KS // 4
    RING = 8
    RB = 16; ACC = RB + 16 * RING
    A("v_and_b32 v14, 63, v0")
    A("v_lshlrev_b32 v1, 4, v14")
    A("s_lshr_b32 s12, s41, 4")
    A("s_and_b32 s14, s41, 15")
    A(f"s_mul_i32 s15, s13, {KW}")
    A("s_lshr_b32 s16, s14, 1")
    A(f"s_mul_i32 s16, s16, {KS}")
    A("s_add_u32 s16, s16, s15")
    A("s_lshl_b32 s16, s16, 12")
    A("s_and_b32 s18, s14, 1")
    A("s_lshl_b32 s18, s18, 11")
    A("s_add_u32 s16, s16, s18")
    A(f"s_add_u32 s16, s16, {WF}")
    A(f"s_mul_i32 s17, s40, {KS}")
    A("s_add_u32 s17, s17, s15")
    A("s_lshl_b32 s17, s17, 12")
    A("s_lshl_b32 s18, s12, 11")
    A("s_add_u32 s17, s17, s18")
    A("s_add_u32 s17, s17, s43")
    A(f"s_add_u32 s17, s17, {AFB}")
    RING = 16; ACC = RB + 8 * RING
    A("s_bitcmp0_b32 s72, 16")
    A(f"s_cbranch_scc1 L_{tag}_nopre")
    for kk in range(KW):
        for t in range(2):
            A(f"buffer_load_dwordx4 a[{(kk*2+t)*4}:{(kk*2+t)*4+3}], v1, s[4:7], s16 offen offset:{t*1024}")
        A("s_add_u32 s16, s16, 4096")
    A("s_waitcnt vmcnt(0)")
    A.label(f"L_{tag}_nopre")
    def lda(si):
        for t in range(2):
            A(f"buffer_load_dwordx4 v[{RB+8*si+4*t}:{RB+8*si+4*t+3}], v1, s[4:7], s17 offen offset:{t*1024} sc1")
        A("s_add_u32 s17, s17, 4096")
    def mm(kk):
        si = kk % RING
        for ct in range(2):
            for tt in range(2):
                acc = v(ACC + (ct * 2 + tt) * 4, 4)
                A(f"v_mfma_f32_16x16x32_bf16 {acc}, a[{(kk*2+ct)*4}:{(kk*2+ct)*4+3}], v[{RB+8*si+4*tt}:{RB+8*si+4*tt+3}], {'0' if kk==0 else acc}")
    D = min(RING - 1, KW)
    cnt_addr(A, 22, dep_stage)
    A("v_mov_b32 v250, 0")
    poll_counter(A, tag, "s22", dep_n)
    for si in range(D): lda(si)
    for kk in range(KW):
        if kk + D < KW:
            lda((kk + D) % RING)
            A(f"s_waitcnt vmcnt({2*D})")
        else:
            A(f"s_waitcnt vmcnt({2*(KW-1-kk)})")
        mm(kk)
    A("s_lshl_b32 s15, s13, 12")
    A("v_add_u32 v2, s15, v1")
    for i in range(4):
        A(f"ds_write_b128 v2, v[{ACC+4*i}:{ACC+4*i+3}] offset:{i*1024}")
    A("s_and_b32 s15, s13, 1")
    A("s_lshl_b32 s15, s15, 10")
    A("v_add_u32 v3, s15, v1")
    A("v_and_b32 v4, 15, v14")
    A("v_lshrrev_b32 v5, 2, v4")
    A("v_and_b32 v4, 3, v4")
    A("v_lshl_add_u32 v4, v5, 3, v4")
    A("s_lshl_b32 s15, s40, 6")
    A("s_lshl_b32 s18, s12, 5")
    A("s_add_u32 s15, s15, s18")
    A("s_and_b32 s18, s13, 1")
    A("s_lshl_b32 s18, s18, 2")
    A("s_add_u32 s15, s15, s18")
    A("v_add_u32 v4, s15, v4")
    A("v_lshlrev_b32 v4, 10, v4")
    A("v_lshrrev_b32 v5, 4, v14")
    A("v_lshl_add_u32 v4, v5, 4, v4")
    A("s_lshl_b32 s15, s14, 6")
    A("v_add_u32 v4, s15, v4")
    A("s_lshl_b32 s18, s42, 1")
    A(f"s_add_u32 s18, s18, {res_idx}")
    A("s_lshl_b32 s18, s18, 21")
    A(f"s_add_u32 s18, s18, {XR}")
    A(f"buffer_load_dwordx4 v[8:11], v4, s[4:7], s18 offen sc1")
    A("s_waitcnt lgkmcnt(0)")
    A("s_barrier")
    A("s_cmp_ge_u32 s13, 2")
    A(f"s_cbranch_scc1 L_{tag}_done")
    R = 16
    for ww in range(4):
        for ct in range(2):
            A(f"ds_read_b128 v[{R+8*ww+4*ct}:{R+8*ww+4*ct+3}], v3 offset:{ww*4096+ct*2048}")
    A("s_waitcnt lgkmcnt(4)")
    for i in range(8): A(f"v_add_f32 v{R+i}, v{R+i}, v{R+8+i}")
    A("s_waitcnt lgkmcnt(2)")
    for i in range(8): A(f"v_add_f32 v{R+i}, v{R+i}, v{R+16+i}")
    A("s_waitcnt lgkmcnt(0) vmcnt(0)")
    for i in range(8): A(f"v_add_f32 v{R+i}, v{R+i}, v{R+24+i}")
    for i in range(4):
        A(f"v_cvt_pk_bf16_f32 v6, v{R+2*i}, v{R+2*i+1}")
        A(f"v_lshlrev_b32 v{R+2*i}, 16, v6")
        A(f"v_and_b32 v{R+2*i+1}, 0xffff0000, v6")
        A(f"v_lshlrev_b32 v6, 16, v{8+i}")
        A(f"v_and_b32 v7, 0xffff0000, v{8+i}")
        A(f"v_add_f32 v{R+2*i}, v{R+2*i}, v6")
        A(f"v_add_f32 v{R+2*i+1}, v{R+2*i+1}, v7")
        A(f"v_cvt_pk_bf16_f32 v{R+32+i}, v{R+2*i}, v{R+2*i+1}")
    if res_idx == 1:
        A("s_cmp_eq_u32 s42, 1")
        A(f"s_cbranch_scc1 L_{tag}_out")
    A(f"s_add_u32 s18, s18, {2*MB}")
    A(f"buffer_store_dwordx4 v[{R+32}:{R+35}], v4, s[4:7], s18 offen sc1")
    if res_idx == 1:
        A(f"s_branch L_{tag}_done")
        A.label(f"L_{tag}_out")
        A(f"buffer_store_dwordx4 v[{R+32}:{R+35}], v4, s[64:67], 0 offen")
    A.label(f"L_{tag}_done")
    signal(A, sig_stage)

NSUB = {0: 4, 1: 48, 2: 16, 3: 32, 4: 4, 5: 14, 6: 32}
TBL_STRIDE = 96

DUR = {0: 2.0, 1: 4.0, 2: 2.5, 3: 3.9, 4: 2.0, 5: 4.3, 6: 2.4}
SYNC = 1.2
STEP = 3.9
POOL = {1: (48, 1), 3: (16, 3), 5: (14, 2), 6: (16, 2)}
NAN = 36
def schedule(nW=192, verbose=False):
    def word(layer, stage, blk, sub): return stage | (blk << 4) | (sub << 9) | (layer << 15)
    base = {}; n = 0
    for st, (sl, k) in POOL.items(): base[st] = n; n += sl * k
    an_base = n; n += NAN
    assert n == nW
    def workers_for(st, sub):
        if st in POOL:
            sl, k = POOL[st]
            slab = sub if st in (1, 5) else (sub & 15)
            return [base[st] + slab * k + i for i in range(k)]
        return list(range(an_base, an_base + NAN))
    done = {}; chain = {}
    for b in range(32): done[(0, 1, b)] = 0.0; done[(0, 7, b)] = 0.0; done[(0, 0, b)] = 0.0
    free = [0.0] * nW
    lists = [[] for _ in range(nW)]
    pending = [(l, st, b) for l in range(2) for st in range(7) for b in range(32) if not (l == 0 and st in (0, 1))]
    def chain_time(l, s):
        if (l, s) in chain: return chain[(l, s)]
        kv = done.get((l, 7, s >> 1))
        if kv is None: return None
        prev = 4.0 if s == 0 else chain_time(l, s - 1)
        if prev is None: return None
        chain[(l, s)] = max(prev, kv + SYNC) + STEP
        return chain[(l, s)]
    def ready(l, st, b):
        if st == 0: return done.get((0, 6, b))
        if st == 1: return done.get((l, 0, b))
        if st == 2:
            q = done.get((l, 1, b)); c = chain_time(l, 2 * b + 1)
            return None if q is None or c is None else max(q, c)
        return done.get((l, st - 1, b))
    while pending:
        r, g = min((ready(*g) + SYNC, g) for g in pending if ready(*g) is not None)
        pending.remove(g)
        l, st, b = g
        fin = 0.0; finkv = 0.0
        for sub in range(NSUB[st]):
            w = min(workers_for(st, sub), key=lambda i: max(free[i], r))
            start = max(free[w], r)
            free[w] = start + DUR[st]
            lists[w].append(word(l, st, b, sub) | ((1 << 16) if not lists[w] else 0))
            fin = max(fin, free[w])
            if st == 1 and sub < 32: finkv = max(finkv, free[w])
        done[g] = fin
        if st == 1: done[(l, 7, b)] = finkv
    if verbose:
        print("sim end", max(free), "chain1 end", chain[(0, 63)], "chain2 start", chain[(1, 0)] - STEP, "chain2 end", chain[(1, 63)], "maxlen", max(len(x) for x in lists))
    assert max(len(l) for l in lists) < TBL_STRIDE, max(len(l) for l in lists)
    return lists

def gen_mega():
    A = Asm()
    name = "mega_kernel"
    A.raw(kernel_header(name))
    A("s_cmp_ge_u32 s2, 256")
    A(f"s_cbranch_scc1 {END}")
    load_ptr_srd(A, "ws", 4, WS_BYTES, 20)
    load_ptr_srd(A, "out", 64, 2 * MB, 20)
    rendezvous(A)
    A("s_cmp_ge_u32 s12, 64")
    A("s_cbranch_scc1 L_worker")
    gen_chain_role(A)
    A.label("L_worker")
    A("s_sub_u32 s12, s12, 64")
    A(f"s_mul_i32 s69, s12, {TBL_STRIDE*16}")
    A(f"s_add_u32 s69, s69, {PROFB + MB}")
    A("s_getpc_b64 s[70:71]")
    A.label("L_pcref")
    A(f"s_mul_i32 s15, s12, {TBL_STRIDE*4}")
    A("s_add_u32 s70, s70, s15")
    A("s_addc_u32 s71, s71, 0")
    A("s_add_u32 s70, s70, L_table-L_pcref")
    A("s_addc_u32 s71, s71, 0")
    A.label("L_wloop")
    A("s_load_dword s72, s[70:71], 0")
    A("s_add_u32 s70, s70, 4")
    A("s_addc_u32 s71, s71, 0")
    A("s_waitcnt lgkmcnt(0)")
    A("s_cmp_eq_u32 s72, -1")
    A(f"s_cbranch_scc1 {END}")
    if PROF:
        A("s_memtime s[74:75]")
        A("s_waitcnt lgkmcnt(0)")
        A("s_mov_b32 s76, s74")
    A("s_and_b32 s73, s72, 15")
    A("s_bfe_u32 s40, s72, 0x50004")
    A("s_bfe_u32 s41, s72, 0x60009")
    A("s_bfe_u32 s42, s72, 0x1000f")
    A(f"s_mul_i32 s43, s42, {LSTRIDE}")
    for st in range(7):
        A(f"s_cmp_eq_u32 s73, {st}")
        A(f"s_cbranch_scc1 L_st{st}")
    A(f"s_branch {END}")
    A.label("L_st0"); stage_ln(A, 0)
    A.label("L_st1"); stage_q(A)
    A.label("L_st2"); stage_attn(A)
    A.label("L_st3"); stage_tb(A, "wo", WO_F, OF, 128, 2, 16, 0, 3)
    A.label("L_st4"); stage_ln(A, 1)
    A.label("L_st5"); stage_g(A)
    A.label("L_st6"); stage_tb(A, "dn", WD_F, HF, 56, 5, 14, 1, 6)
    A.label(END)
    A("s_endpgm")
    A.raw(".p2align 6")
    A.label("L_table")
    for l in schedule(verbose=True):
        ws_ = l + [0xFFFFFFFF] * (TBL_STRIDE - len(l))
        for i in range(0, TBL_STRIDE, 16):
            A.raw("    .long " + ", ".join(hex(x) for x in ws_[i:i+16]))
    return name, A, 256, (256, 256)

def copy_x_to_lds(A, mg_sreg, tmpv):
    A("v_lshlrev_b32 v1, 4, v0")
    A(f"s_lshl_b32 s19, s{mg_sreg}, 17")
    A(f"s_add_u32 s19, s19, {XFA}")
    for rnd in range(4):
        for i in range(8):
            A(f"buffer_load_dwordx4 v[{tmpv+4*i}:{tmpv+4*i+3}], v1, s[4:7], s19 offen")
            A("s_add_u32 s19, s19, 4096")
        for i in range(8):
            A(f"s_waitcnt vmcnt({7-i})")
            off = (rnd * 8 + i) * 4096
            if off < 65536:
                A(f"ds_write_b128 v1, v[{tmpv+4*i}:{tmpv+4*i+3}] offset:{off}")
            else:
                A(f"ds_write_b128 v2, v[{tmpv+4*i}:{tmpv+4*i+3}] offset:{off-65536}")
            if rnd == 0 and i < 2:
                A(f"ds_write_b128 v3, v[{tmpv+4*i}:{tmpv+4*i+3}] offset:{i*4096}")

def gen_qkv(name):
    A = Asm()
    A.raw(kernel_header(name))
    A("s_cmp_ge_u32 s2, 256")
    A("s_cbranch_scc1 L_end_" + name)
    load_ptr_srd(A, "ws", 4, WS_BYTES, 20)
    A("s_and_b32 s12, s2, 7")
    A("s_lshl_b32 s12, s12, 1")
    A("s_bfe_u32 s13, s2, 0x10003")
    A("s_add_u32 s12, s12, s13")
    A("s_lshr_b32 s13, s2, 4")
    A("v_lshlrev_b32 v1, 4, v0")
    A("v_add_u32 v2, 0x10000, v1")
    A("v_add_u32 v3, 0x20000, v1")
    ACC = 0 + 128
    XB = 8
    WB = 72
    XB = 8; WB = 64
    XB = 8; WB = 72; PK = 136
    copy_x_to_lds(A, 13, WB)
    A("v_lshrrev_b32 v4, 6, v0")
    A("v_readfirstlane_b32 s14, v4")
    A("v_and_b32 v4, 63, v0")
    A("v_lshlrev_b32 v4, 4, v4")
    A("v_mov_b32 v5, v4")
    A("s_lshl_b32 s15, s12, 2")
    A("s_add_u32 s15, s15, s14")
    A("s_mul_i32 s15, s15, 196608")
    A(f"s_add_u32 s15, s15, {WQKV_F}")
    A("s_waitcnt lgkmcnt(0)")
    A("s_barrier")
    def wload(setidx):
        for t in range(4):
            A(f"buffer_load_dwordx4 v[{WB+16*setidx+4*t}:{WB+16*setidx+4*t+3}], v4, s[4:7], s15 offen offset:{t*1024}")
        A("s_add_u32 s15, s15, 4096")
    def xread(buf, koff):
        for mt in range(8):
            A(f"ds_read_b128 v[{XB+32*buf+4*mt}:{XB+32*buf+4*mt+3}], v5 offset:{koff*8192+mt*1024}")
    for st in range(3): wload(st)
    xread(0, 0)
    A("s_lshl_b32 s16, s13, 3")
    A("s_lshl_b32 s16, s16, 5")
    A("s_lshl_b32 s17, s12, 1")
    A("s_lshr_b32 s18, s14, 1")
    A("s_add_u32 s17, s17, s18")
    A("s_add_u32 s16, s16, s17")
    A("s_lshl_b32 s16, s16, 2")
    A("s_and_b32 s18, s14, 1")
    A("s_lshl_b32 s18, s18, 1")
    A("s_add_u32 s16, s16, s18")
    A("s_lshl_b32 s16, s16, 10")
    A(f"s_add_u32 s16, s16, {QF}")
    A("s_lshl_b32 s20, s13, 2")
    A("s_lshl_b32 s20, s20, 5")
    A("s_add_u32 s20, s20, s17")
    A("s_lshl_b32 s20, s20, 3")
    A("s_lshl_b32 s18, s18, 1")
    A("s_add_u32 s20, s20, s18")
    A("s_lshl_b32 s20, s20, 10")
    A(f"s_add_u32 s20, s20, {VF}")
    A("s_mov_b32 s21, 0")
    def zero_acc():
        for i in range(128): A(f"v_accvgpr_write_b32 a{i}, 0")
    def kloop(tag, vtype):
        A("s_mov_b32 s22, 0")
        A.label(f"L_k_{tag}_{name}")
        for u in range(4):
            wload((u + 3) % 4)
            xread((u + 1) % 2, u + 1)
            A("s_waitcnt vmcnt(12) lgkmcnt(8)")
            for ct in range(4):
                for mt in range(8):
                    w = v(WB + 16 * u + 4 * ct, 4); x = v(XB + 32 * (u % 2) + 4 * mt, 4)
                    acc = a((ct * 8 + mt) * 4, 4)
                    if vtype: A(f"v_mfma_f32_16x16x32_bf16 {acc}, {x}, {w}, {acc}")
                    else:     A(f"v_mfma_f32_16x16x32_bf16 {acc}, {w}, {x}, {acc}")
        A("v_add_u32 v5, 0x8000, v5")
        A("v_and_b32 v5, 0x1ffff, v5")
        A("s_add_u32 s22, s22, 1")
        A("s_cmp_lt_u32 s22, 4")
        A(f"s_cbranch_scc1 L_k_{tag}_{name}")
    zero_acc()
    A.label(f"L_pass_{name}")
    kloop("qk", False)
    A.fence(10)
    A("s_mov_b32 s19, s16")
    n = 0
    for mt in range(8):
        for cp in range(2):
            pk = PK + 4 * (n % 8); n += 1
            for half in range(2):
                base = ((2 * cp + half) * 8 + mt) * 4
                for i in range(4): A(f"v_accvgpr_read_b32 v{168+i}, a{base+i}")
                A(f"v_cvt_pk_bf16_f32 v{pk+2*half}, v168, v169")
                A(f"v_cvt_pk_bf16_f32 v{pk+2*half+1}, v170, v171")
            A(f"buffer_store_dwordx4 v[{pk}:{pk+3}], v4, s[4:7], s19 offen offset:{cp*1024}")
        if mt < 7: A("s_add_u32 s19, s19, 131072")
    zero_acc()
    A(f"s_add_u32 s16, s16, {KF-QF}")
    A("s_add_u32 s21, s21, 1")
    A("s_cmp_lt_u32 s21, 2")
    A(f"s_cbranch_scc1 L_pass_{name}")
    kloop("v", True)
    A.fence(10)
    A("s_mov_b32 s19, s20")
    n = 0
    for sg in range(4):
        for ct in range(4):
            pk = PK + 4 * (n % 8); n += 1
            for half in range(2):
                base = (ct * 8 + 2 * sg + half) * 4
                for i in range(4): A(f"v_accvgpr_read_b32 v{168+i}, a{base+i}")
                A(f"v_cvt_pk_bf16_f32 v{pk+2*half}, v168, v169")
                A(f"v_cvt_pk_bf16_f32 v{pk+2*half+1}, v170, v171")
            A(f"buffer_store_dwordx4 v[{pk}:{pk+3}], v4, s[4:7], s19 offen offset:{ct*1024}")
        if sg < 3: A("s_add_u32 s19, s19, 262144")
    A.label("L_end_" + name)
    A("s_endpgm")
    return name, A, 256, (176, 128)

def build(kernels, launches):
    out = []
    hdr = open("cdna_kernels/" + NAME + ".s.ref").read().split("\n")
    for l in hdr:
        if l.startswith(";") and "@launch" not in l and "Override" not in l and "grid=ceil" not in l:
            out.append(l)
    for (k, g, lds) in launches:
        out.append(f"; @launch kernel={k} grid=({g},1,1) block=(256,1,1) lds={lds}")
    out.append('.amdgcn_target "amdgcn-amd-amdhsa--gfx950"')
    out.append(".text")
    for (name, A, g, regs) in kernels: out.append(A.text())
    out.append('.section .rodata,"a"')
    for (name, A, g, regs) in kernels:
        if isinstance(regs, tuple):
            nv, na = regs; acc = (nv + 3) // 4 * 4
            out.append(kernel_desc(name, acc + na, 102, acc))
        else:
            out.append(kernel_desc(name, regs, 102, (regs + 3) // 4 * 4))
    return "\n".join(out) + "\n"

if __name__ == "__main__":
    PROF = "prof" in sys.argv
    ks = [gen_prep(), gen_qkv("qkv1_kernel"), gen_mega()]
    launches = [("prep_kernel", ks[0][2], 0), ("qkv1_kernel", 256, 136 * 1024), ("mega_kernel", 256, MEGA_LDS)]
    txt = build(ks, launches)
    dst = "prof.s" if PROF else "cdna_kernels/" + NAME + ".s"
    open(dst, "w").write(txt)
    print("bytes", len(txt))
```

```python
import sys, math, struct
from asmlib import *
from layout2 import *

NAME = "interleave_layers__memory_aug_recurrent_mem_tr__geglu_ffn__prompt"
KA = dict(x=0, mem0=8, wq=16, wk=24, wv=32, wo=40, seg=48, bx=56, wg=64, wu=72, wd=80, out=88, dbg=96, ws=104)
SCALE_HEX = 0x3db504f3
LOG2E_HEX = 0x3fb8aa3b
PROF = False

def srd(A, sd, sbase, nbytes):
    A(f"s_mov_b32 s{sd}, s{sbase}")
    A(f"s_and_b32 s{sd+1}, s{sbase+1}, 0xffff")
    A(f"s_mov_b32 s{sd+2}, {nbytes}")
    A(f"s_mov_b32 s{sd+3}, 0x00020000")

def load_ptr_srd(A, key, sd, nbytes, tmp):
    A(f"s_load_dwordx2 s[{tmp}:{tmp+1}], s[0:1], {KA[key]}")
    A("s_waitcnt lgkmcnt(0)")
    srd(A, sd, tmp, nbytes)

def magic_div(d, maxn):
    for sh in range(0, 32):
        m = -(-(1 << sh) // d)
        if m * maxn < (1 << 32) and all((n * m) >> sh == n // d for n in range(maxn)):
            return m, sh
    raise ValueError

def xlane(A, r, t, ops=("ror8", "p16", "p32"), op="v_add_f32"):
    for o in ops:
        if o == "ror8":
            A(f"{op}_dpp v{r}, v{r}, v{r} row_ror:8")
        else:
            A(f"v_mov_b32 v{t}, v{r}")
            A(f"v_permlane{'16' if o=='p16' else '32'}_swap_b32 v{r}, v{t}")
            A(f"{op} v{r}, v{r}, v{t}")

def bf16_round(A, dst, src, tmp):
    A(f"v_cvt_pk_bf16_f32 v{tmp}, v{src}, v{src}")
    A(f"v_lshlrev_b32 v{dst}, 16, v{tmp}")

def ln_math(A):
    for i in range(16):
        A(f"v_lshlrev_b32 v{32+2*i}, 16, v{16+i}")
        A(f"v_and_b32 v{33+2*i}, 0xffff0000, v{16+i}")
    A("v_add_f32 v7, v32, v33")
    for i in range(2, 32): A(f"v_add_f32 v7, v7, v{32+i}")
    for sh in (8, 4, 2, 1): A(f"v_add_f32_dpp v7, v7, v7 row_ror:{sh}")
    A("v_mul_f32 v7, 0x3b000000, v7")
    A("v_sub_f32 v8, v32, v7")
    A("v_mul_f32 v9, v8, v8")
    for i in range(1, 32):
        A(f"v_sub_f32 v8, v{32+i}, v7")
        A("v_fmac_f32 v9, v8, v8")
    for sh in (8, 4, 2, 1): A(f"v_add_f32_dpp v9, v9, v9 row_ror:{sh}")
    A("v_mul_f32 v9, 0x3b000000, v9")
    bf16_round(A, 7, 7, 10)
    bf16_round(A, 9, 9, 10)
    A("v_add_f32 v9, 0x3727c5ac, v9")
    bf16_round(A, 9, 9, 10)
    A("v_sqrt_f32 v9, v9")
    bf16_round(A, 9, 9, 10)
    A("v_rcp_f32 v9, v9")
    for i in range(16):
        A(f"v_sub_f32 v{32+2*i}, v{32+2*i}, v7")
        A(f"v_sub_f32 v{33+2*i}, v{33+2*i}, v7")
        A(f"v_cvt_pk_bf16_f32 v10, v{32+2*i}, v{33+2*i}")
        A(f"v_lshlrev_b32 v{32+2*i}, 16, v10")
        A(f"v_and_b32 v{33+2*i}, 0xffff0000, v10")
        A(f"v_mul_f32 v{32+2*i}, v{32+2*i}, v9")
        A(f"v_mul_f32 v{33+2*i}, v{33+2*i}, v9")
        A(f"v_cvt_pk_bf16_f32 v{16+i}, v{32+2*i}, v{33+2*i}")

def ln_body(A, sr, soff, sc1):
    A("v_lshrrev_b32 v1, 4, v0")
    A("s_lshl_b32 s3, s3, 4")
    A("v_add_u32 v1, s3, v1")
    A("v_and_b32 v2, 15, v0")
    A("v_lshlrev_b32 v3, 10, v1")
    A("v_lshl_add_u32 v3, v2, 4, v3")
    A(f"s_mov_b32 s19, {soff}")
    for q in range(4):
        A(f"buffer_load_dwordx4 v[{16+4*q}:{19+4*q}], v3, {sr}, s19 offen offset:{q*256}")
    A("v_bfe_u32 v4, v1, 3, 2")
    A("v_and_b32 v5, 3, v1")
    A("v_lshl_add_u32 v4, v4, 2, v5")
    A("v_and_b32 v5, 3, v2")
    A("v_lshl_add_u32 v4, v5, 4, v4")
    A("v_lshlrev_b32 v4, 4, v4")
    A("v_bfe_u32 v5, v1, 2, 1")
    A("v_bfe_u32 v6, v1, 5, 2")
    A("v_lshl_add_u32 v5, v6, 1, v5")
    A("v_lshl_add_u32 v4, v5, 10, v4")
    A("v_lshrrev_b32 v5, 7, v1")
    A("v_lshrrev_b32 v6, 2, v2")
    A("v_lshl_add_u32 v5, v5, 4, v6")
    A("v_lshl_add_u32 v4, v5, 13, v4")
    A("s_waitcnt vmcnt(0)")
    ln_math(A)
    A(f"s_mov_b32 s19, {XFA}")
    for q in range(4):
        if q: A(f"s_add_u32 s19, s19, {4*8192}")
        A(f"buffer_store_dwordx4 v[{16+4*q}:{19+4*q}], v4, s[4:7], s19 offen")

def gen_prep():
    A = Asm()
    name = "prep_kernel"
    A.raw(kernel_header(name))
    mats = [("wq", 512, 4096, "qkv0"), ("wk", 512, 4096, "qkv1"), ("wv", 512, 4096, "qkv2"), ("wo", 4096, 512, "wo"),
            ("wg", 512, 1792, "gu0"), ("wu", 512, 1792, "gu1"), ("wd", 1792, 512, "wd")]
    load_ptr_srd(A, "ws", 4, WS_BYTES, 20)
    A("s_mov_b32 s16, 0x05040100")
    A("s_mov_b32 s17, 0x07060302")
    start = 0; ranges = []
    for (key, K, N, kind) in mats:
        nwg = (K // 8) * (N // 8) // 256
        ranges.append((start, nwg)); start += nwg
    fill_start = start
    nfill = (4 * MB) // 65536
    memx_start = fill_start + nfill
    memx_total = 2 * MEMX_LAYER
    nmemx = -(-memx_total // 4096)
    xcopy_start = memx_start + nmemx
    nxcopy = (2 * MB) // 65536
    cnt_start = xcopy_start + nxcopy
    ln_start = cnt_start + 1
    total_wg = ln_start + 128
    for idx, (key, K, N, kind) in enumerate(mats):
        st, nwg = ranges[idx]
        A(f"s_cmp_lt_u32 s2, {st + nwg}")
        A(f"s_cbranch_scc1 L_prep_{key}")
    A(f"s_cmp_lt_u32 s2, {memx_start}")
    A("s_cbranch_scc1 L_prep_fill")
    A(f"s_cmp_lt_u32 s2, {xcopy_start}")
    A("s_cbranch_scc1 L_prep_memx")
    A(f"s_cmp_lt_u32 s2, {cnt_start}")
    A("s_cbranch_scc1 L_prep_xcopy")
    A(f"s_cmp_lt_u32 s2, {ln_start}")
    A("s_cbranch_scc1 L_prep_cnt")
    A(f"s_cmp_lt_u32 s2, {total_wg}")
    A("s_cbranch_scc1 L_prep_ln")
    A("s_endpgm")
    for idx, (key, K, N, kind) in enumerate(mats):
        st, nwg = ranges[idx]
        A.label(f"L_prep_{key}")
        load_ptr_srd(A, key, 8, K * N * 2, 20)
        NQ = N // 8
        A(f"s_sub_u32 s3, s2, {st}")
        A("s_lshl_b32 s3, s3, 8")
        A("v_add_u32 v1, s3, v0")
        if NQ & (NQ - 1) == 0:
            sh = NQ.bit_length() - 1
            A(f"v_lshrrev_b32 v2, {sh}, v1")
            A(f"v_and_b32 v3, {NQ-1}, v1")
        else:
            m, sh = magic_div(NQ, (K // 8) * NQ)
            A(f"s_mov_b32 s18, {m}")
            A("v_mul_lo_u32 v2, s18, v1")
            A(f"v_lshrrev_b32 v2, {sh}, v2")
            A(f"s_mov_b32 s18, {NQ}")
            A("v_mul_lo_u32 v3, s18, v2")
            A("v_sub_u32 v3, v1, v3")
        A(f"s_mov_b32 s18, {N*16}")
        A("v_mul_lo_u32 v4, s18, v2")
        A("v_lshl_add_u32 v4, v3, 4, v4")
        for j in range(8):
            A(f"s_mov_b32 s19, {j*N*2}")
            A(f"buffer_load_dwordx4 v[{16+4*j}:{19+4*j}], v4, s[8:11], s19 offen")
        A("v_lshrrev_b32 v5, 2, v2")
        A("v_and_b32 v6, 3, v2")
        A("v_lshrrev_b32 v7, 2, v3")
        A("v_and_b32 v9, 3, v3")
        A("v_lshlrev_b32 v10, 6, v9")
        A("v_lshl_add_u32 v10, v6, 8, v10")
        if kind.startswith("qkv"):
            region = int(kind[3])
            A("v_lshrrev_b32 v11, 1, v7")
            A("v_and_b32 v12, 1, v7")
            A("v_lshlrev_b32 v12, 1, v12")
            A("v_mul_u32_u24 v11, 3, v11")
            A(f"v_add_u32 v11, {region}, v11")
            A("v_lshl_add_u32 v11, v11, 4, v5")
            A("v_lshl_add_u32 v11, v11, 2, v12")
            base = WQKV_F
        elif kind in ("wo", "wd"):
            KS = K // 32
            A("v_lshrrev_b32 v11, 1, v7")
            A("v_and_b32 v12, 1, v7")
            A("v_lshlrev_b32 v12, 1, v12")
            A(f"v_mul_u32_u24 v11, {KS}, v11")
            A("v_add_u32 v11, v11, v5")
            A("v_lshl_add_u32 v11, v11, 2, v12")
            base = WO_F if kind == "wo" else WD_F
        else:
            gu = int(kind[2])
            A("v_lshl_add_u32 v11, v7, 4, v5")
            A("v_lshlrev_b32 v11, 2, v11")
            A(f"v_add_u32 v11, {2*gu}, v11")
            base = WGU_F
        A("v_lshl_add_u32 v10, v11, 10, v10")
        A(f"s_mov_b32 s19, {base}")
        A("s_waitcnt vmcnt(0)")
        for r in range(8):
            dw = r >> 1; sel = "s16" if (r & 1) == 0 else "s17"
            for d in range(4):
                lo = 16 + 4 * (2 * d) + dw; hi = 16 + 4 * (2 * d + 1) + dw
                A(f"v_perm_b32 v{48+4*r+d}, v{hi}, v{lo}, {sel}")
            A(f"buffer_store_dwordx4 v[{48+4*r}:{51+4*r}], v10, s[4:7], s19 offen offset:{(r>>2)*1024 + 16*(r&3)}")
        A("s_endpgm")
    A.label("L_prep_fill")
    A(f"s_sub_u32 s3, s2, {fill_start}")
    A("s_lshl_b32 s3, s3, 16")
    A(f"s_add_u32 s3, s3, {PART}")
    A("v_lshlrev_b32 v1, 4, v0")
    for i in range(4): A(f"v_mov_b32 v{4+i}, -1")
    for i in range(16):
        A(f"buffer_store_dwordx4 v[4:7], v1, s[4:7], s3 offen")
        if i < 15: A("s_add_u32 s3, s3, 4096")
    A("s_endpgm")
    A.label("L_prep_cnt")
    A(f"s_mov_b32 s3, {CNT}")
    A("v_lshlrev_b32 v1, 4, v0")
    for i in range(4): A(f"v_mov_b32 v{4+i}, 0")
    for i in range(16):
        if i == 0:
            A("v_cmp_le_u32 vcc, 128, v0")
            A("v_cndmask_b32 v4, 0, 16, vcc")
        elif i == 3:
            A("v_cmp_le_u32 vcc, 128, v0")
            A("v_cndmask_b32 v4, 0, 32, vcc")
        elif i in (1, 4):
            A("v_mov_b32 v4, 0")
        A(f"buffer_store_dwordx4 v[4:7], v1, s[4:7], s3 offen")
        if i < 15: A("s_add_u32 s3, s3, 4096")
    A("s_endpgm")
    A.label("L_prep_ln")
    load_ptr_srd(A, "x", 8, 2 * MB, 20)
    A(f"s_sub_u32 s3, s2, {ln_start}")
    ln_body(A, "s[8:11]", 0, False)
    A("s_endpgm")
    A.label("L_prep_xcopy")
    load_ptr_srd(A, "x", 8, 2 * MB, 20)
    A(f"s_sub_u32 s3, s2, {xcopy_start}")
    A("s_lshl_b32 s3, s3, 16")
    A(f"s_add_u32 s18, s3, {XR}")
    A("v_lshlrev_b32 v1, 4, v0")
    for i in range(16):
        A(f"buffer_load_dwordx4 v[{4+4*i}:{7+4*i}], v1, s[8:11], s3 offen")
        if i < 15: A("s_add_u32 s3, s3, 4096")
    for i in range(16):
        A(f"s_waitcnt vmcnt({15-i})" if i == 0 else "s_nop 0")
        A(f"s_waitcnt vmcnt(15)")
        A(f"buffer_store_dwordx4 v[{4+4*i}:{7+4*i}], v1, s[4:7], s18 offen")
        if i < 15: A("s_add_u32 s18, s18, 4096")
    A("s_endpgm")
    A.label("L_prep_memx")
    load_ptr_srd(A, "mem0", 8, 8192, 20)
    A(f"s_sub_u32 s3, s2, {memx_start}")
    A("s_lshl_b32 s3, s3, 12")
    A("v_lshlrev_b32 v1, 4, v0")
    A("v_add_u32 v1, s3, v1")
    A(f"v_subrev_u32 v2, {MEMX_LAYER}, v1")
    A(f"v_cmp_gt_u32 vcc, {MEMX_LAYER}, v1")
    A("v_cndmask_b32 v2, v2, v1, vcc")
    A("v_lshrrev_b32 v3, 6, v2")
    A("v_bfe_u32 v4, v2, 3, 3")
    A("v_lshlrev_b32 v5, 10, v4")
    A("v_lshl_add_u32 v5, v3, 3, v5")
    A("buffer_load_dwordx2 v[8:9], v5, s[8:11], 0 offen")
    A("buffer_load_dwordx2 v[10:11], v5, s[8:11], 0 offen offset:1024")
    A("s_waitcnt vmcnt(0)")
    A(f"v_cmp_gt_u32 vcc, 8192, v2")
    for i in range(4):
        A(f"v_min_u32 v{8+i}, -2, v{8+i}")
        A(f"v_cndmask_b32 v{8+i}, -1, v{8+i}, vcc")
    A(f"v_cmp_gt_u32 vcc, {memx_total}, v1")
    A("s_and_saveexec_b64 s[22:23], vcc")
    A("s_cbranch_execz L_prep_end")
    A(f"s_mov_b32 s19, {MEMX}")
    A("buffer_store_dwordx4 v[8:11], v1, s[4:7], s19 offen")
    A.label("L_prep_end")
    A("s_endpgm")
    return name, A, total_wg, 80

WOL = 0
MEML = 131072
MROW = 1088
ZROW = MEML + 8 * MROW
SCL = ZROW + 1024
OL = SCL + 12288
MEGA_LDS = OL + 4096
assert MEGA_LDS <= 163840
END = "L_mega_end"
TMO = 0x400000

def stamp(A, idx):
    if not PROF: return
    A("s_memtime s[44:45]")
    A("s_waitcnt lgkmcnt(0)")
    A("s_sub_u32 s46, s44, s47")
    A(f"s_add_u32 s{80+idx}, s{80+idx}, s46")
    A("s_mov_b32 s47, s44")

def rendezvous(A, nwg=256):
    load_ptr_srd(A, "dbg", 8, 256, 20)
    A("s_getreg_b32 s14, hwreg(HW_REG_XCC_ID)")
    A("s_and_b32 s14, s14, 7")
    A("v_lshrrev_b32 v1, 6, v0")
    A("v_readfirstlane_b32 s13, v1")
    A("s_cmp_lg_u32 s13, 0")
    A("s_cbranch_scc1 L_rv_wait")
    A("s_lshl_b32 s15, s14, 2")
    A("v_mov_b32 v1, s15")
    A("v_mov_b32 v2, 1")
    A("s_mov_b64 exec, 1")
    A("buffer_atomic_add v2, v1, s[8:11], 0 offen sc0")
    A("s_waitcnt vmcnt(0)")
    A("v_mov_b32 v1, 0")
    A("ds_write_b32 v1, v2")
    A("s_mov_b64 exec, -1")
    A("s_waitcnt lgkmcnt(0)")
    A.label("L_rv_wait")
    A("s_barrier")
    A("v_mov_b32 v1, 0")
    A("ds_read_b32 v3, v1")
    A("v_and_b32 v4, 7, v0")
    A("v_lshlrev_b32 v4, 2, v4")
    A("s_mov_b32 s26, 0")
    A.label("L_rv_poll")
    A("buffer_load_dword v5, v4, s[8:11], 0 offen sc1")
    A("s_add_u32 s26, s26, 1")
    A(f"s_cmp_gt_u32 s26, {TMO}")
    A(f"s_cbranch_scc1 {END}")
    A("s_waitcnt vmcnt(0) lgkmcnt(0)")
    for x in range(8): A(f"v_readlane_b32 s{32+x}, v5, {x}")
    A("s_add_u32 s15, s32, s33")
    for x in range(2, 8): A(f"s_add_u32 s15, s15, s{32+x}")
    A(f"s_cmp_lg_u32 s15, {nwg}")
    A("s_cbranch_scc1 L_rv_poll")
    A("v_readfirstlane_b32 s12, v3")
    A("s_mov_b32 s30, 0")
    A("s_mov_b32 s31, 0")
    for x in range(8):
        A(f"s_cmp_lt_u32 {x}, s14")
        A(f"s_cselect_b32 s15, s{32+x}, 0")
        A("s_add_u32 s12, s12, s15")
        A(f"s_add_u32 s16, s31, s{32+x}")
        for c in range(2):
            A(f"s_cmp_le_u32 s31, {32*c}")
            A(f"s_cselect_b32 s15, {1<<c}, 0")
            A(f"s_cmp_ge_u32 s16, {32*c+32}")
            A(f"s_cselect_b32 s15, s15, 0")
            A("s_or_b32 s30, s30, s15")
        A("s_mov_b32 s31, s16")
    A("s_barrier")

def poll_counter(A, tag, soff_reg, expected, only_wave0=True):
    if only_wave0:
        A("s_cmp_lg_u32 s13, 0")
        A(f"s_cbranch_scc1 L_pc_done_{tag}")
    A("s_mov_b32 s26, 0")
    A("v_mov_b32 v126, 0")
    A.label(f"L_pc_{tag}")
    A(f"buffer_load_dword v127, v126, s[4:7], {soff_reg} offen sc1")
    A("s_add_u32 s26, s26, 1")
    A(f"s_cmp_gt_u32 s26, {TMO}")
    A(f"s_cbranch_scc1 {END}")
    A("s_waitcnt vmcnt(0)")
    A("v_readfirstlane_b32 s27, v127")
    A(f"s_cmp_ge_u32 s27, {expected}")
    A(f"s_cbranch_scc1 L_pc_done_{tag}")
    A("s_sleep 4" if only_wave0 else "s_sleep 1")
    A(f"s_branch L_pc_{tag}")
    A.label(f"L_pc_done_{tag}")
    if only_wave0:
        A("s_barrier")
        if PROF:
            A("s_memrealtime s[76:77]")
            A("s_waitcnt lgkmcnt(0)")

def poll_counter2(A, tag, soffA, expA, soffB, expB):
    A("s_cmp_lg_u32 s13, 0")
    A(f"s_cbranch_scc1 L_pc_done_{tag}")
    A("s_mov_b32 s26, 0")
    A(f"s_sub_u32 s23, {soffB}, {soffA}")
    A("v_mov_b32 v126, 0")
    A("v_writelane_b32 v126, s23, 1")
    A.label(f"L_pc_{tag}")
    A(f"buffer_load_dword v127, v126, s[4:7], {soffA} offen sc1")
    A("s_add_u32 s26, s26, 1")
    A(f"s_cmp_gt_u32 s26, {TMO}")
    A(f"s_cbranch_scc1 {END}")
    A("s_waitcnt vmcnt(0)")
    A("v_readlane_b32 s27, v127, 0")
    A("v_readlane_b32 s23, v127, 1")
    A(f"s_cmp_ge_u32 s27, {expA}")
    A("s_cselect_b32 s27, 1, 0")
    A(f"s_cmp_ge_u32 s23, {expB}")
    A("s_cselect_b32 s23, 1, 0")
    A("s_and_b32 s27, s27, s23")
    A("s_cmp_eq_u32 s27, 1")
    A(f"s_cbranch_scc1 L_pc_done_{tag}")
    A("s_sleep 4")
    A(f"s_branch L_pc_{tag}")
    A.label(f"L_pc_done_{tag}")
    A("s_barrier")

def gen_chain_role(A):
    MEMF = 16; ACC = 80; KX = 104; VX = 112; T = 120
    A("s_lshr_b32 s42, s12, 5")
    A("s_and_b32 s12, s12, 31")
    A(f"s_mul_i32 s43, s42, {LSTRIDE}")
    A("v_and_b32 v14, 63, v0")
    A("v_lshlrev_b32 v1, 4, v14")
    A("v_lshlrev_b32 v13, 3, v14")
    A("v_and_b32 v15, 15, v14")
    A("s_lshr_b32 s14, s13, 1")
    A("s_lshl_b32 s15, s12, 1")
    A("s_add_u32 s14, s14, s15")
    A("s_mul_i32 s14, s14, 196608")
    A("s_and_b32 s15, s13, 1")
    A("s_lshl_b32 s15, s15, 11")
    A("s_add_u32 s14, s14, s15")
    A(f"s_add_u32 s14, s14, {WQKV_F}")
    def wreg(ti, kk):
        if ti < 4: return a((ti * 16 + kk) * 4, 4)
        return v(128 + ((ti - 4) * 16 + kk) * 4, 4)
    cnt = 0
    for region in range(3):
        for kk in range(16):
            for t in range(2):
                A(f"buffer_load_dwordx4 {wreg(region*2+t, kk)}, v1, s[4:7], s14 offen offset:{t*1024}")
            A("s_add_u32 s14, s14, 4096")
            cnt += 2
            if cnt % 32 == 0: A("s_waitcnt vmcnt(16)")
    A("s_lshl_b32 s14, s13, 8")
    A("s_lshl_b32 s15, s12, 2")
    A("s_add_u32 s14, s14, s15")
    A("s_lshl_b32 s14, s14, 12")
    A(f"s_add_u32 s14, s14, {WO_F}")
    A("s_lshl_b32 s15, s13, 15")
    A("v_add_u32 v9, s15, v1")
    for ngl in range(2):
        for j in range(4):
            for t4 in range(4):
                A(f"buffer_load_dwordx4 v[{MEMF+16*j+4*t4}:{MEMF+16*j+4*t4+3}], v1, s[4:7], s14 offen offset:{t4*1024}")
            A(f"s_add_u32 s14, s14, {4096 if j < 3 else (128-3)*4096}")
        A("s_waitcnt vmcnt(0)")
        for j in range(4):
            for t4 in range(4):
                A(f"ds_write_b128 v9, v[{MEMF+16*j+4*t4}:{MEMF+16*j+4*t4+3}] offset:{((ngl*4+t4)*4+j)*1024}")
    for i in range(4): A(f"v_mov_b32 v{T+i}, 0")
    A(f"v_add_u32 v2, {ZROW}, v1")
    A(f"ds_write_b128 v2, v[{T}:{T+3}]")
    A("v_lshrrev_b32 v120, 4, v14")
    A("s_lshl_b32 s15, s13, 11")
    A("v_add_u32 v2, s15, v1")
    A("v_and_b32 v3, 3, v14")
    A(f"v_mul_u32_u24 v3, {2*MROW}, v3")
    A("v_lshrrev_b32 v4, 2, v14")
    A("v_lshl_add_u32 v3, v4, 3, v3")
    A("s_lshl_b32 s15, s13, 8")
    A(f"s_add_u32 s15, s15, {MEML}")
    A("v_add_u32 v3, s15, v3")
    A(f"v_mul_u32_u24 v4, {MROW}, v15")
    A(f"v_add_u32 v4, {MEML}, v4")
    A(f"v_mov_b32 v5, {ZROW}")
    A("v_cmp_gt_u32 vcc, 8, v15")
    A("v_cndmask_b32 v4, v5, v4, vcc")
    A("v_lshl_add_u32 v4, v120, 4, v4")
    A("s_mul_i32 s15, s13, 3072")
    A(f"s_add_u32 s15, s15, {SCL}")
    A("v_add_u32 v5, s15, v1")
    for (x, reg) in ((1, 6), (2, 122), (3, 123)):
        A(f"s_xor_b32 s15, s13, {x}")
        A("s_mul_i32 s15, s15, 3072")
        A(f"s_add_u32 s15, s15, {SCL}")
        A(f"v_add_u32 v{reg}, s15, v1")
    A("s_lshl_b32 s15, s13, 10")
    A(f"s_add_u32 s15, s15, {OL}")
    A("v_add_u32 v7, s15, v1")
    A(f"v_add_u32 v8, {OL}, v1")
    A("s_lshl_b32 s15, s13, 17")
    A("s_lshl_b32 s14, s12, 7")
    A("s_add_u32 s15, s15, s14")
    A("v_lshlrev_b32 v10, 13, v120")
    A("v_lshl_add_u32 v10, v15, 4, v10")
    A("v_add_u32 v10, s15, v10")
    A("s_lshl_b32 s14, s12, 2")
    A("s_add_u32 s14, s14, s13")
    A("s_lshl_b32 s15, s14, 12")
    A("v_add_u32 v11, s15, v1")
    A("s_lshl_b32 s15, s14, 6")
    A("v_add_u32 v12, s15, v13")
    A(f"s_mul_i32 s16, s42, {MEMX_LAYER}")
    A(f"s_add_u32 s16, s16, {MEMX}")
    A("s_lshl_b32 s38, s42, 21")
    A(f"s_add_u32 s38, s38, {PART}")
    A("s_mov_b32 s17, s38")
    A("s_lshl_b32 s14, s12, 2")
    A("s_add_u32 s14, s14, s13")
    A("s_lshl_b32 s14, s14, 10")
    A("s_add_u32 s14, s14, s43")
    A(f"s_add_u32 s18, s14, {KF}")
    A(f"s_add_u32 s20, s14, {KM}")
    A(f"s_add_u32 s21, s14, {VM}")
    A("s_sub_u32 s14, s14, s43")
    A("s_lshl_b32 s15, s14, 1")
    A("s_add_u32 s15, s15, s43")
    A(f"s_add_u32 s19, s15, {VF}")
    A("s_lshl_b32 s39, s42, 12")
    A(f"s_add_u32 s39, s39, {CHAIN_CNT}")
    A("s_lshl_b32 s40, s42, 14")
    A(f"s_add_u32 s40, s40, {cnt_off(0, 7, 0)}")
    A("s_mov_b32 s24, 0x00ff00ff")
    A("s_mov_b32 s25, 0x00ff00ff")
    A(f"s_mov_b32 s28, {SCALE_HEX}")
    A(f"s_mov_b32 s29, {SCALE_HEX}")
    A(f"s_mov_b32 s33, {LOG2E_HEX}")
    A(f"s_mov_b32 s31, {LOG2E_HEX | 0x80000000}")
    A("s_mov_b32 s36, -1")
    A("s_mov_b32 s37, 0")
    A("v_mov_b32 v14, v122")
    A("v_mov_b32 v15, v123")
    A("v_mov_b32 v0, 0xf149f2ca")
    A("s_mov_b32 s14, 0")
    A("s_mov_b32 s48, 0")
    A("s_mov_b32 s41, s17")
    if PROF:
        for i in range(10): A(f"s_mov_b32 s{80+i}, 0")
        A("s_memtime s[44:45]")
        A("s_waitcnt lgkmcnt(0)")
        A("s_mov_b32 s47, s44")
    A("s_waitcnt vmcnt(0) lgkmcnt(0)")
    A("s_barrier")
    A("s_lshr_b32 s15, s30, s42")
    A("s_and_b32 s15, s15, 1")
    A("s_cmp_eq_u32 s15, 1")
    A("s_cbranch_scc1 L_step_loc")
    for mode in ("glb", "loc"):
        SC = " sc1" if mode == "glb" else ""
        L = lambda x: f"L_{x}_{mode}"
        def kvload():
            A(f"buffer_load_dwordx4 v[{KX}:{KX+3}], v1, s[4:7], s18 offen sc1")
            A("s_add_u32 s22, s18, 131072")
            A(f"buffer_load_dwordx4 v[{KX+4}:{KX+7}], v1, s[4:7], s22 offen sc1")
            A(f"buffer_load_dwordx4 v[{VX}:{VX+3}], v1, s[4:7], s19 offen sc1")
            A(f"buffer_load_dwordx4 v[{VX+4}:{VX+7}], v1, s[4:7], s19 offen offset:1024 sc1")
        A.label(L("step"))
        A("s_cmp_eq_u32 s48, 1")
        A(f"s_cbranch_scc1 {L('kvok')}")
        A("s_lshr_b32 s15, s14, 1")
        A("s_lshl_b32 s15, s15, 6")
        A("s_add_u32 s15, s15, s40")
        poll_counter(A, "kv_" + mode, "s15", 32, only_wave0=False)
        kvload()
        A.label(L("kvok"))
        A("s_add_u32 s15, s14, 1")
        A("s_lshr_b32 s15, s15, 1")
        A("s_min_u32 s15, s15, 31")
        A("s_lshl_b32 s15, s15, 6")
        A("s_add_u32 s15, s15, s40")
        A(f"v_mov_b32 v{ACC+1}, 0")
        A(f"buffer_load_dword v{ACC+2}, v{ACC+1}, s[4:7], s15 offen sc1")
        A("s_mov_b32 s26, 0")
        A.label(L("poll_mem"))
        A(f"buffer_load_dwordx4 v[{T}:{T+3}], v2, s[4:7], s16 offen sc1")
        A(f"buffer_load_dwordx4 v[{T+4}:{T+7}], v2, s[4:7], s16 offen offset:1024 sc1")
        A("s_add_u32 s26, s26, 1")
        A(f"s_cmp_gt_u32 s26, {TMO}")
        A(f"s_cbranch_scc1 {END}")
        A("s_waitcnt vmcnt(0)")
        A(f"v_max3_u32 v{ACC}, v{T}, v{T+1}, v{T+2}")
        A(f"v_max3_u32 v{ACC}, v{ACC}, v{T+3}, v{T+4}")
        A(f"v_max3_u32 v{ACC}, v{ACC}, v{T+5}, v{T+6}")
        A(f"v_max_u32 v{ACC}, v{ACC}, v{T+7}")
        A(f"v_cmp_eq_u32 vcc, -1, v{ACC}")
        A("s_nop 4")
        A(f"s_cbranch_vccnz {L('poll_mem')}")
        stamp(A, 0)
        if PROF:
            A("s_memrealtime s[44:45]")
            A("s_waitcnt lgkmcnt(0)")
            A(f"v_mov_b32 v{ACC+3}, s44")
            A("s_lshl_b32 s15, s42, 6")
            A("s_add_u32 s15, s15, s14")
            A("s_lshl_b32 s15, s15, 7")
            A("s_lshl_b32 s46, s12, 2")
            A("s_add_u32 s15, s15, s46")
            A(f"s_add_u32 s15, s15, {PROFB + 3*MB}")
            A(f"buffer_store_dword v{ACC+3}, v{ACC+1}, s[4:7], s15 offen")
        A(f"v_readfirstlane_b32 s49, v{ACC+2}")
        A(f"ds_write_b64 v3, v[{T}:{T+1}]")
        A(f"ds_write_b64 v3, v[{T+2}:{T+3}] offset:{MROW}")
        A(f"ds_write_b64 v3, v[{T+4}:{T+5}] offset:128")
        A(f"ds_write_b64 v3, v[{T+6}:{T+7}] offset:{MROW+128}")
        A("s_waitcnt lgkmcnt(0)")
        A("s_barrier")
        for kk in range(16):
            A(f"ds_read_b128 v[{MEMF+4*kk}:{MEMF+4*kk+3}], v4 offset:{kk*64}")
        A("s_cmp_eq_u32 s14, 0")
        A(f"s_cbranch_scc1 {L('nodefer')}")
        for i in range(4): A(f"v_mov_b32 v{T+i}, -1")
        A(f"v_mov_b32 v{T+4}, 1")
        A(f"v_mov_b32 v{T+5}, 0")
        for i in range(4):
            A(f"buffer_store_dwordx4 v[{T}:{T+3}], v11, s[4:7], s41 offen offset:{i*1024}{SC}")
        A("s_mov_b64 exec, 1")
        A(f"buffer_atomic_add v{T+4}, v{T+5}, s[4:7], s39 offen")
        A("s_mov_b64 exec, -1")
        A("s_add_u32 s39, s39, 64")
        A.label(L("nodefer"))
        def qkv_mfma(ti, kk):
            acc = v(ACC + 4 * ti, 4); m = v(MEMF + 4 * kk, 4); w = wreg(ti, kk)
            c = "0" if kk == 0 else acc
            if ti < 4: return f"v_mfma_f32_16x16x32_bf16 {acc}, {w}, {m}, {c}"
            else:      return f"v_mfma_f32_16x16x32_bf16 {acc}, {m}, {w}, {c}"
        for kk in range(16):
            A(f"s_waitcnt lgkmcnt({15-kk})")
            for ti in range(4): A(qkv_mfma(ti, kk))
        vm = [qkv_mfma(ti, kk) for kk in range(16) for ti in (4, 5)]
        stamp(A, 1)
        QP = 120; KP = 124; S = 80
        A(vm[0]); A(vm[1]); A(vm[2]); A(vm[3])
        for i, dst in enumerate((QP, KP)):
            for half in range(2):
                b = ACC + 8 * i + 4 * half
                A(f"v_cvt_pk_bf16_f32 v{dst+2*half}, v{b}, v{b+1}")
                A(f"v_cvt_pk_bf16_f32 v{dst+2*half+1}, v{b+2}, v{b+3}")
        A(f"v_mfma_f32_16x16x32_bf16 v[{S}:{S+3}], v[{KP}:{KP+3}], v[{QP}:{QP+3}], 0")
        A(f"v_mfma_f32_16x16x32_bf16 v[{S+4}:{S+7}], v[{KX}:{KX+3}], v[{QP}:{QP+3}], 0")
        A(f"v_mfma_f32_16x16x32_bf16 v[{S+8}:{S+11}], v[{KX+4}:{KX+7}], v[{QP}:{QP+3}], 0")
        A(f"buffer_store_dwordx4 v[{KP}:{KP+3}], v1, s[4:7], s20 offen sc1")
        for i in range(4, 8): A(vm[i])
        for i in range(3):
            A(f"ds_write_b128 v5, v[{S+4*i}:{S+4*i+3}] offset:{i*1024}")
        for i in range(8, 16): A(vm[i])
        A("s_waitcnt lgkmcnt(0)")
        A("s_barrier")
        stamp(A, 2)
        R1 = 16; R2 = 28; R3r = [40, 44, 92]
        for i in range(3): A(f"ds_read_b128 v[{R1+4*i}:{R1+4*i+3}], v6 offset:{i*1024}")
        for i in range(3): A(f"ds_read_b128 v[{R2+4*i}:{R2+4*i+3}], v14 offset:{i*1024}")
        for i in range(3): A(f"ds_read_b128 v[{R3r[i]}:{R3r[i]+3}], v15 offset:{i*1024}")
        for i in range(16, 22): A(vm[i])
        va = []
        va.append("s_waitcnt lgkmcnt(6)")
        for i in range(0, 12, 2): va.append(f"v_pk_add_f32 v[{S+i}:{S+i+1}], v[{S+i}:{S+i+1}], v[{R1+i}:{R1+i+1}]")
        va.append("s_waitcnt lgkmcnt(0)")
        for i in range(0, 12, 2):
            r3 = R3r[i // 4] + (i % 4)
            va.append(f"v_pk_add_f32 v[{R2+i}:{R2+i+1}], v[{R2+i}:{R2+i+1}], v[{r3}:{r3+1}]")
        for i in range(0, 12, 2): va.append(f"v_pk_add_f32 v[{S+i}:{S+i+1}], v[{S+i}:{S+i+1}], v[{R2+i}:{R2+i+1}]")
        TT = 16
        for i in range(0, 12, 2): va.append(f"v_cvt_pk_bf16_f32 v{TT+i//2}, v{S+i}, v{S+i+1}")
        for i in range(0, 12, 2):
            va.append(f"v_lshlrev_b32 v{S+i}, 16, v{TT+i//2}")
            va.append(f"v_and_b32 v{S+i+1}, 0xffff0000, v{TT+i//2}")
        for i in range(0, 12, 2): va.append(f"v_pk_mul_f32 v[{S+i}:{S+i+1}], v[{S+i}:{S+i+1}], s[28:29]")
        for i in range(0, 12, 2): va.append(f"v_cvt_pk_bf16_f32 v{TT+i//2}, v{S+i}, v{S+i+1}")
        for i in range(0, 12, 2):
            va.append(f"v_lshlrev_b32 v{S+i}, 16, v{TT+i//2}")
            va.append(f"v_and_b32 v{S+i+1}, 0xffff0000, v{TT+i//2}")
        for i in range(4): va.append(f"v_cndmask_b32 v{S+i}, v0, v{S+i}, s[36:37]")
        MX = 22; MT = 23
        va.append(f"v_max3_f32 v{MX}, v{S}, v{S+1}, v{S+2}")
        va.append(f"v_max3_f32 v{MT}, v{S+3}, v{S+4}, v{S+5}")
        va.append(f"v_max3_f32 v{MX}, v{MX}, v{S+6}, v{S+7}")
        va.append(f"v_max3_f32 v{MT}, v{MT}, v{S+8}, v{S+9}")
        va.append(f"v_max3_f32 v{MX}, v{MX}, v{S+10}, v{S+11}")
        va.append(f"v_max_f32 v{MX}, v{MX}, v{MT}")
        rest = vm[22:]
        k = 0
        for idx, ins in enumerate(va):
            A(ins)
            if idx % 3 == 2 and k < len(rest):
                A(rest[k]); k += 1
        while k < len(rest): A(rest[k]); k += 1
        xlane(A, MX, MT, ("p16", "p32"), "v_max_f32")
        A(f"v_mul_f32 v{MX}, s31, v{MX}")
        for i in range(12): A(f"v_fma_f32 v{S+i}, v{S+i}, s33, v{MX}")
        WOF = 32; VP = 24
        for half in range(2):
            b = ACC + 16 + 4 * half
            A(f"v_cvt_pk_bf16_f32 v{VP+2*half}, v{b}, v{b+1}")
            A(f"v_cvt_pk_bf16_f32 v{VP+2*half+1}, v{b+2}, v{b+3}")
        for i in range(12): A(f"v_exp_f32 v{S+i}, v{S+i}")
        for t in range(3):
            for j in range(4):
                A(f"ds_read_b128 v[{WOF+16*t+4*j}:{WOF+16*t+4*j+3}], v9 offset:{(t*4+j)*1024}")
        A(f"buffer_store_dwordx2 v[{VP}:{VP+1}], v13, s[4:7], s21 offen sc1")
        A(f"buffer_store_dwordx2 v[{VP+2}:{VP+3}], v13, s[4:7], s21 offen offset:512 sc1")
        for i in range(0, 12, 4):
            A(f"v_pk_add_f32 v[{TT+i//2}:{TT+i//2+1}], v[{S+i}:{S+i+1}], v[{S+i+2}:{S+i+3}]")
        A(f"v_pk_add_f32 v[{TT}:{TT+1}], v[{TT}:{TT+1}], v[{TT+2}:{TT+3}]")
        A(f"v_pk_add_f32 v[{TT}:{TT+1}], v[{TT}:{TT+1}], v[{TT+4}:{TT+5}]")
        A(f"v_add_f32 v{MX}, v{TT}, v{TT+1}")
        xlane(A, MX, MT, ("p16", "p32"))
        A(f"v_rcp_f32 v{MX}, v{MX}")
        A(f"v_mov_b32 v{MT}, v{MX}")
        for i in range(0, 12, 2): A(f"v_pk_mul_f32 v[{S+i}:{S+i+1}], v[{S+i}:{S+i+1}], v[{MX}:{MX+1}]")
        PM = 16; PT = 18
        A(f"v_cvt_pk_bf16_f32 v{PM}, v{S}, v{S+1}")
        A(f"v_cvt_pk_bf16_f32 v{PM+1}, v{S+2}, v{S+3}")
        for i in range(4): A(f"v_cvt_pk_bf16_f32 v{PT+i}, v{S+4+2*i}, v{S+5+2*i}")
        O = 96
        for t in range(2):
            A(f"v_mfma_f32_16x16x32_bf16 v[{O+4*t}:{O+4*t+3}], v[{VX+4*t}:{VX+4*t+3}], v[{PT}:{PT+3}], 0")
        for t in range(2):
            A(f"v_mfma_f32_16x16x16_bf16 v[{O+4*t}:{O+4*t+3}], v[{VP+2*t}:{VP+2*t+1}], v[{PM}:{PM+1}], v[{O+4*t}:{O+4*t+3}]")
        for j in range(4):
            A(f"ds_read_b128 v[{80+4*j}:{83+4*j}], v9 offset:{(3*4+j)*1024}")
        A("s_add_u32 s18, s18, 262144")
        A("s_add_u32 s19, s19, 262144")
        A("s_mov_b32 s48, 0")
        A("s_cmp_lt_u32 s49, 32")
        A(f"s_cbranch_scc1 {L('nopref')}")
        A("s_cmp_ge_u32 s14, 63")
        A(f"s_cbranch_scc1 {L('nopref')}")
        A("s_mov_b32 s48, 1")
        A("s_nop 4")
        kvload()
        A.label(L("nopref"))
        OP = 120
        for t in range(2):
            A(f"v_cvt_pk_bf16_f32 v{OP+2*t}, v{O+4*t}, v{O+4*t+1}")
            A(f"v_cvt_pk_bf16_f32 v{OP+2*t+1}, v{O+4*t+2}, v{O+4*t+3}")
        A(f"ds_write_b128 v7, v[{OP}:{OP+3}]")
        A("s_waitcnt lgkmcnt(0)")
        A("s_barrier")
        stamp(A, 3)
        OFR = 16
        for j in range(4):
            A(f"ds_read_b128 v[{OFR+4*j}:{OFR+4*j+3}], v8 offset:{j*1024}")
        wof = lambda t, j: (WOF + 16 * t + 4 * j) if t < 3 else (80 + 4 * j)
        RES = [96, 100, 120, 124]
        def store_part(t, reg):
            A(f"s_add_u32 s22, s17, {(8*(t>>1)+(t&1))*4096}")
            A(f"buffer_store_dwordx4 v[{reg}:{reg+3}], v10, s[4:7], s22 offen{SC}")
        for j in range(4):
            A(f"s_waitcnt lgkmcnt({3-j + 4*j})")
            for t in range(4):
                acc = v(RES[t], 4)
                A(f"v_mfma_f32_16x16x32_bf16 {acc}, v[{wof(t,j)}:{wof(t,j)+3}], v[{OFR+4*j}:{OFR+4*j+3}], {'0' if j==0 else acc}")
            for t in range(4):
                A(f"ds_read_b128 v[{wof(t,j)}:{wof(t,j)+3}], v9 offset:{((t+4)*4+j)*1024}")
        A("s_mov_b64 exec, s[24:25]")
        for t in range(4): store_part(t, RES[t])
        A("s_mov_b64 exec, -1")
        for j in range(4):
            A(f"s_waitcnt lgkmcnt({12-4*j})")
            for t in range(4):
                acc = v(RES[t], 4)
                A(f"v_mfma_f32_16x16x32_bf16 {acc}, v[{wof(t,j)}:{wof(t,j)+3}], v[{OFR+4*j}:{OFR+4*j+3}], {'0' if j==0 else acc}")
        A("s_mov_b64 exec, s[24:25]")
        for t in range(4): store_part(4 + t, RES[t])
        A("s_mov_b64 exec, -1")
        stamp(A, 4)
        P = 40
        A("s_mov_b32 s26, 0")
        A.label(L("poll_part"))
        for i in range(4):
            A(f"buffer_load_dwordx4 v[{P+4*i}:{P+4*i+3}], v11, s[4:7], s17 offen offset:{i*1024} sc1")
        A("s_add_u32 s26, s26, 1")
        A(f"s_cmp_gt_u32 s26, {TMO}")
        A(f"s_cbranch_scc1 {END}")
        A("s_waitcnt vmcnt(0)")
        A(f"v_max3_u32 v{P+16}, v{P}, v{P+1}, v{P+2}")
        for i in range(3, 15, 2): A(f"v_max3_u32 v{P+16}, v{P+16}, v{P+i}, v{P+i+1}")
        A(f"v_max_u32 v{P+16}, v{P+16}, v{P+15}")
        A(f"v_cmp_eq_u32 vcc, -1, v{P+16}")
        A("s_nop 4")
        A(f"s_cbranch_vccnz {L('poll_part')}")
        stamp(A, 5)
        for c in range(4):
            A(f"v_add_f32 v{P+c}, v{P+c}, v{P+4+c}")
            A(f"v_add_f32 v{P+8+c}, v{P+8+c}, v{P+12+c}")
        for c in range(4): A(f"v_add_f32 v{P+c}, v{P+c}, v{P+8+c}")
        for c in range(4): xlane(A, P + c, P + 16 + c)
        A(f"v_cvt_pk_bf16_f32 v{P+20}, v{P}, v{P+1}")
        A(f"v_cvt_pk_bf16_f32 v{P+21}, v{P+2}, v{P+3}")
        A(f"v_min_u32 v{P+20}, -2, v{P+20}")
        A(f"v_min_u32 v{P+21}, -2, v{P+21}")
        A("s_add_u32 s16, s16, 8192")
        A("s_mov_b64 exec, 0xff")
        A(f"buffer_store_dwordx2 v[{P+20}:{P+21}], v12, s[4:7], s16 offen{SC}")
        A("s_mov_b64 exec, -1")
        A("s_mov_b32 s41, s17")
        A("s_add_u32 s14, s14, 1")
        A("s_and_b32 s15, s14, 3")
        A("s_lshl_b32 s15, s15, 19")
        A("s_add_u32 s17, s38, s15")
        A("s_add_u32 s20, s20, 131072")
        A("s_add_u32 s21, s21, 131072")
        stamp(A, 6)
        A("s_cmp_lt_u32 s14, 64")
        A(f"s_cbranch_scc1 {L('step')}")
        A(f"v_mov_b32 v{T+4}, 1")
        A(f"v_mov_b32 v{T+5}, 0")
        A("s_mov_b64 exec, 1")
        A(f"buffer_atomic_add v{T+4}, v{T+5}, s[4:7], s39 offen")
        A("s_mov_b64 exec, -1")
        if PROF:
            A("s_lshl_b32 s15, s12, 2")
            A("s_add_u32 s15, s15, s13")
            A("s_lshl_b32 s15, s15, 6")
            A("s_lshl_b32 s16, s42, 16")
            A("s_add_u32 s15, s15, s16")
            A(f"s_add_u32 s15, s15, {PROFB}")
            A("v_mov_b32 v1, 0")
            for i in range(8):
                A(f"v_mov_b32 v2, s{80+i}")
                A(f"buffer_store_dword v2, v1, s[4:7], s15 offen offset:{4*i}")
                A("s_nop 1")
            A("v_mov_b32 v2, s30")
            A(f"buffer_store_dword v2, v1, s[4:7], s15 offen offset:32")
        A("s_endpgm")

def cnt_addr(A, dst, stage, layer_reg="s42"):
    A(f"s_lshl_b32 s{dst}, {layer_reg}, 8")
    A(f"s_add_u32 s{dst}, s{dst}, s40")
    A(f"s_lshl_b32 s{dst}, s{dst}, 6")
    A(f"s_add_u32 s{dst}, s{dst}, {cnt_off(0, stage, 0)}")

def signal(A, stage):
    A("s_waitcnt vmcnt(0) lgkmcnt(0)")
    A("s_barrier")
    A("s_cmp_lg_u32 s13, 0")
    A("s_cbranch_scc1 L_wloop")
    if PROF:
        A("s_memrealtime s[78:79]")
        A("s_waitcnt lgkmcnt(0)")
        A("v_mov_b32 v120, s72")
        A("v_mov_b32 v121, s74")
        A("v_mov_b32 v122, s76")
        A("v_mov_b32 v123, s78")
        A("v_mov_b32 v126, 0")
        A("s_mov_b64 exec, 1")
        A("buffer_store_dwordx4 v[120:123], v126, s[4:7], s69 offen")
        A("s_mov_b64 exec, -1")
        A("s_add_u32 s69, s69, 16")
    cnt_addr(A, 22, stage)
    A("v_mov_b32 v126, 0")
    A("v_mov_b32 v127, 1")
    A("s_mov_b64 exec, 1")
    A("buffer_atomic_add v127, v126, s[4:7], s22 offen")
    A("s_mov_b64 exec, -1")
    A("s_branch L_wloop")

def stage_ln(A, which):
    tag = f"ln{which}"
    if which == 0:
        A("s_cmp_eq_u32 s42, 0")
        A(f"s_cbranch_scc1 L_{tag}_nodep")
        A("s_mov_b32 s23, 0")
        cnt_addr(A, 22, 6, "s23")
        poll_counter(A, tag, "s22", 32)
        A.label(f"L_{tag}_nodep")
    else:
        cnt_addr(A, 22, 3)
        poll_counter(A, tag, "s22", 32)
    A("s_lshl_b32 s23, s42, 1")
    A(f"s_add_u32 s23, s23, {which}")
    A("s_lshl_b32 s23, s23, 21")
    A(f"s_add_u32 s19, s23, {XR}")
    A(f"s_add_u32 s18, s23, {XFA}")
    A("v_lshrrev_b32 v1, 4, v0")
    A("s_lshl_b32 s3, s40, 6")
    A("s_lshl_b32 s15, s41, 5")
    A("s_add_u32 s3, s3, s15")
    A("v_add_u32 v1, s3, v1")
    A("v_and_b32 v2, 15, v0")
    A("v_lshlrev_b32 v3, 10, v1")
    A("v_lshl_add_u32 v3, v2, 4, v3")
    for q in range(4):
        A(f"buffer_load_dwordx4 v[{16+4*q}:{19+4*q}], v3, s[4:7], s19 offen offset:{q*256} sc1")
    A("s_add_u32 s19, s19, 16384")
    for q in range(4):
        A(f"buffer_load_dwordx4 v[{64+4*q}:{67+4*q}], v3, s[4:7], s19 offen offset:{q*256} sc1")
    A("v_bfe_u32 v4, v1, 3, 2")
    A("v_and_b32 v5, 3, v1")
    A("v_lshl_add_u32 v4, v4, 2, v5")
    A("v_and_b32 v5, 3, v2")
    A("v_lshl_add_u32 v4, v5, 4, v4")
    A("v_lshlrev_b32 v4, 4, v4")
    A("v_bfe_u32 v5, v1, 2, 1")
    A("v_bfe_u32 v6, v1, 5, 1")
    A("v_lshl_add_u32 v5, v6, 1, v5")
    A("v_lshl_add_u32 v4, v5, 10, v4")
    A("v_lshrrev_b32 v5, 6, v1")
    A("v_lshrrev_b32 v6, 2, v2")
    A("v_lshl_add_u32 v5, v5, 4, v6")
    A("v_lshl_add_u32 v4, v5, 12, v4")
    for it in range(2):
        A(f"s_waitcnt vmcnt({4 if it == 0 else 4})")
        if it == 1:
            for i in range(16): A(f"v_mov_b32 v{16+i}, v{64+i}")
        ln_math(A)
        for q in range(4):
            A(f"s_add_u32 s20, s18, {q*4*4096 + it*128}")
            A(f"buffer_store_dwordx4 v[{16+4*q}:{19+4*q}], v4, s[4:7], s20 offen sc1")
    signal(A, 0 if which == 0 else 4)

XB = 8; WB = 40; TMPX = 104; ACCW = 168

def ta_prologue(A, tag, which, dep_stage):
    A("v_and_b32 v4, 63, v0")
    A("v_lshlrev_b32 v4, 4, v4")
    A("s_bitcmp0_b32 s72, 16")
    A(f"s_cbranch_scc1 L_{tag}_nopre")
    for kk in range(16):
        for t in range(4):
            A(f"buffer_load_dwordx4 a[{(kk*4+t)*4}:{(kk*4+t)*4+3}], v4, s[4:7], s15 offen offset:{t*1024}")
        A("s_add_u32 s15, s15, 4096")
    A.label(f"L_{tag}_nopre")
    cnt_addr(A, 22, dep_stage)
    poll_counter(A, tag, "s22", 2)
    A("v_lshlrev_b32 v1, 4, v0")
    A("s_lshl_b32 s23, s42, 1")
    A(f"s_add_u32 s23, s23, {which}")
    A("s_lshl_b32 s23, s23, 21")
    A("s_lshl_b32 s19, s40, 16")
    A("s_add_u32 s19, s19, s23")
    A(f"s_add_u32 s19, s19, {XFA}")
    for i in range(16):
        A(f"buffer_load_dwordx4 v[{TMPX+4*i}:{TMPX+4*i+3}], v1, s[4:7], s19 offen sc1")
        if i < 15: A("s_add_u32 s19, s19, 4096")
    for i in range(16):
        A(f"s_waitcnt vmcnt({15-i})")
        A(f"ds_write_b128 v1, v[{TMPX+4*i}:{TMPX+4*i+3}] offset:{i*4096}")
    A("v_mov_b32 v5, v4")
    A("s_waitcnt lgkmcnt(0)")
    A("s_barrier")

def ta_xread(A, buf, koff):
    for mt in range(4):
        A(f"ds_read_b128 v[{XB+16*buf+4*mt}:{XB+16*buf+4*mt+3}], v5 offset:{koff*4096+mt*1024}")

def ta_kloop(A, vtype):
    NB = 3
    ta_xread(A, 0, 0); ta_xread(A, 1, 1)
    for kk in range(16):
        if kk + 2 < 16: ta_xread(A, (kk + 2) % NB, kk + 2)
        lg = min(8, 4 * (15 - kk))
        A(f"s_waitcnt lgkmcnt({lg})")
        for ct in range(4):
            for mt in range(4):
                w = a((kk * 4 + ct) * 4, 4); x = v(XB + 16 * (kk % NB) + 4 * mt, 4)
                acc = v(ACCW + (ct * 4 + mt) * 4, 4)
                c = "0" if kk == 0 else acc
                if vtype: A(f"v_mfma_f32_16x16x32_bf16 {acc}, {x}, {w}, {c}")
                else:     A(f"v_mfma_f32_16x16x32_bf16 {acc}, {w}, {x}, {c}")

def stage_q(A):
    A("s_and_b32 s16, s41, 15")
    A("s_lshl_b32 s16, s16, 2")
    A("s_add_u32 s16, s16, s13")
    A("s_lshr_b32 s17, s41, 4")
    A("s_add_u32 s18, s17, 1")
    A("s_cmp_eq_u32 s17, 2")
    A("s_cselect_b32 s18, 0, s18")
    A("s_mul_i32 s15, s16, 3")
    A("s_add_u32 s15, s15, s18")
    A("s_lshl_b32 s15, s15, 16")
    A(f"s_add_u32 s15, s15, {WQKV_F}")
    ta_prologue(A, "q", 0, 0)
    A("s_cmp_eq_u32 s17, 1")
    A("s_cbranch_scc1 L_q_v")
    ta_kloop(A, False)
    A("s_lshl_b32 s19, s40, 7")
    A("s_lshr_b32 s20, s16, 1")
    A("s_add_u32 s19, s19, s20")
    A("s_lshl_b32 s19, s19, 2")
    A("s_and_b32 s20, s16, 1")
    A("s_lshl_b32 s20, s20, 1")
    A("s_add_u32 s19, s19, s20")
    A("s_lshl_b32 s19, s19, 10")
    A("s_add_u32 s19, s19, s43")
    A(f"s_mov_b32 s20, {KF}")
    A("s_cmp_eq_u32 s17, 2")
    A(f"s_cselect_b32 s20, {QF}, s20")
    A("s_add_u32 s19, s19, s20")
    for mt in range(4):
        for cp in range(2):
            pk = TMPX + 4 * (mt * 2 + cp)
            for half in range(2):
                b = ACCW + ((2 * cp + half) * 4 + mt) * 4
                A(f"v_cvt_pk_bf16_f32 v{pk+2*half}, v{b}, v{b+1}")
                A(f"v_cvt_pk_bf16_f32 v{pk+2*half+1}, v{b+2}, v{b+3}")
            A(f"buffer_store_dwordx4 v[{pk}:{pk+3}], v4, s[4:7], s19 offen offset:{cp*1024} sc1")
        if mt < 3: A("s_add_u32 s19, s19, 131072")
    A("s_cmp_eq_u32 s17, 2")
    A("s_cbranch_scc1 L_q_sigq")
    signal(A, 7)
    A.label("L_q_sigq")
    signal(A, 1)
    A.label("L_q_v")
    ta_kloop(A, True)
    A("s_lshl_b32 s19, s40, 6")
    A("s_lshr_b32 s20, s16, 1")
    A("s_add_u32 s19, s19, s20")
    A("s_lshl_b32 s19, s19, 3")
    A("s_and_b32 s20, s16, 1")
    A("s_lshl_b32 s20, s20, 2")
    A("s_add_u32 s19, s19, s20")
    A("s_lshl_b32 s19, s19, 10")
    A("s_add_u32 s19, s19, s43")
    A(f"s_add_u32 s19, s19, {VF}")
    for sg in range(2):
        for ct in range(4):
            pk = TMPX + 4 * (sg * 4 + ct)
            for half in range(2):
                b = ACCW + (ct * 4 + 2 * sg + half) * 4
                A(f"v_cvt_pk_bf16_f32 v{pk+2*half}, v{b}, v{b+1}")
                A(f"v_cvt_pk_bf16_f32 v{pk+2*half+1}, v{b+2}, v{b+3}")
            A(f"buffer_store_dwordx4 v[{pk}:{pk+3}], v4, s[4:7], s19 offen offset:{ct*1024} sc1")
        if sg < 1: A("s_add_u32 s19, s19, 262144")
    signal(A, 7)

def stage_g(A):
    A("s_lshl_b32 s16, s41, 2")
    A("s_add_u32 s16, s16, s13")
    A("s_lshl_b32 s15, s16, 16")
    A(f"s_add_u32 s15, s15, {WGU_F}")
    ta_prologue(A, "g", 1, 4)
    ta_kloop(A, False)
    A("s_mul_i32 s19, s40, 56")
    A("s_add_u32 s19, s19, s16")
    A("s_lshl_b32 s19, s19, 12")
    A("s_add_u32 s19, s19, s43")
    A(f"s_add_u32 s19, s19, {HF}")
    c2 = struct.unpack("<I", struct.pack("<f", -2.0 * math.sqrt(2.0 / math.pi) * math.log2(math.e)))[0]
    A("s_mov_b32 s28, 0x3d372713")
    A(f"s_mov_b32 s29, {c2}")
    Tm = 8
    for mt in range(4):
        pk = TMPX + 4 * mt
        G = [ACCW + (half * 4 + mt) * 4 + i for half in range(2) for i in range(4)]
        U = [ACCW + ((2 + half) * 4 + mt) * 4 + i for half in range(2) for i in range(4)]
        for i in range(0, 8, 2):
            A(f"v_cvt_pk_bf16_f32 v{Tm}, v{G[i]}, v{G[i+1]}")
            A(f"v_lshlrev_b32 v{G[i]}, 16, v{Tm}")
            A(f"v_and_b32 v{G[i+1]}, 0xffff0000, v{Tm}")
            A(f"v_cvt_pk_bf16_f32 v{Tm}, v{U[i]}, v{U[i+1]}")
            A(f"v_lshlrev_b32 v{U[i]}, 16, v{Tm}")
            A(f"v_and_b32 v{U[i+1]}, 0xffff0000, v{Tm}")
        for i in range(8):
            t = Tm + 1 + i
            A(f"v_mul_f32 v{t}, v{G[i]}, v{G[i]}")
            A(f"v_mul_f32 v{t}, s28, v{t}")
            A(f"v_fma_f32 v{t}, v{t}, v{G[i]}, v{G[i]}")
            A(f"v_mul_f32 v{t}, s29, v{t}")
            A(f"v_exp_f32 v{t}, v{t}")
        for i in range(8):
            t = Tm + 1 + i
            A(f"v_add_f32 v{t}, 1.0, v{t}")
            A(f"v_rcp_f32 v{t}, v{t}")
        for i in range(8):
            A(f"v_mul_f32 v{G[i]}, v{G[i]}, v{Tm+1+i}")
        for i in range(0, 8, 2):
            A(f"v_cvt_pk_bf16_f32 v{Tm}, v{G[i]}, v{G[i+1]}")
            A(f"v_lshlrev_b32 v{G[i]}, 16, v{Tm}")
            A(f"v_and_b32 v{G[i+1]}, 0xffff0000, v{Tm}")
            A(f"v_mul_f32 v{G[i]}, v{G[i]}, v{U[i]}")
            A(f"v_mul_f32 v{G[i+1]}, v{G[i+1]}, v{U[i+1]}")
            A(f"v_cvt_pk_bf16_f32 v{pk+i//2}, v{G[i]}, v{G[i+1]}")
        A(f"buffer_store_dwordx4 v[{pk}:{pk+3}], v4, s[4:7], s19 offen offset:{mt*1024} sc1")
    signal(A, 5)

def stage_attn(A):
    A("s_lshl_b32 s12, s40, 1")
    A("s_lshr_b32 s14, s41, 2")
    A("s_add_u32 s12, s12, s14")
    A("s_and_b32 s14, s41, 3")
    A("s_lshl_b32 s14, s14, 3")
    A("s_lshl_b32 s15, s13, 1")
    A("s_add_u32 s14, s14, s15")
    A("s_cmp_eq_u32 s42, 0")
    A("s_cbranch_scc1 L_a_nodep")
    cnt_addr(A, 22, 1)
    cnt_addr(A, 21, 7)
    poll_counter2(A, "a1", "s22", 16, "s21", 32)
    A.label("L_a_nodep")
    A("v_and_b32 v14, 63, v0")
    A("v_lshlrev_b32 v1, 4, v14")
    A("v_lshlrev_b32 v13, 3, v14")
    S = 144; T = 168; O = 176
    def R(hh, kind, i, n):
        base = {"Q": 16, "K": 48, "KM": 80, "V": 96, "VM": 128}[kind]
        if hh == 0:
            r = base + i
            if kind == "V" and i >= 28: r = 240 + (i - 28)
            return v(r, n)
        abase = {"Q": 0, "K": 32, "V": 64, "KM": 96, "VM": 112}[kind]
        return a(abase + i, n)
    for hh in range(2):
        A("s_lshl_b32 s15, s12, 6")
        A("s_add_u32 s15, s15, s14")
        A(f"s_add_u32 s15, s15, {hh}")
        A("s_lshl_b32 s15, s15, 12")
        A("s_add_u32 s15, s15, s43")
        A(f"s_add_u32 s16, s15, {QF}")
        A(f"s_add_u32 s17, s15, {KF}")
        for t in range(2):
            for j in range(4):
                A(f"buffer_load_dwordx4 {R(hh,'Q',16*t+4*j,4)}, v1, s[4:7], s16 offen offset:{j*1024} sc1")
                A(f"buffer_load_dwordx4 {R(hh,'K',16*t+4*j,4)}, v1, s[4:7], s17 offen offset:{j*1024} sc1")
            if t == 0:
                A("s_add_u32 s16, s16, 131072")
                A("s_add_u32 s17, s17, 131072")
        A("s_lshl_b32 s15, s12, 5")
        A("s_add_u32 s15, s15, s14")
        A(f"s_add_u32 s15, s15, {hh}")
        A("s_lshl_b32 s16, s15, 13")
        A("s_add_u32 s16, s16, s43")
        A(f"s_add_u32 s16, s16, {VF}")
        for et in range(8):
            if et == 4: A("s_add_u32 s16, s16, 4096")
            A(f"buffer_load_dwordx4 {R(hh,'V',4*et,4)}, v1, s[4:7], s16 offen offset:{(et&3)*1024} sc1")
    A("s_lshl_b32 s22, s42, 6")
    A("s_add_u32 s22, s22, s12")
    A("s_lshl_b32 s22, s22, 6")
    A(f"s_add_u32 s22, s22, {CHAIN_CNT}")
    poll_counter(A, "a2", "s22", 128)
    for hh in range(2):
        A("s_lshl_b32 s15, s12, 5")
        A("s_add_u32 s15, s15, s14")
        A(f"s_add_u32 s15, s15, {hh}")
        A("s_lshl_b32 s16, s15, 12")
        A("s_add_u32 s16, s16, s43")
        A(f"s_add_u32 s18, s16, {VM}")
        A(f"s_add_u32 s16, s16, {KM}")
        for j in range(4):
            A(f"buffer_load_dwordx4 {R(hh,'KM',4*j,4)}, v1, s[4:7], s16 offen offset:{j*1024} sc1")
        for et in range(8):
            A(f"buffer_load_dwordx2 {R(hh,'VM',2*et,2)}, v13, s[4:7], s18 offen offset:{et*512} sc1")
    A(f"s_mov_b32 s28, {SCALE_HEX}")
    A(f"s_mov_b32 s29, {LOG2E_HEX}")
    A("v_and_b32 v15, 15, v14")
    A("v_lshrrev_b32 v2, 2, v15")
    A("v_and_b32 v3, 3, v15")
    A("v_lshl_add_u32 v2, v2, 3, v3")
    A("v_lshrrev_b32 v3, 4, v14")
    A("v_lshlrev_b32 v3, 3, v3")
    A("v_sub_u32 v2, v2, v3")
    A("s_lshl_b32 s16, s40, 7")
    A("s_lshl_b32 s17, s14, 2")
    A("s_add_u32 s16, s16, s17")
    A("s_lshl_b32 s16, s16, 2")
    A("s_and_b32 s17, s12, 1")
    A("s_lshl_b32 s17, s17, 1")
    A("s_add_u32 s16, s16, s17")
    A("s_lshl_b32 s16, s16, 10")
    A("s_add_u32 s16, s16, s43")
    A(f"s_add_u32 s16, s16, {OF}")
    A(f"v_mov_b32 v{T+7}, 0xf149f2ca")
    for hh in range(2):
        A(f"s_waitcnt vmcnt({20 if hh == 0 else 16})")
        for tq in range(2):
            for j in range(4):
                for kt in range(3):
                    src = R(hh, 'KM', 4 * j, 4) if kt == 0 else R(hh, 'K', 16 * (kt - 1) + 4 * j, 4)
                    acc = v(S + 12 * tq + 4 * kt, 4)
                    A(f"v_mfma_f32_16x16x32_bf16 {acc}, {src}, {R(hh,'Q',16*tq+4*j,4)}, {'0' if j==0 else acc}")
        A(f"s_waitcnt vmcnt({12 if hh == 0 else 8})")
        for tq in range(2):
            Sq = S + 12 * tq
            for i in range(0, 12, 2):
                A(f"v_cvt_pk_bf16_f32 v{T}, v{Sq+i}, v{Sq+i+1}")
                A(f"v_lshlrev_b32 v{Sq+i}, 16, v{T}")
                A(f"v_and_b32 v{Sq+i+1}, 0xffff0000, v{T}")
                A(f"v_mul_f32 v{Sq+i}, s28, v{Sq+i}")
                A(f"v_mul_f32 v{Sq+i+1}, s28, v{Sq+i+1}")
                A(f"v_cvt_pk_bf16_f32 v{T}, v{Sq+i}, v{Sq+i+1}")
                A(f"v_lshlrev_b32 v{Sq+i}, 16, v{T}")
                A(f"v_and_b32 v{Sq+i+1}, 0xffff0000, v{T}")
            A("v_cmp_gt_u32 vcc, 32, v14")
            for i in range(4): A(f"v_cndmask_b32 v{Sq+i}, v{T+7}, v{Sq+i}, vcc")
            for tk in range(2):
                for r in range(4):
                    A(f"v_cmp_le_i32 vcc, {r + 4*tk - 4*tq}, v2")
                    A(f"v_cndmask_b32 v{Sq+4+4*tk+r}, v{T+7}, v{Sq+4+4*tk+r}, vcc")
            A(f"v_max3_f32 v{T+1}, v{Sq}, v{Sq+1}, v{Sq+2}")
            for i in range(3, 11, 2): A(f"v_max3_f32 v{T+1}, v{T+1}, v{Sq+i}, v{Sq+i+1}")
            A(f"v_max_f32 v{T+1}, v{T+1}, v{Sq+11}")
            xlane(A, T + 1, T + 2, ("p16", "p32"), "v_max_f32")
            for i in range(12):
                A(f"v_sub_f32 v{Sq+i}, v{Sq+i}, v{T+1}")
                A(f"v_mul_f32 v{Sq+i}, s29, v{Sq+i}")
                A(f"v_exp_f32 v{Sq+i}, v{Sq+i}")
            A(f"v_add_f32 v{T+1}, v{Sq}, v{Sq+1}")
            for i in range(2, 12): A(f"v_add_f32 v{T+1}, v{T+1}, v{Sq+i}")
            xlane(A, T + 1, T + 2, ("p16", "p32"))
            A(f"v_rcp_f32 v{T+1}, v{T+1}")
            for i in range(12): A(f"v_mul_f32 v{Sq+i}, v{Sq+i}, v{T+1}")
            PM = T + 2; PT = 4
            A(f"v_cvt_pk_bf16_f32 v{PM}, v{Sq}, v{Sq+1}")
            A(f"v_cvt_pk_bf16_f32 v{PM+1}, v{Sq+2}, v{Sq+3}")
            for i in range(4): A(f"v_cvt_pk_bf16_f32 v{PT+i}, v{Sq+4+2*i}, v{Sq+5+2*i}")
            for et in range(8):
                A(f"v_mfma_f32_16x16x32_bf16 v[{O+4*et}:{O+4*et+3}], {R(hh,'V',4*et,4)}, v[{PT}:{PT+3}], 0")
            for et in range(8):
                A(f"v_mfma_f32_16x16x16_bf16 v[{O+4*et}:{O+4*et+3}], {R(hh,'VM',2*et,2)}, v[{PM}:{PM+1}], v[{O+4*et}:{O+4*et+3}]")
            PKO = 208 + 16 * tq
            for j in range(4):
                for half in range(2):
                    b = O + 8 * j + 4 * half
                    A(f"v_cvt_pk_bf16_f32 v{PKO+4*j+2*half}, v{b}, v{b+1}")
                    A(f"v_cvt_pk_bf16_f32 v{PKO+4*j+2*half+1}, v{b+2}, v{b+3}")
                A(f"s_add_u32 s17, s16, {hh*16384 + j*4096 + tq*1024}")
                A(f"buffer_store_dwordx4 v[{PKO+4*j}:{PKO+4*j+3}], v1, s[4:7], s17 offen sc1")
    signal(A, 2)

def stage_tb(A, tag, WF, AFB, KS, dep_stage, dep_n, res_idx, sig_stage):
    KW = KS // 4
    RING = 8
    RB = 16; ACC = RB + 16 * RING
    A("v_and_b32 v14, 63, v0")
    A("v_lshlrev_b32 v1, 4, v14")
    A("s_lshr_b32 s12, s41, 4")
    A("s_and_b32 s14, s41, 15")
    A(f"s_mul_i32 s15, s13, {KW}")
    A("s_lshr_b32 s16, s14, 1")
    A(f"s_mul_i32 s16, s16, {KS}")
    A("s_add_u32 s16, s16, s15")
    A("s_lshl_b32 s16, s16, 12")
    A("s_and_b32 s18, s14, 1")
    A("s_lshl_b32 s18, s18, 11")
    A("s_add_u32 s16, s16, s18")
    A(f"s_add_u32 s16, s16, {WF}")
    A(f"s_mul_i32 s17, s40, {KS}")
    A("s_add_u32 s17, s17, s15")
    A("s_lshl_b32 s17, s17, 12")
    A("s_lshl_b32 s18, s12, 11")
    A("s_add_u32 s17, s17, s18")
    A("s_add_u32 s17, s17, s43")
    A(f"s_add_u32 s17, s17, {AFB}")
    RING = 16; ACC = RB + 8 * RING
    A("s_bitcmp0_b32 s72, 16")
    A(f"s_cbranch_scc1 L_{tag}_nopre")
    for kk in range(KW):
        for t in range(2):
            A(f"buffer_load_dwordx4 a[{(kk*2+t)*4}:{(kk*2+t)*4+3}], v1, s[4:7], s16 offen offset:{t*1024}")
        A("s_add_u32 s16, s16, 4096")
    A("s_waitcnt vmcnt(0)")
    A.label(f"L_{tag}_nopre")
    def lda(si):
        for t in range(2):
            A(f"buffer_load_dwordx4 v[{RB+8*si+4*t}:{RB+8*si+4*t+3}], v1, s[4:7], s17 offen offset:{t*1024} sc1")
        A("s_add_u32 s17, s17, 4096")
    def mm(kk):
        si = kk % RING
        for ct in range(2):
            for tt in range(2):
                acc = v(ACC + (ct * 2 + tt) * 4, 4)
                A(f"v_mfma_f32_16x16x32_bf16 {acc}, a[{(kk*2+ct)*4}:{(kk*2+ct)*4+3}], v[{RB+8*si+4*tt}:{RB+8*si+4*tt+3}], {'0' if kk==0 else acc}")
    D = min(RING - 1, KW)
    cnt_addr(A, 22, dep_stage)
    A("v_mov_b32 v250, 0")
    poll_counter(A, tag, "s22", dep_n)
    for si in range(D): lda(si)
    for kk in range(KW):
        if kk + D < KW:
            lda((kk + D) % RING)
            A(f"s_waitcnt vmcnt({2*D})")
        else:
            A(f"s_waitcnt vmcnt({2*(KW-1-kk)})")
        mm(kk)
    A("s_lshl_b32 s15, s13, 12")
    A("v_add_u32 v2, s15, v1")
    for i in range(4):
        A(f"ds_write_b128 v2, v[{ACC+4*i}:{ACC+4*i+3}] offset:{i*1024}")
    A("s_and_b32 s15, s13, 1")
    A("s_lshl_b32 s15, s15, 10")
    A("v_add_u32 v3, s15, v1")
    A("v_and_b32 v4, 15, v14")
    A("v_lshrrev_b32 v5, 2, v4")
    A("v_and_b32 v4, 3, v4")
    A("v_lshl_add_u32 v4, v5, 3, v4")
    A("s_lshl_b32 s15, s40, 6")
    A("s_lshl_b32 s18, s12, 5")
    A("s_add_u32 s15, s15, s18")
    A("s_and_b32 s18, s13, 1")
    A("s_lshl_b32 s18, s18, 2")
    A("s_add_u32 s15, s15, s18")
    A("v_add_u32 v4, s15, v4")
    A("v_lshlrev_b32 v4, 10, v4")
    A("v_lshrrev_b32 v5, 4, v14")
    A("v_lshl_add_u32 v4, v5, 4, v4")
    A("s_lshl_b32 s15, s14, 6")
    A("v_add_u32 v4, s15, v4")
    A("s_lshl_b32 s18, s42, 1")
    A(f"s_add_u32 s18, s18, {res_idx}")
    A("s_lshl_b32 s18, s18, 21")
    A(f"s_add_u32 s18, s18, {XR}")
    A(f"buffer_load_dwordx4 v[8:11], v4, s[4:7], s18 offen sc1")
    A("s_waitcnt lgkmcnt(0)")
    A("s_barrier")
    A("s_cmp_ge_u32 s13, 2")
    A(f"s_cbranch_scc1 L_{tag}_done")
    R = 16
    for ww in range(4):
        for ct in range(2):
            A(f"ds_read_b128 v[{R+8*ww+4*ct}:{R+8*ww+4*ct+3}], v3 offset:{ww*4096+ct*2048}")
    A("s_waitcnt lgkmcnt(4)")
    for i in range(8): A(f"v_add_f32 v{R+i}, v{R+i}, v{R+8+i}")
    A("s_waitcnt lgkmcnt(2)")
    for i in range(8): A(f"v_add_f32 v{R+i}, v{R+i}, v{R+16+i}")
    A("s_waitcnt lgkmcnt(0) vmcnt(0)")
    for i in range(8): A(f"v_add_f32 v{R+i}, v{R+i}, v{R+24+i}")
    for i in range(4):
        A(f"v_cvt_pk_bf16_f32 v6, v{R+2*i}, v{R+2*i+1}")
        A(f"v_lshlrev_b32 v{R+2*i}, 16, v6")
        A(f"v_and_b32 v{R+2*i+1}, 0xffff0000, v6")
        A(f"v_lshlrev_b32 v6, 16, v{8+i}")
        A(f"v_and_b32 v7, 0xffff0000, v{8+i}")
        A(f"v_add_f32 v{R+2*i}, v{R+2*i}, v6")
        A(f"v_add_f32 v{R+2*i+1}, v{R+2*i+1}, v7")
        A(f"v_cvt_pk_bf16_f32 v{R+32+i}, v{R+2*i}, v{R+2*i+1}")
    if res_idx == 1:
        A("s_cmp_eq_u32 s42, 1")
        A(f"s_cbranch_scc1 L_{tag}_out")
    A(f"s_add_u32 s18, s18, {2*MB}")
    A(f"buffer_store_dwordx4 v[{R+32}:{R+35}], v4, s[4:7], s18 offen sc1")
    if res_idx == 1:
        A(f"s_branch L_{tag}_done")
        A.label(f"L_{tag}_out")
        A(f"buffer_store_dwordx4 v[{R+32}:{R+35}], v4, s[64:67], 0 offen")
    A.label(f"L_{tag}_done")
    signal(A, sig_stage)

NSUB = {0: 2, 1: 48, 2: 8, 3: 32, 4: 2, 5: 14, 6: 32}
TBL_STRIDE = 80

def schedule(nW=192, verbose=False):
    def word(layer, stage, blk, sub): return stage | (blk << 4) | (sub << 9) | (layer << 15)
    lists = []
    def new_worker():
        lists.append([]); return lists[-1]
    TAILB = 28
    for sub in range(48):
        w = new_worker()
        for b in range(32): w.append(word(1, 1, b, sub))
    Dw = {}
    for l in range(2):
        for sub in range(32):
            w = new_worker()
            for b in range(32): w.append(word(l, 3, b, sub))
        for sub in range(14):
            w = new_worker()
            for b in range(32): w.append(word(l, 5, b, sub))
        for cg in range(16):
            Dw[(l, cg)] = new_worker()
    for l in range(2):
        for cg in range(16):
            for b in range(32):
                Dw[(l, cg)].append(word(l, 6, b, cg))
                if l == 1 and b >= TAILB: Dw[(0, cg)].append(word(l, 6, b, 16 + cg))
                else: Dw[(l, cg)].append(word(l, 6, b, 16 + cg))
    Aw = [[new_worker() for _ in range(7)] for l in range(2)]
    for l in range(2):
        k = 0
        for b in range(32):
            for sub in range(8):
                if l == 1 and b >= TAILB:
                    pool = Aw[0] + Aw[1]
                    pool[(k * 5) % 14].append(word(l, 2, b, sub))
                else:
                    Aw[l][k % 7].append(word(l, 2, b, sub))
                k += 1
    for (l, st) in ((0, 4), (1, 0), (1, 4)):
        ws = [new_worker() for _ in range(2)]
        for b in range(32):
            for sub in range(2): ws[sub].append(word(l, st, b, sub))
    assert len(lists) == nW, len(lists)
    for w in lists: w[0] |= 1 << 16
    if verbose: print("maxlen", max(len(x) for x in lists))
    assert max(len(l) for l in lists) < TBL_STRIDE, max(len(l) for l in lists)
    return lists

def gen_mega():
    A = Asm()
    name = "mega_kernel"
    A.raw(kernel_header(name))
    A("s_cmp_ge_u32 s2, 256")
    A(f"s_cbranch_scc1 {END}")
    load_ptr_srd(A, "ws", 4, WS_BYTES, 20)
    load_ptr_srd(A, "out", 64, 2 * MB, 20)
    rendezvous(A)
    A("s_cmp_ge_u32 s12, 64")
    A("s_cbranch_scc1 L_worker")
    gen_chain_role(A)
    A.label("L_worker")
    A("s_sub_u32 s12, s12, 64")
    A(f"s_mul_i32 s69, s12, {TBL_STRIDE*16}")
    A(f"s_add_u32 s69, s69, {PROFB + MB}")
    A("s_getpc_b64 s[70:71]")
    A.label("L_pcref")
    A(f"s_mul_i32 s15, s12, {TBL_STRIDE*4}")
    A("s_add_u32 s70, s70, s15")
    A("s_addc_u32 s71, s71, 0")
    A("s_add_u32 s70, s70, L_table-L_pcref")
    A("s_addc_u32 s71, s71, 0")
    A.label("L_wloop")
    A("s_load_dword s72, s[70:71], 0")
    A("s_add_u32 s70, s70, 4")
    A("s_addc_u32 s71, s71, 0")
    A("s_waitcnt lgkmcnt(0)")
    A("s_cmp_eq_u32 s72, -1")
    A(f"s_cbranch_scc1 {END}")
    if PROF:
        A("s_memrealtime s[74:75]")
        A("s_waitcnt lgkmcnt(0)")
        A("s_mov_b32 s76, s74")
    A("s_and_b32 s73, s72, 15")
    A("s_bfe_u32 s40, s72, 0x50004")
    A("s_bfe_u32 s41, s72, 0x60009")
    A("s_bfe_u32 s42, s72, 0x1000f")
    A(f"s_mul_i32 s43, s42, {LSTRIDE}")
    for st in range(7):
        A(f"s_cmp_eq_u32 s73, {st}")
        A(f"s_cbranch_scc1 L_st{st}")
    A(f"s_branch {END}")
    A.label("L_st0"); stage_ln(A, 0)
    A.label("L_st1"); stage_q(A)
    A.label("L_st2"); stage_attn(A)
    A.label("L_st3"); stage_tb(A, "wo", WO_F, OF, 128, 2, 8, 0, 3)
    A.label("L_st4"); stage_ln(A, 1)
    A.label("L_st5"); stage_g(A)
    A.label("L_st6"); stage_tb(A, "dn", WD_F, HF, 56, 5, 14, 1, 6)
    A.label(END)
    A("s_endpgm")
    A.raw(".p2align 6")
    A.label("L_table")
    for l in schedule(verbose=True):
        ws_ = l + [0xFFFFFFFF] * (TBL_STRIDE - len(l))
        for i in range(0, TBL_STRIDE, 16):
            A.raw("    .long " + ", ".join(hex(x) for x in ws_[i:i+16]))
    return name, A, 256, (256, 256)

def copy_x_to_lds(A, mg_sreg, tmpv):
    A("v_lshlrev_b32 v1, 4, v0")
    A(f"s_lshl_b32 s19, s{mg_sreg}, 17")
    A(f"s_add_u32 s19, s19, {XFA}")
    for rnd in range(4):
        for i in range(8):
            A(f"buffer_load_dwordx4 v[{tmpv+4*i}:{tmpv+4*i+3}], v1, s[4:7], s19 offen")
            A("s_add_u32 s19, s19, 4096")
        for i in range(8):
            A(f"s_waitcnt vmcnt({7-i})")
            off = (rnd * 8 + i) * 4096
            if off < 65536:
                A(f"ds_write_b128 v1, v[{tmpv+4*i}:{tmpv+4*i+3}] offset:{off}")
            else:
                A(f"ds_write_b128 v2, v[{tmpv+4*i}:{tmpv+4*i+3}] offset:{off-65536}")
            if rnd == 0 and i < 2:
                A(f"ds_write_b128 v3, v[{tmpv+4*i}:{tmpv+4*i+3}] offset:{i*4096}")

def gen_qkv(name):
    A = Asm()
    A.raw(kernel_header(name))
    A("s_cmp_ge_u32 s2, 256")
    A("s_cbranch_scc1 L_end_" + name)
    load_ptr_srd(A, "ws", 4, WS_BYTES, 20)
    A("s_and_b32 s12, s2, 7")
    A("s_lshl_b32 s12, s12, 1")
    A("s_bfe_u32 s13, s2, 0x10003")
    A("s_add_u32 s12, s12, s13")
    A("s_lshr_b32 s13, s2, 4")
    A("v_lshlrev_b32 v1, 4, v0")
    A("v_add_u32 v2, 0x10000, v1")
    A("v_add_u32 v3, 0x20000, v1")
    ACC = 0 + 128
    XB = 8
    WB = 72
    XB = 8; WB = 64
    XB = 8; WB = 72; PK = 136
    copy_x_to_lds(A, 13, WB)
    A("v_lshrrev_b32 v4, 6, v0")
    A("v_readfirstlane_b32 s14, v4")
    A("v_and_b32 v4, 63, v0")
    A("v_lshlrev_b32 v4, 4, v4")
    A("v_mov_b32 v5, v4")
    A("s_lshl_b32 s15, s12, 2")
    A("s_add_u32 s15, s15, s14")
    A("s_mul_i32 s15, s15, 196608")
    A(f"s_add_u32 s15, s15, {WQKV_F}")
    A("s_waitcnt lgkmcnt(0)")
    A("s_barrier")
    def wload(setidx):
        for t in range(4):
            A(f"buffer_load_dwordx4 v[{WB+16*setidx+4*t}:{WB+16*setidx+4*t+3}], v4, s[4:7], s15 offen offset:{t*1024}")
        A("s_add_u32 s15, s15, 4096")
    def xread(buf, koff):
        for mt in range(8):
            A(f"ds_read_b128 v[{XB+32*buf+4*mt}:{XB+32*buf+4*mt+3}], v5 offset:{koff*8192+mt*1024}")
    for st in range(3): wload(st)
    xread(0, 0)
    A("s_lshl_b32 s16, s13, 3")
    A("s_lshl_b32 s16, s16, 5")
    A("s_lshl_b32 s17, s12, 1")
    A("s_lshr_b32 s18, s14, 1")
    A("s_add_u32 s17, s17, s18")
    A("s_add_u32 s16, s16, s17")
    A("s_lshl_b32 s16, s16, 2")
    A("s_and_b32 s18, s14, 1")
    A("s_lshl_b32 s18, s18, 1")
    A("s_add_u32 s16, s16, s18")
    A("s_lshl_b32 s16, s16, 10")
    A(f"s_add_u32 s16, s16, {QF}")
    A("s_lshl_b32 s20, s13, 2")
    A("s_lshl_b32 s20, s20, 5")
    A("s_add_u32 s20, s20, s17")
    A("s_lshl_b32 s20, s20, 3")
    A("s_lshl_b32 s18, s18, 1")
    A("s_add_u32 s20, s20, s18")
    A("s_lshl_b32 s20, s20, 10")
    A(f"s_add_u32 s20, s20, {VF}")
    A("s_mov_b32 s21, 0")
    def zero_acc():
        for i in range(128): A(f"v_accvgpr_write_b32 a{i}, 0")
    def kloop(tag, vtype):
        A("s_mov_b32 s22, 0")
        A.label(f"L_k_{tag}_{name}")
        for u in range(4):
            wload((u + 3) % 4)
            xread((u + 1) % 2, u + 1)
            A("s_waitcnt vmcnt(12) lgkmcnt(8)")
            for ct in range(4):
                for mt in range(8):
                    w = v(WB + 16 * u + 4 * ct, 4); x = v(XB + 32 * (u % 2) + 4 * mt, 4)
                    acc = a((ct * 8 + mt) * 4, 4)
                    if vtype: A(f"v_mfma_f32_16x16x32_bf16 {acc}, {x}, {w}, {acc}")
                    else:     A(f"v_mfma_f32_16x16x32_bf16 {acc}, {w}, {x}, {acc}")
        A("v_add_u32 v5, 0x8000, v5")
        A("v_and_b32 v5, 0x1ffff, v5")
        A("s_add_u32 s22, s22, 1")
        A("s_cmp_lt_u32 s22, 4")
        A(f"s_cbranch_scc1 L_k_{tag}_{name}")
    zero_acc()
    A.label(f"L_pass_{name}")
    kloop("qk", False)
    A.fence(10)
    A("s_mov_b32 s19, s16")
    n = 0
    for mt in range(8):
        for cp in range(2):
            pk = PK + 4 * (n % 8); n += 1
            for half in range(2):
                base = ((2 * cp + half) * 8 + mt) * 4
                for i in range(4): A(f"v_accvgpr_read_b32 v{168+i}, a{base+i}")
                A(f"v_cvt_pk_bf16_f32 v{pk+2*half}, v168, v169")
                A(f"v_cvt_pk_bf16_f32 v{pk+2*half+1}, v170, v171")
            A(f"buffer_store_dwordx4 v[{pk}:{pk+3}], v4, s[4:7], s19 offen offset:{cp*1024}")
        if mt < 7: A("s_add_u32 s19, s19, 131072")
    zero_acc()
    A(f"s_add_u32 s16, s16, {KF-QF}")
    A("s_add_u32 s21, s21, 1")
    A("s_cmp_lt_u32 s21, 2")
    A(f"s_cbranch_scc1 L_pass_{name}")
    kloop("v", True)
    A.fence(10)
    A("s_mov_b32 s19, s20")
    n = 0
    for sg in range(4):
        for ct in range(4):
            pk = PK + 4 * (n % 8); n += 1
            for half in range(2):
                base = (ct * 8 + 2 * sg + half) * 4
                for i in range(4): A(f"v_accvgpr_read_b32 v{168+i}, a{base+i}")
                A(f"v_cvt_pk_bf16_f32 v{pk+2*half}, v168, v169")
                A(f"v_cvt_pk_bf16_f32 v{pk+2*half+1}, v170, v171")
            A(f"buffer_store_dwordx4 v[{pk}:{pk+3}], v4, s[4:7], s19 offen offset:{ct*1024}")
        if sg < 3: A("s_add_u32 s19, s19, 262144")
    A.label("L_end_" + name)
    A("s_endpgm")
    return name, A, 256, (176, 128)

def build(kernels, launches):
    out = []
    hdr = open("cdna_kernels/" + NAME + ".s.ref").read().split("\n")
    for l in hdr:
        if l.startswith(";") and "@launch" not in l and "Override" not in l and "grid=ceil" not in l:
            out.append(l)
    for (k, g, lds) in launches:
        out.append(f"; @launch kernel={k} grid=({g},1,1) block=(256,1,1) lds={lds}")
    out.append('.amdgcn_target "amdgcn-amd-amdhsa--gfx950"')
    out.append(".text")
    for (name, A, g, regs) in kernels: out.append(A.text())
    out.append('.section .rodata,"a"')
    for (name, A, g, regs) in kernels:
        if isinstance(regs, tuple):
            nv, na = regs; acc = (nv + 3) // 4 * 4
            out.append(kernel_desc(name, acc + na, 102, acc))
        else:
            out.append(kernel_desc(name, regs, 102, (regs + 3) // 4 * 4))
    return "\n".join(out) + "\n"

if __name__ == "__main__":
    PROF = "prof" in sys.argv
    ks = [gen_prep(), gen_qkv("qkv1_kernel"), gen_mega()]
    launches = [("prep_kernel", ks[0][2], 0), ("qkv1_kernel", 256, 136 * 1024), ("mega_kernel", 256, MEGA_LDS)]
    txt = build(ks, launches)
    dst = "prof.s" if PROF else "cdna_kernels/" + NAME + ".s"
    open(dst, "w").write(txt)
    print("bytes", len(txt))
```

```python
import sys, math, struct
from asmlib import *
from layout2 import *

NAME = "interleave_layers__memory_aug_recurrent_mem_tr__geglu_ffn__prompt"
KA = dict(x=0, mem0=8, wq=16, wk=24, wv=32, wo=40, seg=48, bx=56, wg=64, wu=72, wd=80, out=88, dbg=96, ws=104)
SCALE_HEX = 0x3db504f3
LOG2E_HEX = 0x3fb8aa3b
PROF = False

def srd(A, sd, sbase, nbytes):
    A(f"s_mov_b32 s{sd}, s{sbase}")
    A(f"s_and_b32 s{sd+1}, s{sbase+1}, 0xffff")
    A(f"s_mov_b32 s{sd+2}, {nbytes}")
    A(f"s_mov_b32 s{sd+3}, 0x00020000")

def load_ptr_srd(A, key, sd, nbytes, tmp):
    A(f"s_load_dwordx2 s[{tmp}:{tmp+1}], s[0:1], {KA[key]}")
    A("s_waitcnt lgkmcnt(0)")
    srd(A, sd, tmp, nbytes)

def magic_div(d, maxn):
    for sh in range(0, 32):
        m = -(-(1 << sh) // d)
        if m * maxn < (1 << 32) and all((n * m) >> sh == n // d for n in range(maxn)):
            return m, sh
    raise ValueError

def xlane(A, r, t, ops=("ror8", "p16", "p32"), op="v_add_f32"):
    for o in ops:
        if o == "ror8":
            A(f"{op}_dpp v{r}, v{r}, v{r} row_ror:8")
        else:
            A(f"v_mov_b32 v{t}, v{r}")
            A(f"v_permlane{'16' if o=='p16' else '32'}_swap_b32 v{r}, v{t}")
            A(f"{op} v{r}, v{r}, v{t}")

def bf16_round(A, dst, src, tmp):
    A(f"v_cvt_pk_bf16_f32 v{tmp}, v{src}, v{src}")
    A(f"v_lshlrev_b32 v{dst}, 16, v{tmp}")

def ln_math(A):
    for i in range(16):
        A(f"v_lshlrev_b32 v{32+2*i}, 16, v{16+i}")
        A(f"v_and_b32 v{33+2*i}, 0xffff0000, v{16+i}")
    A("v_add_f32 v7, v32, v33")
    for i in range(2, 32): A(f"v_add_f32 v7, v7, v{32+i}")
    for sh in (8, 4, 2, 1): A(f"v_add_f32_dpp v7, v7, v7 row_ror:{sh}")
    A("v_mul_f32 v7, 0x3b000000, v7")
    A("v_sub_f32 v8, v32, v7")
    A("v_mul_f32 v9, v8, v8")
    for i in range(1, 32):
        A(f"v_sub_f32 v8, v{32+i}, v7")
        A("v_fmac_f32 v9, v8, v8")
    for sh in (8, 4, 2, 1): A(f"v_add_f32_dpp v9, v9, v9 row_ror:{sh}")
    A("v_mul_f32 v9, 0x3b000000, v9")
    bf16_round(A, 7, 7, 10)
    bf16_round(A, 9, 9, 10)
    A("v_add_f32 v9, 0x3727c5ac, v9")
    bf16_round(A, 9, 9, 10)
    A("v_sqrt_f32 v9, v9")
    bf16_round(A, 9, 9, 10)
    A("v_rcp_f32 v9, v9")
    for i in range(16):
        A(f"v_sub_f32 v{32+2*i}, v{32+2*i}, v7")
        A(f"v_sub_f32 v{33+2*i}, v{33+2*i}, v7")
        A(f"v_cvt_pk_bf16_f32 v10, v{32+2*i}, v{33+2*i}")
        A(f"v_lshlrev_b32 v{32+2*i}, 16, v10")
        A(f"v_and_b32 v{33+2*i}, 0xffff0000, v10")
        A(f"v_mul_f32 v{32+2*i}, v{32+2*i}, v9")
        A(f"v_mul_f32 v{33+2*i}, v{33+2*i}, v9")
        A(f"v_cvt_pk_bf16_f32 v{16+i}, v{32+2*i}, v{33+2*i}")

def ln_body(A, sr, soff, sc1):
    A("v_lshrrev_b32 v1, 4, v0")
    A("s_lshl_b32 s3, s3, 4")
    A("v_add_u32 v1, s3, v1")
    A("v_and_b32 v2, 15, v0")
    A("v_lshlrev_b32 v3, 10, v1")
    A("v_lshl_add_u32 v3, v2, 4, v3")
    A(f"s_mov_b32 s19, {soff}")
    for q in range(4):
        A(f"buffer_load_dwordx4 v[{16+4*q}:{19+4*q}], v3, {sr}, s19 offen offset:{q*256}")
    A("v_bfe_u32 v4, v1, 3, 2")
    A("v_and_b32 v5, 3, v1")
    A("v_lshl_add_u32 v4, v4, 2, v5")
    A("v_and_b32 v5, 3, v2")
    A("v_lshl_add_u32 v4, v5, 4, v4")
    A("v_lshlrev_b32 v4, 4, v4")
    A("v_bfe_u32 v5, v1, 2, 1")
    A("v_bfe_u32 v6, v1, 5, 1")
    A("v_lshl_add_u32 v5, v6, 1, v5")
    A("v_lshl_add_u32 v4, v5, 10, v4")
    A("v_lshrrev_b32 v5, 6, v1")
    A("v_lshrrev_b32 v6, 2, v2")
    A("v_lshl_add_u32 v5, v5, 4, v6")
    A("v_lshl_add_u32 v4, v5, 12, v4")
    A("s_waitcnt vmcnt(0)")
    ln_math(A)
    A(f"s_mov_b32 s19, {XFA}")
    for q in range(4):
        if q: A(f"s_add_u32 s19, s19, {4*4096}")
        A(f"buffer_store_dwordx4 v[{16+4*q}:{19+4*q}], v4, s[4:7], s19 offen")

def gen_prep():
    A = Asm()
    name = "prep_kernel"
    A.raw(kernel_header(name))
    mats = [("wq", 512, 4096, "qkv0"), ("wk", 512, 4096, "qkv1"), ("wv", 512, 4096, "qkv2"), ("wo", 4096, 512, "wo"),
            ("wg", 512, 1792, "gu0"), ("wu", 512, 1792, "gu1"), ("wd", 1792, 512, "wd")]
    load_ptr_srd(A, "ws", 4, WS_BYTES, 20)
    A("s_mov_b32 s16, 0x05040100")
    A("s_mov_b32 s17, 0x07060302")
    start = 0; ranges = []
    for (key, K, N, kind) in mats:
        nwg = (K // 8) * (N // 8) // 256
        ranges.append((start, nwg)); start += nwg
    fill_start = start
    nfill = (4 * MB) // 65536
    memx_start = fill_start + nfill
    memx_total = 2 * MEMX_LAYER
    nmemx = -(-memx_total // 4096)
    xcopy_start = memx_start + nmemx
    nxcopy = (2 * MB) // 65536
    cnt_start = xcopy_start + nxcopy
    ln_start = cnt_start + 1
    total_wg = ln_start + 128
    for idx, (key, K, N, kind) in enumerate(mats):
        st, nwg = ranges[idx]
        A(f"s_cmp_lt_u32 s2, {st + nwg}")
        A(f"s_cbranch_scc1 L_prep_{key}")
    A(f"s_cmp_lt_u32 s2, {memx_start}")
    A("s_cbranch_scc1 L_prep_fill")
    A(f"s_cmp_lt_u32 s2, {xcopy_start}")
    A("s_cbranch_scc1 L_prep_memx")
    A(f"s_cmp_lt_u32 s2, {cnt_start}")
    A("s_cbranch_scc1 L_prep_xcopy")
    A(f"s_cmp_lt_u32 s2, {ln_start}")
    A("s_cbranch_scc1 L_prep_cnt")
    A(f"s_cmp_lt_u32 s2, {total_wg}")
    A("s_cbranch_scc1 L_prep_ln")
    A("s_endpgm")
    for idx, (key, K, N, kind) in enumerate(mats):
        st, nwg = ranges[idx]
        A.label(f"L_prep_{key}")
        load_ptr_srd(A, key, 8, K * N * 2, 20)
        NQ = N // 8
        A(f"s_sub_u32 s3, s2, {st}")
        A("s_lshl_b32 s3, s3, 8")
        A("v_add_u32 v1, s3, v0")
        if NQ & (NQ - 1) == 0:
            sh = NQ.bit_length() - 1
            A(f"v_lshrrev_b32 v2, {sh}, v1")
            A(f"v_and_b32 v3, {NQ-1}, v1")
        else:
            m, sh = magic_div(NQ, (K // 8) * NQ)
            A(f"s_mov_b32 s18, {m}")
            A("v_mul_lo_u32 v2, s18, v1")
            A(f"v_lshrrev_b32 v2, {sh}, v2")
            A(f"s_mov_b32 s18, {NQ}")
            A("v_mul_lo_u32 v3, s18, v2")
            A("v_sub_u32 v3, v1, v3")
        A(f"s_mov_b32 s18, {N*16}")
        A("v_mul_lo_u32 v4, s18, v2")
        A("v_lshl_add_u32 v4, v3, 4, v4")
        for j in range(8):
            A(f"s_mov_b32 s19, {j*N*2}")
            A(f"buffer_load_dwordx4 v[{16+4*j}:{19+4*j}], v4, s[8:11], s19 offen")
        A("v_lshrrev_b32 v5, 2, v2")
        A("v_and_b32 v6, 3, v2")
        A("v_lshrrev_b32 v7, 2, v3")
        A("v_and_b32 v9, 3, v3")
        A("v_lshlrev_b32 v10, 6, v9")
        A("v_lshl_add_u32 v10, v6, 8, v10")
        if kind.startswith("qkv"):
            region = int(kind[3])
            A("v_lshrrev_b32 v11, 1, v7")
            A("v_and_b32 v12, 1, v7")
            A("v_lshlrev_b32 v12, 1, v12")
            A("v_mul_u32_u24 v11, 3, v11")
            A(f"v_add_u32 v11, {region}, v11")
            A("v_lshl_add_u32 v11, v11, 4, v5")
            A("v_lshl_add_u32 v11, v11, 2, v12")
            base = WQKV_F
        elif kind in ("wo", "wd"):
            KS = K // 32
            A("v_lshrrev_b32 v11, 1, v7")
            A("v_and_b32 v12, 1, v7")
            A("v_lshlrev_b32 v12, 1, v12")
            A(f"v_mul_u32_u24 v11, {KS}, v11")
            A("v_add_u32 v11, v11, v5")
            A("v_lshl_add_u32 v11, v11, 2, v12")
            base = WO_F if kind == "wo" else WD_F
        else:
            gu = int(kind[2])
            A("v_lshl_add_u32 v11, v7, 4, v5")
            A("v_lshlrev_b32 v11, 2, v11")
            A(f"v_add_u32 v11, {2*gu}, v11")
            base = WGU_F
        A("v_lshl_add_u32 v10, v11, 10, v10")
        A(f"s_mov_b32 s19, {base}")
        A("s_waitcnt vmcnt(0)")
        for r in range(8):
            dw = r >> 1; sel = "s16" if (r & 1) == 0 else "s17"
            for d in range(4):
                lo = 16 + 4 * (2 * d) + dw; hi = 16 + 4 * (2 * d + 1) + dw
                A(f"v_perm_b32 v{48+4*r+d}, v{hi}, v{lo}, {sel}")
            A(f"buffer_store_dwordx4 v[{48+4*r}:{51+4*r}], v10, s[4:7], s19 offen offset:{(r>>2)*1024 + 16*(r&3)}")
        A("s_endpgm")
    A.label("L_prep_fill")
    A(f"s_sub_u32 s3, s2, {fill_start}")
    A("s_lshl_b32 s3, s3, 16")
    A(f"s_add_u32 s3, s3, {PART}")
    A("v_lshlrev_b32 v1, 4, v0")
    for i in range(4): A(f"v_mov_b32 v{4+i}, -1")
    for i in range(16):
        A(f"buffer_store_dwordx4 v[4:7], v1, s[4:7], s3 offen")
        if i < 15: A("s_add_u32 s3, s3, 4096")
    A("s_endpgm")
    A.label("L_prep_cnt")
    A(f"s_mov_b32 s3, {CNT}")
    A("v_lshlrev_b32 v1, 4, v0")
    for i in range(4): A(f"v_mov_b32 v{4+i}, 0")
    for i in range(16):
        A(f"buffer_store_dwordx4 v[4:7], v1, s[4:7], s3 offen")
        if i < 15: A("s_add_u32 s3, s3, 4096")
    A("s_endpgm")
    A.label("L_prep_ln")
    load_ptr_srd(A, "x", 8, 2 * MB, 20)
    A(f"s_sub_u32 s3, s2, {ln_start}")
    ln_body(A, "s[8:11]", 0, False)
    A("s_endpgm")
    A.label("L_prep_xcopy")
    load_ptr_srd(A, "x", 8, 2 * MB, 20)
    A(f"s_sub_u32 s3, s2, {xcopy_start}")
    A("s_lshl_b32 s3, s3, 16")
    A(f"s_add_u32 s18, s3, {XR}")
    A("v_lshlrev_b32 v1, 4, v0")
    for i in range(16):
        A(f"buffer_load_dwordx4 v[{4+4*i}:{7+4*i}], v1, s[8:11], s3 offen")
        if i < 15: A("s_add_u32 s3, s3, 4096")
    for i in range(16):
        A(f"s_waitcnt vmcnt({15-i})" if i == 0 else "s_nop 0")
        A(f"s_waitcnt vmcnt(15)")
        A(f"buffer_store_dwordx4 v[{4+4*i}:{7+4*i}], v1, s[4:7], s18 offen")
        if i < 15: A("s_add_u32 s18, s18, 4096")
    A("s_endpgm")
    A.label("L_prep_memx")
    load_ptr_srd(A, "mem0", 8, 8192, 20)
    A(f"s_sub_u32 s3, s2, {memx_start}")
    A("s_lshl_b32 s3, s3, 12")
    A("v_lshlrev_b32 v1, 4, v0")
    A("v_add_u32 v1, s3, v1")
    A(f"v_subrev_u32 v2, {MEMX_LAYER}, v1")
    A(f"v_cmp_gt_u32 vcc, {MEMX_LAYER}, v1")
    A("v_cndmask_b32 v2, v2, v1, vcc")
    A("v_lshrrev_b32 v3, 6, v2")
    A("v_bfe_u32 v4, v2, 3, 3")
    A("v_lshlrev_b32 v5, 10, v4")
    A("v_lshl_add_u32 v5, v3, 3, v5")
    A("buffer_load_dwordx2 v[8:9], v5, s[8:11], 0 offen")
    A("buffer_load_dwordx2 v[10:11], v5, s[8:11], 0 offen offset:1024")
    A("s_waitcnt vmcnt(0)")
    A(f"v_cmp_gt_u32 vcc, 8192, v2")
    for i in range(4):
        A(f"v_min_u32 v{8+i}, -2, v{8+i}")
        A(f"v_cndmask_b32 v{8+i}, -1, v{8+i}, vcc")
    A(f"v_cmp_gt_u32 vcc, {memx_total}, v1")
    A("s_and_saveexec_b64 s[22:23], vcc")
    A("s_cbranch_execz L_prep_end")
    A(f"s_mov_b32 s19, {MEMX}")
    A("buffer_store_dwordx4 v[8:11], v1, s[4:7], s19 offen")
    A.label("L_prep_end")
    A("s_endpgm")
    return name, A, total_wg, 80

WOL = 0
MEML = 131072
MROW = 1088
ZROW = MEML + 8 * MROW
SCL = ZROW + 1024
OL = SCL + 12288
MEGA_LDS = OL + 4096
assert MEGA_LDS <= 163840
END = "L_mega_end"
TMO = 0x400000

def stamp(A, idx):
    if not PROF: return
    A("s_memtime s[44:45]")
    A("s_waitcnt lgkmcnt(0)")
    A("s_sub_u32 s46, s44, s47")
    A(f"s_add_u32 s{80+idx}, s{80+idx}, s46")
    A("s_mov_b32 s47, s44")

def rendezvous(A, nwg=256):
    load_ptr_srd(A, "dbg", 8, 256, 20)
    A("s_getreg_b32 s14, hwreg(HW_REG_XCC_ID)")
    A("s_and_b32 s14, s14, 7")
    A("v_lshrrev_b32 v1, 6, v0")
    A("v_readfirstlane_b32 s13, v1")
    A("s_cmp_lg_u32 s13, 0")
    A("s_cbranch_scc1 L_rv_wait")
    A("s_lshl_b32 s15, s14, 2")
    A("v_mov_b32 v1, s15")
    A("v_mov_b32 v2, 1")
    A("s_mov_b64 exec, 1")
    A("buffer_atomic_add v2, v1, s[8:11], 0 offen sc0")
    A("s_waitcnt vmcnt(0)")
    A("v_mov_b32 v1, 0")
    A("ds_write_b32 v1, v2")
    A("s_mov_b64 exec, -1")
    A("s_waitcnt lgkmcnt(0)")
    A.label("L_rv_wait")
    A("s_barrier")
    A("v_mov_b32 v1, 0")
    A("ds_read_b32 v3, v1")
    A("v_and_b32 v4, 7, v0")
    A("v_lshlrev_b32 v4, 2, v4")
    A("s_mov_b32 s26, 0")
    A.label("L_rv_poll")
    A("buffer_load_dword v5, v4, s[8:11], 0 offen sc1")
    A("s_add_u32 s26, s26, 1")
    A(f"s_cmp_gt_u32 s26, {TMO}")
    A(f"s_cbranch_scc1 {END}")
    A("s_waitcnt vmcnt(0) lgkmcnt(0)")
    for x in range(8): A(f"v_readlane_b32 s{32+x}, v5, {x}")
    A("s_add_u32 s15, s32, s33")
    for x in range(2, 8): A(f"s_add_u32 s15, s15, s{32+x}")
    A(f"s_cmp_lg_u32 s15, {nwg}")
    A("s_cbranch_scc1 L_rv_poll")
    A("v_readfirstlane_b32 s12, v3")
    A("s_mov_b32 s30, 0")
    A("s_mov_b32 s31, 0")
    for x in range(8):
        A(f"s_cmp_lt_u32 {x}, s14")
        A(f"s_cselect_b32 s15, s{32+x}, 0")
        A("s_add_u32 s12, s12, s15")
        A(f"s_add_u32 s16, s31, s{32+x}")
        for c in range(2):
            A(f"s_cmp_le_u32 s31, {32*c}")
            A(f"s_cselect_b32 s15, {1<<c}, 0")
            A(f"s_cmp_ge_u32 s16, {32*c+32}")
            A(f"s_cselect_b32 s15, s15, 0")
            A("s_or_b32 s30, s30, s15")
        A("s_mov_b32 s31, s16")
    A("s_barrier")

def poll_counter(A, tag, soff_reg, expected, only_wave0=True):
    if only_wave0:
        A("s_cmp_lg_u32 s13, 0")
        A(f"s_cbranch_scc1 L_pc_done_{tag}")
    A("s_mov_b32 s26, 0")
    A("v_mov_b32 v126, 0")
    A.label(f"L_pc_{tag}")
    A(f"buffer_load_dword v127, v126, s[4:7], {soff_reg} offen sc1")
    A("s_add_u32 s26, s26, 1")
    A(f"s_cmp_gt_u32 s26, {TMO}")
    A(f"s_cbranch_scc1 {END}")
    A("s_waitcnt vmcnt(0)")
    A("v_readfirstlane_b32 s27, v127")
    A(f"s_cmp_ge_u32 s27, {expected}")
    A(f"s_cbranch_scc1 L_pc_done_{tag}")
    A("s_sleep 4" if only_wave0 else "s_sleep 1")
    A(f"s_branch L_pc_{tag}")
    A.label(f"L_pc_done_{tag}")
    if only_wave0:
        A("s_barrier")
        if PROF:
            A("s_memrealtime s[76:77]")
            A("s_waitcnt lgkmcnt(0)")

def poll_counter2(A, tag, soffA, expA, soffB, expB):
    A("s_cmp_lg_u32 s13, 0")
    A(f"s_cbranch_scc1 L_pc_done_{tag}")
    A("s_mov_b32 s26, 0")
    A(f"s_sub_u32 s23, {soffB}, {soffA}")
    A("v_mov_b32 v126, 0")
    A("v_writelane_b32 v126, s23, 1")
    A.label(f"L_pc_{tag}")
    A(f"buffer_load_dword v127, v126, s[4:7], {soffA} offen sc1")
    A("s_add_u32 s26, s26, 1")
    A(f"s_cmp_gt_u32 s26, {TMO}")
    A(f"s_cbranch_scc1 {END}")
    A("s_waitcnt vmcnt(0)")
    A("v_readlane_b32 s27, v127, 0")
    A("v_readlane_b32 s23, v127, 1")
    A(f"s_cmp_ge_u32 s27, {expA}")
    A("s_cselect_b32 s27, 1, 0")
    A(f"s_cmp_ge_u32 s23, {expB}")
    A("s_cselect_b32 s23, 1, 0")
    A("s_and_b32 s27, s27, s23")
    A("s_cmp_eq_u32 s27, 1")
    A(f"s_cbranch_scc1 L_pc_done_{tag}")
    A("s_sleep 4")
    A(f"s_branch L_pc_{tag}")
    A.label(f"L_pc_done_{tag}")
    A("s_barrier")

def gen_chain_role(A):
    MEMF = 16; ACC = 80; KX = 104; VX = 112; T = 120
    A("s_lshr_b32 s42, s12, 5")
    A("s_and_b32 s12, s12, 31")
    A(f"s_mul_i32 s43, s42, {LSTRIDE}")
    A("v_and_b32 v14, 63, v0")
    A("v_lshlrev_b32 v1, 4, v14")
    A("v_lshlrev_b32 v13, 3, v14")
    A("v_and_b32 v15, 15, v14")
    A("s_lshr_b32 s14, s13, 1")
    A("s_lshl_b32 s15, s12, 1")
    A("s_add_u32 s14, s14, s15")
    A("s_mul_i32 s14, s14, 196608")
    A("s_and_b32 s15, s13, 1")
    A("s_lshl_b32 s15, s15, 11")
    A("s_add_u32 s14, s14, s15")
    A(f"s_add_u32 s14, s14, {WQKV_F}")
    def wreg(ti, kk):
        if ti < 4: return a((ti * 16 + kk) * 4, 4)
        return v(128 + ((ti - 4) * 16 + kk) * 4, 4)
    cnt = 0
    for region in range(3):
        for kk in range(16):
            for t in range(2):
                A(f"buffer_load_dwordx4 {wreg(region*2+t, kk)}, v1, s[4:7], s14 offen offset:{t*1024}")
            A("s_add_u32 s14, s14, 4096")
            cnt += 2
            if cnt % 32 == 0: A("s_waitcnt vmcnt(16)")
    A("s_lshl_b32 s14, s13, 8")
    A("s_lshl_b32 s15, s12, 2")
    A("s_add_u32 s14, s14, s15")
    A("s_lshl_b32 s14, s14, 12")
    A(f"s_add_u32 s14, s14, {WO_F}")
    A("s_lshl_b32 s15, s13, 15")
    A("v_add_u32 v9, s15, v1")
    for ngl in range(2):
        for j in range(4):
            for t4 in range(4):
                A(f"buffer_load_dwordx4 v[{MEMF+16*j+4*t4}:{MEMF+16*j+4*t4+3}], v1, s[4:7], s14 offen offset:{t4*1024}")
            A(f"s_add_u32 s14, s14, {4096 if j < 3 else (128-3)*4096}")
        A("s_waitcnt vmcnt(0)")
        for j in range(4):
            for t4 in range(4):
                A(f"ds_write_b128 v9, v[{MEMF+16*j+4*t4}:{MEMF+16*j+4*t4+3}] offset:{((ngl*4+t4)*4+j)*1024}")
    for i in range(4): A(f"v_mov_b32 v{T+i}, 0")
    A(f"v_add_u32 v2, {ZROW}, v1")
    A(f"ds_write_b128 v2, v[{T}:{T+3}]")
    A("v_lshrrev_b32 v120, 4, v14")
    A("s_lshl_b32 s15, s13, 11")
    A("v_add_u32 v2, s15, v1")
    A("v_and_b32 v3, 3, v14")
    A(f"v_mul_u32_u24 v3, {2*MROW}, v3")
    A("v_lshrrev_b32 v4, 2, v14")
    A("v_lshl_add_u32 v3, v4, 3, v3")
    A("s_lshl_b32 s15, s13, 8")
    A(f"s_add_u32 s15, s15, {MEML}")
    A("v_add_u32 v3, s15, v3")
    A(f"v_mul_u32_u24 v4, {MROW}, v15")
    A(f"v_add_u32 v4, {MEML}, v4")
    A(f"v_mov_b32 v5, {ZROW}")
    A("v_cmp_gt_u32 vcc, 8, v15")
    A("v_cndmask_b32 v4, v5, v4, vcc")
    A("v_lshl_add_u32 v4, v120, 4, v4")
    A("s_mul_i32 s15, s13, 3072")
    A(f"s_add_u32 s15, s15, {SCL}")
    A("v_add_u32 v5, s15, v1")
    for (x, reg) in ((1, 6), (2, 122), (3, 123)):
        A(f"s_xor_b32 s15, s13, {x}")
        A("s_mul_i32 s15, s15, 3072")
        A(f"s_add_u32 s15, s15, {SCL}")
        A(f"v_add_u32 v{reg}, s15, v1")
    A("s_lshl_b32 s15, s13, 10")
    A(f"s_add_u32 s15, s15, {OL}")
    A("v_add_u32 v7, s15, v1")
    A(f"v_add_u32 v8, {OL}, v1")
    A("s_lshl_b32 s15, s13, 17")
    A("s_lshl_b32 s14, s12, 9")
    A("s_add_u32 s15, s15, s14")
    A("v_lshlrev_b32 v10, 7, v120")
    A("v_lshl_add_u32 v10, v15, 4, v10")
    A("v_add_u32 v10, s15, v10")
    A("s_lshl_b32 s15, s12, 14")
    A("s_lshl_b32 s14, s13, 7")
    A("s_add_u32 s15, s15, s14")
    A("v_lshrrev_b32 v11, 3, v14")
    A("v_lshlrev_b32 v11, 9, v11")
    A("v_and_b32 v12, 7, v14")
    A("v_lshl_add_u32 v11, v12, 4, v11")
    A("v_add_u32 v11, s15, v11")
    A("s_lshr_b32 s14, s12, 1")
    A("s_lshl_b32 s14, s14, 3")
    A("s_lshl_b32 s15, s13, 1")
    A("s_add_u32 s14, s14, s15")
    A("s_and_b32 s15, s12, 1")
    A("s_add_u32 s14, s14, s15")
    A("s_lshl_b32 s15, s14, 6")
    A("v_add_u32 v12, s15, v13")
    A(f"s_mul_i32 s16, s42, {MEMX_LAYER}")
    A(f"s_add_u32 s16, s16, {MEMX}")
    A("s_lshl_b32 s38, s42, 21")
    A(f"s_add_u32 s38, s38, {PART}")
    A("s_mov_b32 s17, s38")
    A("s_lshl_b32 s14, s12, 2")
    A("s_add_u32 s14, s14, s13")
    A("s_lshl_b32 s14, s14, 10")
    A("s_add_u32 s14, s14, s43")
    A(f"s_add_u32 s18, s14, {KF}")
    A(f"s_add_u32 s20, s14, {KM}")
    A(f"s_add_u32 s21, s14, {VM}")
    A("s_sub_u32 s14, s14, s43")
    A("s_lshl_b32 s15, s14, 1")
    A("s_add_u32 s15, s15, s43")
    A(f"s_add_u32 s19, s15, {VF}")
    A("s_lshl_b32 s39, s42, 12")
    A(f"s_add_u32 s39, s39, {CHAIN_CNT}")
    A("s_lshl_b32 s40, s42, 14")
    A(f"s_add_u32 s40, s40, {cnt_off(0, 7, 0)}")
    A("s_mov_b32 s24, 0x00ff00ff")
    A("s_mov_b32 s25, 0x00ff00ff")
    A(f"s_mov_b32 s28, {SCALE_HEX}")
    A(f"s_mov_b32 s29, {SCALE_HEX}")
    A(f"s_mov_b32 s33, {LOG2E_HEX}")
    A(f"s_mov_b32 s31, {LOG2E_HEX | 0x80000000}")
    A("s_mov_b32 s36, -1")
    A("s_mov_b32 s37, 0")
    A("v_mov_b32 v14, v122")
    A("v_mov_b32 v15, v123")
    A("v_mov_b32 v0, 0xf149f2ca")
    A("s_mov_b32 s14, 0")
    A("s_mov_b32 s48, 0")
    A("s_mov_b32 s41, s17")
    if PROF:
        for i in range(10): A(f"s_mov_b32 s{80+i}, 0")
        A("s_memtime s[44:45]")
        A("s_waitcnt lgkmcnt(0)")
        A("s_mov_b32 s47, s44")
    A("s_waitcnt vmcnt(0) lgkmcnt(0)")
    A("s_barrier")
    A("s_lshr_b32 s15, s30, s42")
    A("s_and_b32 s15, s15, 1")
    A("s_cmp_eq_u32 s15, 1")
    A("s_cbranch_scc1 L_step_loc")
    for mode in ("glb", "loc"):
        SC = " sc1" if mode == "glb" else ""
        L = lambda x: f"L_{x}_{mode}"
        def kvload():
            A(f"buffer_load_dwordx4 v[{KX}:{KX+3}], v1, s[4:7], s18 offen sc1")
            A("s_add_u32 s22, s18, 131072")
            A(f"buffer_load_dwordx4 v[{KX+4}:{KX+7}], v1, s[4:7], s22 offen sc1")
            A(f"buffer_load_dwordx4 v[{VX}:{VX+3}], v1, s[4:7], s19 offen sc1")
            A(f"buffer_load_dwordx4 v[{VX+4}:{VX+7}], v1, s[4:7], s19 offen offset:1024 sc1")
        A.label(L("step"))
        A("s_cmp_eq_u32 s48, 1")
        A(f"s_cbranch_scc1 {L('kvok')}")
        A("s_lshr_b32 s15, s14, 1")
        A("s_lshl_b32 s15, s15, 6")
        A("s_add_u32 s15, s15, s40")
        poll_counter(A, "kv_" + mode, "s15", 32, only_wave0=False)
        kvload()
        A.label(L("kvok"))
        A("s_add_u32 s15, s14, 1")
        A("s_lshr_b32 s15, s15, 1")
        A("s_min_u32 s15, s15, 31")
        A("s_lshl_b32 s15, s15, 6")
        A("s_add_u32 s15, s15, s40")
        A(f"v_mov_b32 v{ACC+1}, 0")
        A(f"buffer_load_dword v{ACC+2}, v{ACC+1}, s[4:7], s15 offen sc1")
        A("s_mov_b32 s26, 0")
        A.label(L("poll_mem"))
        A(f"buffer_load_dwordx4 v[{T}:{T+3}], v2, s[4:7], s16 offen sc1")
        A(f"buffer_load_dwordx4 v[{T+4}:{T+7}], v2, s[4:7], s16 offen offset:1024 sc1")
        A("s_add_u32 s26, s26, 1")
        A(f"s_cmp_gt_u32 s26, {TMO}")
        A(f"s_cbranch_scc1 {END}")
        A("s_waitcnt vmcnt(0)")
        A(f"v_max3_u32 v{ACC}, v{T}, v{T+1}, v{T+2}")
        A(f"v_max3_u32 v{ACC}, v{ACC}, v{T+3}, v{T+4}")
        A(f"v_max3_u32 v{ACC}, v{ACC}, v{T+5}, v{T+6}")
        A(f"v_max_u32 v{ACC}, v{ACC}, v{T+7}")
        A(f"v_cmp_eq_u32 vcc, -1, v{ACC}")
        A("s_nop 4")
        A(f"s_cbranch_vccnz {L('poll_mem')}")
        stamp(A, 0)
        if PROF:
            A("s_memrealtime s[44:45]")
            A("s_waitcnt lgkmcnt(0)")
            A(f"v_mov_b32 v{ACC+3}, s44")
            A("s_lshl_b32 s15, s42, 6")
            A("s_add_u32 s15, s15, s14")
            A("s_lshl_b32 s15, s15, 7")
            A("s_lshl_b32 s46, s12, 2")
            A("s_add_u32 s15, s15, s46")
            A(f"s_add_u32 s15, s15, {PROFB + 3*MB}")
            A(f"buffer_store_dword v{ACC+3}, v{ACC+1}, s[4:7], s15 offen")
        A(f"v_readfirstlane_b32 s49, v{ACC+2}")
        A(f"ds_write_b64 v3, v[{T}:{T+1}]")
        A(f"ds_write_b64 v3, v[{T+2}:{T+3}] offset:{MROW}")
        A(f"ds_write_b64 v3, v[{T+4}:{T+5}] offset:128")
        A(f"ds_write_b64 v3, v[{T+6}:{T+7}] offset:{MROW+128}")
        A("s_waitcnt lgkmcnt(0)")
        A("s_barrier")
        for kk in range(16):
            A(f"ds_read_b128 v[{MEMF+4*kk}:{MEMF+4*kk+3}], v4 offset:{kk*64}")
        def qkv_mfma(ti, kk):
            acc = v(ACC + 4 * ti, 4); m = v(MEMF + 4 * kk, 4); w = wreg(ti, kk)
            c = "0" if kk == 0 else acc
            if ti < 4: return f"v_mfma_f32_16x16x32_bf16 {acc}, {w}, {m}, {c}"
            else:      return f"v_mfma_f32_16x16x32_bf16 {acc}, {m}, {w}, {c}"
        for kk in range(16):
            A(f"s_waitcnt lgkmcnt({15-kk})")
            for ti in range(4): A(qkv_mfma(ti, kk))
            if kk == 3:
                A("s_cmp_eq_u32 s14, 0")
                A(f"s_cbranch_scc1 {L('nodefer')}")
                for i in range(4): A(f"v_mov_b32 v{T+i}, -1")
                A(f"v_mov_b32 v{T+4}, 1")
                A(f"v_mov_b32 v{T+5}, 0")
                for i in range(4):
                    A(f"s_add_u32 s22, s41, {i*4096}")
                    A(f"buffer_store_dwordx4 v[{T}:{T+3}], v11, s[4:7], s22 offen{SC}")
                A("s_mov_b64 exec, 1")
                A(f"buffer_atomic_add v{T+4}, v{T+5}, s[4:7], s39 offen")
                A("s_mov_b64 exec, -1")
                A("s_add_u32 s39, s39, 64")
                A.label(L("nodefer"))
        vm = [qkv_mfma(ti, kk) for kk in range(16) for ti in (4, 5)]
        stamp(A, 1)
        QP = 120; KP = 124; S = 80
        A(vm[0]); A(vm[1]); A(vm[2]); A(vm[3])
        for i, dst in enumerate((QP, KP)):
            for half in range(2):
                b = ACC + 8 * i + 4 * half
                A(f"v_cvt_pk_bf16_f32 v{dst+2*half}, v{b}, v{b+1}")
                A(f"v_cvt_pk_bf16_f32 v{dst+2*half+1}, v{b+2}, v{b+3}")
        A(f"v_mfma_f32_16x16x32_bf16 v[{S}:{S+3}], v[{KP}:{KP+3}], v[{QP}:{QP+3}], 0")
        A(f"v_mfma_f32_16x16x32_bf16 v[{S+4}:{S+7}], v[{KX}:{KX+3}], v[{QP}:{QP+3}], 0")
        A(f"v_mfma_f32_16x16x32_bf16 v[{S+8}:{S+11}], v[{KX+4}:{KX+7}], v[{QP}:{QP+3}], 0")
        A(f"buffer_store_dwordx4 v[{KP}:{KP+3}], v1, s[4:7], s20 offen sc1")
        for i in range(4, 8): A(vm[i])
        for i in range(3):
            A(f"ds_write_b128 v5, v[{S+4*i}:{S+4*i+3}] offset:{i*1024}")
        for i in range(8, 16): A(vm[i])
        A("s_waitcnt lgkmcnt(0)")
        A("s_barrier")
        stamp(A, 2)
        R1 = 16; R2 = 28; R3r = [40, 44, 92]
        for i in range(3): A(f"ds_read_b128 v[{R1+4*i}:{R1+4*i+3}], v6 offset:{i*1024}")
        for i in range(3): A(f"ds_read_b128 v[{R2+4*i}:{R2+4*i+3}], v14 offset:{i*1024}")
        for i in range(3): A(f"ds_read_b128 v[{R3r[i]}:{R3r[i]+3}], v15 offset:{i*1024}")
        for i in range(16, 22): A(vm[i])
        va = []
        va.append("s_waitcnt lgkmcnt(6)")
        for i in range(0, 12, 2): va.append(f"v_pk_add_f32 v[{S+i}:{S+i+1}], v[{S+i}:{S+i+1}], v[{R1+i}:{R1+i+1}]")
        va.append("s_waitcnt lgkmcnt(0)")
        for i in range(0, 12, 2):
            r3 = R3r[i // 4] + (i % 4)
            va.append(f"v_pk_add_f32 v[{R2+i}:{R2+i+1}], v[{R2+i}:{R2+i+1}], v[{r3}:{r3+1}]")
        for i in range(0, 12, 2): va.append(f"v_pk_add_f32 v[{S+i}:{S+i+1}], v[{S+i}:{S+i+1}], v[{R2+i}:{R2+i+1}]")
        TT = 16
        for i in range(0, 12, 2): va.append(f"v_cvt_pk_bf16_f32 v{TT+i//2}, v{S+i}, v{S+i+1}")
        for i in range(0, 12, 2):
            va.append(f"v_lshlrev_b32 v{S+i}, 16, v{TT+i//2}")
            va.append(f"v_and_b32 v{S+i+1}, 0xffff0000, v{TT+i//2}")
        for i in range(0, 12, 2): va.append(f"v_pk_mul_f32 v[{S+i}:{S+i+1}], v[{S+i}:{S+i+1}], s[28:29]")
        for i in range(0, 12, 2): va.append(f"v_cvt_pk_bf16_f32 v{TT+i//2}, v{S+i}, v{S+i+1}")
        for i in range(0, 12, 2):
            va.append(f"v_lshlrev_b32 v{S+i}, 16, v{TT+i//2}")
            va.append(f"v_and_b32 v{S+i+1}, 0xffff0000, v{TT+i//2}")
        for i in range(4): va.append(f"v_cndmask_b32 v{S+i}, v0, v{S+i}, s[36:37]")
        MX = 22; MT = 23
        va.append(f"v_max3_f32 v{MX}, v{S}, v{S+1}, v{S+2}")
        va.append(f"v_max3_f32 v{MT}, v{S+3}, v{S+4}, v{S+5}")
        va.append(f"v_max3_f32 v{MX}, v{MX}, v{S+6}, v{S+7}")
        va.append(f"v_max3_f32 v{MT}, v{MT}, v{S+8}, v{S+9}")
        va.append(f"v_max3_f32 v{MX}, v{MX}, v{S+10}, v{S+11}")
        va.append(f"v_max_f32 v{MX}, v{MX}, v{MT}")
        rest = vm[22:]
        k = 0
        for idx, ins in enumerate(va):
            A(ins)
            if idx % 3 == 2 and k < len(rest):
                A(rest[k]); k += 1
        while k < len(rest): A(rest[k]); k += 1
        xlane(A, MX, MT, ("p16", "p32"), "v_max_f32")
        A(f"v_mul_f32 v{MX}, s31, v{MX}")
        for i in range(12): A(f"v_fma_f32 v{S+i}, v{S+i}, s33, v{MX}")
        WOF = 32; VP = 24
        for half in range(2):
            b = ACC + 16 + 4 * half
            A(f"v_cvt_pk_bf16_f32 v{VP+2*half}, v{b}, v{b+1}")
            A(f"v_cvt_pk_bf16_f32 v{VP+2*half+1}, v{b+2}, v{b+3}")
        for i in range(12): A(f"v_exp_f32 v{S+i}, v{S+i}")
        for t in range(3):
            for j in range(4):
                A(f"ds_read_b128 v[{WOF+16*t+4*j}:{WOF+16*t+4*j+3}], v9 offset:{(t*4+j)*1024}")
        A(f"buffer_store_dwordx2 v[{VP}:{VP+1}], v13, s[4:7], s21 offen sc1")
        A(f"buffer_store_dwordx2 v[{VP+2}:{VP+3}], v13, s[4:7], s21 offen offset:512 sc1")
        for i in range(0, 12, 4):
            A(f"v_pk_add_f32 v[{TT+i//2}:{TT+i//2+1}], v[{S+i}:{S+i+1}], v[{S+i+2}:{S+i+3}]")
        A(f"v_pk_add_f32 v[{TT}:{TT+1}], v[{TT}:{TT+1}], v[{TT+2}:{TT+3}]")
        A(f"v_pk_add_f32 v[{TT}:{TT+1}], v[{TT}:{TT+1}], v[{TT+4}:{TT+5}]")
        A(f"v_add_f32 v{MX}, v{TT}, v{TT+1}")
        xlane(A, MX, MT, ("p16", "p32"))
        A(f"v_rcp_f32 v{MX}, v{MX}")
        A(f"v_mov_b32 v{MT}, v{MX}")
        for i in range(0, 12, 2): A(f"v_pk_mul_f32 v[{S+i}:{S+i+1}], v[{S+i}:{S+i+1}], v[{MX}:{MX+1}]")
        PM = 16; PT = 18
        A(f"v_cvt_pk_bf16_f32 v{PM}, v{S}, v{S+1}")
        A(f"v_cvt_pk_bf16_f32 v{PM+1}, v{S+2}, v{S+3}")
        for i in range(4): A(f"v_cvt_pk_bf16_f32 v{PT+i}, v{S+4+2*i}, v{S+5+2*i}")
        O = 96
        for t in range(2):
            A(f"v_mfma_f32_16x16x32_bf16 v[{O+4*t}:{O+4*t+3}], v[{VX+4*t}:{VX+4*t+3}], v[{PT}:{PT+3}], 0")
        for t in range(2):
            A(f"v_mfma_f32_16x16x16_bf16 v[{O+4*t}:{O+4*t+3}], v[{VP+2*t}:{VP+2*t+1}], v[{PM}:{PM+1}], v[{O+4*t}:{O+4*t+3}]")
        for j in range(4):
            A(f"ds_read_b128 v[{80+4*j}:{83+4*j}], v9 offset:{(3*4+j)*1024}")
        A("s_add_u32 s18, s18, 262144")
        A("s_add_u32 s19, s19, 262144")
        A("s_mov_b32 s48, 0")
        A("s_cmp_lt_u32 s49, 32")
        A(f"s_cbranch_scc1 {L('nopref')}")
        A("s_cmp_ge_u32 s14, 63")
        A(f"s_cbranch_scc1 {L('nopref')}")
        A("s_mov_b32 s48, 1")
        A("s_nop 4")
        kvload()
        A.label(L("nopref"))
        OP = 120
        for t in range(2):
            A(f"v_cvt_pk_bf16_f32 v{OP+2*t}, v{O+4*t}, v{O+4*t+1}")
            A(f"v_cvt_pk_bf16_f32 v{OP+2*t+1}, v{O+4*t+2}, v{O+4*t+3}")
        A(f"ds_write_b128 v7, v[{OP}:{OP+3}]")
        A("s_waitcnt lgkmcnt(0)")
        A("s_barrier")
        stamp(A, 3)
        OFR = 16
        for j in range(4):
            A(f"ds_read_b128 v[{OFR+4*j}:{OFR+4*j+3}], v8 offset:{j*1024}")
        wof = lambda t, j: (WOF + 16 * t + 4 * j) if t < 3 else (80 + 4 * j)
        RES = [96, 100, 120, 124]
        def store_part(t, reg):
            A(f"s_add_u32 s22, s17, {t*16384}")
            A(f"buffer_store_dwordx4 v[{reg}:{reg+3}], v10, s[4:7], s22 offen{SC}")
        for j in range(4):
            A(f"s_waitcnt lgkmcnt({3-j + 4*j})")
            for t in range(4):
                acc = v(RES[t], 4)
                A(f"v_mfma_f32_16x16x32_bf16 {acc}, v[{wof(t,j)}:{wof(t,j)+3}], v[{OFR+4*j}:{OFR+4*j+3}], {'0' if j==0 else acc}")
            for t in range(4):
                A(f"ds_read_b128 v[{wof(t,j)}:{wof(t,j)+3}], v9 offset:{((t+4)*4+j)*1024}")
        A("s_mov_b64 exec, s[24:25]")
        for t in range(4): store_part(t, RES[t])
        A("s_mov_b64 exec, -1")
        for j in range(4):
            A(f"s_waitcnt lgkmcnt({12-4*j})")
            for t in range(4):
                acc = v(RES[t], 4)
                A(f"v_mfma_f32_16x16x32_bf16 {acc}, v[{wof(t,j)}:{wof(t,j)+3}], v[{OFR+4*j}:{OFR+4*j+3}], {'0' if j==0 else acc}")
        A("s_mov_b64 exec, s[24:25]")
        for t in range(4): store_part(4 + t, RES[t])
        A("s_mov_b64 exec, -1")
        stamp(A, 4)
        P = 40
        A("s_mov_b32 s26, 0")
        A.label(L("poll_part"))
        for i in range(4):
            A(f"s_add_u32 s22, s17, {i*4096}")
            A(f"buffer_load_dwordx4 v[{P+4*i}:{P+4*i+3}], v11, s[4:7], s22 offen sc1")
        A("s_add_u32 s26, s26, 1")
        A(f"s_cmp_gt_u32 s26, {TMO}")
        A(f"s_cbranch_scc1 {END}")
        A("s_waitcnt vmcnt(0)")
        A(f"v_max3_u32 v{P+16}, v{P}, v{P+1}, v{P+2}")
        for i in range(3, 15, 2): A(f"v_max3_u32 v{P+16}, v{P+16}, v{P+i}, v{P+i+1}")
        A(f"v_max_u32 v{P+16}, v{P+16}, v{P+15}")
        A(f"v_cmp_eq_u32 vcc, -1, v{P+16}")
        A("s_nop 4")
        A(f"s_cbranch_vccnz {L('poll_part')}")
        stamp(A, 5)
        for c in range(4):
            A(f"v_add_f32 v{P+c}, v{P+c}, v{P+4+c}")
            A(f"v_add_f32 v{P+8+c}, v{P+8+c}, v{P+12+c}")
        for c in range(4): A(f"v_add_f32 v{P+c}, v{P+c}, v{P+8+c}")
        for c in range(4): xlane(A, P + c, P + 16 + c)
        A(f"v_cvt_pk_bf16_f32 v{P+20}, v{P}, v{P+1}")
        A(f"v_cvt_pk_bf16_f32 v{P+21}, v{P+2}, v{P+3}")
        A(f"v_min_u32 v{P+20}, -2, v{P+20}")
        A(f"v_min_u32 v{P+21}, -2, v{P+21}")
        A("s_add_u32 s16, s16, 8192")
        A("s_mov_b64 exec, 0xff")
        A(f"buffer_store_dwordx2 v[{P+20}:{P+21}], v12, s[4:7], s16 offen{SC}")
        A("s_mov_b64 exec, -1")
        A("s_mov_b32 s41, s17")
        A("s_add_u32 s14, s14, 1")
        A("s_and_b32 s15, s14, 3")
        A("s_lshl_b32 s15, s15, 19")
        A("s_add_u32 s17, s38, s15")
        A("s_add_u32 s20, s20, 131072")
        A("s_add_u32 s21, s21, 131072")
        stamp(A, 6)
        A("s_cmp_lt_u32 s14, 64")
        A(f"s_cbranch_scc1 {L('step')}")
        A(f"v_mov_b32 v{T+4}, 1")
        A(f"v_mov_b32 v{T+5}, 0")
        A("s_mov_b64 exec, 1")
        A(f"buffer_atomic_add v{T+4}, v{T+5}, s[4:7], s39 offen")
        A("s_mov_b64 exec, -1")
        if PROF:
            A("s_lshl_b32 s15, s12, 2")
            A("s_add_u32 s15, s15, s13")
            A("s_lshl_b32 s15, s15, 6")
            A("s_lshl_b32 s16, s42, 16")
            A("s_add_u32 s15, s15, s16")
            A(f"s_add_u32 s15, s15, {PROFB}")
            A("v_mov_b32 v1, 0")
            for i in range(8):
                A(f"v_mov_b32 v2, s{80+i}")
                A(f"buffer_store_dword v2, v1, s[4:7], s15 offen offset:{4*i}")
                A("s_nop 1")
            A("v_mov_b32 v2, s30")
            A(f"buffer_store_dword v2, v1, s[4:7], s15 offen offset:32")
        A("s_endpgm")

def cnt_addr(A, dst, stage, layer_reg="s42"):
    A(f"s_lshl_b32 s{dst}, {layer_reg}, 8")
    A(f"s_add_u32 s{dst}, s{dst}, s40")
    A(f"s_lshl_b32 s{dst}, s{dst}, 6")
    A(f"s_add_u32 s{dst}, s{dst}, {cnt_off(0, stage, 0)}")

def signal(A, stage):
    A("s_waitcnt vmcnt(0) lgkmcnt(0)")
    A("s_barrier")
    A("s_cmp_lg_u32 s13, 0")
    A("s_cbranch_scc1 L_wloop")
    if PROF:
        A("s_memrealtime s[78:79]")
        A("s_waitcnt lgkmcnt(0)")
        A("v_mov_b32 v120, s72")
        A("v_mov_b32 v121, s74")
        A("v_mov_b32 v122, s76")
        A("v_mov_b32 v123, s78")
        A("v_mov_b32 v126, 0")
        A("s_mov_b64 exec, 1")
        A("buffer_store_dwordx4 v[120:123], v126, s[4:7], s69 offen")
        A("s_mov_b64 exec, -1")
        A("s_add_u32 s69, s69, 16")
    cnt_addr(A, 22, stage)
    A("v_mov_b32 v126, 0")
    A("v_mov_b32 v127, 1")
    A("s_mov_b64 exec, 1")
    A("buffer_atomic_add v127, v126, s[4:7], s22 offen")
    A("s_mov_b64 exec, -1")
    A("s_branch L_wloop")

def stage_ln(A, which):
    tag = f"ln{which}"
    if which == 0:
        A("s_cmp_eq_u32 s42, 0")
        A(f"s_cbranch_scc1 L_{tag}_nodep")
        A("s_mov_b32 s23, 0")
        cnt_addr(A, 22, 6, "s23")
        poll_counter(A, tag, "s22", 32)
        A.label(f"L_{tag}_nodep")
    else:
        cnt_addr(A, 22, 3)
        poll_counter(A, tag, "s22", 32)
    A("s_lshl_b32 s23, s42, 1")
    A(f"s_add_u32 s23, s23, {which}")
    A("s_lshl_b32 s23, s23, 21")
    A(f"s_add_u32 s19, s23, {XR}")
    A(f"s_add_u32 s18, s23, {XFA}")
    A("v_lshrrev_b32 v1, 4, v0")
    A("s_lshl_b32 s3, s40, 6")
    A("s_lshl_b32 s15, s41, 5")
    A("s_add_u32 s3, s3, s15")
    A("v_add_u32 v1, s3, v1")
    A("v_and_b32 v2, 15, v0")
    A("v_lshlrev_b32 v3, 10, v1")
    A("v_lshl_add_u32 v3, v2, 4, v3")
    for q in range(4):
        A(f"buffer_load_dwordx4 v[{16+4*q}:{19+4*q}], v3, s[4:7], s19 offen offset:{q*256} sc1")
    A("s_add_u32 s19, s19, 16384")
    for q in range(4):
        A(f"buffer_load_dwordx4 v[{64+4*q}:{67+4*q}], v3, s[4:7], s19 offen offset:{q*256} sc1")
    A("v_bfe_u32 v4, v1, 3, 2")
    A("v_and_b32 v5, 3, v1")
    A("v_lshl_add_u32 v4, v4, 2, v5")
    A("v_and_b32 v5, 3, v2")
    A("v_lshl_add_u32 v4, v5, 4, v4")
    A("v_lshlrev_b32 v4, 4, v4")
    A("v_bfe_u32 v5, v1, 2, 1")
    A("v_bfe_u32 v6, v1, 5, 1")
    A("v_lshl_add_u32 v5, v6, 1, v5")
    A("v_lshl_add_u32 v4, v5, 10, v4")
    A("v_lshrrev_b32 v5, 6, v1")
    A("v_lshrrev_b32 v6, 2, v2")
    A("v_lshl_add_u32 v5, v5, 4, v6")
    A("v_lshl_add_u32 v4, v5, 12, v4")
    for it in range(2):
        A(f"s_waitcnt vmcnt({4 if it == 0 else 4})")
        if it == 1:
            for i in range(16): A(f"v_mov_b32 v{16+i}, v{64+i}")
        ln_math(A)
        for q in range(4):
            A(f"s_add_u32 s20, s18, {q*4*4096 + it*128}")
            A(f"buffer_store_dwordx4 v[{16+4*q}:{19+4*q}], v4, s[4:7], s20 offen sc1")
    signal(A, 0 if which == 0 else 4)

XB = 8; WB = 40; TMPX = 104; ACCW = 168

def ta_prologue(A, tag, which, dep_stage):
    A("v_and_b32 v4, 63, v0")
    A("v_lshlrev_b32 v4, 4, v4")
    A("s_bitcmp0_b32 s72, 16")
    A(f"s_cbranch_scc1 L_{tag}_nopre")
    for kk in range(16):
        for t in range(4):
            A(f"buffer_load_dwordx4 a[{(kk*4+t)*4}:{(kk*4+t)*4+3}], v4, s[4:7], s15 offen offset:{t*1024}")
        A("s_add_u32 s15, s15, 4096")
    A.label(f"L_{tag}_nopre")
    cnt_addr(A, 22, dep_stage)
    poll_counter(A, tag, "s22", 2)
    A("v_lshlrev_b32 v1, 4, v0")
    A("s_lshl_b32 s23, s42, 1")
    A(f"s_add_u32 s23, s23, {which}")
    A("s_lshl_b32 s23, s23, 21")
    A("s_lshl_b32 s19, s40, 16")
    A("s_add_u32 s19, s19, s23")
    A(f"s_add_u32 s19, s19, {XFA}")
    for i in range(16):
        A(f"buffer_load_dwordx4 v[{TMPX+4*i}:{TMPX+4*i+3}], v1, s[4:7], s19 offen sc1")
        if i < 15: A("s_add_u32 s19, s19, 4096")
    for i in range(16):
        A(f"s_waitcnt vmcnt({15-i})")
        A(f"ds_write_b128 v1, v[{TMPX+4*i}:{TMPX+4*i+3}] offset:{i*4096}")
    A("v_mov_b32 v5, v4")
    A("s_waitcnt lgkmcnt(0)")
    A("s_barrier")

def ta_xread(A, buf, koff):
    for mt in range(4):
        A(f"ds_read_b128 v[{XB+16*buf+4*mt}:{XB+16*buf+4*mt+3}], v5 offset:{koff*4096+mt*1024}")

def ta_kloop(A, vtype):
    NB = 3
    ta_xread(A, 0, 0); ta_xread(A, 1, 1)
    for kk in range(16):
        if kk + 2 < 16: ta_xread(A, (kk + 2) % NB, kk + 2)
        lg = min(8, 4 * (15 - kk))
        A(f"s_waitcnt lgkmcnt({lg})")
        for ct in range(4):
            for mt in range(4):
                w = a((kk * 4 + ct) * 4, 4); x = v(XB + 16 * (kk % NB) + 4 * mt, 4)
                acc = v(ACCW + (ct * 4 + mt) * 4, 4)
                c = "0" if kk == 0 else acc
                if vtype: A(f"v_mfma_f32_16x16x32_bf16 {acc}, {x}, {w}, {c}")
                else:     A(f"v_mfma_f32_16x16x32_bf16 {acc}, {w}, {x}, {c}")

def stage_q(A):
    A("s_and_b32 s16, s41, 15")
    A("s_lshl_b32 s16, s16, 2")
    A("s_add_u32 s16, s16, s13")
    A("s_lshr_b32 s17, s41, 4")
    A("s_add_u32 s18, s17, 1")
    A("s_cmp_eq_u32 s17, 2")
    A("s_cselect_b32 s18, 0, s18")
    A("s_mul_i32 s15, s16, 3")
    A("s_add_u32 s15, s15, s18")
    A("s_lshl_b32 s15, s15, 16")
    A(f"s_add_u32 s15, s15, {WQKV_F}")
    ta_prologue(A, "q", 0, 0)
    A("s_cmp_eq_u32 s17, 1")
    A("s_cbranch_scc1 L_q_v")
    ta_kloop(A, False)
    A("s_lshl_b32 s19, s40, 7")
    A("s_lshr_b32 s20, s16, 1")
    A("s_add_u32 s19, s19, s20")
    A("s_lshl_b32 s19, s19, 2")
    A("s_and_b32 s20, s16, 1")
    A("s_lshl_b32 s20, s20, 1")
    A("s_add_u32 s19, s19, s20")
    A("s_lshl_b32 s19, s19, 10")
    A("s_add_u32 s19, s19, s43")
    A(f"s_mov_b32 s20, {KF}")
    A("s_cmp_eq_u32 s17, 2")
    A(f"s_cselect_b32 s20, {QF}, s20")
    A("s_add_u32 s19, s19, s20")
    for mt in range(4):
        for cp in range(2):
            pk = TMPX + 4 * (mt * 2 + cp)
            for half in range(2):
                b = ACCW + ((2 * cp + half) * 4 + mt) * 4
                A(f"v_cvt_pk_bf16_f32 v{pk+2*half}, v{b}, v{b+1}")
                A(f"v_cvt_pk_bf16_f32 v{pk+2*half+1}, v{b+2}, v{b+3}")
            A(f"buffer_store_dwordx4 v[{pk}:{pk+3}], v4, s[4:7], s19 offen offset:{cp*1024} sc1")
        if mt < 3: A("s_add_u32 s19, s19, 131072")
    A("s_cmp_eq_u32 s17, 2")
    A("s_cbranch_scc1 L_q_sigq")
    signal(A, 7)
    A.label("L_q_sigq")
    signal(A, 1)
    A.label("L_q_v")
    ta_kloop(A, True)
    A("s_lshl_b32 s19, s40, 6")
    A("s_lshr_b32 s20, s16, 1")
    A("s_add_u32 s19, s19, s20")
    A("s_lshl_b32 s19, s19, 3")
    A("s_and_b32 s20, s16, 1")
    A("s_lshl_b32 s20, s20, 2")
    A("s_add_u32 s19, s19, s20")
    A("s_lshl_b32 s19, s19, 10")
    A("s_add_u32 s19, s19, s43")
    A(f"s_add_u32 s19, s19, {VF}")
    for sg in range(2):
        for ct in range(4):
            pk = TMPX + 4 * (sg * 4 + ct)
            for half in range(2):
                b = ACCW + (ct * 4 + 2 * sg + half) * 4
                A(f"v_cvt_pk_bf16_f32 v{pk+2*half}, v{b}, v{b+1}")
                A(f"v_cvt_pk_bf16_f32 v{pk+2*half+1}, v{b+2}, v{b+3}")
            A(f"buffer_store_dwordx4 v[{pk}:{pk+3}], v4, s[4:7], s19 offen offset:{ct*1024} sc1")
        if sg < 1: A("s_add_u32 s19, s19, 262144")
    signal(A, 7)

def stage_q1stream(A):
    PKR = 56
    A("s_and_b32 s16, s41, 15")
    A("s_lshl_b32 s16, s16, 2")
    A("s_add_u32 s16, s16, s13")
    A("s_lshr_b32 s17, s41, 4")
    A("s_add_u32 s18, s17, 1")
    A("s_cmp_eq_u32 s17, 2")
    A("s_cselect_b32 s18, 0, s18")
    A("s_mul_i32 s15, s16, 3")
    A("s_add_u32 s15, s15, s18")
    A("s_lshl_b32 s15, s15, 16")
    A(f"s_add_u32 s15, s15, {WQKV_F}")
    A("v_and_b32 v4, 63, v0")
    A("v_lshlrev_b32 v4, 4, v4")
    A("v_lshlrev_b32 v1, 4, v0")
    A(f"s_mov_b32 s19, {XFA}")
    def xloads():
        for i in range(16):
            A(f"buffer_load_dwordx4 v[{TMPX+4*i}:{TMPX+4*i+3}], v1, s[4:7], s19 offen")
            A("s_add_u32 s19, s19, 4096")
    xloads()
    for kk in range(16):
        for t in range(4):
            A(f"buffer_load_dwordx4 a[{(kk*4+t)*4}:{(kk*4+t)*4+3}], v4, s[4:7], s15 offen offset:{t*1024}")
        A("s_add_u32 s15, s15, 4096")
    A("s_lshr_b32 s20, s16, 1")
    A("s_and_b32 s21, s16, 1")
    A("s_cmp_eq_u32 s17, 1")
    A("s_cbranch_scc1 L_q1_vaddr")
    A("s_lshl_b32 s20, s20, 2")
    A("s_lshl_b32 s21, s21, 1")
    A("s_add_u32 s20, s20, s21")
    A("s_lshl_b32 s20, s20, 10")
    A(f"s_mov_b32 s21, {KF}")
    A("s_cmp_eq_u32 s17, 2")
    A(f"s_cselect_b32 s21, {QF}, s21")
    A("s_add_u32 s20, s20, s21")
    A("s_branch L_q1_addr_done")
    A.label("L_q1_vaddr")
    A("s_lshl_b32 s20, s20, 3")
    A("s_lshl_b32 s21, s21, 2")
    A("s_add_u32 s20, s20, s21")
    A("s_lshl_b32 s20, s20, 10")
    A(f"s_add_u32 s20, s20, {VF}")
    A.label("L_q1_addr_done")
    A(f"s_mov_b32 s21, {cnt_off(0, 7, 0)}")
    A("s_cmp_eq_u32 s17, 2")
    A(f"s_cselect_b32 s21, {cnt_off(0, 1, 0)}, s21")
    A("s_mov_b32 s40, 0")
    A("v_mov_b32 v2, v1")
    A("v_mov_b32 v5, v4")
    A("s_waitcnt vmcnt(0)")
    for i in range(16):
        A(f"ds_write_b128 v2, v[{TMPX+4*i}:{TMPX+4*i+3}] offset:{i*4096}")
    A("s_waitcnt lgkmcnt(0)")
    xloads()
    A("s_barrier")
    A("s_cmp_eq_u32 s17, 1")
    A("s_cbranch_scc1 L_q1_loop_v")
    for vtype in (False, True):
        tg = "v" if vtype else "qk"
        A.label(f"L_q1_loop_{tg}")
        ta_kloop(A, vtype)
        A("s_waitcnt vmcnt(0)")
        A("v_xor_b32 v2, 0x10000, v2")
        A("v_xor_b32 v5, 0x10000, v5")
        for i in range(16):
            A(f"ds_write_b128 v2, v[{TMPX+4*i}:{TMPX+4*i+3}] offset:{i*4096}")
        A("s_waitcnt lgkmcnt(0)")
        A("s_barrier")
        A("s_cmp_le_u32 s40, 1")
        A(f"s_cbranch_scc1 L_q1_nosig_{tg}")
        A("s_cmp_lg_u32 s13, 0")
        A(f"s_cbranch_scc1 L_q1_nosig2_{tg}")
        A("v_mov_b32 v6, 0")
        A("v_mov_b32 v7, 1")
        A("s_mov_b64 exec, 1")
        A("buffer_atomic_add v7, v6, s[4:7], s21 offen")
        A("s_mov_b64 exec, -1")
        A.label(f"L_q1_nosig2_{tg}")
        A("s_add_u32 s21, s21, 64")
        A.label(f"L_q1_nosig_{tg}")
        A("s_cmp_ge_u32 s40, 30")
        A(f"s_cbranch_scc1 L_q1_nold_{tg}")
        xloads()
        A.label(f"L_q1_nold_{tg}")
        A("s_mov_b32 s22, s20")
        if not vtype:
            for mt in range(4):
                for cp in range(2):
                    pk = PKR + 4 * (mt * 2 + cp)
                    for half in range(2):
                        b = ACCW + ((2 * cp + half) * 4 + mt) * 4
                        A(f"v_cvt_pk_bf16_f32 v{pk+2*half}, v{b}, v{b+1}")
                        A(f"v_cvt_pk_bf16_f32 v{pk+2*half+1}, v{b+2}, v{b+3}")
                    A(f"buffer_store_dwordx4 v[{pk}:{pk+3}], v4, s[4:7], s22 offen offset:{cp*1024} sc1")
                if mt < 3: A("s_add_u32 s22, s22, 131072")
        else:
            for sg in range(2):
                for ct in range(4):
                    pk = PKR + 4 * (sg * 4 + ct)
                    for half in range(2):
                        b = ACCW + (ct * 4 + 2 * sg + half) * 4
                        A(f"v_cvt_pk_bf16_f32 v{pk+2*half}, v{b}, v{b+1}")
                        A(f"v_cvt_pk_bf16_f32 v{pk+2*half+1}, v{b+2}, v{b+3}")
                    A(f"buffer_store_dwordx4 v[{pk}:{pk+3}], v4, s[4:7], s22 offen offset:{ct*1024} sc1")
                if sg < 1: A("s_add_u32 s22, s22, 262144")
        A("s_cmp_lg_u32 s40, 0")
        A(f"s_cbranch_scc1 L_q1_noearly_{tg}")
        A("s_waitcnt vmcnt(0)")
        A("s_barrier")
        A("s_cmp_lg_u32 s13, 0")
        A(f"s_cbranch_scc1 L_q1_early2_{tg}")
        A("v_mov_b32 v6, 0")
        A("v_mov_b32 v7, 1")
        A("s_mov_b64 exec, 1")
        A("buffer_atomic_add v7, v6, s[4:7], s21 offen")
        A("s_mov_b64 exec, -1")
        A.label(f"L_q1_early2_{tg}")
        A("s_add_u32 s21, s21, 64")
        A.label(f"L_q1_noearly_{tg}")
        A("s_add_u32 s20, s20, 524288")
        A("s_add_u32 s40, s40, 1")
        A("s_cmp_lt_u32 s40, 32")
        A(f"s_cbranch_scc1 L_q1_loop_{tg}")
        A("s_branch L_q1_fin")
    A.label("L_q1_fin")
    A("s_waitcnt vmcnt(0) lgkmcnt(0)")
    A("s_barrier")
    A("s_cmp_lg_u32 s13, 0")
    A("s_cbranch_scc1 L_wloop")
    A("v_mov_b32 v6, 0")
    A("v_mov_b32 v7, 1")
    A("s_mov_b64 exec, 1")
    A("buffer_atomic_add v7, v6, s[4:7], s21 offen")
    A("s_mov_b64 exec, -1")
    A("s_branch L_wloop")

def stage_g(A):
    A("s_lshl_b32 s16, s41, 2")
    A("s_add_u32 s16, s16, s13")
    A("s_lshl_b32 s15, s16, 16")
    A(f"s_add_u32 s15, s15, {WGU_F}")
    ta_prologue(A, "g", 1, 4)
    ta_kloop(A, False)
    A("s_mul_i32 s19, s40, 56")
    A("s_add_u32 s19, s19, s16")
    A("s_lshl_b32 s19, s19, 12")
    A("s_add_u32 s19, s19, s43")
    A(f"s_add_u32 s19, s19, {HF}")
    c2 = struct.unpack("<I", struct.pack("<f", -2.0 * math.sqrt(2.0 / math.pi) * math.log2(math.e)))[0]
    A("s_mov_b32 s28, 0x3d372713")
    A(f"s_mov_b32 s29, {c2}")
    Tm = 8
    for mt in range(4):
        pk = TMPX + 4 * mt
        G = [ACCW + (half * 4 + mt) * 4 + i for half in range(2) for i in range(4)]
        U = [ACCW + ((2 + half) * 4 + mt) * 4 + i for half in range(2) for i in range(4)]
        for i in range(0, 8, 2):
            A(f"v_cvt_pk_bf16_f32 v{Tm}, v{G[i]}, v{G[i+1]}")
            A(f"v_lshlrev_b32 v{G[i]}, 16, v{Tm}")
            A(f"v_and_b32 v{G[i+1]}, 0xffff0000, v{Tm}")
            A(f"v_cvt_pk_bf16_f32 v{Tm}, v{U[i]}, v{U[i+1]}")
            A(f"v_lshlrev_b32 v{U[i]}, 16, v{Tm}")
            A(f"v_and_b32 v{U[i+1]}, 0xffff0000, v{Tm}")
        for i in range(8):
            t = Tm + 1 + i
            A(f"v_mul_f32 v{t}, v{G[i]}, v{G[i]}")
            A(f"v_mul_f32 v{t}, s28, v{t}")
            A(f"v_fma_f32 v{t}, v{t}, v{G[i]}, v{G[i]}")
            A(f"v_mul_f32 v{t}, s29, v{t}")
            A(f"v_exp_f32 v{t}, v{t}")
        for i in range(8):
            t = Tm + 1 + i
            A(f"v_add_f32 v{t}, 1.0, v{t}")
            A(f"v_rcp_f32 v{t}, v{t}")
        for i in range(8):
            A(f"v_mul_f32 v{G[i]}, v{G[i]}, v{Tm+1+i}")
        for i in range(0, 8, 2):
            A(f"v_cvt_pk_bf16_f32 v{Tm}, v{G[i]}, v{G[i+1]}")
            A(f"v_lshlrev_b32 v{G[i]}, 16, v{Tm}")
            A(f"v_and_b32 v{G[i+1]}, 0xffff0000, v{Tm}")
            A(f"v_mul_f32 v{G[i]}, v{G[i]}, v{U[i]}")
            A(f"v_mul_f32 v{G[i+1]}, v{G[i+1]}, v{U[i+1]}")
            A(f"v_cvt_pk_bf16_f32 v{pk+i//2}, v{G[i]}, v{G[i+1]}")
        A(f"buffer_store_dwordx4 v[{pk}:{pk+3}], v4, s[4:7], s19 offen offset:{mt*1024} sc1")
    signal(A, 5)

def stage_attn(A):
    A("s_lshl_b32 s12, s40, 1")
    A("s_lshr_b32 s14, s41, 2")
    A("s_add_u32 s12, s12, s14")
    A("s_and_b32 s14, s41, 3")
    A("s_lshl_b32 s14, s14, 3")
    A("s_lshl_b32 s15, s13, 1")
    A("s_add_u32 s14, s14, s15")
    cnt_addr(A, 22, 1)
    cnt_addr(A, 21, 7)
    poll_counter2(A, "a1", "s22", 16, "s21", 32)
    A("v_and_b32 v14, 63, v0")
    A("v_lshlrev_b32 v1, 4, v14")
    A("v_lshlrev_b32 v13, 3, v14")
    S = 144; T = 168; O = 176
    def R(hh, kind, i, n):
        base = {"Q": 16, "K": 48, "KM": 80, "V": 96, "VM": 128}[kind]
        if hh == 0:
            r = base + i
            if kind == "V" and i >= 28: r = 240 + (i - 28)
            return v(r, n)
        abase = {"Q": 0, "K": 32, "V": 64, "KM": 96, "VM": 112}[kind]
        return a(abase + i, n)
    for hh in range(2):
        A("s_lshl_b32 s15, s12, 6")
        A("s_add_u32 s15, s15, s14")
        A(f"s_add_u32 s15, s15, {hh}")
        A("s_lshl_b32 s15, s15, 12")
        A("s_add_u32 s15, s15, s43")
        A(f"s_add_u32 s16, s15, {QF}")
        A(f"s_add_u32 s17, s15, {KF}")
        for t in range(2):
            for j in range(4):
                A(f"buffer_load_dwordx4 {R(hh,'Q',16*t+4*j,4)}, v1, s[4:7], s16 offen offset:{j*1024} sc1")
                A(f"buffer_load_dwordx4 {R(hh,'K',16*t+4*j,4)}, v1, s[4:7], s17 offen offset:{j*1024} sc1")
            if t == 0:
                A("s_add_u32 s16, s16, 131072")
                A("s_add_u32 s17, s17, 131072")
        A("s_lshl_b32 s15, s12, 5")
        A("s_add_u32 s15, s15, s14")
        A(f"s_add_u32 s15, s15, {hh}")
        A("s_lshl_b32 s16, s15, 13")
        A("s_add_u32 s16, s16, s43")
        A(f"s_add_u32 s16, s16, {VF}")
        for et in range(8):
            if et == 4: A("s_add_u32 s16, s16, 4096")
            A(f"buffer_load_dwordx4 {R(hh,'V',4*et,4)}, v1, s[4:7], s16 offen offset:{(et&3)*1024} sc1")
    A("s_lshl_b32 s22, s42, 6")
    A("s_add_u32 s22, s22, s12")
    A("s_lshl_b32 s22, s22, 6")
    A(f"s_add_u32 s22, s22, {CHAIN_CNT}")
    poll_counter(A, "a2", "s22", 128)
    for hh in range(2):
        A("s_lshl_b32 s15, s12, 5")
        A("s_add_u32 s15, s15, s14")
        A(f"s_add_u32 s15, s15, {hh}")
        A("s_lshl_b32 s16, s15, 12")
        A("s_add_u32 s16, s16, s43")
        A(f"s_add_u32 s18, s16, {VM}")
        A(f"s_add_u32 s16, s16, {KM}")
        for j in range(4):
            A(f"buffer_load_dwordx4 {R(hh,'KM',4*j,4)}, v1, s[4:7], s16 offen offset:{j*1024} sc1")
        for et in range(8):
            A(f"buffer_load_dwordx2 {R(hh,'VM',2*et,2)}, v13, s[4:7], s18 offen offset:{et*512} sc1")
    A(f"s_mov_b32 s28, {SCALE_HEX}")
    A(f"s_mov_b32 s29, {LOG2E_HEX}")
    A("v_and_b32 v15, 15, v14")
    A("v_lshrrev_b32 v2, 2, v15")
    A("v_and_b32 v3, 3, v15")
    A("v_lshl_add_u32 v2, v2, 3, v3")
    A("v_lshrrev_b32 v3, 4, v14")
    A("v_lshlrev_b32 v3, 3, v3")
    A("v_sub_u32 v2, v2, v3")
    A("s_lshl_b32 s16, s40, 7")
    A("s_lshl_b32 s17, s14, 2")
    A("s_add_u32 s16, s16, s17")
    A("s_lshl_b32 s16, s16, 2")
    A("s_and_b32 s17, s12, 1")
    A("s_lshl_b32 s17, s17, 1")
    A("s_add_u32 s16, s16, s17")
    A("s_lshl_b32 s16, s16, 10")
    A("s_add_u32 s16, s16, s43")
    A(f"s_add_u32 s16, s16, {OF}")
    A(f"v_mov_b32 v{T+7}, 0xf149f2ca")
    for hh in range(2):
        A(f"s_waitcnt vmcnt({20 if hh == 0 else 16})")
        for tq in range(2):
            for j in range(4):
                for kt in range(3):
                    src = R(hh, 'KM', 4 * j, 4) if kt == 0 else R(hh, 'K', 16 * (kt - 1) + 4 * j, 4)
                    acc = v(S + 12 * tq + 4 * kt, 4)
                    A(f"v_mfma_f32_16x16x32_bf16 {acc}, {src}, {R(hh,'Q',16*tq+4*j,4)}, {'0' if j==0 else acc}")
        A(f"s_waitcnt vmcnt({12 if hh == 0 else 8})")
        for tq in range(2):
            Sq = S + 12 * tq
            for i in range(0, 12, 2):
                A(f"v_cvt_pk_bf16_f32 v{T}, v{Sq+i}, v{Sq+i+1}")
                A(f"v_lshlrev_b32 v{Sq+i}, 16, v{T}")
                A(f"v_and_b32 v{Sq+i+1}, 0xffff0000, v{T}")
                A(f"v_mul_f32 v{Sq+i}, s28, v{Sq+i}")
                A(f"v_mul_f32 v{Sq+i+1}, s28, v{Sq+i+1}")
                A(f"v_cvt_pk_bf16_f32 v{T}, v{Sq+i}, v{Sq+i+1}")
                A(f"v_lshlrev_b32 v{Sq+i}, 16, v{T}")
                A(f"v_and_b32 v{Sq+i+1}, 0xffff0000, v{T}")
            A("v_cmp_gt_u32 vcc, 32, v14")
            for i in range(4): A(f"v_cndmask_b32 v{Sq+i}, v{T+7}, v{Sq+i}, vcc")
            for tk in range(2):
                for r in range(4):
                    A(f"v_cmp_le_i32 vcc, {r + 4*tk - 4*tq}, v2")
                    A(f"v_cndmask_b32 v{Sq+4+4*tk+r}, v{T+7}, v{Sq+4+4*tk+r}, vcc")
            A(f"v_max3_f32 v{T+1}, v{Sq}, v{Sq+1}, v{Sq+2}")
            for i in range(3, 11, 2): A(f"v_max3_f32 v{T+1}, v{T+1}, v{Sq+i}, v{Sq+i+1}")
            A(f"v_max_f32 v{T+1}, v{T+1}, v{Sq+11}")
            xlane(A, T + 1, T + 2, ("p16", "p32"), "v_max_f32")
            for i in range(12):
                A(f"v_sub_f32 v{Sq+i}, v{Sq+i}, v{T+1}")
                A(f"v_mul_f32 v{Sq+i}, s29, v{Sq+i}")
                A(f"v_exp_f32 v{Sq+i}, v{Sq+i}")
            A(f"v_add_f32 v{T+1}, v{Sq}, v{Sq+1}")
            for i in range(2, 12): A(f"v_add_f32 v{T+1}, v{T+1}, v{Sq+i}")
            xlane(A, T + 1, T + 2, ("p16", "p32"))
            A(f"v_rcp_f32 v{T+1}, v{T+1}")
            for i in range(12): A(f"v_mul_f32 v{Sq+i}, v{Sq+i}, v{T+1}")
            PM = T + 2; PT = 4
            A(f"v_cvt_pk_bf16_f32 v{PM}, v{Sq}, v{Sq+1}")
            A(f"v_cvt_pk_bf16_f32 v{PM+1}, v{Sq+2}, v{Sq+3}")
            for i in range(4): A(f"v_cvt_pk_bf16_f32 v{PT+i}, v{Sq+4+2*i}, v{Sq+5+2*i}")
            for et in range(8):
                A(f"v_mfma_f32_16x16x32_bf16 v[{O+4*et}:{O+4*et+3}], {R(hh,'V',4*et,4)}, v[{PT}:{PT+3}], 0")
            for et in range(8):
                A(f"v_mfma_f32_16x16x16_bf16 v[{O+4*et}:{O+4*et+3}], {R(hh,'VM',2*et,2)}, v[{PM}:{PM+1}], v[{O+4*et}:{O+4*et+3}]")
            PKO = 208 + 16 * tq
            for j in range(4):
                for half in range(2):
                    b = O + 8 * j + 4 * half
                    A(f"v_cvt_pk_bf16_f32 v{PKO+4*j+2*half}, v{b}, v{b+1}")
                    A(f"v_cvt_pk_bf16_f32 v{PKO+4*j+2*half+1}, v{b+2}, v{b+3}")
                A(f"s_add_u32 s17, s16, {hh*16384 + j*4096 + tq*1024}")
                A(f"buffer_store_dwordx4 v[{PKO+4*j}:{PKO+4*j+3}], v1, s[4:7], s17 offen sc1")
    signal(A, 2)

def stage_tb(A, tag, WF, AFB, KS, dep_stage, dep_n, res_idx, sig_stage):
    KW = KS // 4
    RING = 8
    RB = 16; ACC = RB + 16 * RING
    A("v_and_b32 v14, 63, v0")
    A("v_lshlrev_b32 v1, 4, v14")
    A("s_lshr_b32 s12, s41, 4")
    A("s_and_b32 s14, s41, 15")
    A(f"s_mul_i32 s15, s13, {KW}")
    A("s_lshr_b32 s16, s14, 1")
    A(f"s_mul_i32 s16, s16, {KS}")
    A("s_add_u32 s16, s16, s15")
    A("s_lshl_b32 s16, s16, 12")
    A("s_and_b32 s18, s14, 1")
    A("s_lshl_b32 s18, s18, 11")
    A("s_add_u32 s16, s16, s18")
    A(f"s_add_u32 s16, s16, {WF}")
    A(f"s_mul_i32 s17, s40, {KS}")
    A("s_add_u32 s17, s17, s15")
    A("s_lshl_b32 s17, s17, 12")
    A("s_lshl_b32 s18, s12, 11")
    A("s_add_u32 s17, s17, s18")
    A("s_add_u32 s17, s17, s43")
    A(f"s_add_u32 s17, s17, {AFB}")
    RING = 16; ACC = RB + 8 * RING
    A("s_bitcmp0_b32 s72, 16")
    A(f"s_cbranch_scc1 L_{tag}_nopre")
    for kk in range(KW):
        for t in range(2):
            A(f"buffer_load_dwordx4 a[{(kk*2+t)*4}:{(kk*2+t)*4+3}], v1, s[4:7], s16 offen offset:{t*1024}")
        A("s_add_u32 s16, s16, 4096")
    A("s_waitcnt vmcnt(0)")
    A.label(f"L_{tag}_nopre")
    def lda(si):
        for t in range(2):
            A(f"buffer_load_dwordx4 v[{RB+8*si+4*t}:{RB+8*si+4*t+3}], v1, s[4:7], s17 offen offset:{t*1024} sc1")
        A("s_add_u32 s17, s17, 4096")
    def mm(kk):
        si = kk % RING
        for ct in range(2):
            for tt in range(2):
                acc = v(ACC + (ct * 2 + tt) * 4, 4)
                A(f"v_mfma_f32_16x16x32_bf16 {acc}, a[{(kk*2+ct)*4}:{(kk*2+ct)*4+3}], v[{RB+8*si+4*tt}:{RB+8*si+4*tt+3}], {'0' if kk==0 else acc}")
    D = min(RING - 1, KW)
    cnt_addr(A, 22, dep_stage)
    A("v_mov_b32 v250, 0")
    poll_counter(A, tag, "s22", dep_n)
    for si in range(D): lda(si)
    for kk in range(KW):
        if kk + D < KW:
            lda((kk + D) % RING)
            A(f"s_waitcnt vmcnt({2*D})")
        else:
            A(f"s_waitcnt vmcnt({2*(KW-1-kk)})")
        mm(kk)
    A("s_lshl_b32 s15, s13, 12")
    A("v_add_u32 v2, s15, v1")
    for i in range(4):
        A(f"ds_write_b128 v2, v[{ACC+4*i}:{ACC+4*i+3}] offset:{i*1024}")
    A("s_and_b32 s15, s13, 1")
    A("s_lshl_b32 s15, s15, 10")
    A("v_add_u32 v3, s15, v1")
    A("v_and_b32 v4, 15, v14")
    A("v_lshrrev_b32 v5, 2, v4")
    A("v_and_b32 v4, 3, v4")
    A("v_lshl_add_u32 v4, v5, 3, v4")
    A("s_lshl_b32 s15, s40, 6")
    A("s_lshl_b32 s18, s12, 5")
    A("s_add_u32 s15, s15, s18")
    A("s_and_b32 s18, s13, 1")
    A("s_lshl_b32 s18, s18, 2")
    A("s_add_u32 s15, s15, s18")
    A("v_add_u32 v4, s15, v4")
    A("v_lshlrev_b32 v4, 10, v4")
    A("v_lshrrev_b32 v5, 4, v14")
    A("v_lshl_add_u32 v4, v5, 4, v4")
    A("s_lshl_b32 s15, s14, 6")
    A("v_add_u32 v4, s15, v4")
    A("s_lshl_b32 s18, s42, 1")
    A(f"s_add_u32 s18, s18, {res_idx}")
    A("s_lshl_b32 s18, s18, 21")
    A(f"s_add_u32 s18, s18, {XR}")
    A(f"buffer_load_dwordx4 v[8:11], v4, s[4:7], s18 offen sc1")
    A("s_waitcnt lgkmcnt(0)")
    A("s_barrier")
    A("s_cmp_ge_u32 s13, 2")
    A(f"s_cbranch_scc1 L_{tag}_done")
    R = 16
    for ww in range(4):
        for ct in range(2):
            A(f"ds_read_b128 v[{R+8*ww+4*ct}:{R+8*ww+4*ct+3}], v3 offset:{ww*4096+ct*2048}")
    A("s_waitcnt lgkmcnt(4)")
    for i in range(8): A(f"v_add_f32 v{R+i}, v{R+i}, v{R+8+i}")
    A("s_waitcnt lgkmcnt(2)")
    for i in range(8): A(f"v_add_f32 v{R+i}, v{R+i}, v{R+16+i}")
    A("s_waitcnt lgkmcnt(0) vmcnt(0)")
    for i in range(8): A(f"v_add_f32 v{R+i}, v{R+i}, v{R+24+i}")
    for i in range(4):
        A(f"v_cvt_pk_bf16_f32 v6, v{R+2*i}, v{R+2*i+1}")
        A(f"v_lshlrev_b32 v{R+2*i}, 16, v6")
        A(f"v_and_b32 v{R+2*i+1}, 0xffff0000, v6")
        A(f"v_lshlrev_b32 v6, 16, v{8+i}")
        A(f"v_and_b32 v7, 0xffff0000, v{8+i}")
        A(f"v_add_f32 v{R+2*i}, v{R+2*i}, v6")
        A(f"v_add_f32 v{R+2*i+1}, v{R+2*i+1}, v7")
        A(f"v_cvt_pk_bf16_f32 v{R+32+i}, v{R+2*i}, v{R+2*i+1}")
    if res_idx == 1:
        A("s_cmp_eq_u32 s42, 1")
        A(f"s_cbranch_scc1 L_{tag}_out")
    A(f"s_add_u32 s18, s18, {2*MB}")
    A(f"buffer_store_dwordx4 v[{R+32}:{R+35}], v4, s[4:7], s18 offen sc1")
    if res_idx == 1:
        A(f"s_branch L_{tag}_done")
        A.label(f"L_{tag}_out")
        A(f"buffer_store_dwordx4 v[{R+32}:{R+35}], v4, s[64:67], 0 offen")
    A.label(f"L_{tag}_done")
    signal(A, sig_stage)

NSUB = {0: 2, 1: 48, 2: 8, 3: 32, 4: 2, 5: 14, 6: 32}
TBL_STRIDE = 80

def schedule(nW=192, verbose=False):
    def word(layer, stage, blk, sub): return stage | (blk << 4) | (sub << 9) | (layer << 15)
    lists = []
    def new_worker():
        lists.append([]); return lists[-1]
    TAILB = 28
    for sub in range(48):
        w = new_worker()
        for b in range(32): w.append(word(1, 1, b, sub))
    Dw = {}
    for l in range(2):
        for sub in range(32):
            w = new_worker()
            for b in range(32): w.append(word(l, 3, b, sub))
        for sub in range(14):
            w = new_worker()
            for b in range(32): w.append(word(l, 5, b, sub))
        for cg in range(16):
            Dw[(l, cg)] = new_worker()
    for l in range(2):
        for cg in range(16):
            for b in range(32):
                Dw[(l, cg)].append(word(l, 6, b, cg))
                if l == 1 and b >= TAILB: Dw[(0, cg)].append(word(l, 6, b, 16 + cg))
                else: Dw[(l, cg)].append(word(l, 6, b, 16 + cg))
    Aw = [[new_worker() for _ in range(7)] for l in range(2)]
    for l in range(2):
        k = 0
        for b in range(32):
            for sub in range(8):
                if l == 1 and b >= TAILB:
                    pool = Aw[0] + Aw[1]
                    pool[(k * 5) % 14].append(word(l, 2, b, sub))
                else:
                    Aw[l][k % 7].append(word(l, 2, b, sub))
                k += 1
    for (l, st) in ((0, 4), (1, 0), (1, 4)):
        ws = [new_worker() for _ in range(2)]
        for b in range(32):
            for sub in range(2): ws[sub].append(word(l, st, b, sub))
    assert len(lists) == nW, len(lists)
    for w in lists: w[0] |= 1 << 16
    q1w = [w for w in lists if (w[0] & 0xffff) >> 15 == 1 and (w[0] & 15) in (3, 6)]
    assert len(q1w) == 48, len(q1w)
    for sub, w in enumerate(q1w): w.insert(0, word(0, 8, 0, sub))
    if verbose: print("maxlen", max(len(x) for x in lists))
    assert max(len(l) for l in lists) < TBL_STRIDE, max(len(l) for l in lists)
    return lists

def gen_mega():
    A = Asm()
    name = "mega_kernel"
    A.raw(kernel_header(name))
    A("s_cmp_ge_u32 s2, 256")
    A(f"s_cbranch_scc1 {END}")
    load_ptr_srd(A, "ws", 4, WS_BYTES, 20)
    load_ptr_srd(A, "out", 64, 2 * MB, 20)
    rendezvous(A)
    A("s_cmp_ge_u32 s12, 64")
    A("s_cbranch_scc1 L_worker")
    gen_chain_role(A)
    A.label("L_worker")
    A("s_sub_u32 s12, s12, 64")
    A(f"s_mul_i32 s69, s12, {TBL_STRIDE*16}")
    A(f"s_add_u32 s69, s69, {PROFB + MB}")
    A("s_getpc_b64 s[70:71]")
    A.label("L_pcref")
    A(f"s_mul_i32 s15, s12, {TBL_STRIDE*4}")
    A("s_add_u32 s70, s70, s15")
    A("s_addc_u32 s71, s71, 0")
    A("s_add_u32 s70, s70, L_table-L_pcref")
    A("s_addc_u32 s71, s71, 0")
    A.label("L_wloop")
    A("s_load_dword s72, s[70:71], 0")
    A("s_add_u32 s70, s70, 4")
    A("s_addc_u32 s71, s71, 0")
    A("s_waitcnt lgkmcnt(0)")
    A("s_cmp_eq_u32 s72, -1")
    A(f"s_cbranch_scc1 {END}")
    if PROF:
        A("s_memrealtime s[74:75]")
        A("s_waitcnt lgkmcnt(0)")
        A("s_mov_b32 s76, s74")
    A("s_and_b32 s73, s72, 15")
    A("s_bfe_u32 s40, s72, 0x50004")
    A("s_bfe_u32 s41, s72, 0x60009")
    A("s_bfe_u32 s42, s72, 0x1000f")
    A(f"s_mul_i32 s43, s42, {LSTRIDE}")
    for st in (0, 1, 2, 3, 4, 5, 6, 8):
        A(f"s_cmp_eq_u32 s73, {st}")
        A(f"s_cbranch_scc1 L_st{st}")
    A(f"s_branch {END}")
    A.label("L_st0"); stage_ln(A, 0)
    A.label("L_st1"); stage_q(A)
    A.label("L_st2"); stage_attn(A)
    A.label("L_st3"); stage_tb(A, "wo", WO_F, OF, 128, 2, 8, 0, 3)
    A.label("L_st4"); stage_ln(A, 1)
    A.label("L_st5"); stage_g(A)
    A.label("L_st6"); stage_tb(A, "dn", WD_F, HF, 56, 5, 14, 1, 6)
    A.label("L_st8"); stage_q1stream(A)
    A.label(END)
    A("s_endpgm")
    A.raw(".p2align 6")
    A.label("L_table")
    for l in schedule(verbose=True):
        ws_ = l + [0xFFFFFFFF] * (TBL_STRIDE - len(l))
        for i in range(0, TBL_STRIDE, 16):
            A.raw("    .long " + ", ".join(hex(x) for x in ws_[i:i+16]))
    return name, A, 256, (256, 256)

def copy_x_to_lds(A, mg_sreg, tmpv):
    A("v_lshlrev_b32 v1, 4, v0")
    A(f"s_lshl_b32 s19, s{mg_sreg}, 17")
    A(f"s_add_u32 s19, s19, {XFA}")
    for rnd in range(4):
        for i in range(8):
            A(f"buffer_load_dwordx4 v[{tmpv+4*i}:{tmpv+4*i+3}], v1, s[4:7], s19 offen")
            A("s_add_u32 s19, s19, 4096")
        for i in range(8):
            A(f"s_waitcnt vmcnt({7-i})")
            off = (rnd * 8 + i) * 4096
            if off < 65536:
                A(f"ds_write_b128 v1, v[{tmpv+4*i}:{tmpv+4*i+3}] offset:{off}")
            else:
                A(f"ds_write_b128 v2, v[{tmpv+4*i}:{tmpv+4*i+3}] offset:{off-65536}")
            if rnd == 0 and i < 2:
                A(f"ds_write_b128 v3, v[{tmpv+4*i}:{tmpv+4*i+3}] offset:{i*4096}")

def gen_qkv(name):
    A = Asm()
    A.raw(kernel_header(name))
    A("s_cmp_ge_u32 s2, 256")
    A("s_cbranch_scc1 L_end_" + name)
    load_ptr_srd(A, "ws", 4, WS_BYTES, 20)
    A("s_and_b32 s12, s2, 7")
    A("s_lshl_b32 s12, s12, 1")
    A("s_bfe_u32 s13, s2, 0x10003")
    A("s_add_u32 s12, s12, s13")
    A("s_lshr_b32 s13, s2, 4")
    A("v_lshlrev_b32 v1, 4, v0")
    A("v_add_u32 v2, 0x10000, v1")
    A("v_add_u32 v3, 0x20000, v1")
    ACC = 0 + 128
    XB = 8
    WB = 72
    XB = 8; WB = 64
    XB = 8; WB = 72; PK = 136
    copy_x_to_lds(A, 13, WB)
    A("v_lshrrev_b32 v4, 6, v0")
    A("v_readfirstlane_b32 s14, v4")
    A("v_and_b32 v4, 63, v0")
    A("v_lshlrev_b32 v4, 4, v4")
    A("v_mov_b32 v5, v4")
    A("s_lshl_b32 s15, s12, 2")
    A("s_add_u32 s15, s15, s14")
    A("s_mul_i32 s15, s15, 196608")
    A(f"s_add_u32 s15, s15, {WQKV_F}")
    A("s_waitcnt lgkmcnt(0)")
    A("s_barrier")
    def wload(setidx):
        for t in range(4):
            A(f"buffer_load_dwordx4 v[{WB+16*setidx+4*t}:{WB+16*setidx+4*t+3}], v4, s[4:7], s15 offen offset:{t*1024}")
        A("s_add_u32 s15, s15, 4096")
    def xread(buf, koff):
        for mt in range(8):
            A(f"ds_read_b128 v[{XB+32*buf+4*mt}:{XB+32*buf+4*mt+3}], v5 offset:{koff*8192+mt*1024}")
    for st in range(3): wload(st)
    xread(0, 0)
    A("s_lshl_b32 s16, s13, 3")
    A("s_lshl_b32 s16, s16, 5")
    A("s_lshl_b32 s17, s12, 1")
    A("s_lshr_b32 s18, s14, 1")
    A("s_add_u32 s17, s17, s18")
    A("s_add_u32 s16, s16, s17")
    A("s_lshl_b32 s16, s16, 2")
    A("s_and_b32 s18, s14, 1")
    A("s_lshl_b32 s18, s18, 1")
    A("s_add_u32 s16, s16, s18")
    A("s_lshl_b32 s16, s16, 10")
    A(f"s_add_u32 s16, s16, {QF}")
    A("s_lshl_b32 s20, s13, 2")
    A("s_lshl_b32 s20, s20, 5")
    A("s_add_u32 s20, s20, s17")
    A("s_lshl_b32 s20, s20, 3")
    A("s_lshl_b32 s18, s18, 1")
    A("s_add_u32 s20, s20, s18")
    A("s_lshl_b32 s20, s20, 10")
    A(f"s_add_u32 s20, s20, {VF}")
    A("s_mov_b32 s21, 0")
    def zero_acc():
        for i in range(128): A(f"v_accvgpr_write_b32 a{i}, 0")
    def kloop(tag, vtype):
        A("s_mov_b32 s22, 0")
        A.label(f"L_k_{tag}_{name}")
        for u in range(4):
            wload((u + 3) % 4)
            xread((u + 1) % 2, u + 1)
            A("s_waitcnt vmcnt(12) lgkmcnt(8)")
            for ct in range(4):
                for mt in range(8):
                    w = v(WB + 16 * u + 4 * ct, 4); x = v(XB + 32 * (u % 2) + 4 * mt, 4)
                    acc = a((ct * 8 + mt) * 4, 4)
                    if vtype: A(f"v_mfma_f32_16x16x32_bf16 {acc}, {x}, {w}, {acc}")
                    else:     A(f"v_mfma_f32_16x16x32_bf16 {acc}, {w}, {x}, {acc}")
        A("v_add_u32 v5, 0x8000, v5")
        A("v_and_b32 v5, 0x1ffff, v5")
        A("s_add_u32 s22, s22, 1")
        A("s_cmp_lt_u32 s22, 4")
        A(f"s_cbranch_scc1 L_k_{tag}_{name}")
    zero_acc()
    A.label(f"L_pass_{name}")
    kloop("qk", False)
    A.fence(10)
    A("s_mov_b32 s19, s16")
    n = 0
    for mt in range(8):
        for cp in range(2):
            pk = PK + 4 * (n % 8); n += 1
            for half in range(2):
                base = ((2 * cp + half) * 8 + mt) * 4
                for i in range(4): A(f"v_accvgpr_read_b32 v{168+i}, a{base+i}")
                A(f"v_cvt_pk_bf16_f32 v{pk+2*half}, v168, v169")
                A(f"v_cvt_pk_bf16_f32 v{pk+2*half+1}, v170, v171")
            A(f"buffer_store_dwordx4 v[{pk}:{pk+3}], v4, s[4:7], s19 offen offset:{cp*1024}")
        if mt < 7: A("s_add_u32 s19, s19, 131072")
    zero_acc()
    A(f"s_add_u32 s16, s16, {KF-QF}")
    A("s_add_u32 s21, s21, 1")
    A("s_cmp_lt_u32 s21, 2")
    A(f"s_cbranch_scc1 L_pass_{name}")
    kloop("v", True)
    A.fence(10)
    A("s_mov_b32 s19, s20")
    n = 0
    for sg in range(4):
        for ct in range(4):
            pk = PK + 4 * (n % 8); n += 1
            for half in range(2):
                base = (ct * 8 + 2 * sg + half) * 4
                for i in range(4): A(f"v_accvgpr_read_b32 v{168+i}, a{base+i}")
                A(f"v_cvt_pk_bf16_f32 v{pk+2*half}, v168, v169")
                A(f"v_cvt_pk_bf16_f32 v{pk+2*half+1}, v170, v171")
            A(f"buffer_store_dwordx4 v[{pk}:{pk+3}], v4, s[4:7], s19 offen offset:{ct*1024}")
        if sg < 3: A("s_add_u32 s19, s19, 262144")
    A.label("L_end_" + name)
    A("s_endpgm")
    return name, A, 256, (176, 128)

def build(kernels, launches):
    out = []
    hdr = open("cdna_kernels/" + NAME + ".s.ref").read().split("\n")
    for l in hdr:
        if l.startswith(";") and "@launch" not in l and "Override" not in l and "grid=ceil" not in l:
            out.append(l)
    for (k, g, lds) in launches:
        out.append(f"; @launch kernel={k} grid=({g},1,1) block=(256,1,1) lds={lds}")
    out.append('.amdgcn_target "amdgcn-amd-amdhsa--gfx950"')
    out.append(".text")
    for (name, A, g, regs) in kernels: out.append(A.text())
    out.append('.section .rodata,"a"')
    for (name, A, g, regs) in kernels:
        if isinstance(regs, tuple):
            nv, na = regs; acc = (nv + 3) // 4 * 4
            out.append(kernel_desc(name, acc + na, 102, acc))
        else:
            out.append(kernel_desc(name, regs, 102, (regs + 3) // 4 * 4))
    return "\n".join(out) + "\n"

if __name__ == "__main__":
    PROF = "prof" in sys.argv
    ks = [gen_prep(), gen_mega()]
    launches = [("prep_kernel", ks[0][2], 0), ("mega_kernel", 256, MEGA_LDS)]
    txt = build(ks, launches)
    dst = "prof.s" if PROF else "cdna_kernels/" + NAME + ".s"
    open(dst, "w").write(txt)
    print("bytes", len(txt))
```

```python
import sys, math, struct
from asmlib import *
from layout2 import *

NAME = "interleave_layers__memory_aug_recurrent_mem_tr__geglu_ffn__prompt"
KA = dict(x=0, mem0=8, wq=16, wk=24, wv=32, wo=40, seg=48, bx=56, wg=64, wu=72, wd=80, out=88, dbg=96, ws=104)
SCALE_HEX = 0x3db504f3
LOG2E_HEX = 0x3fb8aa3b
PROF = False

def srd(A, sd, sbase, nbytes):
    A(f"s_mov_b32 s{sd}, s{sbase}")
    A(f"s_and_b32 s{sd+1}, s{sbase+1}, 0xffff")
    A(f"s_mov_b32 s{sd+2}, {nbytes}")
    A(f"s_mov_b32 s{sd+3}, 0x00020000")

def load_ptr_srd(A, key, sd, nbytes, tmp):
    A(f"s_load_dwordx2 s[{tmp}:{tmp+1}], s[0:1], {KA[key]}")
    A("s_waitcnt lgkmcnt(0)")
    srd(A, sd, tmp, nbytes)

def magic_div(d, maxn):
    for sh in range(0, 32):
        m = -(-(1 << sh) // d)
        if m * maxn < (1 << 32) and all((n * m) >> sh == n // d for n in range(maxn)):
            return m, sh
    raise ValueError

def xlane(A, r, t, ops=("ror8", "p16", "p32"), op="v_add_f32"):
    for o in ops:
        if o == "ror8":
            A(f"{op}_dpp v{r}, v{r}, v{r} row_ror:8")
        else:
            A(f"v_mov_b32 v{t}, v{r}")
            A(f"v_permlane{'16' if o=='p16' else '32'}_swap_b32 v{r}, v{t}")
            A(f"{op} v{r}, v{r}, v{t}")

def bf16_round(A, dst, src, tmp):
    A(f"v_cvt_pk_bf16_f32 v{tmp}, v{src}, v{src}")
    A(f"v_lshlrev_b32 v{dst}, 16, v{tmp}")

def ln_math(A):
    for i in range(16):
        A(f"v_lshlrev_b32 v{32+2*i}, 16, v{16+i}")
        A(f"v_and_b32 v{33+2*i}, 0xffff0000, v{16+i}")
    A("v_add_f32 v7, v32, v33")
    for i in range(2, 32): A(f"v_add_f32 v7, v7, v{32+i}")
    for sh in (8, 4, 2, 1): A(f"v_add_f32_dpp v7, v7, v7 row_ror:{sh}")
    A("v_mul_f32 v7, 0x3b000000, v7")
    A("v_sub_f32 v8, v32, v7")
    A("v_mul_f32 v9, v8, v8")
    for i in range(1, 32):
        A(f"v_sub_f32 v8, v{32+i}, v7")
        A("v_fmac_f32 v9, v8, v8")
    for sh in (8, 4, 2, 1): A(f"v_add_f32_dpp v9, v9, v9 row_ror:{sh}")
    A("v_mul_f32 v9, 0x3b000000, v9")
    bf16_round(A, 7, 7, 10)
    bf16_round(A, 9, 9, 10)
    A("v_add_f32 v9, 0x3727c5ac, v9")
    bf16_round(A, 9, 9, 10)
    A("v_sqrt_f32 v9, v9")
    bf16_round(A, 9, 9, 10)
    A("v_rcp_f32 v9, v9")
    for i in range(16):
        A(f"v_sub_f32 v{32+2*i}, v{32+2*i}, v7")
        A(f"v_sub_f32 v{33+2*i}, v{33+2*i}, v7")
        A(f"v_cvt_pk_bf16_f32 v10, v{32+2*i}, v{33+2*i}")
        A(f"v_lshlrev_b32 v{32+2*i}, 16, v10")
        A(f"v_and_b32 v{33+2*i}, 0xffff0000, v10")
        A(f"v_mul_f32 v{32+2*i}, v{32+2*i}, v9")
        A(f"v_mul_f32 v{33+2*i}, v{33+2*i}, v9")
        A(f"v_cvt_pk_bf16_f32 v{16+i}, v{32+2*i}, v{33+2*i}")

def ln_body(A, sr, soff, sc1):
    A("v_lshrrev_b32 v1, 4, v0")
    A("s_lshl_b32 s3, s3, 4")
    A("v_add_u32 v1, s3, v1")
    A("v_and_b32 v2, 15, v0")
    A("v_lshlrev_b32 v3, 10, v1")
    A("v_lshl_add_u32 v3, v2, 4, v3")
    A(f"s_mov_b32 s19, {soff}")
    for q in range(4):
        A(f"buffer_load_dwordx4 v[{16+4*q}:{19+4*q}], v3, {sr}, s19 offen offset:{q*256}")
    A("v_bfe_u32 v4, v1, 3, 2")
    A("v_and_b32 v5, 3, v1")
    A("v_lshl_add_u32 v4, v4, 2, v5")
    A("v_and_b32 v5, 3, v2")
    A("v_lshl_add_u32 v4, v5, 4, v4")
    A("v_lshlrev_b32 v4, 4, v4")
    A("v_bfe_u32 v5, v1, 2, 1")
    A("v_bfe_u32 v6, v1, 5, 1")
    A("v_lshl_add_u32 v5, v6, 1, v5")
    A("v_lshl_add_u32 v4, v5, 10, v4")
    A("v_lshrrev_b32 v5, 6, v1")
    A("v_lshrrev_b32 v6, 2, v2")
    A("v_lshl_add_u32 v5, v5, 4, v6")
    A("v_lshl_add_u32 v4, v5, 12, v4")
    A("s_waitcnt vmcnt(0)")
    ln_math(A)
    A(f"s_mov_b32 s19, {XFA}")
    for q in range(4):
        if q: A(f"s_add_u32 s19, s19, {4*4096}")
        A(f"buffer_store_dwordx4 v[{16+4*q}:{19+4*q}], v4, s[4:7], s19 offen")

def gen_prep():
    A = Asm()
    name = "prep_kernel"
    A.raw(kernel_header(name))
    mats = [("wq", 512, 4096, "qkv0"), ("wk", 512, 4096, "qkv1"), ("wv", 512, 4096, "qkv2"), ("wo", 4096, 512, "wo"),
            ("wg", 512, 1792, "gu0"), ("wu", 512, 1792, "gu1"), ("wd", 1792, 512, "wd")]
    load_ptr_srd(A, "ws", 4, WS_BYTES, 20)
    A("s_mov_b32 s16, 0x05040100")
    A("s_mov_b32 s17, 0x07060302")
    start = 0; ranges = []
    for (key, K, N, kind) in mats:
        nwg = (K // 8) * (N // 8) // 256
        ranges.append((start, nwg)); start += nwg
    fill_start = start
    nfill = (4 * MB) // 65536
    memx_start = fill_start + nfill
    memx_total = 2 * MEMX_LAYER
    nmemx = -(-memx_total // 4096)
    xcopy_start = memx_start + nmemx
    nxcopy = (2 * MB) // 65536
    cnt_start = xcopy_start + nxcopy
    ln_start = cnt_start + 1
    total_wg = ln_start + 128
    for idx, (key, K, N, kind) in enumerate(mats):
        st, nwg = ranges[idx]
        A(f"s_cmp_lt_u32 s2, {st + nwg}")
        A(f"s_cbranch_scc1 L_prep_{key}")
    A(f"s_cmp_lt_u32 s2, {memx_start}")
    A("s_cbranch_scc1 L_prep_fill")
    A(f"s_cmp_lt_u32 s2, {xcopy_start}")
    A("s_cbranch_scc1 L_prep_memx")
    A(f"s_cmp_lt_u32 s2, {cnt_start}")
    A("s_cbranch_scc1 L_prep_xcopy")
    A(f"s_cmp_lt_u32 s2, {ln_start}")
    A("s_cbranch_scc1 L_prep_cnt")
    A(f"s_cmp_lt_u32 s2, {total_wg}")
    A("s_cbranch_scc1 L_prep_ln")
    A("s_endpgm")
    for idx, (key, K, N, kind) in enumerate(mats):
        st, nwg = ranges[idx]
        A.label(f"L_prep_{key}")
        load_ptr_srd(A, key, 8, K * N * 2, 20)
        NQ = N // 8
        A(f"s_sub_u32 s3, s2, {st}")
        A("s_lshl_b32 s3, s3, 8")
        A("v_add_u32 v1, s3, v0")
        if NQ & (NQ - 1) == 0:
            sh = NQ.bit_length() - 1
            A(f"v_lshrrev_b32 v2, {sh}, v1")
            A(f"v_and_b32 v3, {NQ-1}, v1")
        else:
            m, sh = magic_div(NQ, (K // 8) * NQ)
            A(f"s_mov_b32 s18, {m}")
            A("v_mul_lo_u32 v2, s18, v1")
            A(f"v_lshrrev_b32 v2, {sh}, v2")
            A(f"s_mov_b32 s18, {NQ}")
            A("v_mul_lo_u32 v3, s18, v2")
            A("v_sub_u32 v3, v1, v3")
        A(f"s_mov_b32 s18, {N*16}")
        A("v_mul_lo_u32 v4, s18, v2")
        A("v_lshl_add_u32 v4, v3, 4, v4")
        for j in range(8):
            A(f"s_mov_b32 s19, {j*N*2}")
            A(f"buffer_load_dwordx4 v[{16+4*j}:{19+4*j}], v4, s[8:11], s19 offen")
        A("v_lshrrev_b32 v5, 2, v2")
        A("v_and_b32 v6, 3, v2")
        A("v_lshrrev_b32 v7, 2, v3")
        A("v_and_b32 v9, 3, v3")
        A("v_lshlrev_b32 v10, 6, v9")
        A("v_lshl_add_u32 v10, v6, 8, v10")
        if kind.startswith("qkv"):
            region = int(kind[3])
            A("v_lshrrev_b32 v11, 1, v7")
            A("v_and_b32 v12, 1, v7")
            A("v_lshlrev_b32 v12, 1, v12")
            A("v_mul_u32_u24 v11, 3, v11")
            A(f"v_add_u32 v11, {region}, v11")
            A("v_lshl_add_u32 v11, v11, 4, v5")
            A("v_lshl_add_u32 v11, v11, 2, v12")
            base = WQKV_F
        elif kind in ("wo", "wd"):
            KS = K // 32
            A("v_lshrrev_b32 v11, 1, v7")
            A("v_and_b32 v12, 1, v7")
            A("v_lshlrev_b32 v12, 1, v12")
            A(f"v_mul_u32_u24 v11, {KS}, v11")
            A("v_add_u32 v11, v11, v5")
            A("v_lshl_add_u32 v11, v11, 2, v12")
            base = WO_F if kind == "wo" else WD_F
        else:
            gu = int(kind[2])
            A("v_lshl_add_u32 v11, v7, 4, v5")
            A("v_lshlrev_b32 v11, 2, v11")
            A(f"v_add_u32 v11, {2*gu}, v11")
            base = WGU_F
        A("v_lshl_add_u32 v10, v11, 10, v10")
        A(f"s_mov_b32 s19, {base}")
        A("s_waitcnt vmcnt(0)")
        for r in range(8):
            dw = r >> 1; sel = "s16" if (r & 1) == 0 else "s17"
            for d in range(4):
                lo = 16 + 4 * (2 * d) + dw; hi = 16 + 4 * (2 * d + 1) + dw
                A(f"v_perm_b32 v{48+4*r+d}, v{hi}, v{lo}, {sel}")
            A(f"buffer_store_dwordx4 v[{48+4*r}:{51+4*r}], v10, s[4:7], s19 offen offset:{(r>>2)*1024 + 16*(r&3)}")
        A("s_endpgm")
    A.label("L_prep_fill")
    A(f"s_sub_u32 s3, s2, {fill_start}")
    A("s_lshl_b32 s3, s3, 16")
    A(f"s_add_u32 s3, s3, {PART}")
    A("v_lshlrev_b32 v1, 4, v0")
    for i in range(4): A(f"v_mov_b32 v{4+i}, -1")
    for i in range(16):
        A(f"buffer_store_dwordx4 v[4:7], v1, s[4:7], s3 offen")
        if i < 15: A("s_add_u32 s3, s3, 4096")
    A("s_endpgm")
    A.label("L_prep_cnt")
    A(f"s_mov_b32 s3, {CNT}")
    A("v_lshlrev_b32 v1, 4, v0")
    for i in range(4): A(f"v_mov_b32 v{4+i}, 0")
    for i in range(16):
        A(f"buffer_store_dwordx4 v[4:7], v1, s[4:7], s3 offen")
        if i < 15: A("s_add_u32 s3, s3, 4096")
    A("s_endpgm")
    A.label("L_prep_ln")
    load_ptr_srd(A, "x", 8, 2 * MB, 20)
    A(f"s_sub_u32 s3, s2, {ln_start}")
    ln_body(A, "s[8:11]", 0, False)
    A("s_endpgm")
    A.label("L_prep_xcopy")
    load_ptr_srd(A, "x", 8, 2 * MB, 20)
    A(f"s_sub_u32 s3, s2, {xcopy_start}")
    A("s_lshl_b32 s3, s3, 16")
    A(f"s_add_u32 s18, s3, {XR}")
    A("v_lshlrev_b32 v1, 4, v0")
    for i in range(16):
        A(f"buffer_load_dwordx4 v[{4+4*i}:{7+4*i}], v1, s[8:11], s3 offen")
        if i < 15: A("s_add_u32 s3, s3, 4096")
    for i in range(16):
        A(f"s_waitcnt vmcnt({15-i})" if i == 0 else "s_nop 0")
        A(f"s_waitcnt vmcnt(15)")
        A(f"buffer_store_dwordx4 v[{4+4*i}:{7+4*i}], v1, s[4:7], s18 offen")
        if i < 15: A("s_add_u32 s18, s18, 4096")
    A("s_endpgm")
    A.label("L_prep_memx")
    load_ptr_srd(A, "mem0", 8, 8192, 20)
    A(f"s_sub_u32 s3, s2, {memx_start}")
    A("s_lshl_b32 s3, s3, 12")
    A("v_lshlrev_b32 v1, 4, v0")
    A("v_add_u32 v1, s3, v1")
    A(f"v_subrev_u32 v2, {MEMX_LAYER}, v1")
    A(f"v_cmp_gt_u32 vcc, {MEMX_LAYER}, v1")
    A("v_cndmask_b32 v2, v2, v1, vcc")
    A("v_lshrrev_b32 v3, 6, v2")
    A("v_bfe_u32 v4, v2, 3, 3")
    A("v_lshlrev_b32 v5, 10, v4")
    A("v_lshl_add_u32 v5, v3, 3, v5")
    A("buffer_load_dwordx2 v[8:9], v5, s[8:11], 0 offen")
    A("buffer_load_dwordx2 v[10:11], v5, s[8:11], 0 offen offset:1024")
    A("s_waitcnt vmcnt(0)")
    A(f"v_cmp_gt_u32 vcc, 8192, v2")
    for i in range(4):
        A(f"v_min_u32 v{8+i}, -2, v{8+i}")
        A(f"v_cndmask_b32 v{8+i}, -1, v{8+i}, vcc")
    A(f"v_cmp_gt_u32 vcc, {memx_total}, v1")
    A("s_and_saveexec_b64 s[22:23], vcc")
    A("s_cbranch_execz L_prep_end")
    A(f"s_mov_b32 s19, {MEMX}")
    A("buffer_store_dwordx4 v[8:11], v1, s[4:7], s19 offen")
    A.label("L_prep_end")
    A("s_endpgm")
    return name, A, total_wg, 80

WOL = 0
MEML = 131072
MROW = 1088
ZROW = MEML + 8 * MROW
SCL = ZROW + 1024
OL = SCL + 12288
MEGA_LDS = OL + 4096
assert MEGA_LDS <= 163840
END = "L_mega_end"
TMO = 0x400000

def stamp(A, idx):
    if not PROF: return
    A("s_memtime s[44:45]")
    A("s_waitcnt lgkmcnt(0)")
    A("s_sub_u32 s46, s44, s47")
    A(f"s_add_u32 s{80+idx}, s{80+idx}, s46")
    A("s_mov_b32 s47, s44")

def rendezvous(A, nwg=256):
    load_ptr_srd(A, "dbg", 8, 256, 20)
    A("s_getreg_b32 s14, hwreg(HW_REG_XCC_ID)")
    A("s_and_b32 s14, s14, 7")
    A("v_lshrrev_b32 v1, 6, v0")
    A("v_readfirstlane_b32 s13, v1")
    A("s_cmp_lg_u32 s13, 0")
    A("s_cbranch_scc1 L_rv_wait")
    A("s_lshl_b32 s15, s14, 2")
    A("v_mov_b32 v1, s15")
    A("v_mov_b32 v2, 1")
    A("s_mov_b64 exec, 1")
    A("buffer_atomic_add v2, v1, s[8:11], 0 offen sc0")
    A("s_waitcnt vmcnt(0)")
    A("v_mov_b32 v1, 0")
    A("ds_write_b32 v1, v2")
    A("s_mov_b64 exec, -1")
    A("s_waitcnt lgkmcnt(0)")
    A.label("L_rv_wait")
    A("s_barrier")
    A("v_mov_b32 v1, 0")
    A("ds_read_b32 v3, v1")
    A("v_and_b32 v4, 7, v0")
    A("v_lshlrev_b32 v4, 2, v4")
    A("s_mov_b32 s26, 0")
    A.label("L_rv_poll")
    A("buffer_load_dword v5, v4, s[8:11], 0 offen sc1")
    A("s_add_u32 s26, s26, 1")
    A(f"s_cmp_gt_u32 s26, {TMO}")
    A(f"s_cbranch_scc1 {END}")
    A("s_waitcnt vmcnt(0) lgkmcnt(0)")
    for x in range(8): A(f"v_readlane_b32 s{32+x}, v5, {x}")
    A("s_add_u32 s15, s32, s33")
    for x in range(2, 8): A(f"s_add_u32 s15, s15, s{32+x}")
    A(f"s_cmp_lg_u32 s15, {nwg}")
    A("s_cbranch_scc1 L_rv_poll")
    A("v_readfirstlane_b32 s12, v3")
    A("s_mov_b32 s30, 0")
    A("s_mov_b32 s31, 0")
    for x in range(8):
        A(f"s_cmp_lt_u32 {x}, s14")
        A(f"s_cselect_b32 s15, s{32+x}, 0")
        A("s_add_u32 s12, s12, s15")
        A(f"s_add_u32 s16, s31, s{32+x}")
        for c in range(2):
            A(f"s_cmp_le_u32 s31, {32*c}")
            A(f"s_cselect_b32 s15, {1<<c}, 0")
            A(f"s_cmp_ge_u32 s16, {32*c+32}")
            A(f"s_cselect_b32 s15, s15, 0")
            A("s_or_b32 s30, s30, s15")
        A("s_mov_b32 s31, s16")
    A("s_barrier")

def poll_counter(A, tag, soff_reg, expected, only_wave0=True):
    if only_wave0:
        A("s_cmp_lg_u32 s13, 0")
        A(f"s_cbranch_scc1 L_pc_done_{tag}")
    A("s_mov_b32 s26, 0")
    A("v_mov_b32 v126, 0")
    A.label(f"L_pc_{tag}")
    A(f"buffer_load_dword v127, v126, s[4:7], {soff_reg} offen sc1")
    A("s_add_u32 s26, s26, 1")
    A(f"s_cmp_gt_u32 s26, {TMO}")
    A(f"s_cbranch_scc1 {END}")
    A("s_waitcnt vmcnt(0)")
    A("v_readfirstlane_b32 s27, v127")
    A(f"s_cmp_ge_u32 s27, {expected}")
    A(f"s_cbranch_scc1 L_pc_done_{tag}")
    A("s_sleep 4" if only_wave0 else "s_sleep 1")
    A(f"s_branch L_pc_{tag}")
    A.label(f"L_pc_done_{tag}")
    if only_wave0:
        A("s_barrier")
        if PROF:
            A("s_memrealtime s[76:77]")
            A("s_waitcnt lgkmcnt(0)")

def poll_counter2(A, tag, soffA, expA, soffB, expB):
    A("s_cmp_lg_u32 s13, 0")
    A(f"s_cbranch_scc1 L_pc_done_{tag}")
    A("s_mov_b32 s26, 0")
    A(f"s_sub_u32 s23, {soffB}, {soffA}")
    A("v_mov_b32 v126, 0")
    A("v_writelane_b32 v126, s23, 1")
    A.label(f"L_pc_{tag}")
    A(f"buffer_load_dword v127, v126, s[4:7], {soffA} offen sc1")
    A("s_add_u32 s26, s26, 1")
    A(f"s_cmp_gt_u32 s26, {TMO}")
    A(f"s_cbranch_scc1 {END}")
    A("s_waitcnt vmcnt(0)")
    A("v_readlane_b32 s27, v127, 0")
    A("v_readlane_b32 s23, v127, 1")
    A(f"s_cmp_ge_u32 s27, {expA}")
    A("s_cselect_b32 s27, 1, 0")
    A(f"s_cmp_ge_u32 s23, {expB}")
    A("s_cselect_b32 s23, 1, 0")
    A("s_and_b32 s27, s27, s23")
    A("s_cmp_eq_u32 s27, 1")
    A(f"s_cbranch_scc1 L_pc_done_{tag}")
    A("s_sleep 4")
    A(f"s_branch L_pc_{tag}")
    A.label(f"L_pc_done_{tag}")
    A("s_barrier")

def gen_chain_role(A):
    MEMF = 16; ACC = 80; KX = 104; VX = 112; T = 120
    A("s_lshr_b32 s42, s12, 5")
    A("s_and_b32 s12, s12, 31")
    A(f"s_mul_i32 s43, s42, {LSTRIDE}")
    A("v_and_b32 v14, 63, v0")
    A("v_lshlrev_b32 v1, 4, v14")
    A("v_lshlrev_b32 v13, 3, v14")
    A("v_and_b32 v15, 15, v14")
    A("s_lshr_b32 s14, s13, 1")
    A("s_lshl_b32 s15, s12, 1")
    A("s_add_u32 s14, s14, s15")
    A("s_mul_i32 s14, s14, 196608")
    A("s_and_b32 s15, s13, 1")
    A("s_lshl_b32 s15, s15, 11")
    A("s_add_u32 s14, s14, s15")
    A(f"s_add_u32 s14, s14, {WQKV_F}")
    def wreg(ti, kk):
        if ti < 4: return a((ti * 16 + kk) * 4, 4)
        return v(128 + ((ti - 4) * 16 + kk) * 4, 4)
    cnt = 0
    for region in range(3):
        for kk in range(16):
            for t in range(2):
                A(f"buffer_load_dwordx4 {wreg(region*2+t, kk)}, v1, s[4:7], s14 offen offset:{t*1024}")
            A("s_add_u32 s14, s14, 4096")
            cnt += 2
            if cnt % 32 == 0: A("s_waitcnt vmcnt(16)")
    A("s_lshl_b32 s14, s13, 8")
    A("s_lshl_b32 s15, s12, 2")
    A("s_add_u32 s14, s14, s15")
    A("s_lshl_b32 s14, s14, 12")
    A(f"s_add_u32 s14, s14, {WO_F}")
    A("s_lshl_b32 s15, s13, 15")
    A("v_add_u32 v9, s15, v1")
    for ngl in range(2):
        for j in range(4):
            for t4 in range(4):
                A(f"buffer_load_dwordx4 v[{MEMF+16*j+4*t4}:{MEMF+16*j+4*t4+3}], v1, s[4:7], s14 offen offset:{t4*1024}")
            A(f"s_add_u32 s14, s14, {4096 if j < 3 else (128-3)*4096}")
        A("s_waitcnt vmcnt(0)")
        for j in range(4):
            for t4 in range(4):
                A(f"ds_write_b128 v9, v[{MEMF+16*j+4*t4}:{MEMF+16*j+4*t4+3}] offset:{((ngl*4+t4)*4+j)*1024}")
    for i in range(4): A(f"v_mov_b32 v{T+i}, 0")
    A(f"v_add_u32 v2, {ZROW}, v1")
    A(f"ds_write_b128 v2, v[{T}:{T+3}]")
    A("v_lshrrev_b32 v120, 4, v14")
    A("s_lshl_b32 s15, s13, 11")
    A("v_add_u32 v2, s15, v1")
    A("v_and_b32 v3, 3, v14")
    A(f"v_mul_u32_u24 v3, {2*MROW}, v3")
    A("v_lshrrev_b32 v4, 2, v14")
    A("v_lshl_add_u32 v3, v4, 3, v3")
    A("s_lshl_b32 s15, s13, 8")
    A(f"s_add_u32 s15, s15, {MEML}")
    A("v_add_u32 v3, s15, v3")
    A(f"v_mul_u32_u24 v4, {MROW}, v15")
    A(f"v_add_u32 v4, {MEML}, v4")
    A(f"v_mov_b32 v5, {ZROW}")
    A("v_cmp_gt_u32 vcc, 8, v15")
    A("v_cndmask_b32 v4, v5, v4, vcc")
    A("v_lshl_add_u32 v4, v120, 4, v4")
    A("s_mul_i32 s15, s13, 3072")
    A(f"s_add_u32 s15, s15, {SCL}")
    A("v_add_u32 v5, s15, v1")
    for (x, reg) in ((1, 6), (2, 122), (3, 123)):
        A(f"s_xor_b32 s15, s13, {x}")
        A("s_mul_i32 s15, s15, 3072")
        A(f"s_add_u32 s15, s15, {SCL}")
        A(f"v_add_u32 v{reg}, s15, v1")
    A("s_lshl_b32 s15, s13, 10")
    A(f"s_add_u32 s15, s15, {OL}")
    A("v_add_u32 v7, s15, v1")
    A(f"v_add_u32 v8, {OL}, v1")
    A("s_lshl_b32 s15, s13, 17")
    A("s_lshl_b32 s14, s12, 9")
    A("s_add_u32 s15, s15, s14")
    A("v_lshlrev_b32 v10, 7, v120")
    A("v_lshl_add_u32 v10, v15, 4, v10")
    A("v_add_u32 v10, s15, v10")
    A("s_lshl_b32 s15, s12, 14")
    A("s_lshl_b32 s14, s13, 7")
    A("s_add_u32 s15, s15, s14")
    A("v_lshrrev_b32 v11, 3, v14")
    A("v_lshlrev_b32 v11, 9, v11")
    A("v_and_b32 v12, 7, v14")
    A("v_lshl_add_u32 v11, v12, 4, v11")
    A("v_add_u32 v11, s15, v11")
    A("s_lshr_b32 s14, s12, 1")
    A("s_lshl_b32 s14, s14, 3")
    A("s_lshl_b32 s15, s13, 1")
    A("s_add_u32 s14, s14, s15")
    A("s_and_b32 s15, s12, 1")
    A("s_add_u32 s14, s14, s15")
    A("s_lshl_b32 s15, s14, 6")
    A("v_add_u32 v12, s15, v13")
    A(f"s_mul_i32 s16, s42, {MEMX_LAYER}")
    A(f"s_add_u32 s16, s16, {MEMX}")
    A("s_lshl_b32 s38, s42, 21")
    A(f"s_add_u32 s38, s38, {PART}")
    A("s_mov_b32 s17, s38")
    A("s_lshl_b32 s14, s12, 2")
    A("s_add_u32 s14, s14, s13")
    A("s_lshl_b32 s14, s14, 10")
    A("s_add_u32 s14, s14, s43")
    A(f"s_add_u32 s18, s14, {KF}")
    A(f"s_add_u32 s20, s14, {KM}")
    A(f"s_add_u32 s21, s14, {VM}")
    A("s_sub_u32 s14, s14, s43")
    A("s_lshl_b32 s15, s14, 1")
    A("s_add_u32 s15, s15, s43")
    A(f"s_add_u32 s19, s15, {VF}")
    A("s_lshl_b32 s39, s42, 12")
    A(f"s_add_u32 s39, s39, {CHAIN_CNT}")
    A("s_lshl_b32 s40, s42, 14")
    A(f"s_add_u32 s40, s40, {cnt_off(0, 7, 0)}")
    A("s_mov_b32 s24, 0x00ff00ff")
    A("s_mov_b32 s25, 0x00ff00ff")
    A(f"s_mov_b32 s28, {SCALE_HEX}")
    A(f"s_mov_b32 s29, {SCALE_HEX}")
    A(f"s_mov_b32 s33, {LOG2E_HEX}")
    A(f"s_mov_b32 s31, {LOG2E_HEX | 0x80000000}")
    A("s_mov_b32 s36, -1")
    A("s_mov_b32 s37, 0")
    A("v_mov_b32 v14, v122")
    A("v_mov_b32 v15, v123")
    A("v_mov_b32 v0, 0xf149f2ca")
    A("s_mov_b32 s14, 0")
    A("s_mov_b32 s48, 0")
    A("s_mov_b32 s41, s17")
    if PROF:
        for i in range(10): A(f"s_mov_b32 s{80+i}, 0")
        A("s_memtime s[44:45]")
        A("s_waitcnt lgkmcnt(0)")
        A("s_mov_b32 s47, s44")
    A("s_waitcnt vmcnt(0) lgkmcnt(0)")
    A("s_barrier")
    A("s_lshr_b32 s15, s30, s42")
    A("s_and_b32 s15, s15, 1")
    A("s_cmp_eq_u32 s15, 1")
    A("s_cbranch_scc1 L_step_loc")
    for mode in ("glb", "loc"):
        SC = " sc1" if mode == "glb" else ""
        L = lambda x: f"L_{x}_{mode}"
        def kvload():
            A(f"buffer_load_dwordx4 v[{KX}:{KX+3}], v1, s[4:7], s18 offen sc1")
            A("s_add_u32 s22, s18, 131072")
            A(f"buffer_load_dwordx4 v[{KX+4}:{KX+7}], v1, s[4:7], s22 offen sc1")
            A(f"buffer_load_dwordx4 v[{VX}:{VX+3}], v1, s[4:7], s19 offen sc1")
            A(f"buffer_load_dwordx4 v[{VX+4}:{VX+7}], v1, s[4:7], s19 offen offset:1024 sc1")
        A.label(L("step"))
        A("s_cmp_eq_u32 s48, 1")
        A(f"s_cbranch_scc1 {L('kvok')}")
        A("s_lshr_b32 s15, s14, 1")
        A("s_lshl_b32 s15, s15, 6")
        A("s_add_u32 s15, s15, s40")
        poll_counter(A, "kv_" + mode, "s15", 32, only_wave0=False)
        kvload()
        A.label(L("kvok"))
        A("s_add_u32 s15, s14, 1")
        A("s_lshr_b32 s15, s15, 1")
        A("s_min_u32 s15, s15, 31")
        A("s_lshl_b32 s15, s15, 6")
        A("s_add_u32 s15, s15, s40")
        A(f"v_mov_b32 v{ACC+1}, 0")
        A(f"buffer_load_dword v{ACC+2}, v{ACC+1}, s[4:7], s15 offen sc1")
        A("s_mov_b32 s26, 0")
        A.label(L("poll_mem"))
        A(f"buffer_load_dwordx4 v[{T}:{T+3}], v2, s[4:7], s16 offen sc1")
        A(f"buffer_load_dwordx4 v[{T+4}:{T+7}], v2, s[4:7], s16 offen offset:1024 sc1")
        A("s_add_u32 s26, s26, 1")
        A(f"s_cmp_gt_u32 s26, {TMO}")
        A(f"s_cbranch_scc1 {END}")
        A("s_waitcnt vmcnt(0)")
        A(f"v_max3_u32 v{ACC}, v{T}, v{T+1}, v{T+2}")
        A(f"v_max3_u32 v{ACC}, v{ACC}, v{T+3}, v{T+4}")
        A(f"v_max3_u32 v{ACC}, v{ACC}, v{T+5}, v{T+6}")
        A(f"v_max_u32 v{ACC}, v{ACC}, v{T+7}")
        A(f"v_cmp_eq_u32 vcc, -1, v{ACC}")
        A("s_nop 4")
        A(f"s_cbranch_vccnz {L('poll_mem')}")
        stamp(A, 0)
        if PROF:
            A("s_memrealtime s[44:45]")
            A("s_waitcnt lgkmcnt(0)")
            A(f"v_mov_b32 v{ACC+3}, s44")
            A("s_lshl_b32 s15, s42, 6")
            A("s_add_u32 s15, s15, s14")
            A("s_lshl_b32 s15, s15, 7")
            A("s_lshl_b32 s46, s12, 2")
            A("s_add_u32 s15, s15, s46")
            A(f"s_add_u32 s15, s15, {PROFB + 3*MB}")
            A(f"buffer_store_dword v{ACC+3}, v{ACC+1}, s[4:7], s15 offen")
        A(f"v_readfirstlane_b32 s49, v{ACC+2}")
        A(f"ds_write_b64 v3, v[{T}:{T+1}]")
        A(f"ds_write_b64 v3, v[{T+2}:{T+3}] offset:{MROW}")
        A(f"ds_write_b64 v3, v[{T+4}:{T+5}] offset:128")
        A(f"ds_write_b64 v3, v[{T+6}:{T+7}] offset:{MROW+128}")
        A("s_waitcnt lgkmcnt(0)")
        A("s_barrier")
        for kk in range(16):
            A(f"ds_read_b128 v[{MEMF+4*kk}:{MEMF+4*kk+3}], v4 offset:{kk*64}")
        def qkv_mfma(ti, kk):
            acc = v(ACC + 4 * ti, 4); m = v(MEMF + 4 * kk, 4); w = wreg(ti, kk)
            c = "0" if kk == 0 else acc
            if ti < 4: return f"v_mfma_f32_16x16x32_bf16 {acc}, {w}, {m}, {c}"
            else:      return f"v_mfma_f32_16x16x32_bf16 {acc}, {m}, {w}, {c}"
        for kk in range(16):
            A(f"s_waitcnt lgkmcnt({15-kk})")
            for ti in range(4): A(qkv_mfma(ti, kk))
            if kk == 3:
                A("s_cmp_eq_u32 s14, 0")
                A(f"s_cbranch_scc1 {L('nodefer')}")
                for i in range(4): A(f"v_mov_b32 v{T+i}, -1")
                A(f"v_mov_b32 v{T+4}, 1")
                A(f"v_mov_b32 v{T+5}, 0")
                for i in range(4):
                    A(f"s_add_u32 s22, s41, {i*4096}")
                    A(f"buffer_store_dwordx4 v[{T}:{T+3}], v11, s[4:7], s22 offen{SC}")
                A("s_mov_b64 exec, 1")
                A(f"buffer_atomic_add v{T+4}, v{T+5}, s[4:7], s39 offen")
                A("s_mov_b64 exec, -1")
                A("s_add_u32 s39, s39, 64")
                A.label(L("nodefer"))
        vm = [qkv_mfma(ti, kk) for kk in range(16) for ti in (4, 5)]
        stamp(A, 1)
        QP = 120; KP = 124; S = 80
        A(vm[0]); A(vm[1]); A(vm[2]); A(vm[3])
        for i, dst in enumerate((QP, KP)):
            for half in range(2):
                b = ACC + 8 * i + 4 * half
                A(f"v_cvt_pk_bf16_f32 v{dst+2*half}, v{b}, v{b+1}")
                A(f"v_cvt_pk_bf16_f32 v{dst+2*half+1}, v{b+2}, v{b+3}")
        A(f"v_mfma_f32_16x16x32_bf16 v[{S}:{S+3}], v[{KP}:{KP+3}], v[{QP}:{QP+3}], 0")
        A(f"v_mfma_f32_16x16x32_bf16 v[{S+4}:{S+7}], v[{KX}:{KX+3}], v[{QP}:{QP+3}], 0")
        A(f"v_mfma_f32_16x16x32_bf16 v[{S+8}:{S+11}], v[{KX+4}:{KX+7}], v[{QP}:{QP+3}], 0")
        A(f"buffer_store_dwordx4 v[{KP}:{KP+3}], v1, s[4:7], s20 offen sc1")
        for i in range(4, 8): A(vm[i])
        for i in range(3):
            A(f"ds_write_b128 v5, v[{S+4*i}:{S+4*i+3}] offset:{i*1024}")
        for i in range(8, 16): A(vm[i])
        A("s_waitcnt lgkmcnt(0)")
        A("s_barrier")
        stamp(A, 2)
        R1 = 16; R2 = 28; R3r = [40, 44, 92]
        for i in range(3): A(f"ds_read_b128 v[{R1+4*i}:{R1+4*i+3}], v6 offset:{i*1024}")
        for i in range(3): A(f"ds_read_b128 v[{R2+4*i}:{R2+4*i+3}], v14 offset:{i*1024}")
        for i in range(3): A(f"ds_read_b128 v[{R3r[i]}:{R3r[i]+3}], v15 offset:{i*1024}")
        for i in range(16, 22): A(vm[i])
        va = []
        va.append("s_waitcnt lgkmcnt(6)")
        for i in range(0, 12, 2): va.append(f"v_pk_add_f32 v[{S+i}:{S+i+1}], v[{S+i}:{S+i+1}], v[{R1+i}:{R1+i+1}]")
        va.append("s_waitcnt lgkmcnt(0)")
        for i in range(0, 12, 2):
            r3 = R3r[i // 4] + (i % 4)
            va.append(f"v_pk_add_f32 v[{R2+i}:{R2+i+1}], v[{R2+i}:{R2+i+1}], v[{r3}:{r3+1}]")
        for i in range(0, 12, 2): va.append(f"v_pk_add_f32 v[{S+i}:{S+i+1}], v[{S+i}:{S+i+1}], v[{R2+i}:{R2+i+1}]")
        TT = 16
        for i in range(0, 12, 2): va.append(f"v_cvt_pk_bf16_f32 v{TT+i//2}, v{S+i}, v{S+i+1}")
        for i in range(0, 12, 2):
            va.append(f"v_lshlrev_b32 v{S+i}, 16, v{TT+i//2}")
            va.append(f"v_and_b32 v{S+i+1}, 0xffff0000, v{TT+i//2}")
        for i in range(0, 12, 2): va.append(f"v_pk_mul_f32 v[{S+i}:{S+i+1}], v[{S+i}:{S+i+1}], s[28:29]")
        for i in range(0, 12, 2): va.append(f"v_cvt_pk_bf16_f32 v{TT+i//2}, v{S+i}, v{S+i+1}")
        for i in range(0, 12, 2):
            va.append(f"v_lshlrev_b32 v{S+i}, 16, v{TT+i//2}")
            va.append(f"v_and_b32 v{S+i+1}, 0xffff0000, v{TT+i//2}")
        for i in range(4): va.append(f"v_cndmask_b32 v{S+i}, v0, v{S+i}, s[36:37]")
        MX = 22; MT = 23
        va.append(f"v_max3_f32 v{MX}, v{S}, v{S+1}, v{S+2}")
        va.append(f"v_max3_f32 v{MT}, v{S+3}, v{S+4}, v{S+5}")
        va.append(f"v_max3_f32 v{MX}, v{MX}, v{S+6}, v{S+7}")
        va.append(f"v_max3_f32 v{MT}, v{MT}, v{S+8}, v{S+9}")
        va.append(f"v_max3_f32 v{MX}, v{MX}, v{S+10}, v{S+11}")
        va.append(f"v_max_f32 v{MX}, v{MX}, v{MT}")
        rest = vm[22:]
        k = 0
        for idx, ins in enumerate(va):
            A(ins)
            if idx % 3 == 2 and k < len(rest):
                A(rest[k]); k += 1
        while k < len(rest): A(rest[k]); k += 1
        xlane(A, MX, MT, ("p16", "p32"), "v_max_f32")
        A(f"v_mul_f32 v{MX}, s31, v{MX}")
        for i in range(12): A(f"v_fma_f32 v{S+i}, v{S+i}, s33, v{MX}")
        WOF = 32; VP = 24
        for half in range(2):
            b = ACC + 16 + 4 * half
            A(f"v_cvt_pk_bf16_f32 v{VP+2*half}, v{b}, v{b+1}")
            A(f"v_cvt_pk_bf16_f32 v{VP+2*half+1}, v{b+2}, v{b+3}")
        for i in range(12): A(f"v_exp_f32 v{S+i}, v{S+i}")
        for t in range(3):
            for j in range(4):
                A(f"ds_read_b128 v[{WOF+16*t+4*j}:{WOF+16*t+4*j+3}], v9 offset:{(t*4+j)*1024}")
        A(f"buffer_store_dwordx2 v[{VP}:{VP+1}], v13, s[4:7], s21 offen sc1")
        A(f"buffer_store_dwordx2 v[{VP+2}:{VP+3}], v13, s[4:7], s21 offen offset:512 sc1")
        for i in range(0, 12, 4):
            A(f"v_pk_add_f32 v[{TT+i//2}:{TT+i//2+1}], v[{S+i}:{S+i+1}], v[{S+i+2}:{S+i+3}]")
        A(f"v_pk_add_f32 v[{TT}:{TT+1}], v[{TT}:{TT+1}], v[{TT+2}:{TT+3}]")
        A(f"v_pk_add_f32 v[{TT}:{TT+1}], v[{TT}:{TT+1}], v[{TT+4}:{TT+5}]")
        A(f"v_add_f32 v{MX}, v{TT}, v{TT+1}")
        xlane(A, MX, MT, ("p16", "p32"))
        A(f"v_rcp_f32 v{MX}, v{MX}")
        A(f"v_mov_b32 v{MT}, v{MX}")
        for i in range(0, 12, 2): A(f"v_pk_mul_f32 v[{S+i}:{S+i+1}], v[{S+i}:{S+i+1}], v[{MX}:{MX+1}]")
        PM = 16; PT = 18
        A(f"v_cvt_pk_bf16_f32 v{PM}, v{S}, v{S+1}")
        A(f"v_cvt_pk_bf16_f32 v{PM+1}, v{S+2}, v{S+3}")
        for i in range(4): A(f"v_cvt_pk_bf16_f32 v{PT+i}, v{S+4+2*i}, v{S+5+2*i}")
        O = 96
        for t in range(2):
            A(f"v_mfma_f32_16x16x32_bf16 v[{O+4*t}:{O+4*t+3}], v[{VX+4*t}:{VX+4*t+3}], v[{PT}:{PT+3}], 0")
        for t in range(2):
            A(f"v_mfma_f32_16x16x16_bf16 v[{O+4*t}:{O+4*t+3}], v[{VP+2*t}:{VP+2*t+1}], v[{PM}:{PM+1}], v[{O+4*t}:{O+4*t+3}]")
        for j in range(4):
            A(f"ds_read_b128 v[{80+4*j}:{83+4*j}], v9 offset:{(3*4+j)*1024}")
        A("s_add_u32 s18, s18, 262144")
        A("s_add_u32 s19, s19, 262144")
        A("s_mov_b32 s48, 0")
        A("s_cmp_lt_u32 s49, 32")
        A(f"s_cbranch_scc1 {L('nopref')}")
        A("s_cmp_ge_u32 s14, 63")
        A(f"s_cbranch_scc1 {L('nopref')}")
        A("s_mov_b32 s48, 1")
        A("s_nop 4")
        kvload()
        A.label(L("nopref"))
        OP = 120
        for t in range(2):
            A(f"v_cvt_pk_bf16_f32 v{OP+2*t}, v{O+4*t}, v{O+4*t+1}")
            A(f"v_cvt_pk_bf16_f32 v{OP+2*t+1}, v{O+4*t+2}, v{O+4*t+3}")
        A(f"ds_write_b128 v7, v[{OP}:{OP+3}]")
        A("s_waitcnt lgkmcnt(0)")
        A("s_barrier")
        stamp(A, 3)
        OFR = 16
        for j in range(4):
            A(f"ds_read_b128 v[{OFR+4*j}:{OFR+4*j+3}], v8 offset:{j*1024}")
        wof = lambda t, j: (WOF + 16 * t + 4 * j) if t < 3 else (80 + 4 * j)
        RES = [96, 100, 120, 124]
        def store_part(t, reg):
            A(f"s_add_u32 s22, s17, {t*16384}")
            A(f"buffer_store_dwordx4 v[{reg}:{reg+3}], v10, s[4:7], s22 offen{SC}")
        for j in range(4):
            A(f"s_waitcnt lgkmcnt({3-j + 4*j})")
            for t in range(4):
                acc = v(RES[t], 4)
                A(f"v_mfma_f32_16x16x32_bf16 {acc}, v[{wof(t,j)}:{wof(t,j)+3}], v[{OFR+4*j}:{OFR+4*j+3}], {'0' if j==0 else acc}")
            for t in range(4):
                A(f"ds_read_b128 v[{wof(t,j)}:{wof(t,j)+3}], v9 offset:{((t+4)*4+j)*1024}")
        A("s_mov_b64 exec, s[24:25]")
        for t in range(4): store_part(t, RES[t])
        A("s_mov_b64 exec, -1")
        for j in range(4):
            A(f"s_waitcnt lgkmcnt({12-4*j})")
            for t in range(4):
                acc = v(RES[t], 4)
                A(f"v_mfma_f32_16x16x32_bf16 {acc}, v[{wof(t,j)}:{wof(t,j)+3}], v[{OFR+4*j}:{OFR+4*j+3}], {'0' if j==0 else acc}")
        A("s_mov_b64 exec, s[24:25]")
        for t in range(4): store_part(4 + t, RES[t])
        A("s_mov_b64 exec, -1")
        stamp(A, 4)
        P = 40
        A("s_mov_b32 s26, 0")
        A.label(L("poll_part"))
        for i in range(4):
            A(f"s_add_u32 s22, s17, {i*4096}")
            A(f"buffer_load_dwordx4 v[{P+4*i}:{P+4*i+3}], v11, s[4:7], s22 offen sc1")
        A("s_add_u32 s26, s26, 1")
        A(f"s_cmp_gt_u32 s26, {TMO}")
        A(f"s_cbranch_scc1 {END}")
        A("s_waitcnt vmcnt(0)")
        A(f"v_max3_u32 v{P+16}, v{P}, v{P+1}, v{P+2}")
        for i in range(3, 15, 2): A(f"v_max3_u32 v{P+16}, v{P+16}, v{P+i}, v{P+i+1}")
        A(f"v_max_u32 v{P+16}, v{P+16}, v{P+15}")
        A(f"v_cmp_eq_u32 vcc, -1, v{P+16}")
        A("s_nop 4")
        A(f"s_cbranch_vccnz {L('poll_part')}")
        stamp(A, 5)
        for c in range(4):
            A(f"v_add_f32 v{P+c}, v{P+c}, v{P+4+c}")
            A(f"v_add_f32 v{P+8+c}, v{P+8+c}, v{P+12+c}")
        for c in range(4): A(f"v_add_f32 v{P+c}, v{P+c}, v{P+8+c}")
        for c in range(4): xlane(A, P + c, P + 16 + c)
        A(f"v_cvt_pk_bf16_f32 v{P+20}, v{P}, v{P+1}")
        A(f"v_cvt_pk_bf16_f32 v{P+21}, v{P+2}, v{P+3}")
        A(f"v_min_u32 v{P+20}, -2, v{P+20}")
        A(f"v_min_u32 v{P+21}, -2, v{P+21}")
        A("s_add_u32 s16, s16, 8192")
        A("s_mov_b64 exec, 0xff")
        A(f"buffer_store_dwordx2 v[{P+20}:{P+21}], v12, s[4:7], s16 offen{SC}")
        A("s_mov_b64 exec, -1")
        A("s_mov_b32 s41, s17")
        A("s_add_u32 s14, s14, 1")
        A("s_and_b32 s15, s14, 3")
        A("s_lshl_b32 s15, s15, 19")
        A("s_add_u32 s17, s38, s15")
        A("s_add_u32 s20, s20, 131072")
        A("s_add_u32 s21, s21, 131072")
        stamp(A, 6)
        A("s_cmp_lt_u32 s14, 64")
        A(f"s_cbranch_scc1 {L('step')}")
        A(f"v_mov_b32 v{T+4}, 1")
        A(f"v_mov_b32 v{T+5}, 0")
        A("s_mov_b64 exec, 1")
        A(f"buffer_atomic_add v{T+4}, v{T+5}, s[4:7], s39 offen")
        A("s_mov_b64 exec, -1")
        if PROF:
            A("s_lshl_b32 s15, s12, 2")
            A("s_add_u32 s15, s15, s13")
            A("s_lshl_b32 s15, s15, 6")
            A("s_lshl_b32 s16, s42, 16")
            A("s_add_u32 s15, s15, s16")
            A(f"s_add_u32 s15, s15, {PROFB}")
            A("v_mov_b32 v1, 0")
            for i in range(8):
                A(f"v_mov_b32 v2, s{80+i}")
                A(f"buffer_store_dword v2, v1, s[4:7], s15 offen offset:{4*i}")
                A("s_nop 1")
            A("v_mov_b32 v2, s30")
            A(f"buffer_store_dword v2, v1, s[4:7], s15 offen offset:32")
        A("s_endpgm")

def cnt_addr(A, dst, stage, layer_reg="s42"):
    A(f"s_lshl_b32 s{dst}, {layer_reg}, 8")
    A(f"s_add_u32 s{dst}, s{dst}, s40")
    A(f"s_lshl_b32 s{dst}, s{dst}, 6")
    A(f"s_add_u32 s{dst}, s{dst}, {cnt_off(0, stage, 0)}")

def signal(A, stage):
    A("s_waitcnt vmcnt(0) lgkmcnt(0)")
    A("s_barrier")
    A("s_cmp_lg_u32 s13, 0")
    A("s_cbranch_scc1 L_wloop")
    if PROF:
        A("s_memrealtime s[78:79]")
        A("s_waitcnt lgkmcnt(0)")
        A("v_mov_b32 v120, s72")
        A("v_mov_b32 v121, s74")
        A("v_mov_b32 v122, s76")
        A("v_mov_b32 v123, s78")
        A("v_mov_b32 v126, 0")
        A("s_mov_b64 exec, 1")
        A("buffer_store_dwordx4 v[120:123], v126, s[4:7], s69 offen")
        A("s_mov_b64 exec, -1")
        A("s_add_u32 s69, s69, 16")
    cnt_addr(A, 22, stage)
    A("v_mov_b32 v126, 0")
    A("v_mov_b32 v127, 1")
    A("s_mov_b64 exec, 1")
    A("buffer_atomic_add v127, v126, s[4:7], s22 offen")
    A("s_mov_b64 exec, -1")
    A("s_branch L_wloop")

def flush_pending(A, tag):
    A("s_cmp_eq_u32 s68, 0")
    A(f"s_cbranch_scc1 L_fp_done_{tag}")
    A("s_barrier")
    A("s_cmp_lg_u32 s13, 0")
    A(f"s_cbranch_scc1 L_fp_skip_{tag}")
    A("v_mov_b32 v124, 0")
    A("v_mov_b32 v125, 1")
    A("s_mov_b64 exec, 1")
    A("buffer_atomic_add v125, v124, s[4:7], s68 offen")
    A("s_mov_b64 exec, -1")
    A.label(f"L_fp_skip_{tag}")
    A("s_mov_b32 s68, 0")
    A.label(f"L_fp_done_{tag}")

def stage_ln(A, which):
    tag = f"ln{which}"
    if which == 0:
        A("s_cmp_eq_u32 s42, 0")
        A(f"s_cbranch_scc1 L_{tag}_nodep")
        A("s_mov_b32 s23, 0")
        cnt_addr(A, 22, 6, "s23")
        poll_counter(A, tag, "s22", 32)
        A.label(f"L_{tag}_nodep")
    else:
        cnt_addr(A, 22, 3)
        poll_counter(A, tag, "s22", 32)
    A("s_lshl_b32 s23, s42, 1")
    A(f"s_add_u32 s23, s23, {which}")
    A("s_lshl_b32 s23, s23, 21")
    A(f"s_add_u32 s19, s23, {XR}")
    A(f"s_add_u32 s18, s23, {XFA}")
    A("v_lshrrev_b32 v1, 4, v0")
    A("s_lshl_b32 s3, s40, 6")
    A("s_lshl_b32 s15, s41, 5")
    A("s_add_u32 s3, s3, s15")
    A("v_add_u32 v1, s3, v1")
    A("v_and_b32 v2, 15, v0")
    A("v_lshlrev_b32 v3, 10, v1")
    A("v_lshl_add_u32 v3, v2, 4, v3")
    for q in range(4):
        A(f"buffer_load_dwordx4 v[{16+4*q}:{19+4*q}], v3, s[4:7], s19 offen offset:{q*256} sc1")
    A("s_add_u32 s19, s19, 16384")
    for q in range(4):
        A(f"buffer_load_dwordx4 v[{64+4*q}:{67+4*q}], v3, s[4:7], s19 offen offset:{q*256} sc1")
    A("v_bfe_u32 v4, v1, 3, 2")
    A("v_and_b32 v5, 3, v1")
    A("v_lshl_add_u32 v4, v4, 2, v5")
    A("v_and_b32 v5, 3, v2")
    A("v_lshl_add_u32 v4, v5, 4, v4")
    A("v_lshlrev_b32 v4, 4, v4")
    A("v_bfe_u32 v5, v1, 2, 1")
    A("v_bfe_u32 v6, v1, 5, 1")
    A("v_lshl_add_u32 v5, v6, 1, v5")
    A("v_lshl_add_u32 v4, v5, 10, v4")
    A("v_lshrrev_b32 v5, 6, v1")
    A("v_lshrrev_b32 v6, 2, v2")
    A("v_lshl_add_u32 v5, v5, 4, v6")
    A("v_lshl_add_u32 v4, v5, 12, v4")
    for it in range(2):
        A(f"s_waitcnt vmcnt({4 if it == 0 else 4})")
        if it == 1:
            for i in range(16): A(f"v_mov_b32 v{16+i}, v{64+i}")
        ln_math(A)
        for q in range(4):
            A(f"s_add_u32 s20, s18, {q*4*4096 + it*128}")
            A(f"buffer_store_dwordx4 v[{16+4*q}:{19+4*q}], v4, s[4:7], s20 offen sc1")
    signal(A, 0 if which == 0 else 4)

XB = 8; WB = 40; TMPX = 104; ACCW = 168

def ta_prologue(A, tag, which, dep_stage):
    A("v_and_b32 v4, 63, v0")
    A("v_lshlrev_b32 v4, 4, v4")
    A("s_bitcmp0_b32 s72, 16")
    A(f"s_cbranch_scc1 L_{tag}_nopre")
    for kk in range(16):
        for t in range(4):
            A(f"buffer_load_dwordx4 a[{(kk*4+t)*4}:{(kk*4+t)*4+3}], v4, s[4:7], s15 offen offset:{t*1024}")
        A("s_add_u32 s15, s15, 4096")
    A.label(f"L_{tag}_nopre")
    cnt_addr(A, 22, dep_stage)
    poll_counter(A, tag, "s22", 2)
    A("v_lshlrev_b32 v1, 4, v0")
    A("s_lshl_b32 s23, s42, 1")
    A(f"s_add_u32 s23, s23, {which}")
    A("s_lshl_b32 s23, s23, 21")
    A("s_lshl_b32 s19, s40, 16")
    A("s_add_u32 s19, s19, s23")
    A(f"s_add_u32 s19, s19, {XFA}")
    for i in range(16):
        A(f"buffer_load_dwordx4 v[{TMPX+4*i}:{TMPX+4*i+3}], v1, s[4:7], s19 offen sc1")
        if i < 15: A("s_add_u32 s19, s19, 4096")
    for i in range(16):
        A(f"s_waitcnt vmcnt({15-i})")
        A(f"ds_write_b128 v1, v[{TMPX+4*i}:{TMPX+4*i+3}] offset:{i*4096}")
    A("v_mov_b32 v5, v4")
    A("s_waitcnt lgkmcnt(0)")
    A("s_barrier")

def ta_xread(A, buf, koff):
    for mt in range(4):
        A(f"ds_read_b128 v[{XB+16*buf+4*mt}:{XB+16*buf+4*mt+3}], v5 offset:{koff*4096+mt*1024}")

def ta_kloop(A, vtype):
    NB = 3
    ta_xread(A, 0, 0); ta_xread(A, 1, 1)
    for kk in range(16):
        if kk + 2 < 16: ta_xread(A, (kk + 2) % NB, kk + 2)
        lg = min(8, 4 * (15 - kk))
        A(f"s_waitcnt lgkmcnt({lg})")
        for ct in range(4):
            for mt in range(4):
                w = a((kk * 4 + ct) * 4, 4); x = v(XB + 16 * (kk % NB) + 4 * mt, 4)
                acc = v(ACCW + (ct * 4 + mt) * 4, 4)
                c = "0" if kk == 0 else acc
                if vtype: A(f"v_mfma_f32_16x16x32_bf16 {acc}, {x}, {w}, {c}")
                else:     A(f"v_mfma_f32_16x16x32_bf16 {acc}, {w}, {x}, {c}")

def stage_q(A):
    A("s_and_b32 s16, s41, 15")
    A("s_lshl_b32 s16, s16, 2")
    A("s_add_u32 s16, s16, s13")
    A("s_lshr_b32 s17, s41, 4")
    A("s_add_u32 s18, s17, 1")
    A("s_cmp_eq_u32 s17, 2")
    A("s_cselect_b32 s18, 0, s18")
    A("s_mul_i32 s15, s16, 3")
    A("s_add_u32 s15, s15, s18")
    A("s_lshl_b32 s15, s15, 16")
    A(f"s_add_u32 s15, s15, {WQKV_F}")
    ta_prologue(A, "q", 0, 0)
    A("s_cmp_eq_u32 s17, 1")
    A("s_cbranch_scc1 L_q_v")
    ta_kloop(A, False)
    A("s_lshl_b32 s19, s40, 7")
    A("s_lshr_b32 s20, s16, 1")
    A("s_add_u32 s19, s19, s20")
    A("s_lshl_b32 s19, s19, 2")
    A("s_and_b32 s20, s16, 1")
    A("s_lshl_b32 s20, s20, 1")
    A("s_add_u32 s19, s19, s20")
    A("s_lshl_b32 s19, s19, 10")
    A("s_add_u32 s19, s19, s43")
    A(f"s_mov_b32 s20, {KF}")
    A("s_cmp_eq_u32 s17, 2")
    A(f"s_cselect_b32 s20, {QF}, s20")
    A("s_add_u32 s19, s19, s20")
    for mt in range(4):
        for cp in range(2):
            pk = TMPX + 4 * (mt * 2 + cp)
            for half in range(2):
                b = ACCW + ((2 * cp + half) * 4 + mt) * 4
                A(f"v_cvt_pk_bf16_f32 v{pk+2*half}, v{b}, v{b+1}")
                A(f"v_cvt_pk_bf16_f32 v{pk+2*half+1}, v{b+2}, v{b+3}")
            A(f"buffer_store_dwordx4 v[{pk}:{pk+3}], v4, s[4:7], s19 offen offset:{cp*1024} sc1")
        if mt < 3: A("s_add_u32 s19, s19, 131072")
    A("s_cmp_eq_u32 s17, 2")
    A("s_cbranch_scc1 L_q_sigq")
    signal(A, 7)
    A.label("L_q_sigq")
    signal(A, 1)
    A.label("L_q_v")
    ta_kloop(A, True)
    A("s_lshl_b32 s19, s40, 6")
    A("s_lshr_b32 s20, s16, 1")
    A("s_add_u32 s19, s19, s20")
    A("s_lshl_b32 s19, s19, 3")
    A("s_and_b32 s20, s16, 1")
    A("s_lshl_b32 s20, s20, 2")
    A("s_add_u32 s19, s19, s20")
    A("s_lshl_b32 s19, s19, 10")
    A("s_add_u32 s19, s19, s43")
    A(f"s_add_u32 s19, s19, {VF}")
    for sg in range(2):
        for ct in range(4):
            pk = TMPX + 4 * (sg * 4 + ct)
            for half in range(2):
                b = ACCW + (ct * 4 + 2 * sg + half) * 4
                A(f"v_cvt_pk_bf16_f32 v{pk+2*half}, v{b}, v{b+1}")
                A(f"v_cvt_pk_bf16_f32 v{pk+2*half+1}, v{b+2}, v{b+3}")
            A(f"buffer_store_dwordx4 v[{pk}:{pk+3}], v4, s[4:7], s19 offen offset:{ct*1024} sc1")
        if sg < 1: A("s_add_u32 s19, s19, 262144")
    signal(A, 7)

def stage_q1stream(A):
    PKR = 56
    A("s_and_b32 s16, s41, 15")
    A("s_lshl_b32 s16, s16, 2")
    A("s_add_u32 s16, s16, s13")
    A("s_lshr_b32 s17, s41, 4")
    A("s_add_u32 s18, s17, 1")
    A("s_cmp_eq_u32 s17, 2")
    A("s_cselect_b32 s18, 0, s18")
    A("s_mul_i32 s15, s16, 3")
    A("s_add_u32 s15, s15, s18")
    A("s_lshl_b32 s15, s15, 16")
    A(f"s_add_u32 s15, s15, {WQKV_F}")
    A("v_and_b32 v4, 63, v0")
    A("v_lshlrev_b32 v4, 4, v4")
    A("v_lshlrev_b32 v1, 4, v0")
    A(f"s_mov_b32 s19, {XFA}")
    def xloads():
        for i in range(16):
            A(f"buffer_load_dwordx4 v[{TMPX+4*i}:{TMPX+4*i+3}], v1, s[4:7], s19 offen")
            A("s_add_u32 s19, s19, 4096")
    xloads()
    for kk in range(16):
        for t in range(4):
            A(f"buffer_load_dwordx4 a[{(kk*4+t)*4}:{(kk*4+t)*4+3}], v4, s[4:7], s15 offen offset:{t*1024}")
        A("s_add_u32 s15, s15, 4096")
    A("s_lshr_b32 s20, s16, 1")
    A("s_and_b32 s21, s16, 1")
    A("s_cmp_eq_u32 s17, 1")
    A("s_cbranch_scc1 L_q1_vaddr")
    A("s_lshl_b32 s20, s20, 2")
    A("s_lshl_b32 s21, s21, 1")
    A("s_add_u32 s20, s20, s21")
    A("s_lshl_b32 s20, s20, 10")
    A(f"s_mov_b32 s21, {KF}")
    A("s_cmp_eq_u32 s17, 2")
    A(f"s_cselect_b32 s21, {QF}, s21")
    A("s_add_u32 s20, s20, s21")
    A("s_branch L_q1_addr_done")
    A.label("L_q1_vaddr")
    A("s_lshl_b32 s20, s20, 3")
    A("s_lshl_b32 s21, s21, 2")
    A("s_add_u32 s20, s20, s21")
    A("s_lshl_b32 s20, s20, 10")
    A(f"s_add_u32 s20, s20, {VF}")
    A.label("L_q1_addr_done")
    A(f"s_mov_b32 s21, {cnt_off(0, 7, 0)}")
    A("s_cmp_eq_u32 s17, 2")
    A(f"s_cselect_b32 s21, {cnt_off(0, 1, 0)}, s21")
    A("s_mov_b32 s40, 0")
    A("v_mov_b32 v2, v1")
    A("v_mov_b32 v5, v4")
    A("s_waitcnt vmcnt(0)")
    for i in range(16):
        A(f"ds_write_b128 v2, v[{TMPX+4*i}:{TMPX+4*i+3}] offset:{i*4096}")
    A("s_waitcnt lgkmcnt(0)")
    xloads()
    A("s_barrier")
    A("s_cmp_eq_u32 s17, 1")
    A("s_cbranch_scc1 L_q1_loop_v")
    for vtype in (False, True):
        tg = "v" if vtype else "qk"
        A.label(f"L_q1_loop_{tg}")
        ta_kloop(A, vtype)
        A("s_waitcnt vmcnt(0)")
        A("v_xor_b32 v2, 0x10000, v2")
        A("v_xor_b32 v5, 0x10000, v5")
        for i in range(16):
            A(f"ds_write_b128 v2, v[{TMPX+4*i}:{TMPX+4*i+3}] offset:{i*4096}")
        A("s_waitcnt lgkmcnt(0)")
        A("s_barrier")
        A("s_cmp_le_u32 s40, 1")
        A(f"s_cbranch_scc1 L_q1_nosig_{tg}")
        A("s_cmp_lg_u32 s13, 0")
        A(f"s_cbranch_scc1 L_q1_nosig2_{tg}")
        A("v_mov_b32 v6, 0")
        A("v_mov_b32 v7, 1")
        A("s_mov_b64 exec, 1")
        A("buffer_atomic_add v7, v6, s[4:7], s21 offen")
        A("s_mov_b64 exec, -1")
        A.label(f"L_q1_nosig2_{tg}")
        A("s_add_u32 s21, s21, 64")
        A.label(f"L_q1_nosig_{tg}")
        A("s_cmp_ge_u32 s40, 30")
        A(f"s_cbranch_scc1 L_q1_nold_{tg}")
        xloads()
        A.label(f"L_q1_nold_{tg}")
        A("s_mov_b32 s22, s20")
        if not vtype:
            for mt in range(4):
                for cp in range(2):
                    pk = PKR + 4 * (mt * 2 + cp)
                    for half in range(2):
                        b = ACCW + ((2 * cp + half) * 4 + mt) * 4
                        A(f"v_cvt_pk_bf16_f32 v{pk+2*half}, v{b}, v{b+1}")
                        A(f"v_cvt_pk_bf16_f32 v{pk+2*half+1}, v{b+2}, v{b+3}")
                    A(f"buffer_store_dwordx4 v[{pk}:{pk+3}], v4, s[4:7], s22 offen offset:{cp*1024} sc1")
                if mt < 3: A("s_add_u32 s22, s22, 131072")
        else:
            for sg in range(2):
                for ct in range(4):
                    pk = PKR + 4 * (sg * 4 + ct)
                    for half in range(2):
                        b = ACCW + (ct * 4 + 2 * sg + half) * 4
                        A(f"v_cvt_pk_bf16_f32 v{pk+2*half}, v{b}, v{b+1}")
                        A(f"v_cvt_pk_bf16_f32 v{pk+2*half+1}, v{b+2}, v{b+3}")
                    A(f"buffer_store_dwordx4 v[{pk}:{pk+3}], v4, s[4:7], s22 offen offset:{ct*1024} sc1")
                if sg < 1: A("s_add_u32 s22, s22, 262144")
        A("s_cmp_lg_u32 s40, 0")
        A(f"s_cbranch_scc1 L_q1_noearly_{tg}")
        A("s_waitcnt vmcnt(0)")
        A("s_barrier")
        A("s_cmp_lg_u32 s13, 0")
        A(f"s_cbranch_scc1 L_q1_early2_{tg}")
        A("v_mov_b32 v6, 0")
        A("v_mov_b32 v7, 1")
        A("s_mov_b64 exec, 1")
        A("buffer_atomic_add v7, v6, s[4:7], s21 offen")
        A("s_mov_b64 exec, -1")
        A.label(f"L_q1_early2_{tg}")
        A("s_add_u32 s21, s21, 64")
        A.label(f"L_q1_noearly_{tg}")
        A("s_add_u32 s20, s20, 524288")
        A("s_add_u32 s40, s40, 1")
        A("s_cmp_lt_u32 s40, 32")
        A(f"s_cbranch_scc1 L_q1_loop_{tg}")
        A("s_branch L_q1_fin")
    A.label("L_q1_fin")
    A("s_waitcnt vmcnt(0) lgkmcnt(0)")
    A("s_barrier")
    A("s_cmp_lg_u32 s13, 0")
    A("s_cbranch_scc1 L_wloop")
    A("v_mov_b32 v6, 0")
    A("v_mov_b32 v7, 1")
    A("s_mov_b64 exec, 1")
    A("buffer_atomic_add v7, v6, s[4:7], s21 offen")
    A("s_mov_b64 exec, -1")
    A("s_branch L_wloop")

def stage_g(A):
    A("s_lshl_b32 s16, s41, 2")
    A("s_add_u32 s16, s16, s13")
    A("s_lshl_b32 s15, s16, 16")
    A(f"s_add_u32 s15, s15, {WGU_F}")
    ta_prologue(A, "g", 1, 4)
    ta_kloop(A, False)
    A("s_mul_i32 s19, s40, 56")
    A("s_add_u32 s19, s19, s16")
    A("s_lshl_b32 s19, s19, 12")
    A("s_add_u32 s19, s19, s43")
    A(f"s_add_u32 s19, s19, {HF}")
    c2 = struct.unpack("<I", struct.pack("<f", -2.0 * math.sqrt(2.0 / math.pi) * math.log2(math.e)))[0]
    A("s_mov_b32 s28, 0x3d372713")
    A(f"s_mov_b32 s29, {c2}")
    Tm = 8
    for mt in range(4):
        pk = TMPX + 4 * mt
        G = [ACCW + (half * 4 + mt) * 4 + i for half in range(2) for i in range(4)]
        U = [ACCW + ((2 + half) * 4 + mt) * 4 + i for half in range(2) for i in range(4)]
        for i in range(0, 8, 2):
            A(f"v_cvt_pk_bf16_f32 v{Tm}, v{G[i]}, v{G[i+1]}")
            A(f"v_lshlrev_b32 v{G[i]}, 16, v{Tm}")
            A(f"v_and_b32 v{G[i+1]}, 0xffff0000, v{Tm}")
            A(f"v_cvt_pk_bf16_f32 v{Tm}, v{U[i]}, v{U[i+1]}")
            A(f"v_lshlrev_b32 v{U[i]}, 16, v{Tm}")
            A(f"v_and_b32 v{U[i+1]}, 0xffff0000, v{Tm}")
        for i in range(8):
            t = Tm + 1 + i
            A(f"v_mul_f32 v{t}, v{G[i]}, v{G[i]}")
            A(f"v_mul_f32 v{t}, s28, v{t}")
            A(f"v_fma_f32 v{t}, v{t}, v{G[i]}, v{G[i]}")
            A(f"v_mul_f32 v{t}, s29, v{t}")
            A(f"v_exp_f32 v{t}, v{t}")
        for i in range(8):
            t = Tm + 1 + i
            A(f"v_add_f32 v{t}, 1.0, v{t}")
            A(f"v_rcp_f32 v{t}, v{t}")
        for i in range(8):
            A(f"v_mul_f32 v{G[i]}, v{G[i]}, v{Tm+1+i}")
        for i in range(0, 8, 2):
            A(f"v_cvt_pk_bf16_f32 v{Tm}, v{G[i]}, v{G[i+1]}")
            A(f"v_lshlrev_b32 v{G[i]}, 16, v{Tm}")
            A(f"v_and_b32 v{G[i+1]}, 0xffff0000, v{Tm}")
            A(f"v_mul_f32 v{G[i]}, v{G[i]}, v{U[i]}")
            A(f"v_mul_f32 v{G[i+1]}, v{G[i+1]}, v{U[i+1]}")
            A(f"v_cvt_pk_bf16_f32 v{pk+i//2}, v{G[i]}, v{G[i+1]}")
        A(f"buffer_store_dwordx4 v[{pk}:{pk+3}], v4, s[4:7], s19 offen offset:{mt*1024} sc1")
    signal(A, 5)

def stage_attn(A):
    A("s_lshl_b32 s12, s40, 1")
    A("s_lshr_b32 s14, s41, 2")
    A("s_add_u32 s12, s12, s14")
    A("s_and_b32 s14, s41, 3")
    A("s_lshl_b32 s14, s14, 3")
    A("s_lshl_b32 s15, s13, 1")
    A("s_add_u32 s14, s14, s15")
    cnt_addr(A, 22, 1)
    cnt_addr(A, 21, 7)
    A("s_lshl_b32 s20, s42, 6")
    A("s_add_u32 s20, s20, s12")
    A("s_lshl_b32 s20, s20, 6")
    A(f"s_add_u32 s20, s20, {CHAIN_CNT}")
    A("v_and_b32 v14, 63, v0")
    A("v_lshlrev_b32 v1, 4, v14")
    A("v_lshlrev_b32 v13, 3, v14")
    A("s_sub_u32 s23, s21, s22")
    A("v_mov_b32 v126, 0")
    A("v_writelane_b32 v126, s23, 1")
    A("s_sub_u32 s23, s20, s22")
    A("v_writelane_b32 v126, s23, 2")
    A("s_mov_b32 s26, 0")
    A("buffer_load_dword v127, v126, s[4:7], s22 offen sc1")
    A("s_waitcnt vmcnt(0)")
    flush_pending(A, "a")
    A("s_branch L_a_chk")
    A.label("L_a_poll")
    A("buffer_load_dword v127, v126, s[4:7], s22 offen sc1")
    A("s_add_u32 s26, s26, 1")
    A(f"s_cmp_gt_u32 s26, {TMO}")
    A(f"s_cbranch_scc1 {END}")
    A("s_waitcnt vmcnt(0)")
    A.label("L_a_chk")
    A("v_readlane_b32 s27, v127, 0")
    A("v_readlane_b32 s23, v127, 1")
    A("v_readlane_b32 s19, v127, 2")
    A("s_cmp_ge_u32 s27, 16")
    A("s_cselect_b32 s27, 1, 0")
    A("s_cmp_ge_u32 s23, 32")
    A("s_cselect_b32 s23, 1, 0")
    A("s_and_b32 s27, s27, s23")
    A("s_cmp_eq_u32 s27, 1")
    A("s_cbranch_scc1 L_a_polled")
    A("s_sleep 4")
    A("s_branch L_a_poll")
    A.label("L_a_polled")
    S = 144; T = 168; O = 176; BI = 244
    def R(hh, kind, i, n):
        base = {"Q": 16, "K": 48, "KM": 80, "V": 96, "VM": 128}[kind]
        if hh == 0:
            r = base + i
            if kind == "V" and i >= 28: r = 240 + (i - 28)
            return v(r, n)
        abase = {"Q": 0, "K": 32, "V": 64, "KM": 96, "VM": 112}[kind]
        return a(abase + i, n)
    for hh in range(2):
        A("s_lshl_b32 s15, s12, 6")
        A("s_add_u32 s15, s15, s14")
        A(f"s_add_u32 s15, s15, {hh}")
        A("s_lshl_b32 s15, s15, 12")
        A("s_add_u32 s15, s15, s43")
        A(f"s_add_u32 s16, s15, {QF}")
        A(f"s_add_u32 s17, s15, {KF}")
        for t in range(2):
            for j in range(4):
                A(f"buffer_load_dwordx4 {R(hh,'Q',16*t+4*j,4)}, v1, s[4:7], s16 offen offset:{j*1024} sc1")
                A(f"buffer_load_dwordx4 {R(hh,'K',16*t+4*j,4)}, v1, s[4:7], s17 offen offset:{j*1024} sc1")
            if t == 0:
                A("s_add_u32 s16, s16, 131072")
                A("s_add_u32 s17, s17, 131072")
        A("s_lshl_b32 s15, s12, 5")
        A("s_add_u32 s15, s15, s14")
        A(f"s_add_u32 s15, s15, {hh}")
        A("s_lshl_b32 s16, s15, 13")
        A("s_add_u32 s16, s16, s43")
        A(f"s_add_u32 s16, s16, {VF}")
        for et in range(8):
            if et == 4: A("s_add_u32 s16, s16, 4096")
            A(f"buffer_load_dwordx4 {R(hh,'V',4*et,4)}, v1, s[4:7], s16 offen offset:{(et&3)*1024} sc1")
    A("s_cmp_ge_u32 s19, 128")
    A("s_cbranch_scc1 L_a_chain_ok")
    poll_counter(A, "a2", "s20", 128, only_wave0=False)
    A.label("L_a_chain_ok")
    if PROF:
        A("s_memrealtime s[76:77]")
        A("s_waitcnt lgkmcnt(0)")
    for hh in range(2):
        A("s_lshl_b32 s15, s12, 5")
        A("s_add_u32 s15, s15, s14")
        A(f"s_add_u32 s15, s15, {hh}")
        A("s_lshl_b32 s16, s15, 12")
        A("s_add_u32 s16, s16, s43")
        A(f"s_add_u32 s18, s16, {VM}")
        A(f"s_add_u32 s16, s16, {KM}")
        for j in range(4):
            A(f"buffer_load_dwordx4 {R(hh,'KM',4*j,4)}, v1, s[4:7], s16 offen offset:{j*1024} sc1")
        for et in range(8):
            A(f"buffer_load_dwordx2 {R(hh,'VM',2*et,2)}, v13, s[4:7], s18 offen offset:{et*512} sc1")
    A(f"s_mov_b32 s28, {SCALE_HEX}")
    A(f"s_mov_b32 s29, {SCALE_HEX}")
    A(f"s_mov_b32 s30, {LOG2E_HEX}")
    A(f"s_mov_b32 s31, {LOG2E_HEX | 0x80000000}")
    A("v_and_b32 v15, 15, v14")
    A("v_lshrrev_b32 v2, 2, v15")
    A("v_and_b32 v3, 3, v15")
    A("v_lshl_add_u32 v2, v2, 3, v3")
    A("v_lshrrev_b32 v3, 4, v14")
    A("v_lshlrev_b32 v3, 3, v3")
    A("v_sub_u32 v2, v2, v3")
    A(f"v_mov_b32 v{T+7}, 0xf149f2ca")
    bias = {0: 244, 1: 8}
    A("v_cmp_gt_u32 vcc, 32, v14")
    A(f"v_cndmask_b32 v252, v{T+7}, 0, vcc")
    A("v_mov_b32 v253, v252")
    for tq in range(2):
        for tk in range(2):
            for r in range(4):
                A(f"v_cmp_le_i32 vcc, {r + 4*tk - 4*tq}, v2")
                A(f"v_cndmask_b32 v{bias[tq]+4*tk+r}, v{T+7}, 0, vcc")
    A("s_lshl_b32 s16, s40, 7")
    A("s_lshl_b32 s17, s14, 2")
    A("s_add_u32 s16, s16, s17")
    A("s_lshl_b32 s16, s16, 2")
    A("s_and_b32 s17, s12, 1")
    A("s_lshl_b32 s17, s17, 1")
    A("s_add_u32 s16, s16, s17")
    A("s_lshl_b32 s16, s16, 10")
    A("s_add_u32 s16, s16, s43")
    A(f"s_add_u32 s16, s16, {OF}")
    for hh in range(2):
        A(f"s_waitcnt vmcnt({20 if hh == 0 else 16})")
        for tq in range(2):
            for j in range(4):
                for kt in range(3):
                    src = R(hh, 'KM', 4 * j, 4) if kt == 0 else R(hh, 'K', 16 * (kt - 1) + 4 * j, 4)
                    acc = v(S + 12 * tq + 4 * kt, 4)
                    A(f"v_mfma_f32_16x16x32_bf16 {acc}, {src}, {R(hh,'Q',16*tq+4*j,4)}, {'0' if j==0 else acc}")
        A(f"s_waitcnt vmcnt({12 if hh == 0 else 8})")
        for tq in range(2):
            Sq = S + 12 * tq
            TT = T
            for i in range(0, 12, 2): A(f"v_cvt_pk_bf16_f32 v{TT+i//2}, v{Sq+i}, v{Sq+i+1}")
            for i in range(0, 12, 2):
                A(f"v_lshlrev_b32 v{Sq+i}, 16, v{TT+i//2}")
                A(f"v_and_b32 v{Sq+i+1}, 0xffff0000, v{TT+i//2}")
            for i in range(0, 12, 2): A(f"v_pk_mul_f32 v[{Sq+i}:{Sq+i+1}], v[{Sq+i}:{Sq+i+1}], s[28:29]")
            for i in range(0, 12, 2): A(f"v_cvt_pk_bf16_f32 v{TT+i//2}, v{Sq+i}, v{Sq+i+1}")
            for i in range(0, 12, 2):
                A(f"v_lshlrev_b32 v{Sq+i}, 16, v{TT+i//2}")
                A(f"v_and_b32 v{Sq+i+1}, 0xffff0000, v{TT+i//2}")
            for i in range(0, 4, 2): A(f"v_pk_add_f32 v[{Sq+i}:{Sq+i+1}], v[{Sq+i}:{Sq+i+1}], v[252:253]")
            for i in range(0, 8, 2): A(f"v_pk_add_f32 v[{Sq+4+i}:{Sq+5+i}], v[{Sq+4+i}:{Sq+5+i}], v[{bias[tq]+i}:{bias[tq]+i+1}]")
            MX = T + 4; MT = T + 5
            A(f"v_max3_f32 v{MX}, v{Sq}, v{Sq+1}, v{Sq+2}")
            A(f"v_max3_f32 v{MT}, v{Sq+3}, v{Sq+4}, v{Sq+5}")
            A(f"v_max3_f32 v{MX}, v{MX}, v{Sq+6}, v{Sq+7}")
            A(f"v_max3_f32 v{MT}, v{MT}, v{Sq+8}, v{Sq+9}")
            A(f"v_max3_f32 v{MX}, v{MX}, v{Sq+10}, v{Sq+11}")
            A(f"v_max_f32 v{MX}, v{MX}, v{MT}")
            xlane(A, MX, MT, ("p16", "p32"), "v_max_f32")
            A(f"v_mul_f32 v{MX}, s31, v{MX}")
            for i in range(12): A(f"v_fma_f32 v{Sq+i}, v{Sq+i}, s30, v{MX}")
            for i in range(12): A(f"v_exp_f32 v{Sq+i}, v{Sq+i}")
            A(f"v_pk_add_f32 v[{TT}:{TT+1}], v[{Sq}:{Sq+1}], v[{Sq+2}:{Sq+3}]")
            A(f"v_pk_add_f32 v[{TT+2}:{TT+3}], v[{Sq+4}:{Sq+5}], v[{Sq+6}:{Sq+7}]")
            A(f"v_pk_add_f32 v[{MX}:{MX+1}], v[{Sq+8}:{Sq+9}], v[{Sq+10}:{Sq+11}]")
            A(f"v_pk_add_f32 v[{TT}:{TT+1}], v[{TT}:{TT+1}], v[{TT+2}:{TT+3}]")
            A(f"v_pk_add_f32 v[{TT}:{TT+1}], v[{TT}:{TT+1}], v[{MX}:{MX+1}]")
            A(f"v_add_f32 v{MX}, v{TT}, v{TT+1}")
            xlane(A, MX, MT, ("p16", "p32"))
            A(f"v_rcp_f32 v{MX}, v{MX}")
            A(f"v_mov_b32 v{MT}, v{MX}")
            for i in range(0, 12, 2): A(f"v_pk_mul_f32 v[{Sq+i}:{Sq+i+1}], v[{Sq+i}:{Sq+i+1}], v[{MX}:{MX+1}]")
            PM = T + 2; PT = 4
            A(f"v_cvt_pk_bf16_f32 v{PM}, v{Sq}, v{Sq+1}")
            A(f"v_cvt_pk_bf16_f32 v{PM+1}, v{Sq+2}, v{Sq+3}")
            for i in range(4): A(f"v_cvt_pk_bf16_f32 v{PT+i}, v{Sq+4+2*i}, v{Sq+5+2*i}")
            for et in range(8):
                A(f"v_mfma_f32_16x16x32_bf16 v[{O+4*et}:{O+4*et+3}], {R(hh,'V',4*et,4)}, v[{PT}:{PT+3}], 0")
            for et in range(8):
                A(f"v_mfma_f32_16x16x16_bf16 v[{O+4*et}:{O+4*et+3}], {R(hh,'VM',2*et,2)}, v[{PM}:{PM+1}], v[{O+4*et}:{O+4*et+3}]")
            PKO = 208 + 16 * tq
            for j in range(4):
                for half in range(2):
                    b = O + 8 * j + 4 * half
                    A(f"v_cvt_pk_bf16_f32 v{PKO+4*j+2*half}, v{b}, v{b+1}")
                    A(f"v_cvt_pk_bf16_f32 v{PKO+4*j+2*half+1}, v{b+2}, v{b+3}")
                A(f"s_add_u32 s17, s16, {hh*16384 + j*4096 + tq*1024}")
                A(f"buffer_store_dwordx4 v[{PKO+4*j}:{PKO+4*j+3}], v1, s[4:7], s17 offen sc1")
    if PROF:
        signal(A, 2)
    else:
        cnt_addr(A, 68, 2)
        A("s_branch L_wloop")

def stage_tb(A, tag, WF, AFB, KS, dep_stage, dep_n, res_idx, sig_stage):
    KW = KS // 4
    RING = 8
    RB = 16; ACC = RB + 16 * RING
    A("v_and_b32 v14, 63, v0")
    A("v_lshlrev_b32 v1, 4, v14")
    A("s_lshr_b32 s12, s41, 4")
    A("s_and_b32 s14, s41, 15")
    A(f"s_mul_i32 s15, s13, {KW}")
    A("s_lshr_b32 s16, s14, 1")
    A(f"s_mul_i32 s16, s16, {KS}")
    A("s_add_u32 s16, s16, s15")
    A("s_lshl_b32 s16, s16, 12")
    A("s_and_b32 s18, s14, 1")
    A("s_lshl_b32 s18, s18, 11")
    A("s_add_u32 s16, s16, s18")
    A(f"s_add_u32 s16, s16, {WF}")
    A(f"s_mul_i32 s17, s40, {KS}")
    A("s_add_u32 s17, s17, s15")
    A("s_lshl_b32 s17, s17, 12")
    A("s_lshl_b32 s18, s12, 11")
    A("s_add_u32 s17, s17, s18")
    A("s_add_u32 s17, s17, s43")
    A(f"s_add_u32 s17, s17, {AFB}")
    RING = 16; ACC = RB + 8 * RING
    A("s_bitcmp0_b32 s72, 16")
    A(f"s_cbranch_scc1 L_{tag}_nopre")
    for kk in range(KW):
        for t in range(2):
            A(f"buffer_load_dwordx4 a[{(kk*2+t)*4}:{(kk*2+t)*4+3}], v1, s[4:7], s16 offen offset:{t*1024}")
        A("s_add_u32 s16, s16, 4096")
    A("s_waitcnt vmcnt(0)")
    A.label(f"L_{tag}_nopre")
    def lda(si):
        for t in range(2):
            A(f"buffer_load_dwordx4 v[{RB+8*si+4*t}:{RB+8*si+4*t+3}], v1, s[4:7], s17 offen offset:{t*1024} sc1")
        A("s_add_u32 s17, s17, 4096")
    def mm(kk):
        si = kk % RING
        for ct in range(2):
            for tt in range(2):
                acc = v(ACC + (ct * 2 + tt) * 4, 4)
                A(f"v_mfma_f32_16x16x32_bf16 {acc}, a[{(kk*2+ct)*4}:{(kk*2+ct)*4+3}], v[{RB+8*si+4*tt}:{RB+8*si+4*tt+3}], {'0' if kk==0 else acc}")
    D = min(RING - 1, KW)
    cnt_addr(A, 22, dep_stage)
    A("v_mov_b32 v250, 0")
    poll_counter(A, tag, "s22", dep_n)
    for si in range(D): lda(si)
    for kk in range(KW):
        if kk + D < KW:
            lda((kk + D) % RING)
            A(f"s_waitcnt vmcnt({2*D})")
        else:
            A(f"s_waitcnt vmcnt({2*(KW-1-kk)})")
        mm(kk)
    A("s_lshl_b32 s15, s13, 12")
    A("v_add_u32 v2, s15, v1")
    for i in range(4):
        A(f"ds_write_b128 v2, v[{ACC+4*i}:{ACC+4*i+3}] offset:{i*1024}")
    A("s_and_b32 s15, s13, 1")
    A("s_lshl_b32 s15, s15, 10")
    A("v_add_u32 v3, s15, v1")
    A("v_and_b32 v4, 15, v14")
    A("v_lshrrev_b32 v5, 2, v4")
    A("v_and_b32 v4, 3, v4")
    A("v_lshl_add_u32 v4, v5, 3, v4")
    A("s_lshl_b32 s15, s40, 6")
    A("s_lshl_b32 s18, s12, 5")
    A("s_add_u32 s15, s15, s18")
    A("s_and_b32 s18, s13, 1")
    A("s_lshl_b32 s18, s18, 2")
    A("s_add_u32 s15, s15, s18")
    A("v_add_u32 v4, s15, v4")
    A("v_lshlrev_b32 v4, 10, v4")
    A("v_lshrrev_b32 v5, 4, v14")
    A("v_lshl_add_u32 v4, v5, 4, v4")
    A("s_lshl_b32 s15, s14, 6")
    A("v_add_u32 v4, s15, v4")
    A("s_lshl_b32 s18, s42, 1")
    A(f"s_add_u32 s18, s18, {res_idx}")
    A("s_lshl_b32 s18, s18, 21")
    A(f"s_add_u32 s18, s18, {XR}")
    A(f"buffer_load_dwordx4 v[8:11], v4, s[4:7], s18 offen sc1")
    A("s_waitcnt lgkmcnt(0)")
    A("s_barrier")
    A("s_cmp_ge_u32 s13, 2")
    A(f"s_cbranch_scc1 L_{tag}_done")
    R = 16
    for ww in range(4):
        for ct in range(2):
            A(f"ds_read_b128 v[{R+8*ww+4*ct}:{R+8*ww+4*ct+3}], v3 offset:{ww*4096+ct*2048}")
    A("s_waitcnt lgkmcnt(4)")
    for i in range(8): A(f"v_add_f32 v{R+i}, v{R+i}, v{R+8+i}")
    A("s_waitcnt lgkmcnt(2)")
    for i in range(8): A(f"v_add_f32 v{R+i}, v{R+i}, v{R+16+i}")
    A("s_waitcnt lgkmcnt(0) vmcnt(0)")
    for i in range(8): A(f"v_add_f32 v{R+i}, v{R+i}, v{R+24+i}")
    for i in range(4):
        A(f"v_cvt_pk_bf16_f32 v6, v{R+2*i}, v{R+2*i+1}")
        A(f"v_lshlrev_b32 v{R+2*i}, 16, v6")
        A(f"v_and_b32 v{R+2*i+1}, 0xffff0000, v6")
        A(f"v_lshlrev_b32 v6, 16, v{8+i}")
        A(f"v_and_b32 v7, 0xffff0000, v{8+i}")
        A(f"v_add_f32 v{R+2*i}, v{R+2*i}, v6")
        A(f"v_add_f32 v{R+2*i+1}, v{R+2*i+1}, v7")
        A(f"v_cvt_pk_bf16_f32 v{R+32+i}, v{R+2*i}, v{R+2*i+1}")
    if res_idx == 1:
        A("s_cmp_eq_u32 s42, 1")
        A(f"s_cbranch_scc1 L_{tag}_out")
    A(f"s_add_u32 s18, s18, {2*MB}")
    A(f"buffer_store_dwordx4 v[{R+32}:{R+35}], v4, s[4:7], s18 offen sc1")
    if res_idx == 1:
        A(f"s_branch L_{tag}_done")
        A.label(f"L_{tag}_out")
        A(f"buffer_store_dwordx4 v[{R+32}:{R+35}], v4, s[64:67], 0 offen")
    A.label(f"L_{tag}_done")
    signal(A, sig_stage)

NSUB = {0: 2, 1: 48, 2: 8, 3: 32, 4: 2, 5: 14, 6: 32}
TBL_STRIDE = 80

def schedule(nW=192, verbose=False):
    def word(layer, stage, blk, sub): return stage | (blk << 4) | (sub << 9) | (layer << 15)
    lists = []
    def new_worker():
        lists.append([]); return lists[-1]
    q1w = []
    for sub in range(48):
        w = new_worker()
        for b in range(32): w.append(word(1, 1, b, sub))
    WG = {}
    for l in range(2):
        for st, n in ((3, 32), (5, 14)):
            for sub in range(n):
                WG[(l, st, sub)] = new_worker()
                if l == 1: q1w.append(WG[(l, st, sub)])
    for l in range(2):
        for st, n in ((3, 32), (5, 14)):
            for sub in range(n):
                for b in range(32):
                    own = 0 if (l == 1 and b >= 29 and (b & 1)) else l
                    WG[(own, st, sub)].append(word(l, st, b, sub))
    P = 7.05
    for cg in range(16):
        for sb in range(2):
            w = new_worker()
            ev = [(27 + P * b, word(0, 6, b, sb * 16 + cg)) for b in range(32)]
            ev += [(max(72 + P * b, 117 + 5.3 * b) + 6, word(1, 6, b, sb * 16 + cg)) for b in range(32)]
            ev.sort()
            w.extend(e[1] for e in ev)
    A1 = [new_worker() for _ in range(8)]
    A2 = [new_worker() for _ in range(6)]
    for b in range(32):
        for sub in range(8): A1[sub].append(word(0, 2, b, sub))
    free = [0.0] * 6
    k = 0
    for b in range(32):
        for sub in range(8):
            if b >= 29:
                pool = A1 + A2
                pool[(k * 5) % 14].append(word(1, 2, b, sub)); k += 1
            else:
                t = 46 + P * b + 3.5 * (sub >> 2)
                i = min(range(6), key=lambda j: (max(free[j], t), j))
                free[i] = max(free[i], t) + 4.2
                A2[i].append(word(1, 2, b, sub))
    for (l, st) in ((0, 4), (1, 0), (1, 4)):
        ws = [new_worker() for _ in range(2)]
        for b in range(32):
            for sub in range(2): ws[sub].append(word(l, st, b, sub))
        if (l, st) == (1, 4): q1w += ws
    assert len(lists) == nW, len(lists)
    for w in lists: w[0] |= 1 << 16
    assert len(q1w) == 48
    for sub, w in enumerate(q1w): w.insert(0, word(0, 8, 0, sub))
    if verbose: print("maxlen", max(len(x) for x in lists))
    assert max(len(l) for l in lists) < TBL_STRIDE, max(len(l) for l in lists)
    return lists

def gen_mega():
    A = Asm()
    name = "mega_kernel"
    A.raw(kernel_header(name))
    A("s_cmp_ge_u32 s2, 256")
    A(f"s_cbranch_scc1 {END}")
    load_ptr_srd(A, "ws", 4, WS_BYTES, 20)
    load_ptr_srd(A, "out", 64, 2 * MB, 20)
    rendezvous(A)
    A("s_cmp_ge_u32 s12, 64")
    A("s_cbranch_scc1 L_worker")
    gen_chain_role(A)
    A.label("L_worker")
    A("s_sub_u32 s12, s12, 64")
    A("s_mov_b32 s68, 0")
    A(f"s_mul_i32 s69, s12, {TBL_STRIDE*16}")
    A(f"s_add_u32 s69, s69, {PROFB + MB}")
    A("s_getpc_b64 s[70:71]")
    A.label("L_pcref")
    A(f"s_mul_i32 s15, s12, {TBL_STRIDE*4}")
    A("s_add_u32 s70, s70, s15")
    A("s_addc_u32 s71, s71, 0")
    A("s_add_u32 s70, s70, L_table-L_pcref")
    A("s_addc_u32 s71, s71, 0")
    A.label("L_wloop")
    A("s_load_dword s72, s[70:71], 0")
    A("s_add_u32 s70, s70, 4")
    A("s_addc_u32 s71, s71, 0")
    A("s_waitcnt lgkmcnt(0)")
    A("s_cmp_eq_u32 s72, -1")
    A(f"s_cbranch_scc1 L_wend")
    if PROF:
        A("s_memrealtime s[74:75]")
        A("s_waitcnt lgkmcnt(0)")
        A("s_mov_b32 s76, s74")
    A("s_and_b32 s73, s72, 15")
    A("s_bfe_u32 s40, s72, 0x50004")
    A("s_bfe_u32 s41, s72, 0x60009")
    A("s_bfe_u32 s42, s72, 0x1000f")
    A(f"s_mul_i32 s43, s42, {LSTRIDE}")
    for st in (0, 1, 2, 3, 4, 5, 6, 8):
        A(f"s_cmp_eq_u32 s73, {st}")
        A(f"s_cbranch_scc1 L_st{st}")
    A(f"s_branch {END}")
    A.label("L_st0"); stage_ln(A, 0)
    A.label("L_st1"); stage_q(A)
    A.label("L_st2"); stage_attn(A)
    A.label("L_st3"); stage_tb(A, "wo", WO_F, OF, 128, 2, 8, 0, 3)
    A.label("L_st4"); stage_ln(A, 1)
    A.label("L_st5"); stage_g(A)
    A.label("L_st6"); stage_tb(A, "dn", WD_F, HF, 56, 5, 14, 1, 6)
    A.label("L_st8"); stage_q1stream(A)
    A.label("L_wend")
    A("s_waitcnt vmcnt(0)")
    flush_pending(A, "end")
    A.label(END)
    A("s_endpgm")
    A.raw(".p2align 6")
    A.label("L_table")
    for l in schedule(verbose=True):
        ws_ = l + [0xFFFFFFFF] * (TBL_STRIDE - len(l))
        for i in range(0, TBL_STRIDE, 16):
            A.raw("    .long " + ", ".join(hex(x) for x in ws_[i:i+16]))
    return name, A, 256, (256, 256)

def copy_x_to_lds(A, mg_sreg, tmpv):
    A("v_lshlrev_b32 v1, 4, v0")
    A(f"s_lshl_b32 s19, s{mg_sreg}, 17")
    A(f"s_add_u32 s19, s19, {XFA}")
    for rnd in range(4):
        for i in range(8):
            A(f"buffer_load_dwordx4 v[{tmpv+4*i}:{tmpv+4*i+3}], v1, s[4:7], s19 offen")
            A("s_add_u32 s19, s19, 4096")
        for i in range(8):
            A(f"s_waitcnt vmcnt({7-i})")
            off = (rnd * 8 + i) * 4096
            if off < 65536:
                A(f"ds_write_b128 v1, v[{tmpv+4*i}:{tmpv+4*i+3}] offset:{off}")
            else:
                A(f"ds_write_b128 v2, v[{tmpv+4*i}:{tmpv+4*i+3}] offset:{off-65536}")
            if rnd == 0 and i < 2:
                A(f"ds_write_b128 v3, v[{tmpv+4*i}:{tmpv+4*i+3}] offset:{i*4096}")

def gen_qkv(name):
    A = Asm()
    A.raw(kernel_header(name))
    A("s_cmp_ge_u32 s2, 256")
    A("s_cbranch_scc1 L_end_" + name)
    load_ptr_srd(A, "ws", 4, WS_BYTES, 20)
    A("s_and_b32 s12, s2, 7")
    A("s_lshl_b32 s12, s12, 1")
    A("s_bfe_u32 s13, s2, 0x10003")
    A("s_add_u32 s12, s12, s13")
    A("s_lshr_b32 s13, s2, 4")
    A("v_lshlrev_b32 v1, 4, v0")
    A("v_add_u32 v2, 0x10000, v1")
    A("v_add_u32 v3, 0x20000, v1")
    ACC = 0 + 128
    XB = 8
    WB = 72
    XB = 8; WB = 64
    XB = 8; WB = 72; PK = 136
    copy_x_to_lds(A, 13, WB)
    A("v_lshrrev_b32 v4, 6, v0")
    A("v_readfirstlane_b32 s14, v4")
    A("v_and_b32 v4, 63, v0")
    A("v_lshlrev_b32 v4, 4, v4")
    A("v_mov_b32 v5, v4")
    A("s_lshl_b32 s15, s12, 2")
    A("s_add_u32 s15, s15, s14")
    A("s_mul_i32 s15, s15, 196608")
    A(f"s_add_u32 s15, s15, {WQKV_F}")
    A("s_waitcnt lgkmcnt(0)")
    A("s_barrier")
    def wload(setidx):
        for t in range(4):
            A(f"buffer_load_dwordx4 v[{WB+16*setidx+4*t}:{WB+16*setidx+4*t+3}], v4, s[4:7], s15 offen offset:{t*1024}")
        A("s_add_u32 s15, s15, 4096")
    def xread(buf, koff):
        for mt in range(8):
            A(f"ds_read_b128 v[{XB+32*buf+4*mt}:{XB+32*buf+4*mt+3}], v5 offset:{koff*8192+mt*1024}")
    for st in range(3): wload(st)
    xread(0, 0)
    A("s_lshl_b32 s16, s13, 3")
    A("s_lshl_b32 s16, s16, 5")
    A("s_lshl_b32 s17, s12, 1")
    A("s_lshr_b32 s18, s14, 1")
    A("s_add_u32 s17, s17, s18")
    A("s_add_u32 s16, s16, s17")
    A("s_lshl_b32 s16, s16, 2")
    A("s_and_b32 s18, s14, 1")
    A("s_lshl_b32 s18, s18, 1")
    A("s_add_u32 s16, s16, s18")
    A("s_lshl_b32 s16, s16, 10")
    A(f"s_add_u32 s16, s16, {QF}")
    A("s_lshl_b32 s20, s13, 2")
    A("s_lshl_b32 s20, s20, 5")
    A("s_add_u32 s20, s20, s17")
    A("s_lshl_b32 s20, s20, 3")
    A("s_lshl_b32 s18, s18, 1")
    A("s_add_u32 s20, s20, s18")
    A("s_lshl_b32 s20, s20, 10")
    A(f"s_add_u32 s20, s20, {VF}")
    A("s_mov_b32 s21, 0")
    def zero_acc():
        for i in range(128): A(f"v_accvgpr_write_b32 a{i}, 0")
    def kloop(tag, vtype):
        A("s_mov_b32 s22, 0")
        A.label(f"L_k_{tag}_{name}")
        for u in range(4):
            wload((u + 3) % 4)
            xread((u + 1) % 2, u + 1)
            A("s_waitcnt vmcnt(12) lgkmcnt(8)")
            for ct in range(4):
                for mt in range(8):
                    w = v(WB + 16 * u + 4 * ct, 4); x = v(XB + 32 * (u % 2) + 4 * mt, 4)
                    acc = a((ct * 8 + mt) * 4, 4)
                    if vtype: A(f"v_mfma_f32_16x16x32_bf16 {acc}, {x}, {w}, {acc}")
                    else:     A(f"v_mfma_f32_16x16x32_bf16 {acc}, {w}, {x}, {acc}")
        A("v_add_u32 v5, 0x8000, v5")
        A("v_and_b32 v5, 0x1ffff, v5")
        A("s_add_u32 s22, s22, 1")
        A("s_cmp_lt_u32 s22, 4")
        A(f"s_cbranch_scc1 L_k_{tag}_{name}")
    zero_acc()
    A.label(f"L_pass_{name}")
    kloop("qk", False)
    A.fence(10)
    A("s_mov_b32 s19, s16")
    n = 0
    for mt in range(8):
        for cp in range(2):
            pk = PK + 4 * (n % 8); n += 1
            for half in range(2):
                base = ((2 * cp + half) * 8 + mt) * 4
                for i in range(4): A(f"v_accvgpr_read_b32 v{168+i}, a{base+i}")
                A(f"v_cvt_pk_bf16_f32 v{pk+2*half}, v168, v169")
                A(f"v_cvt_pk_bf16_f32 v{pk+2*half+1}, v170, v171")
            A(f"buffer_store_dwordx4 v[{pk}:{pk+3}], v4, s[4:7], s19 offen offset:{cp*1024}")
        if mt < 7: A("s_add_u32 s19, s19, 131072")
    zero_acc()
    A(f"s_add_u32 s16, s16, {KF-QF}")
    A("s_add_u32 s21, s21, 1")
    A("s_cmp_lt_u32 s21, 2")
    A(f"s_cbranch_scc1 L_pass_{name}")
    kloop("v", True)
    A.fence(10)
    A("s_mov_b32 s19, s20")
    n = 0
    for sg in range(4):
        for ct in range(4):
            pk = PK + 4 * (n % 8); n += 1
            for half in range(2):
                base = (ct * 8 + 2 * sg + half) * 4
                for i in range(4): A(f"v_accvgpr_read_b32 v{168+i}, a{base+i}")
                A(f"v_cvt_pk_bf16_f32 v{pk+2*half}, v168, v169")
                A(f"v_cvt_pk_bf16_f32 v{pk+2*half+1}, v170, v171")
            A(f"buffer_store_dwordx4 v[{pk}:{pk+3}], v4, s[4:7], s19 offen offset:{ct*1024}")
        if sg < 3: A("s_add_u32 s19, s19, 262144")
    A.label("L_end_" + name)
    A("s_endpgm")
    return name, A, 256, (176, 128)

def build(kernels, launches):
    out = []
    hdr = open("cdna_kernels/" + NAME + ".s.ref").read().split("\n")
    for l in hdr:
        if l.startswith(";") and "@launch" not in l and "Override" not in l and "grid=ceil" not in l:
            out.append(l)
    for (k, g, lds) in launches:
        out.append(f"; @launch kernel={k} grid=({g},1,1) block=(256,1,1) lds={lds}")
    out.append('.amdgcn_target "amdgcn-amd-amdhsa--gfx950"')
    out.append(".text")
    for (name, A, g, regs) in kernels: out.append(A.text())
    out.append('.section .rodata,"a"')
    for (name, A, g, regs) in kernels:
        if isinstance(regs, tuple):
            nv, na = regs; acc = (nv + 3) // 4 * 4
            out.append(kernel_desc(name, acc + na, 102, acc))
        else:
            out.append(kernel_desc(name, regs, 102, (regs + 3) // 4 * 4))
    return "\n".join(out) + "\n"

if __name__ == "__main__":
    PROF = "prof" in sys.argv
    ks = [gen_prep(), gen_mega()]
    launches = [("prep_kernel", ks[0][2], 0), ("mega_kernel", 256, MEGA_LDS)]
    txt = build(ks, launches)
    dst = "prof.s" if PROF else "cdna_kernels/" + NAME + ".s"
    open(dst, "w").write(txt)
    print("bytes", len(txt))
```

```python
import sys, math, struct
from asmlib import *
from layout2 import *

NAME = "interleave_layers__memory_aug_recurrent_mem_tr__geglu_ffn__prompt"
KA = dict(x=0, mem0=8, wq=16, wk=24, wv=32, wo=40, seg=48, bx=56, wg=64, wu=72, wd=80, out=88, dbg=96, ws=104)
SCALE_HEX = 0x3db504f3
LOG2E_HEX = 0x3fb8aa3b
PROF = False

def srd(A, sd, sbase, nbytes):
    A(f"s_mov_b32 s{sd}, s{sbase}")
    A(f"s_and_b32 s{sd+1}, s{sbase+1}, 0xffff")
    A(f"s_mov_b32 s{sd+2}, {nbytes}")
    A(f"s_mov_b32 s{sd+3}, 0x00020000")

def load_ptr_srd(A, key, sd, nbytes, tmp):
    A(f"s_load_dwordx2 s[{tmp}:{tmp+1}], s[0:1], {KA[key]}")
    A("s_waitcnt lgkmcnt(0)")
    srd(A, sd, tmp, nbytes)

def magic_div(d, maxn):
    for sh in range(0, 32):
        m = -(-(1 << sh) // d)
        if m * maxn < (1 << 32) and all((n * m) >> sh == n // d for n in range(maxn)):
            return m, sh
    raise ValueError

def xlane(A, r, t, ops=("ror8", "p16", "p32"), op="v_add_f32"):
    for o in ops:
        if o == "ror8":
            A(f"{op}_dpp v{r}, v{r}, v{r} row_ror:8")
        else:
            A(f"v_mov_b32 v{t}, v{r}")
            A(f"v_permlane{'16' if o=='p16' else '32'}_swap_b32 v{r}, v{t}")
            A(f"{op} v{r}, v{r}, v{t}")

def bf16_round(A, dst, src, tmp):
    A(f"v_cvt_pk_bf16_f32 v{tmp}, v{src}, v{src}")
    A(f"v_lshlrev_b32 v{dst}, 16, v{tmp}")

def ln_math(A):
    for i in range(16):
        A(f"v_lshlrev_b32 v{32+2*i}, 16, v{16+i}")
        A(f"v_and_b32 v{33+2*i}, 0xffff0000, v{16+i}")
    A("v_add_f32 v7, v32, v33")
    for i in range(2, 32): A(f"v_add_f32 v7, v7, v{32+i}")
    for sh in (8, 4, 2, 1): A(f"v_add_f32_dpp v7, v7, v7 row_ror:{sh}")
    A("v_mul_f32 v7, 0x3b000000, v7")
    A("v_sub_f32 v8, v32, v7")
    A("v_mul_f32 v9, v8, v8")
    for i in range(1, 32):
        A(f"v_sub_f32 v8, v{32+i}, v7")
        A("v_fmac_f32 v9, v8, v8")
    for sh in (8, 4, 2, 1): A(f"v_add_f32_dpp v9, v9, v9 row_ror:{sh}")
    A("v_mul_f32 v9, 0x3b000000, v9")
    bf16_round(A, 7, 7, 10)
    bf16_round(A, 9, 9, 10)
    A("v_add_f32 v9, 0x3727c5ac, v9")
    bf16_round(A, 9, 9, 10)
    A("v_sqrt_f32 v9, v9")
    bf16_round(A, 9, 9, 10)
    A("v_rcp_f32 v9, v9")
    for i in range(16):
        A(f"v_sub_f32 v{32+2*i}, v{32+2*i}, v7")
        A(f"v_sub_f32 v{33+2*i}, v{33+2*i}, v7")
        A(f"v_cvt_pk_bf16_f32 v10, v{32+2*i}, v{33+2*i}")
        A(f"v_lshlrev_b32 v{32+2*i}, 16, v10")
        A(f"v_and_b32 v{33+2*i}, 0xffff0000, v10")
        A(f"v_mul_f32 v{32+2*i}, v{32+2*i}, v9")
        A(f"v_mul_f32 v{33+2*i}, v{33+2*i}, v9")
        A(f"v_cvt_pk_bf16_f32 v{16+i}, v{32+2*i}, v{33+2*i}")

def ln_body(A, sr, soff, sc1):
    A("v_lshrrev_b32 v1, 4, v0")
    A("s_lshl_b32 s3, s3, 4")
    A("v_add_u32 v1, s3, v1")
    A("v_and_b32 v2, 15, v0")
    A("v_lshlrev_b32 v3, 10, v1")
    A("v_lshl_add_u32 v3, v2, 4, v3")
    A(f"s_mov_b32 s19, {soff}")
    for q in range(4):
        A(f"buffer_load_dwordx4 v[{16+4*q}:{19+4*q}], v3, {sr}, s19 offen offset:{q*256}")
    A("v_bfe_u32 v4, v1, 3, 2")
    A("v_and_b32 v5, 3, v1")
    A("v_lshl_add_u32 v4, v4, 2, v5")
    A("v_and_b32 v5, 3, v2")
    A("v_lshl_add_u32 v4, v5, 4, v4")
    A("v_lshlrev_b32 v4, 4, v4")
    A("v_bfe_u32 v5, v1, 2, 1")
    A("v_bfe_u32 v6, v1, 5, 1")
    A("v_lshl_add_u32 v5, v6, 1, v5")
    A("v_lshl_add_u32 v4, v5, 10, v4")
    A("v_lshrrev_b32 v5, 6, v1")
    A("v_lshrrev_b32 v6, 2, v2")
    A("v_lshl_add_u32 v5, v5, 4, v6")
    A("v_lshl_add_u32 v4, v5, 12, v4")
    A("s_waitcnt vmcnt(0)")
    ln_math(A)
    A(f"s_mov_b32 s19, {XFA}")
    for q in range(4):
        if q: A(f"s_add_u32 s19, s19, {4*4096}")
        A(f"buffer_store_dwordx4 v[{16+4*q}:{19+4*q}], v4, s[4:7], s19 offen" + (" sc1" if sc1 else ""))

def gen_prep():
    A = Asm()
    name = "prep_kernel"
    A.raw(kernel_header(name))
    mats = []
    load_ptr_srd(A, "ws", 4, WS_BYTES, 20)
    A("s_mov_b32 s16, 0x05040100")
    A("s_mov_b32 s17, 0x07060302")
    start = 0; ranges = []
    for (key, K, N, kind) in mats:
        nwg = (K // 8) * (N // 8) // 256
        ranges.append((start, nwg)); start += nwg
    fill_start = start
    nfill = (4 * MB) // 65536
    memx_start = fill_start + nfill
    memx_total = 2 * MEMX_LAYER
    nmemx = -(-memx_total // 4096)
    xcopy_start = memx_start + nmemx
    nxcopy = (2 * MB) // 65536
    cnt_start = xcopy_start + nxcopy
    ln_start = cnt_start + 1
    total_wg = ln_start + 128
    for idx, (key, K, N, kind) in enumerate(mats):
        st, nwg = ranges[idx]
        A(f"s_cmp_lt_u32 s2, {st + nwg}")
        A(f"s_cbranch_scc1 L_prep_{key}")
    A(f"s_cmp_lt_u32 s2, {memx_start}")
    A("s_cbranch_scc1 L_prep_fill")
    A(f"s_cmp_lt_u32 s2, {xcopy_start}")
    A("s_cbranch_scc1 L_prep_memx")
    A(f"s_cmp_lt_u32 s2, {cnt_start}")
    A("s_cbranch_scc1 L_prep_xcopy")
    A(f"s_cmp_lt_u32 s2, {ln_start}")
    A("s_cbranch_scc1 L_prep_cnt")
    A(f"s_cmp_lt_u32 s2, {total_wg}")
    A("s_cbranch_scc1 L_prep_ln")
    A("s_endpgm")
    for idx, (key, K, N, kind) in enumerate(mats):
        st, nwg = ranges[idx]
        A.label(f"L_prep_{key}")
        load_ptr_srd(A, key, 8, K * N * 2, 20)
        NQ = N // 8
        A(f"s_sub_u32 s3, s2, {st}")
        A("s_lshl_b32 s3, s3, 8")
        A("v_add_u32 v1, s3, v0")
        if NQ & (NQ - 1) == 0:
            sh = NQ.bit_length() - 1
            A(f"v_lshrrev_b32 v2, {sh}, v1")
            A(f"v_and_b32 v3, {NQ-1}, v1")
        else:
            m, sh = magic_div(NQ, (K // 8) * NQ)
            A(f"s_mov_b32 s18, {m}")
            A("v_mul_lo_u32 v2, s18, v1")
            A(f"v_lshrrev_b32 v2, {sh}, v2")
            A(f"s_mov_b32 s18, {NQ}")
            A("v_mul_lo_u32 v3, s18, v2")
            A("v_sub_u32 v3, v1, v3")
        A(f"s_mov_b32 s18, {N*16}")
        A("v_mul_lo_u32 v4, s18, v2")
        A("v_lshl_add_u32 v4, v3, 4, v4")
        for j in range(8):
            A(f"s_mov_b32 s19, {j*N*2}")
            A(f"buffer_load_dwordx4 v[{16+4*j}:{19+4*j}], v4, s[8:11], s19 offen")
        A("v_lshrrev_b32 v5, 2, v2")
        A("v_and_b32 v6, 3, v2")
        A("v_lshrrev_b32 v7, 2, v3")
        A("v_and_b32 v9, 3, v3")
        A("v_lshlrev_b32 v10, 6, v9")
        A("v_lshl_add_u32 v10, v6, 8, v10")
        if kind.startswith("qkv"):
            region = int(kind[3])
            A("v_lshrrev_b32 v11, 1, v7")
            A("v_and_b32 v12, 1, v7")
            A("v_lshlrev_b32 v12, 1, v12")
            A("v_mul_u32_u24 v11, 3, v11")
            A(f"v_add_u32 v11, {region}, v11")
            A("v_lshl_add_u32 v11, v11, 4, v5")
            A("v_lshl_add_u32 v11, v11, 2, v12")
            base = WQKV_F
        elif kind in ("wo", "wd"):
            KS = K // 32
            A("v_lshrrev_b32 v11, 1, v7")
            A("v_and_b32 v12, 1, v7")
            A("v_lshlrev_b32 v12, 1, v12")
            A(f"v_mul_u32_u24 v11, {KS}, v11")
            A("v_add_u32 v11, v11, v5")
            A("v_lshl_add_u32 v11, v11, 2, v12")
            base = WO_F if kind == "wo" else WD_F
        else:
            gu = int(kind[2])
            A("v_lshl_add_u32 v11, v7, 4, v5")
            A("v_lshlrev_b32 v11, 2, v11")
            A(f"v_add_u32 v11, {2*gu}, v11")
            base = WGU_F
        A("v_lshl_add_u32 v10, v11, 10, v10")
        A(f"s_mov_b32 s19, {base}")
        A("s_waitcnt vmcnt(0)")
        for r in range(8):
            dw = r >> 1; sel = "s16" if (r & 1) == 0 else "s17"
            for d in range(4):
                lo = 16 + 4 * (2 * d) + dw; hi = 16 + 4 * (2 * d + 1) + dw
                A(f"v_perm_b32 v{48+4*r+d}, v{hi}, v{lo}, {sel}")
            A(f"buffer_store_dwordx4 v[{48+4*r}:{51+4*r}], v10, s[4:7], s19 offen offset:{(r>>2)*1024 + 16*(r&3)}")
        A("s_endpgm")
    A.label("L_prep_fill")
    A(f"s_sub_u32 s3, s2, {fill_start}")
    A("s_lshl_b32 s3, s3, 16")
    A(f"s_add_u32 s3, s3, {PART}")
    A("v_lshlrev_b32 v1, 4, v0")
    for i in range(4): A(f"v_mov_b32 v{4+i}, -1")
    for i in range(16):
        A(f"buffer_store_dwordx4 v[4:7], v1, s[4:7], s3 offen")
        if i < 15: A("s_add_u32 s3, s3, 4096")
    A("s_endpgm")
    A.label("L_prep_cnt")
    A(f"s_mov_b32 s3, {CNT}")
    A("v_lshlrev_b32 v1, 4, v0")
    for i in range(4): A(f"v_mov_b32 v{4+i}, 0")
    for i in range(16):
        A(f"buffer_store_dwordx4 v[4:7], v1, s[4:7], s3 offen")
        if i < 15: A("s_add_u32 s3, s3, 4096")
    A("s_endpgm")
    A.label("L_prep_ln")
    load_ptr_srd(A, "x", 8, 2 * MB, 20)
    A(f"s_sub_u32 s3, s2, {ln_start}")
    ln_body(A, "s[8:11]", 0, False)
    A("s_endpgm")
    A.label("L_prep_xcopy")
    load_ptr_srd(A, "x", 8, 2 * MB, 20)
    A(f"s_sub_u32 s3, s2, {xcopy_start}")
    A("s_lshl_b32 s3, s3, 16")
    A(f"s_add_u32 s18, s3, {XR}")
    A("v_lshlrev_b32 v1, 4, v0")
    for i in range(16):
        A(f"buffer_load_dwordx4 v[{4+4*i}:{7+4*i}], v1, s[8:11], s3 offen")
        if i < 15: A("s_add_u32 s3, s3, 4096")
    for i in range(16):
        A(f"s_waitcnt vmcnt({15-i})" if i == 0 else "s_nop 0")
        A(f"s_waitcnt vmcnt(15)")
        A(f"buffer_store_dwordx4 v[{4+4*i}:{7+4*i}], v1, s[4:7], s18 offen")
        if i < 15: A("s_add_u32 s18, s18, 4096")
    A("s_endpgm")
    A.label("L_prep_memx")
    load_ptr_srd(A, "mem0", 8, 8192, 20)
    A(f"s_sub_u32 s3, s2, {memx_start}")
    A("s_lshl_b32 s3, s3, 12")
    A("v_lshlrev_b32 v1, 4, v0")
    A("v_add_u32 v1, s3, v1")
    A(f"v_subrev_u32 v2, {MEMX_LAYER}, v1")
    A(f"v_cmp_gt_u32 vcc, {MEMX_LAYER}, v1")
    A("v_cndmask_b32 v2, v2, v1, vcc")
    A("v_lshrrev_b32 v3, 6, v2")
    A("v_bfe_u32 v4, v2, 3, 3")
    A("v_lshlrev_b32 v5, 10, v4")
    A("v_lshl_add_u32 v5, v3, 3, v5")
    A("buffer_load_dwordx2 v[8:9], v5, s[8:11], 0 offen")
    A("buffer_load_dwordx2 v[10:11], v5, s[8:11], 0 offen offset:1024")
    A("s_waitcnt vmcnt(0)")
    A(f"v_cmp_gt_u32 vcc, 8192, v2")
    for i in range(4):
        A(f"v_min_u32 v{8+i}, -2, v{8+i}")
        A(f"v_cndmask_b32 v{8+i}, -1, v{8+i}, vcc")
    A(f"v_cmp_gt_u32 vcc, {memx_total}, v1")
    A("s_and_saveexec_b64 s[22:23], vcc")
    A("s_cbranch_execz L_prep_end")
    A(f"s_mov_b32 s19, {MEMX}")
    A("buffer_store_dwordx4 v[8:11], v1, s[4:7], s19 offen")
    A.label("L_prep_end")
    A("s_endpgm")
    return name, A, total_wg, 80

WOL = 0
MEML = 131072
MROW = 1088
ZROW = MEML + 8 * MROW
SCL = ZROW + 1024
OL = SCL + 12288
MEGA_LDS = OL + 4096
assert MEGA_LDS <= 163840
END = "L_mega_end"
RDV = CNT + 0xC000
SETUP_CNT = CNT + 0xE000
TMO = 0x400000

def stamp(A, idx):
    if not PROF: return
    A("s_memtime s[44:45]")
    A("s_waitcnt lgkmcnt(0)")
    A("s_sub_u32 s46, s44, s47")
    A(f"s_add_u32 s{80+idx}, s{80+idx}, s46")
    A("s_mov_b32 s47, s44")

def rendezvous(A, nwg=256):
    load_ptr_srd(A, "dbg", 8, 256, 20)
    A("s_getreg_b32 s14, hwreg(HW_REG_XCC_ID)")
    A("s_and_b32 s14, s14, 7")
    A("v_lshrrev_b32 v1, 6, v0")
    A("v_readfirstlane_b32 s13, v1")
    A("s_waitcnt vmcnt(0)")
    A("s_barrier")
    A("s_cmp_lg_u32 s13, 0")
    A("s_cbranch_scc1 L_rv_wait")
    A("s_lshl_b32 s15, s14, 5")
    A("v_mov_b32 v1, s15")
    A("v_mov_b32 v2, 1")
    A("s_mov_b64 exec, 1")
    A("buffer_atomic_add v2, v1, s[8:11], 0 offen sc0")
    A("s_waitcnt vmcnt(0)")
    A("v_mov_b32 v1, 0")
    A("ds_write_b32 v1, v2")
    A("s_mov_b64 exec, -1")
    A("s_waitcnt lgkmcnt(0)")
    A.label("L_rv_wait")
    A("s_barrier")
    A("v_mov_b32 v1, 0")
    A("ds_read_b32 v3, v1")
    A("v_and_b32 v4, 7, v0")
    A("v_lshlrev_b32 v4, 5, v4")
    A("s_mov_b32 s26, 0")
    A.label("L_rv_poll")
    A("buffer_load_dword v5, v4, s[8:11], 0 offen sc1")
    A("s_add_u32 s26, s26, 1")
    A(f"s_cmp_gt_u32 s26, {TMO}")
    A(f"s_cbranch_scc1 {END}")
    A("s_waitcnt vmcnt(0) lgkmcnt(0)")
    for x in range(8): A(f"v_readlane_b32 s{32+x}, v5, {x}")
    A("s_add_u32 s15, s32, s33")
    for x in range(2, 8): A(f"s_add_u32 s15, s15, s{32+x}")
    A(f"s_cmp_lg_u32 s15, {nwg}")
    A("s_cbranch_scc1 L_rv_poll")
    A("v_readfirstlane_b32 s12, v3")
    A("s_mov_b32 s30, 0")
    A("s_mov_b32 s31, 0")
    for x in range(8):
        A(f"s_cmp_lt_u32 {x}, s14")
        A(f"s_cselect_b32 s15, s{32+x}, 0")
        A("s_add_u32 s12, s12, s15")
        A(f"s_add_u32 s16, s31, s{32+x}")
        for c in range(2):
            A(f"s_cmp_le_u32 s31, {32*c}")
            A(f"s_cselect_b32 s15, {1<<c}, 0")
            A(f"s_cmp_ge_u32 s16, {32*c+32}")
            A(f"s_cselect_b32 s15, s15, 0")
            A("s_or_b32 s30, s30, s15")
        A("s_mov_b32 s31, s16")
    A("s_barrier")

def poll_counter(A, tag, soff_reg, expected, only_wave0=True):
    if only_wave0:
        A("s_cmp_lg_u32 s13, 0")
        A(f"s_cbranch_scc1 L_pc_done_{tag}")
    A("s_mov_b32 s26, 0")
    A("v_mov_b32 v126, 0")
    A.label(f"L_pc_{tag}")
    A(f"buffer_load_dword v127, v126, s[4:7], {soff_reg} offen sc1")
    A("s_add_u32 s26, s26, 1")
    A(f"s_cmp_gt_u32 s26, {TMO}")
    A(f"s_cbranch_scc1 {END}")
    A("s_waitcnt vmcnt(0)")
    A("v_readfirstlane_b32 s27, v127")
    A(f"s_cmp_ge_u32 s27, {expected}")
    A(f"s_cbranch_scc1 L_pc_done_{tag}")
    A("s_sleep 4" if only_wave0 else "s_sleep 1")
    A(f"s_branch L_pc_{tag}")
    A.label(f"L_pc_done_{tag}")
    if only_wave0:
        A("s_barrier")
        if PROF:
            A("s_memrealtime s[76:77]")
            A("s_waitcnt lgkmcnt(0)")

def poll_counter2(A, tag, soffA, expA, soffB, expB):
    A("s_cmp_lg_u32 s13, 0")
    A(f"s_cbranch_scc1 L_pc_done_{tag}")
    A("s_mov_b32 s26, 0")
    A(f"s_sub_u32 s23, {soffB}, {soffA}")
    A("v_mov_b32 v126, 0")
    A("v_writelane_b32 v126, s23, 1")
    A.label(f"L_pc_{tag}")
    A(f"buffer_load_dword v127, v126, s[4:7], {soffA} offen sc1")
    A("s_add_u32 s26, s26, 1")
    A(f"s_cmp_gt_u32 s26, {TMO}")
    A(f"s_cbranch_scc1 {END}")
    A("s_waitcnt vmcnt(0)")
    A("v_readlane_b32 s27, v127, 0")
    A("v_readlane_b32 s23, v127, 1")
    A(f"s_cmp_ge_u32 s27, {expA}")
    A("s_cselect_b32 s27, 1, 0")
    A(f"s_cmp_ge_u32 s23, {expB}")
    A("s_cselect_b32 s23, 1, 0")
    A("s_and_b32 s27, s27, s23")
    A("s_cmp_eq_u32 s27, 1")
    A(f"s_cbranch_scc1 L_pc_done_{tag}")
    A("s_sleep 4")
    A(f"s_branch L_pc_{tag}")
    A.label(f"L_pc_done_{tag}")
    A("s_barrier")

PTR = dict(wq=84, wk=86, wv=88, wo=90, wg=92, wu=94, wd=96)
WBYTES = dict(wq=4*MB, wk=4*MB, wv=4*MB, wo=4*MB, wg=512*1792*2, wu=512*1792*2, wd=1792*512*2)

def raw_srd(A, key):
    srd(A, 8, PTR[key], WBYTES[key])

def tr_load(A, rs, nk, nt, dst, stage_sreg, VA, VB, C, post=None):
    pitch = nt * 32
    lpr = nt * 2
    rows_per = 64 // lpr
    nld = 32 // rows_per
    sh = lpr.bit_length() - 1
    A(f"v_lshrrev_b32 v2, {sh}, v14")
    A(f"s_mov_b32 s23, {rs}")
    A("v_mul_lo_u32 v2, s23, v2")
    A(f"v_and_b32 v3, {lpr-1}, v14")
    A("v_lshl_add_u32 v2, v3, 4, v2")
    A("v_lshlrev_b32 v3, 4, v14")
    A(f"v_add_u32 v3, {stage_sreg}, v3")
    A("v_lshrrev_b32 v5, 4, v14")
    A("v_bfe_u32 v6, v14, 2, 2")
    A("v_lshl_add_u32 v5, v5, 3, v6")
    A(f"v_mul_u32_u24 v5, {pitch}, v5")
    A("v_and_b32 v6, 3, v14")
    A("v_lshl_add_u32 v5, v6, 4, v5")
    A(f"v_add_u32 v5, {stage_sreg}, v5")
    chunks = [list(range(k, min(k + C, nk))) for k in range(0, nk, C)]
    def issue(ci):
        V = VA if ci % 2 == 0 else VB
        n = 0
        for kk in chunks[ci]:
            for i in range(nld):
                A(f"buffer_load_dwordx4 v[{V+4*n}:{V+4*n+3}], v2, s[8:11], s15 offen")
                A(f"s_add_u32 s15, s15, {rows_per*rs}")
                n += 1
        return n
    issue(0)
    for ci, ch in enumerate(chunks):
        V = VA if ci % 2 == 0 else VB
        nxt = issue(ci + 1) if ci + 1 < len(chunks) else 0
        A(f"s_waitcnt vmcnt({nxt})")
        for n in range(len(ch) * nld):
            A(f"ds_write_b128 v3, v[{V+4*n}:{V+4*n+3}] offset:{n*1024}")
        A("s_waitcnt lgkmcnt(0)")
        for q, kk in enumerate(ch):
            for t in range(nt):
                kind, r = dst(kk, t)
                off = q * nt * 1024 + 64 * (t >> 1) + 8 * (t & 1)
                A(f"ds_read_b64_tr_b16 {kind}[{r}:{r+1}], v5 offset:{off}")
                A(f"ds_read_b64_tr_b16 {kind}[{r+2}:{r+3}], v5 offset:{off + 4*pitch}")
        A("s_waitcnt lgkmcnt(0)")
        if post:
            for kk in ch:
                for t in range(nt): post(kk, t, dst(kk, t))
            A("s_waitcnt lgkmcnt(0)")

def gen_chain_role(A):
    MEMF = 16; ACC = 80; KX = 104; VX = 112; T = 120
    A("s_lshr_b32 s42, s12, 5")
    A("s_and_b32 s12, s12, 31")
    A(f"s_mul_i32 s43, s42, {LSTRIDE}")
    A("v_and_b32 v14, 63, v0")
    A("v_lshlrev_b32 v1, 4, v14")
    A("v_lshlrev_b32 v13, 3, v14")
    A("v_and_b32 v15, 15, v14")
    def wreg(ti, kk):
        if ti < 4: return a((ti * 16 + kk) * 4, 4)
        return v(128 + ((ti - 4) * 16 + kk) * 4, 4)
    A("s_mul_i32 s16, s13, 6144")
    A(f"s_add_u32 s16, s16, {MEML}")
    for region, key in enumerate(("wq", "wk", "wv")):
        raw_srd(A, key)
        A("s_lshl_b32 s15, s12, 8")
        A("s_lshl_b32 s14, s13, 6")
        A("s_add_u32 s15, s15, s14")
        def dst(kk, t, region=region):
            ti = region * 2 + t
            return ("a", (ti * 16 + kk) * 4) if ti < 4 else ("v", 128 + ((ti - 4) * 16 + kk) * 4)
        tr_load(A, 8192, 16, 2, dst, "s16", 16, 40, 3)
    A("s_lshl_b32 s15, s13, 15")
    A("v_add_u32 v9, s15, v1")
    raw_srd(A, "wo")
    for half in range(2):
        A("s_lshl_b32 s15, s12, 17")
        A("s_lshl_b32 s14, s13, 8")
        A("s_add_u32 s15, s15, s14")
        A(f"s_add_u32 s15, s15, {128*half}")
        def dst(kk, t): return ("v", 80 + 4 * t)
        def post(kk, t, r, half=half):
            A(f"ds_write_b128 v9, v[{r[1]}:{r[1]+3}] offset:{((half*4+t)*4+kk)*1024}")
        tr_load(A, 1024, 4, 4, dst, "s16", 16, 40, 1, post)
    A("s_barrier")
    for i in range(4): A(f"v_mov_b32 v{T+i}, 0")
    A(f"v_add_u32 v2, {ZROW}, v1")
    A(f"ds_write_b128 v2, v[{T}:{T+3}]")
    A("v_lshrrev_b32 v120, 4, v14")
    A("s_lshl_b32 s15, s13, 11")
    A("v_add_u32 v2, s15, v1")
    A("v_and_b32 v3, 3, v14")
    A(f"v_mul_u32_u24 v3, {2*MROW}, v3")
    A("v_lshrrev_b32 v4, 2, v14")
    A("v_lshl_add_u32 v3, v4, 3, v3")
    A("s_lshl_b32 s15, s13, 8")
    A(f"s_add_u32 s15, s15, {MEML}")
    A("v_add_u32 v3, s15, v3")
    A(f"v_mul_u32_u24 v4, {MROW}, v15")
    A(f"v_add_u32 v4, {MEML}, v4")
    A(f"v_mov_b32 v5, {ZROW}")
    A("v_cmp_gt_u32 vcc, 8, v15")
    A("v_cndmask_b32 v4, v5, v4, vcc")
    A("v_lshl_add_u32 v4, v120, 4, v4")
    A("s_mul_i32 s15, s13, 3072")
    A(f"s_add_u32 s15, s15, {SCL}")
    A("v_add_u32 v5, s15, v1")
    for (x, reg) in ((1, 6), (2, 122), (3, 123)):
        A(f"s_xor_b32 s15, s13, {x}")
        A("s_mul_i32 s15, s15, 3072")
        A(f"s_add_u32 s15, s15, {SCL}")
        A(f"v_add_u32 v{reg}, s15, v1")
    A("s_lshl_b32 s15, s13, 10")
    A(f"s_add_u32 s15, s15, {OL}")
    A("v_add_u32 v7, s15, v1")
    A(f"v_add_u32 v8, {OL}, v1")
    A("s_lshl_b32 s15, s13, 17")
    A("s_lshl_b32 s14, s12, 9")
    A("s_add_u32 s15, s15, s14")
    A("v_lshlrev_b32 v10, 7, v120")
    A("v_lshl_add_u32 v10, v15, 4, v10")
    A("v_add_u32 v10, s15, v10")
    A("s_lshl_b32 s15, s12, 14")
    A("s_lshl_b32 s14, s13, 7")
    A("s_add_u32 s15, s15, s14")
    A("v_lshrrev_b32 v11, 3, v14")
    A("v_lshlrev_b32 v11, 9, v11")
    A("v_and_b32 v12, 7, v14")
    A("v_lshl_add_u32 v11, v12, 4, v11")
    A("v_add_u32 v11, s15, v11")
    A("s_lshr_b32 s14, s12, 1")
    A("s_lshl_b32 s14, s14, 3")
    A("s_lshl_b32 s15, s13, 1")
    A("s_add_u32 s14, s14, s15")
    A("s_and_b32 s15, s12, 1")
    A("s_add_u32 s14, s14, s15")
    A("s_lshl_b32 s15, s14, 6")
    A("v_add_u32 v12, s15, v13")
    A(f"s_mul_i32 s16, s42, {MEMX_LAYER}")
    A(f"s_add_u32 s16, s16, {MEMX}")
    A("s_lshl_b32 s38, s42, 21")
    A(f"s_add_u32 s38, s38, {PART}")
    A("s_mov_b32 s17, s38")
    A("s_lshl_b32 s14, s12, 2")
    A("s_add_u32 s14, s14, s13")
    A("s_lshl_b32 s14, s14, 10")
    A("s_add_u32 s14, s14, s43")
    A(f"s_add_u32 s18, s14, {KF}")
    A(f"s_add_u32 s20, s14, {KM}")
    A(f"s_add_u32 s21, s14, {VM}")
    A("s_sub_u32 s14, s14, s43")
    A("s_lshl_b32 s15, s14, 1")
    A("s_add_u32 s15, s15, s43")
    A(f"s_add_u32 s19, s15, {VF}")
    A("s_lshl_b32 s39, s42, 12")
    A(f"s_add_u32 s39, s39, {CHAIN_CNT}")
    A("s_lshl_b32 s40, s42, 14")
    A(f"s_add_u32 s40, s40, {cnt_off(0, 7, 0)}")
    A("s_mov_b32 s24, 0x00ff00ff")
    A("s_mov_b32 s25, 0x00ff00ff")
    A(f"s_mov_b32 s28, {SCALE_HEX}")
    A(f"s_mov_b32 s29, {SCALE_HEX}")
    A(f"s_mov_b32 s33, {LOG2E_HEX}")
    A(f"s_mov_b32 s31, {LOG2E_HEX | 0x80000000}")
    A("s_mov_b32 s36, -1")
    A("s_mov_b32 s37, 0")
    A("v_mov_b32 v14, v122")
    A("v_mov_b32 v15, v123")
    A("v_mov_b32 v0, 0xf149f2ca")
    A("s_mov_b32 s14, 0")
    A("s_mov_b32 s48, 0")
    A("s_mov_b32 s41, s17")
    if PROF:
        for i in range(10): A(f"s_mov_b32 s{80+i}, 0")
        A("s_memtime s[44:45]")
        A("s_waitcnt lgkmcnt(0)")
        A("s_mov_b32 s47, s44")
    A("s_waitcnt vmcnt(0) lgkmcnt(0)")
    A("s_barrier")
    A("s_cmp_lg_u32 s13, 0")
    A("s_cbranch_scc1 L_ch_nosig")
    A(f"s_mov_b32 s15, {SETUP_CNT}")
    A("v_mov_b32 v120, 0")
    A("v_mov_b32 v121, 1")
    A("s_mov_b64 exec, 1")
    A("buffer_atomic_add v121, v120, s[4:7], s15 offen")
    A("s_mov_b64 exec, -1")
    A.label("L_ch_nosig")
    A("s_lshr_b32 s15, s30, s42")
    A("s_and_b32 s15, s15, 1")
    A("s_cmp_eq_u32 s15, 1")
    A("s_cbranch_scc1 L_step_loc")
    for mode in ("glb", "loc"):
        SC = " sc1" if mode == "glb" else ""
        L = lambda x: f"L_{x}_{mode}"
        def kvload():
            A(f"buffer_load_dwordx4 v[{KX}:{KX+3}], v1, s[4:7], s18 offen sc1")
            A("s_add_u32 s22, s18, 131072")
            A(f"buffer_load_dwordx4 v[{KX+4}:{KX+7}], v1, s[4:7], s22 offen sc1")
            A(f"buffer_load_dwordx4 v[{VX}:{VX+3}], v1, s[4:7], s19 offen sc1")
            A(f"buffer_load_dwordx4 v[{VX+4}:{VX+7}], v1, s[4:7], s19 offen offset:1024 sc1")
        A.label(L("step"))
        A("s_cmp_eq_u32 s48, 1")
        A(f"s_cbranch_scc1 {L('kvok')}")
        A("s_lshr_b32 s15, s14, 1")
        A("s_lshl_b32 s15, s15, 6")
        A("s_add_u32 s15, s15, s40")
        poll_counter(A, "kv_" + mode, "s15", 32, only_wave0=False)
        kvload()
        A.label(L("kvok"))
        A("s_add_u32 s15, s14, 1")
        A("s_lshr_b32 s15, s15, 1")
        A("s_min_u32 s15, s15, 31")
        A("s_lshl_b32 s15, s15, 6")
        A("s_add_u32 s15, s15, s40")
        A(f"v_mov_b32 v{ACC+1}, 0")
        A(f"buffer_load_dword v{ACC+2}, v{ACC+1}, s[4:7], s15 offen sc1")
        A("s_mov_b32 s26, 0")
        A.label(L("poll_mem"))
        A(f"buffer_load_dwordx4 v[{T}:{T+3}], v2, s[4:7], s16 offen sc1")
        A(f"buffer_load_dwordx4 v[{T+4}:{T+7}], v2, s[4:7], s16 offen offset:1024 sc1")
        A("s_add_u32 s26, s26, 1")
        A(f"s_cmp_gt_u32 s26, {TMO}")
        A(f"s_cbranch_scc1 {END}")
        A("s_waitcnt vmcnt(0)")
        A(f"v_max3_u32 v{ACC}, v{T}, v{T+1}, v{T+2}")
        A(f"v_max3_u32 v{ACC}, v{ACC}, v{T+3}, v{T+4}")
        A(f"v_max3_u32 v{ACC}, v{ACC}, v{T+5}, v{T+6}")
        A(f"v_max_u32 v{ACC}, v{ACC}, v{T+7}")
        A(f"v_cmp_eq_u32 vcc, -1, v{ACC}")
        A("s_nop 4")
        A(f"s_cbranch_vccnz {L('poll_mem')}")
        stamp(A, 0)
        if PROF:
            A("s_memrealtime s[44:45]")
            A("s_waitcnt lgkmcnt(0)")
            A(f"v_mov_b32 v{ACC+3}, s44")
            A("s_lshl_b32 s15, s42, 6")
            A("s_add_u32 s15, s15, s14")
            A("s_lshl_b32 s15, s15, 7")
            A("s_lshl_b32 s46, s12, 2")
            A("s_add_u32 s15, s15, s46")
            A(f"s_add_u32 s15, s15, {PROFB + 3*MB}")
            A(f"buffer_store_dword v{ACC+3}, v{ACC+1}, s[4:7], s15 offen")
        A(f"v_readfirstlane_b32 s49, v{ACC+2}")
        A(f"ds_write_b64 v3, v[{T}:{T+1}]")
        A(f"ds_write_b64 v3, v[{T+2}:{T+3}] offset:{MROW}")
        A(f"ds_write_b64 v3, v[{T+4}:{T+5}] offset:128")
        A(f"ds_write_b64 v3, v[{T+6}:{T+7}] offset:{MROW+128}")
        A("s_waitcnt lgkmcnt(0)")
        A("s_barrier")
        for kk in range(16):
            A(f"ds_read_b128 v[{MEMF+4*kk}:{MEMF+4*kk+3}], v4 offset:{kk*64}")
        def qkv_mfma(ti, kk):
            acc = v(ACC + 4 * ti, 4); m = v(MEMF + 4 * kk, 4); w = wreg(ti, kk)
            c = "0" if kk == 0 else acc
            if ti < 4: return f"v_mfma_f32_16x16x32_bf16 {acc}, {w}, {m}, {c}"
            else:      return f"v_mfma_f32_16x16x32_bf16 {acc}, {m}, {w}, {c}"
        for kk in range(16):
            A(f"s_waitcnt lgkmcnt({15-kk})")
            for ti in range(4): A(qkv_mfma(ti, kk))
            if kk == 3:
                A("s_cmp_eq_u32 s14, 0")
                A(f"s_cbranch_scc1 {L('nodefer')}")
                for i in range(4): A(f"v_mov_b32 v{T+i}, -1")
                A(f"v_mov_b32 v{T+4}, 1")
                A(f"v_mov_b32 v{T+5}, 0")
                for i in range(4):
                    A(f"s_add_u32 s22, s41, {i*4096}")
                    A(f"buffer_store_dwordx4 v[{T}:{T+3}], v11, s[4:7], s22 offen{SC}")
                A("s_mov_b64 exec, 1")
                A(f"buffer_atomic_add v{T+4}, v{T+5}, s[4:7], s39 offen")
                A("s_mov_b64 exec, -1")
                A("s_add_u32 s39, s39, 64")
                A.label(L("nodefer"))
        vm = [qkv_mfma(ti, kk) for kk in range(16) for ti in (4, 5)]
        stamp(A, 1)
        QP = 120; KP = 124; S = 80
        A(vm[0]); A(vm[1]); A(vm[2]); A(vm[3])
        for i, dst in enumerate((QP, KP)):
            for half in range(2):
                b = ACC + 8 * i + 4 * half
                A(f"v_cvt_pk_bf16_f32 v{dst+2*half}, v{b}, v{b+1}")
                A(f"v_cvt_pk_bf16_f32 v{dst+2*half+1}, v{b+2}, v{b+3}")
        A(f"v_mfma_f32_16x16x32_bf16 v[{S}:{S+3}], v[{KP}:{KP+3}], v[{QP}:{QP+3}], 0")
        A(f"v_mfma_f32_16x16x32_bf16 v[{S+4}:{S+7}], v[{KX}:{KX+3}], v[{QP}:{QP+3}], 0")
        A(f"v_mfma_f32_16x16x32_bf16 v[{S+8}:{S+11}], v[{KX+4}:{KX+7}], v[{QP}:{QP+3}], 0")
        A(f"buffer_store_dwordx4 v[{KP}:{KP+3}], v1, s[4:7], s20 offen sc1")
        for i in range(4, 8): A(vm[i])
        for i in range(3):
            A(f"ds_write_b128 v5, v[{S+4*i}:{S+4*i+3}] offset:{i*1024}")
        for i in range(8, 16): A(vm[i])
        A("s_waitcnt lgkmcnt(0)")
        A("s_barrier")
        stamp(A, 2)
        R1 = 16; R2 = 28; R3r = [40, 44, 92]
        for i in range(3): A(f"ds_read_b128 v[{R1+4*i}:{R1+4*i+3}], v6 offset:{i*1024}")
        for i in range(3): A(f"ds_read_b128 v[{R2+4*i}:{R2+4*i+3}], v14 offset:{i*1024}")
        for i in range(3): A(f"ds_read_b128 v[{R3r[i]}:{R3r[i]+3}], v15 offset:{i*1024}")
        for i in range(16, 22): A(vm[i])
        va = []
        va.append("s_waitcnt lgkmcnt(6)")
        for i in range(0, 12, 2): va.append(f"v_pk_add_f32 v[{S+i}:{S+i+1}], v[{S+i}:{S+i+1}], v[{R1+i}:{R1+i+1}]")
        va.append("s_waitcnt lgkmcnt(0)")
        for i in range(0, 12, 2):
            r3 = R3r[i // 4] + (i % 4)
            va.append(f"v_pk_add_f32 v[{R2+i}:{R2+i+1}], v[{R2+i}:{R2+i+1}], v[{r3}:{r3+1}]")
        for i in range(0, 12, 2): va.append(f"v_pk_add_f32 v[{S+i}:{S+i+1}], v[{S+i}:{S+i+1}], v[{R2+i}:{R2+i+1}]")
        TT = 16
        for i in range(0, 12, 2): va.append(f"v_cvt_pk_bf16_f32 v{TT+i//2}, v{S+i}, v{S+i+1}")
        for i in range(0, 12, 2):
            va.append(f"v_lshlrev_b32 v{S+i}, 16, v{TT+i//2}")
            va.append(f"v_and_b32 v{S+i+1}, 0xffff0000, v{TT+i//2}")
        for i in range(0, 12, 2): va.append(f"v_pk_mul_f32 v[{S+i}:{S+i+1}], v[{S+i}:{S+i+1}], s[28:29]")
        for i in range(0, 12, 2): va.append(f"v_cvt_pk_bf16_f32 v{TT+i//2}, v{S+i}, v{S+i+1}")
        for i in range(0, 12, 2):
            va.append(f"v_lshlrev_b32 v{S+i}, 16, v{TT+i//2}")
            va.append(f"v_and_b32 v{S+i+1}, 0xffff0000, v{TT+i//2}")
        for i in range(4): va.append(f"v_cndmask_b32 v{S+i}, v0, v{S+i}, s[36:37]")
        MX = 22; MT = 23
        va.append(f"v_max3_f32 v{MX}, v{S}, v{S+1}, v{S+2}")
        va.append(f"v_max3_f32 v{MT}, v{S+3}, v{S+4}, v{S+5}")
        va.append(f"v_max3_f32 v{MX}, v{MX}, v{S+6}, v{S+7}")
        va.append(f"v_max3_f32 v{MT}, v{MT}, v{S+8}, v{S+9}")
        va.append(f"v_max3_f32 v{MX}, v{MX}, v{S+10}, v{S+11}")
        va.append(f"v_max_f32 v{MX}, v{MX}, v{MT}")
        rest = vm[22:]
        k = 0
        for idx, ins in enumerate(va):
            A(ins)
            if idx % 3 == 2 and k < len(rest):
                A(rest[k]); k += 1
        while k < len(rest): A(rest[k]); k += 1
        xlane(A, MX, MT, ("p16", "p32"), "v_max_f32")
        A(f"v_mul_f32 v{MX}, s31, v{MX}")
        for i in range(12): A(f"v_fma_f32 v{S+i}, v{S+i}, s33, v{MX}")
        WOF = 32; VP = 24
        for half in range(2):
            b = ACC + 16 + 4 * half
            A(f"v_cvt_pk_bf16_f32 v{VP+2*half}, v{b}, v{b+1}")
            A(f"v_cvt_pk_bf16_f32 v{VP+2*half+1}, v{b+2}, v{b+3}")
        for i in range(12): A(f"v_exp_f32 v{S+i}, v{S+i}")
        for t in range(3):
            for j in range(4):
                A(f"ds_read_b128 v[{WOF+16*t+4*j}:{WOF+16*t+4*j+3}], v9 offset:{(t*4+j)*1024}")
        A(f"buffer_store_dwordx2 v[{VP}:{VP+1}], v13, s[4:7], s21 offen sc1")
        A(f"buffer_store_dwordx2 v[{VP+2}:{VP+3}], v13, s[4:7], s21 offen offset:512 sc1")
        for i in range(0, 12, 4):
            A(f"v_pk_add_f32 v[{TT+i//2}:{TT+i//2+1}], v[{S+i}:{S+i+1}], v[{S+i+2}:{S+i+3}]")
        A(f"v_pk_add_f32 v[{TT}:{TT+1}], v[{TT}:{TT+1}], v[{TT+2}:{TT+3}]")
        A(f"v_pk_add_f32 v[{TT}:{TT+1}], v[{TT}:{TT+1}], v[{TT+4}:{TT+5}]")
        A(f"v_add_f32 v{MX}, v{TT}, v{TT+1}")
        xlane(A, MX, MT, ("p16", "p32"))
        A(f"v_rcp_f32 v{MX}, v{MX}")
        A(f"v_mov_b32 v{MT}, v{MX}")
        for i in range(0, 12, 2): A(f"v_pk_mul_f32 v[{S+i}:{S+i+1}], v[{S+i}:{S+i+1}], v[{MX}:{MX+1}]")
        PM = 16; PT = 18
        A(f"v_cvt_pk_bf16_f32 v{PM}, v{S}, v{S+1}")
        A(f"v_cvt_pk_bf16_f32 v{PM+1}, v{S+2}, v{S+3}")
        for i in range(4): A(f"v_cvt_pk_bf16_f32 v{PT+i}, v{S+4+2*i}, v{S+5+2*i}")
        O = 96
        for t in range(2):
            A(f"v_mfma_f32_16x16x32_bf16 v[{O+4*t}:{O+4*t+3}], v[{VX+4*t}:{VX+4*t+3}], v[{PT}:{PT+3}], 0")
        for t in range(2):
            A(f"v_mfma_f32_16x16x16_bf16 v[{O+4*t}:{O+4*t+3}], v[{VP+2*t}:{VP+2*t+1}], v[{PM}:{PM+1}], v[{O+4*t}:{O+4*t+3}]")
        for j in range(4):
            A(f"ds_read_b128 v[{80+4*j}:{83+4*j}], v9 offset:{(3*4+j)*1024}")
        A("s_add_u32 s18, s18, 262144")
        A("s_add_u32 s19, s19, 262144")
        A("s_mov_b32 s48, 0")
        A("s_cmp_lt_u32 s49, 32")
        A(f"s_cbranch_scc1 {L('nopref')}")
        A("s_cmp_ge_u32 s14, 63")
        A(f"s_cbranch_scc1 {L('nopref')}")
        A("s_mov_b32 s48, 1")
        A("s_nop 4")
        kvload()
        A.label(L("nopref"))
        OP = 120
        for t in range(2):
            A(f"v_cvt_pk_bf16_f32 v{OP+2*t}, v{O+4*t}, v{O+4*t+1}")
            A(f"v_cvt_pk_bf16_f32 v{OP+2*t+1}, v{O+4*t+2}, v{O+4*t+3}")
        A(f"ds_write_b128 v7, v[{OP}:{OP+3}]")
        A("s_waitcnt lgkmcnt(0)")
        A("s_barrier")
        stamp(A, 3)
        OFR = 16
        for j in range(4):
            A(f"ds_read_b128 v[{OFR+4*j}:{OFR+4*j+3}], v8 offset:{j*1024}")
        wof = lambda t, j: (WOF + 16 * t + 4 * j) if t < 3 else (80 + 4 * j)
        RES = [96, 100, 120, 124]
        def store_part(t, reg):
            A(f"s_add_u32 s22, s17, {t*16384}")
            A(f"buffer_store_dwordx4 v[{reg}:{reg+3}], v10, s[4:7], s22 offen{SC}")
        for j in range(4):
            A(f"s_waitcnt lgkmcnt({3-j + 4*j})")
            for t in range(4):
                acc = v(RES[t], 4)
                A(f"v_mfma_f32_16x16x32_bf16 {acc}, v[{wof(t,j)}:{wof(t,j)+3}], v[{OFR+4*j}:{OFR+4*j+3}], {'0' if j==0 else acc}")
            for t in range(4):
                A(f"ds_read_b128 v[{wof(t,j)}:{wof(t,j)+3}], v9 offset:{((t+4)*4+j)*1024}")
        A("s_mov_b64 exec, s[24:25]")
        for t in range(4): store_part(t, RES[t])
        A("s_mov_b64 exec, -1")
        for j in range(4):
            A(f"s_waitcnt lgkmcnt({12-4*j})")
            for t in range(4):
                acc = v(RES[t], 4)
                A(f"v_mfma_f32_16x16x32_bf16 {acc}, v[{wof(t,j)}:{wof(t,j)+3}], v[{OFR+4*j}:{OFR+4*j+3}], {'0' if j==0 else acc}")
        A("s_mov_b64 exec, s[24:25]")
        for t in range(4): store_part(4 + t, RES[t])
        A("s_mov_b64 exec, -1")
        stamp(A, 4)
        P = 40
        A("s_mov_b32 s26, 0")
        A.label(L("poll_part"))
        for i in range(4):
            A(f"s_add_u32 s22, s17, {i*4096}")
            A(f"buffer_load_dwordx4 v[{P+4*i}:{P+4*i+3}], v11, s[4:7], s22 offen sc1")
        A("s_add_u32 s26, s26, 1")
        A(f"s_cmp_gt_u32 s26, {TMO}")
        A(f"s_cbranch_scc1 {END}")
        A("s_waitcnt vmcnt(0)")
        A(f"v_max3_u32 v{P+16}, v{P}, v{P+1}, v{P+2}")
        for i in range(3, 15, 2): A(f"v_max3_u32 v{P+16}, v{P+16}, v{P+i}, v{P+i+1}")
        A(f"v_max_u32 v{P+16}, v{P+16}, v{P+15}")
        A(f"v_cmp_eq_u32 vcc, -1, v{P+16}")
        A("s_nop 4")
        A(f"s_cbranch_vccnz {L('poll_part')}")
        stamp(A, 5)
        for c in range(4):
            A(f"v_add_f32 v{P+c}, v{P+c}, v{P+4+c}")
            A(f"v_add_f32 v{P+8+c}, v{P+8+c}, v{P+12+c}")
        for c in range(4): A(f"v_add_f32 v{P+c}, v{P+c}, v{P+8+c}")
        for c in range(4): xlane(A, P + c, P + 16 + c)
        A(f"v_cvt_pk_bf16_f32 v{P+20}, v{P}, v{P+1}")
        A(f"v_cvt_pk_bf16_f32 v{P+21}, v{P+2}, v{P+3}")
        A(f"v_min_u32 v{P+20}, -2, v{P+20}")
        A(f"v_min_u32 v{P+21}, -2, v{P+21}")
        A("s_add_u32 s16, s16, 8192")
        A("s_mov_b64 exec, 0xff")
        A(f"buffer_store_dwordx2 v[{P+20}:{P+21}], v12, s[4:7], s16 offen{SC}")
        A("s_mov_b64 exec, -1")
        A("s_mov_b32 s41, s17")
        A("s_add_u32 s14, s14, 1")
        A("s_and_b32 s15, s14, 3")
        A("s_lshl_b32 s15, s15, 19")
        A("s_add_u32 s17, s38, s15")
        A("s_add_u32 s20, s20, 131072")
        A("s_add_u32 s21, s21, 131072")
        stamp(A, 6)
        A("s_cmp_lt_u32 s14, 64")
        A(f"s_cbranch_scc1 {L('step')}")
        A(f"v_mov_b32 v{T+4}, 1")
        A(f"v_mov_b32 v{T+5}, 0")
        A("s_mov_b64 exec, 1")
        A(f"buffer_atomic_add v{T+4}, v{T+5}, s[4:7], s39 offen")
        A("s_mov_b64 exec, -1")
        if PROF:
            A("s_lshl_b32 s15, s12, 2")
            A("s_add_u32 s15, s15, s13")
            A("s_lshl_b32 s15, s15, 6")
            A("s_lshl_b32 s16, s42, 16")
            A("s_add_u32 s15, s15, s16")
            A(f"s_add_u32 s15, s15, {PROFB}")
            A("v_mov_b32 v1, 0")
            for i in range(8):
                A(f"v_mov_b32 v2, s{80+i}")
                A(f"buffer_store_dword v2, v1, s[4:7], s15 offen offset:{4*i}")
                A("s_nop 1")
            A("v_mov_b32 v2, s30")
            A(f"buffer_store_dword v2, v1, s[4:7], s15 offen offset:32")
        A("s_endpgm")

def cnt_addr(A, dst, stage, layer_reg="s42"):
    A(f"s_lshl_b32 s{dst}, {layer_reg}, 8")
    A(f"s_add_u32 s{dst}, s{dst}, s40")
    A(f"s_lshl_b32 s{dst}, s{dst}, 6")
    A(f"s_add_u32 s{dst}, s{dst}, {cnt_off(0, stage, 0)}")

def signal(A, stage):
    A("s_waitcnt vmcnt(0) lgkmcnt(0)")
    A("s_barrier")
    A("s_cmp_lg_u32 s13, 0")
    A("s_cbranch_scc1 L_wloop")
    if PROF:
        A("s_memrealtime s[78:79]")
        A("s_waitcnt lgkmcnt(0)")
        A("v_mov_b32 v120, s72")
        A("v_mov_b32 v121, s74")
        A("v_mov_b32 v122, s76")
        A("v_mov_b32 v123, s78")
        A("v_mov_b32 v126, 0")
        A("s_mov_b64 exec, 1")
        A("buffer_store_dwordx4 v[120:123], v126, s[4:7], s69 offen")
        A("s_mov_b64 exec, -1")
        A("s_add_u32 s69, s69, 16")
    cnt_addr(A, 22, stage)
    A("v_mov_b32 v126, 0")
    A("v_mov_b32 v127, 1")
    A("s_mov_b64 exec, 1")
    A("buffer_atomic_add v127, v126, s[4:7], s22 offen")
    A("s_mov_b64 exec, -1")
    A("s_branch L_wloop")

def flush_pending(A, tag):
    A("s_cmp_eq_u32 s68, 0")
    A(f"s_cbranch_scc1 L_fp_done_{tag}")
    A("s_barrier")
    A("s_cmp_lg_u32 s13, 0")
    A(f"s_cbranch_scc1 L_fp_skip_{tag}")
    A("v_mov_b32 v124, 0")
    A("v_mov_b32 v125, 1")
    A("s_mov_b64 exec, 1")
    A("buffer_atomic_add v125, v124, s[4:7], s68 offen")
    A("s_mov_b64 exec, -1")
    A.label(f"L_fp_skip_{tag}")
    A("s_mov_b32 s68, 0")
    A.label(f"L_fp_done_{tag}")

def stage_ln(A, which):
    tag = f"ln{which}"
    if which == 0:
        A("s_cmp_eq_u32 s42, 0")
        A(f"s_cbranch_scc1 L_{tag}_nodep")
        A("s_mov_b32 s23, 0")
        cnt_addr(A, 22, 6, "s23")
        poll_counter(A, tag, "s22", 32)
        A.label(f"L_{tag}_nodep")
    else:
        cnt_addr(A, 22, 3)
        poll_counter(A, tag, "s22", 32)
    A("s_lshl_b32 s23, s42, 1")
    A(f"s_add_u32 s23, s23, {which}")
    A("s_lshl_b32 s23, s23, 21")
    A(f"s_add_u32 s19, s23, {XR}")
    A(f"s_add_u32 s18, s23, {XFA}")
    A("v_lshrrev_b32 v1, 4, v0")
    A("s_lshl_b32 s3, s40, 6")
    A("s_lshl_b32 s15, s41, 5")
    A("s_add_u32 s3, s3, s15")
    A("v_add_u32 v1, s3, v1")
    A("v_and_b32 v2, 15, v0")
    A("v_lshlrev_b32 v3, 10, v1")
    A("v_lshl_add_u32 v3, v2, 4, v3")
    for q in range(4):
        A(f"buffer_load_dwordx4 v[{16+4*q}:{19+4*q}], v3, s[4:7], s19 offen offset:{q*256} sc1")
    A("s_add_u32 s19, s19, 16384")
    for q in range(4):
        A(f"buffer_load_dwordx4 v[{64+4*q}:{67+4*q}], v3, s[4:7], s19 offen offset:{q*256} sc1")
    A("v_bfe_u32 v4, v1, 3, 2")
    A("v_and_b32 v5, 3, v1")
    A("v_lshl_add_u32 v4, v4, 2, v5")
    A("v_and_b32 v5, 3, v2")
    A("v_lshl_add_u32 v4, v5, 4, v4")
    A("v_lshlrev_b32 v4, 4, v4")
    A("v_bfe_u32 v5, v1, 2, 1")
    A("v_bfe_u32 v6, v1, 5, 1")
    A("v_lshl_add_u32 v5, v6, 1, v5")
    A("v_lshl_add_u32 v4, v5, 10, v4")
    A("v_lshrrev_b32 v5, 6, v1")
    A("v_lshrrev_b32 v6, 2, v2")
    A("v_lshl_add_u32 v5, v5, 4, v6")
    A("v_lshl_add_u32 v4, v5, 12, v4")
    for it in range(2):
        A(f"s_waitcnt vmcnt({4 if it == 0 else 4})")
        if it == 1:
            for i in range(16): A(f"v_mov_b32 v{16+i}, v{64+i}")
        ln_math(A)
        for q in range(4):
            A(f"s_add_u32 s20, s18, {q*4*4096 + it*128}")
            A(f"buffer_store_dwordx4 v[{16+4*q}:{19+4*q}], v4, s[4:7], s20 offen sc1")
    signal(A, 0 if which == 0 else 4)

XB = 8; WB = 40; TMPX = 104; ACCW = 168

def ta_prologue(A, tag, which, dep_stage, preload):
    A("v_and_b32 v4, 63, v0")
    A("v_lshlrev_b32 v4, 4, v4")
    A("s_bitcmp0_b32 s72, 16")
    A(f"s_cbranch_scc1 L_{tag}_nopre")
    A(f"s_mov_b32 s22, {SETUP_CNT}")
    poll_counter(A, tag + "_su", "s22", 64)
    preload(A)
    A.label(f"L_{tag}_nopre")
    cnt_addr(A, 22, dep_stage)
    poll_counter(A, tag, "s22", 2)
    A("v_lshlrev_b32 v1, 4, v0")
    A("s_lshl_b32 s23, s42, 1")
    A(f"s_add_u32 s23, s23, {which}")
    A("s_lshl_b32 s23, s23, 21")
    A("s_lshl_b32 s19, s40, 16")
    A("s_add_u32 s19, s19, s23")
    A(f"s_add_u32 s19, s19, {XFA}")
    for i in range(16):
        A(f"buffer_load_dwordx4 v[{TMPX+4*i}:{TMPX+4*i+3}], v1, s[4:7], s19 offen sc1")
        if i < 15: A("s_add_u32 s19, s19, 4096")
    for i in range(16):
        A(f"s_waitcnt vmcnt({15-i})")
        A(f"ds_write_b128 v1, v[{TMPX+4*i}:{TMPX+4*i+3}] offset:{i*4096}")
    A("v_mov_b32 v5, v4")
    A("s_waitcnt lgkmcnt(0)")
    A("s_barrier")

def ta_xread(A, buf, koff):
    for mt in range(4):
        A(f"ds_read_b128 v[{XB+16*buf+4*mt}:{XB+16*buf+4*mt+3}], v5 offset:{koff*4096+mt*1024}")

def ta_kloop(A, vtype):
    NB = 3
    ta_xread(A, 0, 0); ta_xread(A, 1, 1)
    for kk in range(16):
        if kk + 2 < 16: ta_xread(A, (kk + 2) % NB, kk + 2)
        lg = min(8, 4 * (15 - kk))
        A(f"s_waitcnt lgkmcnt({lg})")
        for ct in range(4):
            for mt in range(4):
                w = a((kk * 4 + ct) * 4, 4); x = v(XB + 16 * (kk % NB) + 4 * mt, 4)
                acc = v(ACCW + (ct * 4 + mt) * 4, 4)
                c = "0" if kk == 0 else acc
                if vtype: A(f"v_mfma_f32_16x16x32_bf16 {acc}, {x}, {w}, {c}")
                else:     A(f"v_mfma_f32_16x16x32_bf16 {acc}, {w}, {x}, {c}")

def preload_qkv(A):
    A("v_and_b32 v14, 63, v0")
    A(f"s_mov_b32 s8, s{PTR['wq']}")
    A(f"s_mov_b32 s9, s{PTR['wq']+1}")
    A("s_cmp_eq_u32 s18, 1")
    A(f"s_cselect_b32 s8, s{PTR['wk']}, s8")
    A(f"s_cselect_b32 s9, s{PTR['wk']+1}, s9")
    A("s_cmp_eq_u32 s18, 2")
    A(f"s_cselect_b32 s8, s{PTR['wv']}, s8")
    A(f"s_cselect_b32 s9, s{PTR['wv']+1}, s9")
    A("s_and_b32 s9, s9, 0xffff")
    A(f"s_mov_b32 s10, {4*MB}")
    A("s_mov_b32 s11, 0x00020000")
    A("s_lshl_b32 s15, s16, 7")
    A("s_lshl_b32 s24, s13, 14")
    tr_load(A, 8192, 16, 4, lambda kk, t: ("a", (kk * 4 + t) * 4), "s24", 16, 80, 4)
    A("s_barrier")

def preload_gu(A):
    A("v_and_b32 v14, 63, v0")
    A("s_lshl_b32 s24, s13, 14")
    for gu, key in enumerate(("wg", "wu")):
        raw_srd(A, key)
        A("s_lshl_b32 s15, s16, 6")
        tr_load(A, 3584, 16, 2, lambda kk, t, gu=gu: ("a", (kk * 4 + 2 * gu + t) * 4), "s24", 16, 80, 8)
    A("s_barrier")

def stage_q(A):
    A("s_and_b32 s16, s41, 15")
    A("s_lshl_b32 s16, s16, 2")
    A("s_add_u32 s16, s16, s13")
    A("s_lshr_b32 s17, s41, 4")
    A("s_add_u32 s18, s17, 1")
    A("s_cmp_eq_u32 s17, 2")
    A("s_cselect_b32 s18, 0, s18")
    A("s_mul_i32 s15, s16, 3")
    A("s_add_u32 s15, s15, s18")
    A("s_lshl_b32 s15, s15, 16")
    A(f"s_add_u32 s15, s15, {WQKV_F}")
    ta_prologue(A, "q", 0, 0, preload_qkv)
    A("s_cmp_eq_u32 s17, 1")
    A("s_cbranch_scc1 L_q_v")
    ta_kloop(A, False)
    A("s_lshl_b32 s19, s40, 7")
    A("s_lshr_b32 s20, s16, 1")
    A("s_add_u32 s19, s19, s20")
    A("s_lshl_b32 s19, s19, 2")
    A("s_and_b32 s20, s16, 1")
    A("s_lshl_b32 s20, s20, 1")
    A("s_add_u32 s19, s19, s20")
    A("s_lshl_b32 s19, s19, 10")
    A("s_add_u32 s19, s19, s43")
    A(f"s_mov_b32 s20, {KF}")
    A("s_cmp_eq_u32 s17, 2")
    A(f"s_cselect_b32 s20, {QF}, s20")
    A("s_add_u32 s19, s19, s20")
    for mt in range(4):
        for cp in range(2):
            pk = TMPX + 4 * (mt * 2 + cp)
            for half in range(2):
                b = ACCW + ((2 * cp + half) * 4 + mt) * 4
                A(f"v_cvt_pk_bf16_f32 v{pk+2*half}, v{b}, v{b+1}")
                A(f"v_cvt_pk_bf16_f32 v{pk+2*half+1}, v{b+2}, v{b+3}")
            A(f"buffer_store_dwordx4 v[{pk}:{pk+3}], v4, s[4:7], s19 offen offset:{cp*1024} sc1")
        if mt < 3: A("s_add_u32 s19, s19, 131072")
    A("s_cmp_eq_u32 s17, 2")
    A("s_cbranch_scc1 L_q_sigq")
    signal(A, 7)
    A.label("L_q_sigq")
    signal(A, 1)
    A.label("L_q_v")
    ta_kloop(A, True)
    A("s_lshl_b32 s19, s40, 6")
    A("s_lshr_b32 s20, s16, 1")
    A("s_add_u32 s19, s19, s20")
    A("s_lshl_b32 s19, s19, 3")
    A("s_and_b32 s20, s16, 1")
    A("s_lshl_b32 s20, s20, 2")
    A("s_add_u32 s19, s19, s20")
    A("s_lshl_b32 s19, s19, 10")
    A("s_add_u32 s19, s19, s43")
    A(f"s_add_u32 s19, s19, {VF}")
    for sg in range(2):
        for ct in range(4):
            pk = TMPX + 4 * (sg * 4 + ct)
            for half in range(2):
                b = ACCW + (ct * 4 + 2 * sg + half) * 4
                A(f"v_cvt_pk_bf16_f32 v{pk+2*half}, v{b}, v{b+1}")
                A(f"v_cvt_pk_bf16_f32 v{pk+2*half+1}, v{b+2}, v{b+3}")
            A(f"buffer_store_dwordx4 v[{pk}:{pk+3}], v4, s[4:7], s19 offen offset:{ct*1024} sc1")
        if sg < 1: A("s_add_u32 s19, s19, 262144")
    signal(A, 7)

def stage_q1stream(A):
    PKR = 56
    A("s_and_b32 s16, s41, 15")
    A("s_lshl_b32 s16, s16, 2")
    A("s_add_u32 s16, s16, s13")
    A("s_lshr_b32 s17, s41, 4")
    A("s_add_u32 s18, s17, 1")
    A("s_cmp_eq_u32 s17, 2")
    A("s_cselect_b32 s18, 0, s18")
    A("s_mul_i32 s15, s16, 3")
    A("s_add_u32 s15, s15, s18")
    A("s_lshl_b32 s15, s15, 16")
    A(f"s_add_u32 s15, s15, {WQKV_F}")
    A("v_and_b32 v4, 63, v0")
    A("v_lshlrev_b32 v4, 4, v4")
    A("v_lshlrev_b32 v1, 4, v0")
    A(f"s_mov_b32 s19, {XFA}")
    def xloads():
        for i in range(16):
            A(f"buffer_load_dwordx4 v[{TMPX+4*i}:{TMPX+4*i+3}], v1, s[4:7], s19 offen sc1")
            A("s_add_u32 s19, s19, 4096")
    preload_qkv(A)
    xloads()
    A("s_lshr_b32 s20, s16, 1")
    A("s_and_b32 s21, s16, 1")
    A("s_cmp_eq_u32 s17, 1")
    A("s_cbranch_scc1 L_q1_vaddr")
    A("s_lshl_b32 s20, s20, 2")
    A("s_lshl_b32 s21, s21, 1")
    A("s_add_u32 s20, s20, s21")
    A("s_lshl_b32 s20, s20, 10")
    A(f"s_mov_b32 s21, {KF}")
    A("s_cmp_eq_u32 s17, 2")
    A(f"s_cselect_b32 s21, {QF}, s21")
    A("s_add_u32 s20, s20, s21")
    A("s_branch L_q1_addr_done")
    A.label("L_q1_vaddr")
    A("s_lshl_b32 s20, s20, 3")
    A("s_lshl_b32 s21, s21, 2")
    A("s_add_u32 s20, s20, s21")
    A("s_lshl_b32 s20, s20, 10")
    A(f"s_add_u32 s20, s20, {VF}")
    A.label("L_q1_addr_done")
    A(f"s_mov_b32 s21, {cnt_off(0, 7, 0)}")
    A("s_cmp_eq_u32 s17, 2")
    A(f"s_cselect_b32 s21, {cnt_off(0, 1, 0)}, s21")
    A("s_mov_b32 s40, 0")
    A("v_mov_b32 v2, v1")
    A("v_mov_b32 v5, v4")
    A("s_waitcnt vmcnt(0)")
    for i in range(16):
        A(f"ds_write_b128 v2, v[{TMPX+4*i}:{TMPX+4*i+3}] offset:{i*4096}")
    A("s_waitcnt lgkmcnt(0)")
    xloads()
    A("s_barrier")
    A("s_cmp_eq_u32 s17, 1")
    A("s_cbranch_scc1 L_q1_loop_v")
    for vtype in (False, True):
        tg = "v" if vtype else "qk"
        A.label(f"L_q1_loop_{tg}")
        ta_kloop(A, vtype)
        A("s_waitcnt vmcnt(0)")
        A("v_xor_b32 v2, 0x10000, v2")
        A("v_xor_b32 v5, 0x10000, v5")
        for i in range(16):
            A(f"ds_write_b128 v2, v[{TMPX+4*i}:{TMPX+4*i+3}] offset:{i*4096}")
        A("s_waitcnt lgkmcnt(0)")
        A("s_barrier")
        A("s_cmp_le_u32 s40, 1")
        A(f"s_cbranch_scc1 L_q1_nosig_{tg}")
        A("s_cmp_lg_u32 s13, 0")
        A(f"s_cbranch_scc1 L_q1_nosig2_{tg}")
        A("v_mov_b32 v6, 0")
        A("v_mov_b32 v7, 1")
        A("s_mov_b64 exec, 1")
        A("buffer_atomic_add v7, v6, s[4:7], s21 offen")
        A("s_mov_b64 exec, -1")
        A.label(f"L_q1_nosig2_{tg}")
        A("s_add_u32 s21, s21, 64")
        A.label(f"L_q1_nosig_{tg}")
        A("s_cmp_ge_u32 s40, 30")
        A(f"s_cbranch_scc1 L_q1_nold_{tg}")
        xloads()
        A.label(f"L_q1_nold_{tg}")
        A("s_mov_b32 s22, s20")
        if not vtype:
            for mt in range(4):
                for cp in range(2):
                    pk = PKR + 4 * (mt * 2 + cp)
                    for half in range(2):
                        b = ACCW + ((2 * cp + half) * 4 + mt) * 4
                        A(f"v_cvt_pk_bf16_f32 v{pk+2*half}, v{b}, v{b+1}")
                        A(f"v_cvt_pk_bf16_f32 v{pk+2*half+1}, v{b+2}, v{b+3}")
                    A(f"buffer_store_dwordx4 v[{pk}:{pk+3}], v4, s[4:7], s22 offen offset:{cp*1024} sc1")
                if mt < 3: A("s_add_u32 s22, s22, 131072")
        else:
            for sg in range(2):
                for ct in range(4):
                    pk = PKR + 4 * (sg * 4 + ct)
                    for half in range(2):
                        b = ACCW + (ct * 4 + 2 * sg + half) * 4
                        A(f"v_cvt_pk_bf16_f32 v{pk+2*half}, v{b}, v{b+1}")
                        A(f"v_cvt_pk_bf16_f32 v{pk+2*half+1}, v{b+2}, v{b+3}")
                    A(f"buffer_store_dwordx4 v[{pk}:{pk+3}], v4, s[4:7], s22 offen offset:{ct*1024} sc1")
                if sg < 1: A("s_add_u32 s22, s22, 262144")
        A("s_cmp_lg_u32 s40, 0")
        A(f"s_cbranch_scc1 L_q1_noearly_{tg}")
        A("s_waitcnt vmcnt(0)")
        A("s_barrier")
        A("s_cmp_lg_u32 s13, 0")
        A(f"s_cbranch_scc1 L_q1_early2_{tg}")
        A("v_mov_b32 v6, 0")
        A("v_mov_b32 v7, 1")
        A("s_mov_b64 exec, 1")
        A("buffer_atomic_add v7, v6, s[4:7], s21 offen")
        A("s_mov_b64 exec, -1")
        A.label(f"L_q1_early2_{tg}")
        A("s_add_u32 s21, s21, 64")
        A.label(f"L_q1_noearly_{tg}")
        A("s_add_u32 s20, s20, 524288")
        A("s_add_u32 s40, s40, 1")
        A("s_cmp_lt_u32 s40, 32")
        A(f"s_cbranch_scc1 L_q1_loop_{tg}")
        A("s_branch L_q1_fin")
    A.label("L_q1_fin")
    A("s_waitcnt vmcnt(0) lgkmcnt(0)")
    A("s_barrier")
    A("s_cmp_lg_u32 s13, 0")
    A("s_cbranch_scc1 L_wloop")
    A("v_mov_b32 v6, 0")
    A("v_mov_b32 v7, 1")
    A("s_mov_b64 exec, 1")
    A("buffer_atomic_add v7, v6, s[4:7], s21 offen")
    A("s_mov_b64 exec, -1")
    A("s_branch L_wloop")

def stage_g(A):
    A("s_lshl_b32 s16, s41, 2")
    A("s_add_u32 s16, s16, s13")
    A("s_lshl_b32 s15, s16, 16")
    A(f"s_add_u32 s15, s15, {WGU_F}")
    ta_prologue(A, "g", 1, 4, preload_gu)
    ta_kloop(A, False)
    A("s_mul_i32 s19, s40, 56")
    A("s_add_u32 s19, s19, s16")
    A("s_lshl_b32 s19, s19, 12")
    A("s_add_u32 s19, s19, s43")
    A(f"s_add_u32 s19, s19, {HF}")
    c2 = struct.unpack("<I", struct.pack("<f", -2.0 * math.sqrt(2.0 / math.pi) * math.log2(math.e)))[0]
    A("s_mov_b32 s28, 0x3d372713")
    A(f"s_mov_b32 s29, {c2}")
    Tm = 8
    for mt in range(4):
        pk = TMPX + 4 * mt
        G = [ACCW + (half * 4 + mt) * 4 + i for half in range(2) for i in range(4)]
        U = [ACCW + ((2 + half) * 4 + mt) * 4 + i for half in range(2) for i in range(4)]
        for i in range(0, 8, 2):
            A(f"v_cvt_pk_bf16_f32 v{Tm}, v{G[i]}, v{G[i+1]}")
            A(f"v_lshlrev_b32 v{G[i]}, 16, v{Tm}")
            A(f"v_and_b32 v{G[i+1]}, 0xffff0000, v{Tm}")
            A(f"v_cvt_pk_bf16_f32 v{Tm}, v{U[i]}, v{U[i+1]}")
            A(f"v_lshlrev_b32 v{U[i]}, 16, v{Tm}")
            A(f"v_and_b32 v{U[i+1]}, 0xffff0000, v{Tm}")
        for i in range(8):
            t = Tm + 1 + i
            A(f"v_mul_f32 v{t}, v{G[i]}, v{G[i]}")
            A(f"v_mul_f32 v{t}, s28, v{t}")
            A(f"v_fma_f32 v{t}, v{t}, v{G[i]}, v{G[i]}")
            A(f"v_mul_f32 v{t}, s29, v{t}")
            A(f"v_exp_f32 v{t}, v{t}")
        for i in range(8):
            t = Tm + 1 + i
            A(f"v_add_f32 v{t}, 1.0, v{t}")
            A(f"v_rcp_f32 v{t}, v{t}")
        for i in range(8):
            A(f"v_mul_f32 v{G[i]}, v{G[i]}, v{Tm+1+i}")
        for i in range(0, 8, 2):
            A(f"v_cvt_pk_bf16_f32 v{Tm}, v{G[i]}, v{G[i+1]}")
            A(f"v_lshlrev_b32 v{G[i]}, 16, v{Tm}")
            A(f"v_and_b32 v{G[i+1]}, 0xffff0000, v{Tm}")
            A(f"v_mul_f32 v{G[i]}, v{G[i]}, v{U[i]}")
            A(f"v_mul_f32 v{G[i+1]}, v{G[i+1]}, v{U[i+1]}")
            A(f"v_cvt_pk_bf16_f32 v{pk+i//2}, v{G[i]}, v{G[i+1]}")
        A(f"buffer_store_dwordx4 v[{pk}:{pk+3}], v4, s[4:7], s19 offen offset:{mt*1024} sc1")
    signal(A, 5)

def stage_attn(A):
    A("s_lshl_b32 s12, s40, 1")
    A("s_lshr_b32 s14, s41, 2")
    A("s_add_u32 s12, s12, s14")
    A("s_and_b32 s14, s41, 3")
    A("s_lshl_b32 s14, s14, 3")
    A("s_lshl_b32 s15, s13, 1")
    A("s_add_u32 s14, s14, s15")
    cnt_addr(A, 22, 1)
    cnt_addr(A, 21, 7)
    A("s_lshl_b32 s20, s42, 6")
    A("s_add_u32 s20, s20, s12")
    A("s_lshl_b32 s20, s20, 6")
    A(f"s_add_u32 s20, s20, {CHAIN_CNT}")
    A("v_and_b32 v14, 63, v0")
    A("v_lshlrev_b32 v1, 4, v14")
    A("v_lshlrev_b32 v13, 3, v14")
    A("s_sub_u32 s23, s21, s22")
    A("v_mov_b32 v126, 0")
    A("v_writelane_b32 v126, s23, 1")
    A("s_sub_u32 s23, s20, s22")
    A("v_writelane_b32 v126, s23, 2")
    A("s_mov_b32 s26, 0")
    A("buffer_load_dword v127, v126, s[4:7], s22 offen sc1")
    A("s_waitcnt vmcnt(0)")
    flush_pending(A, "a")
    A("s_branch L_a_chk")
    A.label("L_a_poll")
    A("buffer_load_dword v127, v126, s[4:7], s22 offen sc1")
    A("s_add_u32 s26, s26, 1")
    A(f"s_cmp_gt_u32 s26, {TMO}")
    A(f"s_cbranch_scc1 {END}")
    A("s_waitcnt vmcnt(0)")
    A.label("L_a_chk")
    A("v_readlane_b32 s27, v127, 0")
    A("v_readlane_b32 s23, v127, 1")
    A("v_readlane_b32 s19, v127, 2")
    A("s_cmp_ge_u32 s27, 16")
    A("s_cselect_b32 s27, 1, 0")
    A("s_cmp_ge_u32 s23, 32")
    A("s_cselect_b32 s23, 1, 0")
    A("s_and_b32 s27, s27, s23")
    A("s_cmp_eq_u32 s27, 1")
    A("s_cbranch_scc1 L_a_polled")
    A("s_sleep 4")
    A("s_branch L_a_poll")
    A.label("L_a_polled")
    S = 144; T = 168; O = 176; BI = 244
    def R(hh, kind, i, n):
        base = {"Q": 16, "K": 48, "KM": 80, "V": 96, "VM": 128}[kind]
        if hh == 0:
            r = base + i
            if kind == "V" and i >= 28: r = 240 + (i - 28)
            return v(r, n)
        abase = {"Q": 0, "K": 32, "V": 64, "KM": 96, "VM": 112}[kind]
        return a(abase + i, n)
    for hh in range(2):
        A("s_lshl_b32 s15, s12, 6")
        A("s_add_u32 s15, s15, s14")
        A(f"s_add_u32 s15, s15, {hh}")
        A("s_lshl_b32 s15, s15, 12")
        A("s_add_u32 s15, s15, s43")
        A(f"s_add_u32 s16, s15, {QF}")
        A(f"s_add_u32 s17, s15, {KF}")
        for t in range(2):
            for j in range(4):
                A(f"buffer_load_dwordx4 {R(hh,'Q',16*t+4*j,4)}, v1, s[4:7], s16 offen offset:{j*1024} sc1")
                A(f"buffer_load_dwordx4 {R(hh,'K',16*t+4*j,4)}, v1, s[4:7], s17 offen offset:{j*1024} sc1")
            if t == 0:
                A("s_add_u32 s16, s16, 131072")
                A("s_add_u32 s17, s17, 131072")
        A("s_lshl_b32 s15, s12, 5")
        A("s_add_u32 s15, s15, s14")
        A(f"s_add_u32 s15, s15, {hh}")
        A("s_lshl_b32 s16, s15, 13")
        A("s_add_u32 s16, s16, s43")
        A(f"s_add_u32 s16, s16, {VF}")
        for et in range(8):
            if et == 4: A("s_add_u32 s16, s16, 4096")
            A(f"buffer_load_dwordx4 {R(hh,'V',4*et,4)}, v1, s[4:7], s16 offen offset:{(et&3)*1024} sc1")
    A("s_cmp_ge_u32 s19, 128")
    A("s_cbranch_scc1 L_a_chain_ok")
    poll_counter(A, "a2", "s20", 128, only_wave0=False)
    A.label("L_a_chain_ok")
    if PROF:
        A("s_memrealtime s[76:77]")
        A("s_waitcnt lgkmcnt(0)")
    for hh in range(2):
        A("s_lshl_b32 s15, s12, 5")
        A("s_add_u32 s15, s15, s14")
        A(f"s_add_u32 s15, s15, {hh}")
        A("s_lshl_b32 s16, s15, 12")
        A("s_add_u32 s16, s16, s43")
        A(f"s_add_u32 s18, s16, {VM}")
        A(f"s_add_u32 s16, s16, {KM}")
        for j in range(4):
            A(f"buffer_load_dwordx4 {R(hh,'KM',4*j,4)}, v1, s[4:7], s16 offen offset:{j*1024} sc1")
        for et in range(8):
            A(f"buffer_load_dwordx2 {R(hh,'VM',2*et,2)}, v13, s[4:7], s18 offen offset:{et*512} sc1")
    A(f"s_mov_b32 s28, {SCALE_HEX}")
    A(f"s_mov_b32 s29, {SCALE_HEX}")
    A(f"s_mov_b32 s30, {LOG2E_HEX}")
    A(f"s_mov_b32 s31, {LOG2E_HEX | 0x80000000}")
    A("v_and_b32 v15, 15, v14")
    A("v_lshrrev_b32 v2, 2, v15")
    A("v_and_b32 v3, 3, v15")
    A("v_lshl_add_u32 v2, v2, 3, v3")
    A("v_lshrrev_b32 v3, 4, v14")
    A("v_lshlrev_b32 v3, 3, v3")
    A("v_sub_u32 v2, v2, v3")
    A(f"v_mov_b32 v{T+7}, 0xf149f2ca")
    bias = {0: 244, 1: 8}
    A("v_cmp_gt_u32 vcc, 32, v14")
    A(f"v_cndmask_b32 v252, v{T+7}, 0, vcc")
    A("v_mov_b32 v253, v252")
    for tq in range(2):
        for tk in range(2):
            for r in range(4):
                A(f"v_cmp_le_i32 vcc, {r + 4*tk - 4*tq}, v2")
                A(f"v_cndmask_b32 v{bias[tq]+4*tk+r}, v{T+7}, 0, vcc")
    A("s_lshl_b32 s16, s40, 7")
    A("s_lshl_b32 s17, s14, 2")
    A("s_add_u32 s16, s16, s17")
    A("s_lshl_b32 s16, s16, 2")
    A("s_and_b32 s17, s12, 1")
    A("s_lshl_b32 s17, s17, 1")
    A("s_add_u32 s16, s16, s17")
    A("s_lshl_b32 s16, s16, 10")
    A("s_add_u32 s16, s16, s43")
    A(f"s_add_u32 s16, s16, {OF}")
    for hh in range(2):
        A(f"s_waitcnt vmcnt({20 if hh == 0 else 16})")
        for tq in range(2):
            for j in range(4):
                for kt in range(3):
                    src = R(hh, 'KM', 4 * j, 4) if kt == 0 else R(hh, 'K', 16 * (kt - 1) + 4 * j, 4)
                    acc = v(S + 12 * tq + 4 * kt, 4)
                    A(f"v_mfma_f32_16x16x32_bf16 {acc}, {src}, {R(hh,'Q',16*tq+4*j,4)}, {'0' if j==0 else acc}")
        A(f"s_waitcnt vmcnt({12 if hh == 0 else 8})")
        for tq in range(2):
            Sq = S + 12 * tq
            TT = T
            for i in range(0, 12, 2): A(f"v_cvt_pk_bf16_f32 v{TT+i//2}, v{Sq+i}, v{Sq+i+1}")
            for i in range(0, 12, 2):
                A(f"v_lshlrev_b32 v{Sq+i}, 16, v{TT+i//2}")
                A(f"v_and_b32 v{Sq+i+1}, 0xffff0000, v{TT+i//2}")
            for i in range(0, 12, 2): A(f"v_pk_mul_f32 v[{Sq+i}:{Sq+i+1}], v[{Sq+i}:{Sq+i+1}], s[28:29]")
            for i in range(0, 12, 2): A(f"v_cvt_pk_bf16_f32 v{TT+i//2}, v{Sq+i}, v{Sq+i+1}")
            for i in range(0, 12, 2):
                A(f"v_lshlrev_b32 v{Sq+i}, 16, v{TT+i//2}")
                A(f"v_and_b32 v{Sq+i+1}, 0xffff0000, v{TT+i//2}")
            for i in range(0, 4, 2): A(f"v_pk_add_f32 v[{Sq+i}:{Sq+i+1}], v[{Sq+i}:{Sq+i+1}], v[252:253]")
            for i in range(0, 8, 2): A(f"v_pk_add_f32 v[{Sq+4+i}:{Sq+5+i}], v[{Sq+4+i}:{Sq+5+i}], v[{bias[tq]+i}:{bias[tq]+i+1}]")
            MX = T + 4; MT = T + 5
            A(f"v_max3_f32 v{MX}, v{Sq}, v{Sq+1}, v{Sq+2}")
            A(f"v_max3_f32 v{MT}, v{Sq+3}, v{Sq+4}, v{Sq+5}")
            A(f"v_max3_f32 v{MX}, v{MX}, v{Sq+6}, v{Sq+7}")
            A(f"v_max3_f32 v{MT}, v{MT}, v{Sq+8}, v{Sq+9}")
            A(f"v_max3_f32 v{MX}, v{MX}, v{Sq+10}, v{Sq+11}")
            A(f"v_max_f32 v{MX}, v{MX}, v{MT}")
            xlane(A, MX, MT, ("p16", "p32"), "v_max_f32")
            A(f"v_mul_f32 v{MX}, s31, v{MX}")
            for i in range(12): A(f"v_fma_f32 v{Sq+i}, v{Sq+i}, s30, v{MX}")
            for i in range(12): A(f"v_exp_f32 v{Sq+i}, v{Sq+i}")
            A(f"v_pk_add_f32 v[{TT}:{TT+1}], v[{Sq}:{Sq+1}], v[{Sq+2}:{Sq+3}]")
            A(f"v_pk_add_f32 v[{TT+2}:{TT+3}], v[{Sq+4}:{Sq+5}], v[{Sq+6}:{Sq+7}]")
            A(f"v_pk_add_f32 v[{MX}:{MX+1}], v[{Sq+8}:{Sq+9}], v[{Sq+10}:{Sq+11}]")
            A(f"v_pk_add_f32 v[{TT}:{TT+1}], v[{TT}:{TT+1}], v[{TT+2}:{TT+3}]")
            A(f"v_pk_add_f32 v[{TT}:{TT+1}], v[{TT}:{TT+1}], v[{MX}:{MX+1}]")
            A(f"v_add_f32 v{MX}, v{TT}, v{TT+1}")
            xlane(A, MX, MT, ("p16", "p32"))
            A(f"v_rcp_f32 v{MX}, v{MX}")
            A(f"v_mov_b32 v{MT}, v{MX}")
            for i in range(0, 12, 2): A(f"v_pk_mul_f32 v[{Sq+i}:{Sq+i+1}], v[{Sq+i}:{Sq+i+1}], v[{MX}:{MX+1}]")
            PM = T + 2; PT = 4
            A(f"v_cvt_pk_bf16_f32 v{PM}, v{Sq}, v{Sq+1}")
            A(f"v_cvt_pk_bf16_f32 v{PM+1}, v{Sq+2}, v{Sq+3}")
            for i in range(4): A(f"v_cvt_pk_bf16_f32 v{PT+i}, v{Sq+4+2*i}, v{Sq+5+2*i}")
            for et in range(8):
                A(f"v_mfma_f32_16x16x32_bf16 v[{O+4*et}:{O+4*et+3}], {R(hh,'V',4*et,4)}, v[{PT}:{PT+3}], 0")
            for et in range(8):
                A(f"v_mfma_f32_16x16x16_bf16 v[{O+4*et}:{O+4*et+3}], {R(hh,'VM',2*et,2)}, v[{PM}:{PM+1}], v[{O+4*et}:{O+4*et+3}]")
            PKO = 208 + 16 * tq
            for j in range(4):
                for half in range(2):
                    b = O + 8 * j + 4 * half
                    A(f"v_cvt_pk_bf16_f32 v{PKO+4*j+2*half}, v{b}, v{b+1}")
                    A(f"v_cvt_pk_bf16_f32 v{PKO+4*j+2*half+1}, v{b+2}, v{b+3}")
                A(f"s_add_u32 s17, s16, {hh*16384 + j*4096 + tq*1024}")
                A(f"buffer_store_dwordx4 v[{PKO+4*j}:{PKO+4*j+3}], v1, s[4:7], s17 offen sc1")
    if PROF:
        signal(A, 2)
    else:
        cnt_addr(A, 68, 2)
        A("s_branch L_wloop")

def stage_tb(A, tag, WF, AFB, KS, dep_stage, dep_n, res_idx, sig_stage):
    KW = KS // 4
    RING = 8
    RB = 16; ACC = RB + 16 * RING
    A("v_and_b32 v14, 63, v0")
    A("v_lshlrev_b32 v1, 4, v14")
    A("s_lshr_b32 s12, s41, 4")
    A("s_and_b32 s14, s41, 15")
    A(f"s_mul_i32 s15, s13, {KW}")
    A("s_lshr_b32 s16, s14, 1")
    A(f"s_mul_i32 s16, s16, {KS}")
    A("s_add_u32 s16, s16, s15")
    A("s_lshl_b32 s16, s16, 12")
    A("s_and_b32 s18, s14, 1")
    A("s_lshl_b32 s18, s18, 11")
    A("s_add_u32 s16, s16, s18")
    A(f"s_add_u32 s16, s16, {WF}")
    A(f"s_mul_i32 s17, s40, {KS}")
    A("s_add_u32 s17, s17, s15")
    A("s_lshl_b32 s17, s17, 12")
    A("s_lshl_b32 s18, s12, 11")
    A("s_add_u32 s17, s17, s18")
    A("s_add_u32 s17, s17, s43")
    A(f"s_add_u32 s17, s17, {AFB}")
    RING = 16; ACC = RB + 8 * RING
    A("s_bitcmp0_b32 s72, 16")
    A(f"s_cbranch_scc1 L_{tag}_nopre")
    A(f"s_mov_b32 s22, {SETUP_CNT}")
    poll_counter(A, tag + "_su", "s22", 64)
    raw_srd(A, "wo" if KS == 128 else "wd")
    A(f"s_mul_i32 s15, s13, {KW*32*1024}")
    A("s_lshl_b32 s24, s14, 6")
    A("s_add_u32 s15, s15, s24")
    A("s_lshl_b32 s24, s13, 14")
    tr_load(A, 1024, KW, 2, lambda kk, t: ("a", (kk * 2 + t) * 4), "s24", 16, 80, 8)
    A("s_barrier")
    A.label(f"L_{tag}_nopre")
    def lda(si):
        for t in range(2):
            A(f"buffer_load_dwordx4 v[{RB+8*si+4*t}:{RB+8*si+4*t+3}], v1, s[4:7], s17 offen offset:{t*1024} sc1")
        A("s_add_u32 s17, s17, 4096")
    def mm(kk):
        si = kk % RING
        for ct in range(2):
            for tt in range(2):
                acc = v(ACC + (ct * 2 + tt) * 4, 4)
                A(f"v_mfma_f32_16x16x32_bf16 {acc}, a[{(kk*2+ct)*4}:{(kk*2+ct)*4+3}], v[{RB+8*si+4*tt}:{RB+8*si+4*tt+3}], {'0' if kk==0 else acc}")
    D = min(RING - 1, KW)
    cnt_addr(A, 22, dep_stage)
    A("v_mov_b32 v250, 0")
    poll_counter(A, tag, "s22", dep_n)
    for si in range(D): lda(si)
    for kk in range(KW):
        if kk + D < KW:
            lda((kk + D) % RING)
            A(f"s_waitcnt vmcnt({2*D})")
        else:
            A(f"s_waitcnt vmcnt({2*(KW-1-kk)})")
        mm(kk)
    A("s_lshl_b32 s15, s13, 12")
    A("v_add_u32 v2, s15, v1")
    for i in range(4):
        A(f"ds_write_b128 v2, v[{ACC+4*i}:{ACC+4*i+3}] offset:{i*1024}")
    A("s_and_b32 s15, s13, 1")
    A("s_lshl_b32 s15, s15, 10")
    A("v_add_u32 v3, s15, v1")
    A("v_and_b32 v4, 15, v14")
    A("v_lshrrev_b32 v5, 2, v4")
    A("v_and_b32 v4, 3, v4")
    A("v_lshl_add_u32 v4, v5, 3, v4")
    A("s_lshl_b32 s15, s40, 6")
    A("s_lshl_b32 s18, s12, 5")
    A("s_add_u32 s15, s15, s18")
    A("s_and_b32 s18, s13, 1")
    A("s_lshl_b32 s18, s18, 2")
    A("s_add_u32 s15, s15, s18")
    A("v_add_u32 v4, s15, v4")
    A("v_lshlrev_b32 v4, 10, v4")
    A("v_lshrrev_b32 v5, 4, v14")
    A("v_lshl_add_u32 v4, v5, 4, v4")
    A("s_lshl_b32 s15, s14, 6")
    A("v_add_u32 v4, s15, v4")
    A("s_lshl_b32 s18, s42, 1")
    A(f"s_add_u32 s18, s18, {res_idx}")
    A("s_lshl_b32 s18, s18, 21")
    A(f"s_add_u32 s18, s18, {XR}")
    A(f"buffer_load_dwordx4 v[8:11], v4, s[4:7], s18 offen sc1")
    A("s_waitcnt lgkmcnt(0)")
    A("s_barrier")
    A("s_cmp_ge_u32 s13, 2")
    A(f"s_cbranch_scc1 L_{tag}_done")
    R = 16
    for ww in range(4):
        for ct in range(2):
            A(f"ds_read_b128 v[{R+8*ww+4*ct}:{R+8*ww+4*ct+3}], v3 offset:{ww*4096+ct*2048}")
    A("s_waitcnt lgkmcnt(4)")
    for i in range(8): A(f"v_add_f32 v{R+i}, v{R+i}, v{R+8+i}")
    A("s_waitcnt lgkmcnt(2)")
    for i in range(8): A(f"v_add_f32 v{R+i}, v{R+i}, v{R+16+i}")
    A("s_waitcnt lgkmcnt(0) vmcnt(0)")
    for i in range(8): A(f"v_add_f32 v{R+i}, v{R+i}, v{R+24+i}")
    for i in range(4):
        A(f"v_cvt_pk_bf16_f32 v6, v{R+2*i}, v{R+2*i+1}")
        A(f"v_lshlrev_b32 v{R+2*i}, 16, v6")
        A(f"v_and_b32 v{R+2*i+1}, 0xffff0000, v6")
        A(f"v_lshlrev_b32 v6, 16, v{8+i}")
        A(f"v_and_b32 v7, 0xffff0000, v{8+i}")
        A(f"v_add_f32 v{R+2*i}, v{R+2*i}, v6")
        A(f"v_add_f32 v{R+2*i+1}, v{R+2*i+1}, v7")
        A(f"v_cvt_pk_bf16_f32 v{R+32+i}, v{R+2*i}, v{R+2*i+1}")
    if res_idx == 1:
        A("s_cmp_eq_u32 s42, 1")
        A(f"s_cbranch_scc1 L_{tag}_out")
    A(f"s_add_u32 s18, s18, {2*MB}")
    A(f"buffer_store_dwordx4 v[{R+32}:{R+35}], v4, s[4:7], s18 offen sc1")
    if res_idx == 1:
        A(f"s_branch L_{tag}_done")
        A.label(f"L_{tag}_out")
        A(f"buffer_store_dwordx4 v[{R+32}:{R+35}], v4, s[64:67], 0 offen")
    A.label(f"L_{tag}_done")
    signal(A, sig_stage)

NSUB = {0: 2, 1: 48, 2: 8, 3: 32, 4: 2, 5: 14, 6: 32}
TBL_STRIDE = 80

def schedule(nW=192, verbose=False):
    def word(layer, stage, blk, sub): return stage | (blk << 4) | (sub << 9) | (layer << 15)
    lists = []
    def new_worker():
        lists.append([]); return lists[-1]
    q1w = []
    for sub in range(48):
        w = new_worker()
        for b in range(32): w.append(word(1, 1, b, sub))
    WG = {}
    for l in range(2):
        for st, n in ((3, 32), (5, 14)):
            for sub in range(n):
                WG[(l, st, sub)] = new_worker()
                if l == 1: q1w.append(WG[(l, st, sub)])
    for l in range(2):
        for st, n in ((3, 32), (5, 14)):
            for sub in range(n):
                for b in range(32):
                    own = 0 if (l == 1 and b >= 29 and (b & 1)) else l
                    WG[(own, st, sub)].append(word(l, st, b, sub))
    P = 7.05
    for cg in range(16):
        for sb in range(2):
            w = new_worker()
            ev = [(27 + P * b, word(0, 6, b, sb * 16 + cg)) for b in range(32)]
            ev += [(max(72 + P * b, 117 + 5.3 * b) + 6, word(1, 6, b, sb * 16 + cg)) for b in range(32)]
            ev.sort()
            w.extend(e[1] for e in ev)
    A1 = [new_worker() for _ in range(8)]
    A2 = [new_worker() for _ in range(6)]
    for b in range(32):
        for sub in range(8): A1[sub].append(word(0, 2, b, sub))
    free = [0.0] * 6
    k = 0
    for b in range(32):
        for sub in range(8):
            if b >= 29:
                pool = A1 + A2
                pool[(k * 5) % 14].append(word(1, 2, b, sub)); k += 1
            else:
                t = 46 + P * b + 3.5 * (sub >> 2)
                i = min(range(6), key=lambda j: (max(free[j], t), j))
                free[i] = max(free[i], t) + 4.2
                A2[i].append(word(1, 2, b, sub))
    for (l, st) in ((0, 4), (1, 0), (1, 4)):
        ws = [new_worker() for _ in range(2)]
        for b in range(32):
            for sub in range(2): ws[sub].append(word(l, st, b, sub))
        if (l, st) == (1, 4): q1w += ws
    assert len(lists) == nW, len(lists)
    for w in lists: w[0] |= 1 << 16
    assert len(q1w) == 48
    for sub, w in enumerate(q1w): w.insert(0, word(0, 8, 0, sub))
    if verbose: print("maxlen", max(len(x) for x in lists))
    assert max(len(l) for l in lists) < TBL_STRIDE, max(len(l) for l in lists)
    return lists

def mega_init(A):
    A("v_lshlrev_b32 v1, 4, v0")
    for i in range(4): A(f"v_mov_b32 v{4+i}, -1")
    A("s_lshl_b32 s3, s2, 14")
    A(f"s_add_u32 s3, s3, {PART}")
    for i in range(4):
        A("buffer_store_dwordx4 v[4:7], v1, s[4:7], s3 offen sc1")
        if i < 3: A("s_add_u32 s3, s3, 4096")
    for i in range(4): A(f"v_mov_b32 v{8+i}, 0")
    A("s_lshl_b32 s3, s2, 8")
    A(f"s_add_u32 s3, s3, {CNT}")
    A("v_cmp_gt_u32 vcc, 16, v0")
    A("s_and_saveexec_b64 s[22:23], vcc")
    A("s_cbranch_execz L_init_nocnt")
    A("buffer_store_dwordx4 v[8:11], v1, s[4:7], s3 offen sc1")
    A.label("L_init_nocnt")
    A("s_mov_b64 exec, s[22:23]")
    load_ptr_srd(A, "x", 8, 2 * MB, 20)
    A("s_lshl_b32 s3, s2, 13")
    A(f"s_add_u32 s18, s3, {XR}")
    A("buffer_load_dwordx4 v[12:15], v1, s[8:11], s3 offen")
    A("s_add_u32 s3, s3, 4096")
    A("buffer_load_dwordx4 v[64:67], v1, s[8:11], s3 offen")
    A("s_waitcnt vmcnt(0)")
    A("buffer_store_dwordx4 v[12:15], v1, s[4:7], s18 offen sc1")
    A("s_add_u32 s18, s18, 4096")
    A("buffer_store_dwordx4 v[64:67], v1, s[4:7], s18 offen sc1")
    A("s_cmp_ge_u32 s2, 128")
    A("s_cbranch_scc1 L_init_noln")
    A("s_mov_b32 s3, s2")
    ln_body(A, "s[8:11]", 0, True)
    A.label("L_init_noln")
    load_ptr_srd(A, "mem0", 8, 8192, 20)
    memx_total = 2 * MEMX_LAYER
    for rep in range(2):
        if rep == 1:
            A("s_cmp_ge_u32 s2, 4")
            A("s_cbranch_scc1 L_init_done")
        A(f"s_add_u32 s3, s2, {256*rep}")
        A("s_lshl_b32 s3, s3, 12")
        A("v_lshlrev_b32 v1, 4, v0")
        A("v_add_u32 v1, s3, v1")
        A(f"v_subrev_u32 v2, {MEMX_LAYER}, v1")
        A(f"v_cmp_gt_u32 vcc, {MEMX_LAYER}, v1")
        A("v_cndmask_b32 v2, v2, v1, vcc")
        A("v_lshrrev_b32 v3, 6, v2")
        A("v_bfe_u32 v4, v2, 3, 3")
        A("v_lshlrev_b32 v5, 10, v4")
        A("v_lshl_add_u32 v5, v3, 3, v5")
        A("buffer_load_dwordx2 v[8:9], v5, s[8:11], 0 offen")
        A("buffer_load_dwordx2 v[10:11], v5, s[8:11], 0 offen offset:1024")
        A("s_waitcnt vmcnt(0)")
        A(f"v_cmp_gt_u32 vcc, 8192, v2")
        for i in range(4):
            A(f"v_min_u32 v{8+i}, -2, v{8+i}")
            A(f"v_cndmask_b32 v{8+i}, -1, v{8+i}, vcc")
        A(f"s_mov_b32 s19, {MEMX}")
        A("buffer_store_dwordx4 v[8:11], v1, s[4:7], s19 offen sc1")
    A.label("L_init_done")

def gen_mega():
    A = Asm()
    name = "mega_kernel"
    A.raw(kernel_header(name))
    A("s_cmp_ge_u32 s2, 256")
    A(f"s_cbranch_scc1 {END}")
    load_ptr_srd(A, "ws", 4, WS_BYTES, 20)
    load_ptr_srd(A, "out", 64, 2 * MB, 20)
    for key, r in PTR.items():
        A(f"s_load_dwordx2 s[{r}:{r+1}], s[0:1], {KA[key]}")
    A("s_waitcnt lgkmcnt(0)")
    mega_init(A)
    rendezvous(A)
    A("s_cmp_ge_u32 s12, 64")
    A("s_cbranch_scc1 L_worker")
    gen_chain_role(A)
    A.label("L_worker")
    A("s_sub_u32 s12, s12, 64")
    A("s_mov_b32 s68, 0")
    A(f"s_mul_i32 s69, s12, {TBL_STRIDE*16}")
    A(f"s_add_u32 s69, s69, {PROFB + MB}")
    A("s_getpc_b64 s[70:71]")
    A.label("L_pcref")
    A(f"s_mul_i32 s15, s12, {TBL_STRIDE*4}")
    A("s_add_u32 s70, s70, s15")
    A("s_addc_u32 s71, s71, 0")
    A("s_add_u32 s70, s70, L_table-L_pcref")
    A("s_addc_u32 s71, s71, 0")
    A.label("L_wloop")
    A("s_load_dword s72, s[70:71], 0")
    A("s_add_u32 s70, s70, 4")
    A("s_addc_u32 s71, s71, 0")
    A("s_waitcnt lgkmcnt(0)")
    A("s_cmp_eq_u32 s72, -1")
    A(f"s_cbranch_scc1 L_wend")
    if PROF:
        A("s_memrealtime s[74:75]")
        A("s_waitcnt lgkmcnt(0)")
        A("s_mov_b32 s76, s74")
    A("s_and_b32 s73, s72, 15")
    A("s_bfe_u32 s40, s72, 0x50004")
    A("s_bfe_u32 s41, s72, 0x60009")
    A("s_bfe_u32 s42, s72, 0x1000f")
    A(f"s_mul_i32 s43, s42, {LSTRIDE}")
    for st in (0, 1, 2, 3, 4, 5, 6, 8):
        A(f"s_cmp_eq_u32 s73, {st}")
        A(f"s_cbranch_scc1 L_st{st}")
    A(f"s_branch {END}")
    A.label("L_st0"); stage_ln(A, 0)
    A.label("L_st1"); stage_q(A)
    A.label("L_st2"); stage_attn(A)
    A.label("L_st3"); stage_tb(A, "wo", WO_F, OF, 128, 2, 8, 0, 3)
    A.label("L_st4"); stage_ln(A, 1)
    A.label("L_st5"); stage_g(A)
    A.label("L_st6"); stage_tb(A, "dn", WD_F, HF, 56, 5, 14, 1, 6)
    A.label("L_st8"); stage_q1stream(A)
    A.label("L_wend")
    A("s_waitcnt vmcnt(0)")
    flush_pending(A, "end")
    A.label(END)
    A("s_endpgm")
    A.raw(".p2align 6")
    A.label("L_table")
    for l in schedule(verbose=True):
        ws_ = l + [0xFFFFFFFF] * (TBL_STRIDE - len(l))
        for i in range(0, TBL_STRIDE, 16):
            A.raw("    .long " + ", ".join(hex(x) for x in ws_[i:i+16]))
    return name, A, 256, (256, 256)

def copy_x_to_lds(A, mg_sreg, tmpv):
    A("v_lshlrev_b32 v1, 4, v0")
    A(f"s_lshl_b32 s19, s{mg_sreg}, 17")
    A(f"s_add_u32 s19, s19, {XFA}")
    for rnd in range(4):
        for i in range(8):
            A(f"buffer_load_dwordx4 v[{tmpv+4*i}:{tmpv+4*i+3}], v1, s[4:7], s19 offen")
            A("s_add_u32 s19, s19, 4096")
        for i in range(8):
            A(f"s_waitcnt vmcnt({7-i})")
            off = (rnd * 8 + i) * 4096
            if off < 65536:
                A(f"ds_write_b128 v1, v[{tmpv+4*i}:{tmpv+4*i+3}] offset:{off}")
            else:
                A(f"ds_write_b128 v2, v[{tmpv+4*i}:{tmpv+4*i+3}] offset:{off-65536}")
            if rnd == 0 and i < 2:
                A(f"ds_write_b128 v3, v[{tmpv+4*i}:{tmpv+4*i+3}] offset:{i*4096}")

def gen_qkv(name):
    A = Asm()
    A.raw(kernel_header(name))
    A("s_cmp_ge_u32 s2, 256")
    A("s_cbranch_scc1 L_end_" + name)
    load_ptr_srd(A, "ws", 4, WS_BYTES, 20)
    A("s_and_b32 s12, s2, 7")
    A("s_lshl_b32 s12, s12, 1")
    A("s_bfe_u32 s13, s2, 0x10003")
    A("s_add_u32 s12, s12, s13")
    A("s_lshr_b32 s13, s2, 4")
    A("v_lshlrev_b32 v1, 4, v0")
    A("v_add_u32 v2, 0x10000, v1")
    A("v_add_u32 v3, 0x20000, v1")
    ACC = 0 + 128
    XB = 8
    WB = 72
    XB = 8; WB = 64
    XB = 8; WB = 72; PK = 136
    copy_x_to_lds(A, 13, WB)
    A("v_lshrrev_b32 v4, 6, v0")
    A("v_readfirstlane_b32 s14, v4")
    A("v_and_b32 v4, 63, v0")
    A("v_lshlrev_b32 v4, 4, v4")
    A("v_mov_b32 v5, v4")
    A("s_lshl_b32 s15, s12, 2")
    A("s_add_u32 s15, s15, s14")
    A("s_mul_i32 s15, s15, 196608")
    A(f"s_add_u32 s15, s15, {WQKV_F}")
    A("s_waitcnt lgkmcnt(0)")
    A("s_barrier")
    def wload(setidx):
        for t in range(4):
            A(f"buffer_load_dwordx4 v[{WB+16*setidx+4*t}:{WB+16*setidx+4*t+3}], v4, s[4:7], s15 offen offset:{t*1024}")
        A("s_add_u32 s15, s15, 4096")
    def xread(buf, koff):
        for mt in range(8):
            A(f"ds_read_b128 v[{XB+32*buf+4*mt}:{XB+32*buf+4*mt+3}], v5 offset:{koff*8192+mt*1024}")
    for st in range(3): wload(st)
    xread(0, 0)
    A("s_lshl_b32 s16, s13, 3")
    A("s_lshl_b32 s16, s16, 5")
    A("s_lshl_b32 s17, s12, 1")
    A("s_lshr_b32 s18, s14, 1")
    A("s_add_u32 s17, s17, s18")
    A("s_add_u32 s16, s16, s17")
    A("s_lshl_b32 s16, s16, 2")
    A("s_and_b32 s18, s14, 1")
    A("s_lshl_b32 s18, s18, 1")
    A("s_add_u32 s16, s16, s18")
    A("s_lshl_b32 s16, s16, 10")
    A(f"s_add_u32 s16, s16, {QF}")
    A("s_lshl_b32 s20, s13, 2")
    A("s_lshl_b32 s20, s20, 5")
    A("s_add_u32 s20, s20, s17")
    A("s_lshl_b32 s20, s20, 3")
    A("s_lshl_b32 s18, s18, 1")
    A("s_add_u32 s20, s20, s18")
    A("s_lshl_b32 s20, s20, 10")
    A(f"s_add_u32 s20, s20, {VF}")
    A("s_mov_b32 s21, 0")
    def zero_acc():
        for i in range(128): A(f"v_accvgpr_write_b32 a{i}, 0")
    def kloop(tag, vtype):
        A("s_mov_b32 s22, 0")
        A.label(f"L_k_{tag}_{name}")
        for u in range(4):
            wload((u + 3) % 4)
            xread((u + 1) % 2, u + 1)
            A("s_waitcnt vmcnt(12) lgkmcnt(8)")
            for ct in range(4):
                for mt in range(8):
                    w = v(WB + 16 * u + 4 * ct, 4); x = v(XB + 32 * (u % 2) + 4 * mt, 4)
                    acc = a((ct * 8 + mt) * 4, 4)
                    if vtype: A(f"v_mfma_f32_16x16x32_bf16 {acc}, {x}, {w}, {acc}")
                    else:     A(f"v_mfma_f32_16x16x32_bf16 {acc}, {w}, {x}, {acc}")
        A("v_add_u32 v5, 0x8000, v5")
        A("v_and_b32 v5, 0x1ffff, v5")
        A("s_add_u32 s22, s22, 1")
        A("s_cmp_lt_u32 s22, 4")
        A(f"s_cbranch_scc1 L_k_{tag}_{name}")
    zero_acc()
    A.label(f"L_pass_{name}")
    kloop("qk", False)
    A.fence(10)
    A("s_mov_b32 s19, s16")
    n = 0
    for mt in range(8):
        for cp in range(2):
            pk = PK + 4 * (n % 8); n += 1
            for half in range(2):
                base = ((2 * cp + half) * 8 + mt) * 4
                for i in range(4): A(f"v_accvgpr_read_b32 v{168+i}, a{base+i}")
                A(f"v_cvt_pk_bf16_f32 v{pk+2*half}, v168, v169")
                A(f"v_cvt_pk_bf16_f32 v{pk+2*half+1}, v170, v171")
            A(f"buffer_store_dwordx4 v[{pk}:{pk+3}], v4, s[4:7], s19 offen offset:{cp*1024}")
        if mt < 7: A("s_add_u32 s19, s19, 131072")
    zero_acc()
    A(f"s_add_u32 s16, s16, {KF-QF}")
    A("s_add_u32 s21, s21, 1")
    A("s_cmp_lt_u32 s21, 2")
    A(f"s_cbranch_scc1 L_pass_{name}")
    kloop("v", True)
    A.fence(10)
    A("s_mov_b32 s19, s20")
    n = 0
    for sg in range(4):
        for ct in range(4):
            pk = PK + 4 * (n % 8); n += 1
            for half in range(2):
                base = (ct * 8 + 2 * sg + half) * 4
                for i in range(4): A(f"v_accvgpr_read_b32 v{168+i}, a{base+i}")
                A(f"v_cvt_pk_bf16_f32 v{pk+2*half}, v168, v169")
                A(f"v_cvt_pk_bf16_f32 v{pk+2*half+1}, v170, v171")
            A(f"buffer_store_dwordx4 v[{pk}:{pk+3}], v4, s[4:7], s19 offen offset:{ct*1024}")
        if sg < 3: A("s_add_u32 s19, s19, 262144")
    A.label("L_end_" + name)
    A("s_endpgm")
    return name, A, 256, (176, 128)

def build(kernels, launches):
    out = []
    hdr = open("cdna_kernels/" + NAME + ".s.ref").read().split("\n")
    for l in hdr:
        if l.startswith(";") and "@launch" not in l and "Override" not in l and "grid=ceil" not in l:
            out.append(l)
    for (k, g, lds) in launches:
        out.append(f"; @launch kernel={k} grid=({g},1,1) block=(256,1,1) lds={lds}")
    out.append('.amdgcn_target "amdgcn-amd-amdhsa--gfx950"')
    out.append(".text")
    for (name, A, g, regs) in kernels: out.append(A.text())
    out.append('.section .rodata,"a"')
    for (name, A, g, regs) in kernels:
        if isinstance(regs, tuple):
            nv, na = regs; acc = (nv + 3) // 4 * 4
            out.append(kernel_desc(name, acc + na, 102, acc))
        else:
            out.append(kernel_desc(name, regs, 102, (regs + 3) // 4 * 4))
    return "\n".join(out) + "\n"

if __name__ == "__main__":
    PROF = "prof" in sys.argv
    ks = [gen_mega()]
    launches = [("mega_kernel", 256, MEGA_LDS)]
    txt = build(ks, launches)
    dst = "prof.s" if PROF else "cdna_kernels/" + NAME + ".s"
    open(dst, "w").write(txt)
    print("bytes", len(txt))
```

```python
import sys, math, struct
from asmlib import *
from layout2 import *

NAME = "interleave_layers__memory_aug_recurrent_mem_tr__geglu_ffn__prompt"
KA = dict(x=0, mem0=8, wq=16, wk=24, wv=32, wo=40, seg=48, bx=56, wg=64, wu=72, wd=80, out=88, dbg=96, ws=104)
SCALE_HEX = 0x3db504f3
LOG2E_HEX = 0x3fb8aa3b
PROF = False

def srd(A, sd, sbase, nbytes):
    A(f"s_mov_b32 s{sd}, s{sbase}")
    A(f"s_and_b32 s{sd+1}, s{sbase+1}, 0xffff")
    A(f"s_mov_b32 s{sd+2}, {nbytes}")
    A(f"s_mov_b32 s{sd+3}, 0x00020000")

def load_ptr_srd(A, key, sd, nbytes, tmp):
    A(f"s_load_dwordx2 s[{tmp}:{tmp+1}], s[0:1], {KA[key]}")
    A("s_waitcnt lgkmcnt(0)")
    srd(A, sd, tmp, nbytes)

def magic_div(d, maxn):
    for sh in range(0, 32):
        m = -(-(1 << sh) // d)
        if m * maxn < (1 << 32) and all((n * m) >> sh == n // d for n in range(maxn)):
            return m, sh
    raise ValueError

def xlane(A, r, t, ops=("ror8", "p16", "p32"), op="v_add_f32"):
    for o in ops:
        if o == "ror8":
            A(f"{op}_dpp v{r}, v{r}, v{r} row_ror:8")
        else:
            A(f"v_mov_b32 v{t}, v{r}")
            A(f"v_permlane{'16' if o=='p16' else '32'}_swap_b32 v{r}, v{t}")
            A(f"{op} v{r}, v{r}, v{t}")

def bf16_round(A, dst, src, tmp):
    A(f"v_cvt_pk_bf16_f32 v{tmp}, v{src}, v{src}")
    A(f"v_lshlrev_b32 v{dst}, 16, v{tmp}")

def ln_math(A):
    for i in range(16):
        A(f"v_lshlrev_b32 v{32+2*i}, 16, v{16+i}")
        A(f"v_and_b32 v{33+2*i}, 0xffff0000, v{16+i}")
    A("v_add_f32 v7, v32, v33")
    for i in range(2, 32): A(f"v_add_f32 v7, v7, v{32+i}")
    for sh in (8, 4, 2, 1): A(f"v_add_f32_dpp v7, v7, v7 row_ror:{sh}")
    A("v_mul_f32 v7, 0x3b000000, v7")
    A("v_sub_f32 v8, v32, v7")
    A("v_mul_f32 v9, v8, v8")
    for i in range(1, 32):
        A(f"v_sub_f32 v8, v{32+i}, v7")
        A("v_fmac_f32 v9, v8, v8")
    for sh in (8, 4, 2, 1): A(f"v_add_f32_dpp v9, v9, v9 row_ror:{sh}")
    A("v_mul_f32 v9, 0x3b000000, v9")
    bf16_round(A, 7, 7, 10)
    bf16_round(A, 9, 9, 10)
    A("v_add_f32 v9, 0x3727c5ac, v9")
    bf16_round(A, 9, 9, 10)
    A("v_sqrt_f32 v9, v9")
    bf16_round(A, 9, 9, 10)
    A("v_rcp_f32 v9, v9")
    for i in range(16):
        A(f"v_sub_f32 v{32+2*i}, v{32+2*i}, v7")
        A(f"v_sub_f32 v{33+2*i}, v{33+2*i}, v7")
        A(f"v_cvt_pk_bf16_f32 v10, v{32+2*i}, v{33+2*i}")
        A(f"v_lshlrev_b32 v{32+2*i}, 16, v10")
        A(f"v_and_b32 v{33+2*i}, 0xffff0000, v10")
        A(f"v_mul_f32 v{32+2*i}, v{32+2*i}, v9")
        A(f"v_mul_f32 v{33+2*i}, v{33+2*i}, v9")
        A(f"v_cvt_pk_bf16_f32 v{16+i}, v{32+2*i}, v{33+2*i}")

def ln_body(A, sr, soff, sc1):
    A("v_lshrrev_b32 v1, 4, v0")
    A("s_lshl_b32 s3, s3, 4")
    A("v_add_u32 v1, s3, v1")
    A("v_and_b32 v2, 15, v0")
    A("v_lshlrev_b32 v3, 10, v1")
    A("v_lshl_add_u32 v3, v2, 4, v3")
    A(f"s_mov_b32 s19, {soff}")
    for q in range(4):
        A(f"buffer_load_dwordx4 v[{16+4*q}:{19+4*q}], v3, {sr}, s19 offen offset:{q*256}")
    A("v_bfe_u32 v4, v1, 3, 2")
    A("v_and_b32 v5, 3, v1")
    A("v_lshl_add_u32 v4, v4, 2, v5")
    A("v_and_b32 v5, 3, v2")
    A("v_lshl_add_u32 v4, v5, 4, v4")
    A("v_lshlrev_b32 v4, 4, v4")
    A("v_bfe_u32 v5, v1, 2, 1")
    A("v_bfe_u32 v6, v1, 5, 1")
    A("v_lshl_add_u32 v5, v6, 1, v5")
    A("v_lshl_add_u32 v4, v5, 10, v4")
    A("v_lshrrev_b32 v5, 6, v1")
    A("v_lshrrev_b32 v6, 2, v2")
    A("v_lshl_add_u32 v5, v5, 4, v6")
    A("v_lshl_add_u32 v4, v5, 12, v4")
    A("s_waitcnt vmcnt(0)")
    ln_math(A)
    A(f"s_mov_b32 s19, {XFA}")
    for q in range(4):
        if q: A(f"s_add_u32 s19, s19, {4*4096}")
        A(f"buffer_store_dwordx4 v[{16+4*q}:{19+4*q}], v4, s[4:7], s19 offen")

def gen_prep():
    A = Asm()
    name = "prep_kernel"
    A.raw(kernel_header(name))
    mats = []
    load_ptr_srd(A, "ws", 4, WS_BYTES, 20)
    A("s_mov_b32 s16, 0x05040100")
    A("s_mov_b32 s17, 0x07060302")
    start = 0; ranges = []
    for (key, K, N, kind) in mats:
        nwg = (K // 8) * (N // 8) // 256
        ranges.append((start, nwg)); start += nwg
    fill_start = start
    nfill = (4 * MB) // 65536
    memx_start = fill_start + nfill
    memx_total = 2 * MEMX_LAYER
    nmemx = -(-memx_total // 4096)
    xcopy_start = memx_start + nmemx
    nxcopy = (2 * MB) // 65536
    cnt_start = xcopy_start + nxcopy
    ln_start = cnt_start + 1
    total_wg = ln_start + 128
    for idx, (key, K, N, kind) in enumerate(mats):
        st, nwg = ranges[idx]
        A(f"s_cmp_lt_u32 s2, {st + nwg}")
        A(f"s_cbranch_scc1 L_prep_{key}")
    A(f"s_cmp_lt_u32 s2, {memx_start}")
    A("s_cbranch_scc1 L_prep_fill")
    A(f"s_cmp_lt_u32 s2, {xcopy_start}")
    A("s_cbranch_scc1 L_prep_memx")
    A(f"s_cmp_lt_u32 s2, {cnt_start}")
    A("s_cbranch_scc1 L_prep_xcopy")
    A(f"s_cmp_lt_u32 s2, {ln_start}")
    A("s_cbranch_scc1 L_prep_cnt")
    A(f"s_cmp_lt_u32 s2, {total_wg}")
    A("s_cbranch_scc1 L_prep_ln")
    A("s_endpgm")
    for idx, (key, K, N, kind) in enumerate(mats):
        st, nwg = ranges[idx]
        A.label(f"L_prep_{key}")
        load_ptr_srd(A, key, 8, K * N * 2, 20)
        NQ = N // 8
        A(f"s_sub_u32 s3, s2, {st}")
        A("s_lshl_b32 s3, s3, 8")
        A("v_add_u32 v1, s3, v0")
        if NQ & (NQ - 1) == 0:
            sh = NQ.bit_length() - 1
            A(f"v_lshrrev_b32 v2, {sh}, v1")
            A(f"v_and_b32 v3, {NQ-1}, v1")
        else:
            m, sh = magic_div(NQ, (K // 8) * NQ)
            A(f"s_mov_b32 s18, {m}")
            A("v_mul_lo_u32 v2, s18, v1")
            A(f"v_lshrrev_b32 v2, {sh}, v2")
            A(f"s_mov_b32 s18, {NQ}")
            A("v_mul_lo_u32 v3, s18, v2")
            A("v_sub_u32 v3, v1, v3")
        A(f"s_mov_b32 s18, {N*16}")
        A("v_mul_lo_u32 v4, s18, v2")
        A("v_lshl_add_u32 v4, v3, 4, v4")
        for j in range(8):
            A(f"s_mov_b32 s19, {j*N*2}")
            A(f"buffer_load_dwordx4 v[{16+4*j}:{19+4*j}], v4, s[8:11], s19 offen")
        A("v_lshrrev_b32 v5, 2, v2")
        A("v_and_b32 v6, 3, v2")
        A("v_lshrrev_b32 v7, 2, v3")
        A("v_and_b32 v9, 3, v3")
        A("v_lshlrev_b32 v10, 6, v9")
        A("v_lshl_add_u32 v10, v6, 8, v10")
        if kind.startswith("qkv"):
            region = int(kind[3])
            A("v_lshrrev_b32 v11, 1, v7")
            A("v_and_b32 v12, 1, v7")
            A("v_lshlrev_b32 v12, 1, v12")
            A("v_mul_u32_u24 v11, 3, v11")
            A(f"v_add_u32 v11, {region}, v11")
            A("v_lshl_add_u32 v11, v11, 4, v5")
            A("v_lshl_add_u32 v11, v11, 2, v12")
            base = WQKV_F
        elif kind in ("wo", "wd"):
            KS = K // 32
            A("v_lshrrev_b32 v11, 1, v7")
            A("v_and_b32 v12, 1, v7")
            A("v_lshlrev_b32 v12, 1, v12")
            A(f"v_mul_u32_u24 v11, {KS}, v11")
            A("v_add_u32 v11, v11, v5")
            A("v_lshl_add_u32 v11, v11, 2, v12")
            base = WO_F if kind == "wo" else WD_F
        else:
            gu = int(kind[2])
            A("v_lshl_add_u32 v11, v7, 4, v5")
            A("v_lshlrev_b32 v11, 2, v11")
            A(f"v_add_u32 v11, {2*gu}, v11")
            base = WGU_F
        A("v_lshl_add_u32 v10, v11, 10, v10")
        A(f"s_mov_b32 s19, {base}")
        A("s_waitcnt vmcnt(0)")
        for r in range(8):
            dw = r >> 1; sel = "s16" if (r & 1) == 0 else "s17"
            for d in range(4):
                lo = 16 + 4 * (2 * d) + dw; hi = 16 + 4 * (2 * d + 1) + dw
                A(f"v_perm_b32 v{48+4*r+d}, v{hi}, v{lo}, {sel}")
            A(f"buffer_store_dwordx4 v[{48+4*r}:{51+4*r}], v10, s[4:7], s19 offen offset:{(r>>2)*1024 + 16*(r&3)}")
        A("s_endpgm")
    A.label("L_prep_fill")
    A(f"s_sub_u32 s3, s2, {fill_start}")
    A("s_lshl_b32 s3, s3, 16")
    A(f"s_add_u32 s3, s3, {PART}")
    A("v_lshlrev_b32 v1, 4, v0")
    for i in range(4): A(f"v_mov_b32 v{4+i}, -1")
    for i in range(16):
        A(f"buffer_store_dwordx4 v[4:7], v1, s[4:7], s3 offen")
        if i < 15: A("s_add_u32 s3, s3, 4096")
    A("s_endpgm")
    A.label("L_prep_cnt")
    A(f"s_mov_b32 s3, {CNT}")
    A("v_lshlrev_b32 v1, 4, v0")
    for i in range(4): A(f"v_mov_b32 v{4+i}, 0")
    for i in range(16):
        A(f"buffer_store_dwordx4 v[4:7], v1, s[4:7], s3 offen")
        if i < 15: A("s_add_u32 s3, s3, 4096")
    A("s_endpgm")
    A.label("L_prep_ln")
    load_ptr_srd(A, "x", 8, 2 * MB, 20)
    A(f"s_sub_u32 s3, s2, {ln_start}")
    ln_body(A, "s[8:11]", 0, False)
    A("s_endpgm")
    A.label("L_prep_xcopy")
    load_ptr_srd(A, "x", 8, 2 * MB, 20)
    A(f"s_sub_u32 s3, s2, {xcopy_start}")
    A("s_lshl_b32 s3, s3, 16")
    A(f"s_add_u32 s18, s3, {XR}")
    A("v_lshlrev_b32 v1, 4, v0")
    for i in range(16):
        A(f"buffer_load_dwordx4 v[{4+4*i}:{7+4*i}], v1, s[8:11], s3 offen")
        if i < 15: A("s_add_u32 s3, s3, 4096")
    for i in range(16):
        A(f"s_waitcnt vmcnt({15-i})" if i == 0 else "s_nop 0")
        A(f"s_waitcnt vmcnt(15)")
        A(f"buffer_store_dwordx4 v[{4+4*i}:{7+4*i}], v1, s[4:7], s18 offen")
        if i < 15: A("s_add_u32 s18, s18, 4096")
    A("s_endpgm")
    A.label("L_prep_memx")
    load_ptr_srd(A, "mem0", 8, 8192, 20)
    A(f"s_sub_u32 s3, s2, {memx_start}")
    A("s_lshl_b32 s3, s3, 12")
    A("v_lshlrev_b32 v1, 4, v0")
    A("v_add_u32 v1, s3, v1")
    A(f"v_subrev_u32 v2, {MEMX_LAYER}, v1")
    A(f"v_cmp_gt_u32 vcc, {MEMX_LAYER}, v1")
    A("v_cndmask_b32 v2, v2, v1, vcc")
    A("v_lshrrev_b32 v3, 6, v2")
    A("v_bfe_u32 v4, v2, 3, 3")
    A("v_lshlrev_b32 v5, 10, v4")
    A("v_lshl_add_u32 v5, v3, 3, v5")
    A("buffer_load_dwordx2 v[8:9], v5, s[8:11], 0 offen")
    A("buffer_load_dwordx2 v[10:11], v5, s[8:11], 0 offen offset:1024")
    A("s_waitcnt vmcnt(0)")
    A(f"v_cmp_gt_u32 vcc, 8192, v2")
    for i in range(4):
        A(f"v_min_u32 v{8+i}, -2, v{8+i}")
        A(f"v_cndmask_b32 v{8+i}, -1, v{8+i}, vcc")
    A(f"v_cmp_gt_u32 vcc, {memx_total}, v1")
    A("s_and_saveexec_b64 s[22:23], vcc")
    A("s_cbranch_execz L_prep_end")
    A(f"s_mov_b32 s19, {MEMX}")
    A("buffer_store_dwordx4 v[8:11], v1, s[4:7], s19 offen")
    A.label("L_prep_end")
    A("s_endpgm")
    return name, A, total_wg, 80

WOL = 0
MEML = 131072
MROW = 1088
ZROW = MEML + 8 * MROW
SCL = ZROW + 1024
OL = SCL + 12288
MEGA_LDS = OL + 4096
assert MEGA_LDS <= 163840
END = "L_mega_end"
RDV = CNT + 0xC000
SETUP_CNT = CNT + 0xE000
TMO = 0x400000

def stamp(A, idx):
    if not PROF: return
    A("s_memtime s[44:45]")
    A("s_waitcnt lgkmcnt(0)")
    A("s_sub_u32 s46, s44, s47")
    A(f"s_add_u32 s{80+idx}, s{80+idx}, s46")
    A("s_mov_b32 s47, s44")

def rendezvous(A, nwg=256):
    A(f"s_mov_b32 s17, {RDV}")
    A("s_getreg_b32 s14, hwreg(HW_REG_XCC_ID)")
    A("s_and_b32 s14, s14, 7")
    A("v_lshrrev_b32 v1, 6, v0")
    A("v_readfirstlane_b32 s13, v1")
    A("s_cmp_lg_u32 s13, 0")
    A("s_cbranch_scc1 L_rv_wait")
    A("s_lshl_b32 s15, s14, 8")
    A("v_mov_b32 v1, s15")
    A("v_mov_b32 v2, 1")
    A("s_mov_b64 exec, 1")
    A("buffer_atomic_add v2, v1, s[4:7], s17 offen sc0")
    A("s_waitcnt vmcnt(0)")
    A("v_mov_b32 v1, 0")
    A("ds_write_b32 v1, v2")
    A("s_mov_b64 exec, -1")
    A("s_waitcnt lgkmcnt(0)")
    A.label("L_rv_wait")
    A("s_barrier")
    A("v_mov_b32 v1, 0")
    A("ds_read_b32 v3, v1")
    A("v_and_b32 v4, 7, v0")
    A("v_lshlrev_b32 v4, 8, v4")
    A("s_mov_b32 s26, 0")
    A.label("L_rv_poll")
    A("buffer_load_dword v5, v4, s[4:7], s17 offen sc1")
    A("s_add_u32 s26, s26, 1")
    A(f"s_cmp_gt_u32 s26, {TMO}")
    A(f"s_cbranch_scc1 {END}")
    A("s_waitcnt vmcnt(0) lgkmcnt(0)")
    for x in range(8): A(f"v_readlane_b32 s{32+x}, v5, {x}")
    A("s_add_u32 s15, s32, s33")
    for x in range(2, 8): A(f"s_add_u32 s15, s15, s{32+x}")
    A(f"s_cmp_lg_u32 s15, {nwg}")
    A("s_cbranch_scc1 L_rv_poll")
    A("v_readfirstlane_b32 s12, v3")
    A("s_mov_b32 s30, 0")
    A("s_mov_b32 s31, 0")
    for x in range(8):
        A(f"s_cmp_lt_u32 {x}, s14")
        A(f"s_cselect_b32 s15, s{32+x}, 0")
        A("s_add_u32 s12, s12, s15")
        A(f"s_add_u32 s16, s31, s{32+x}")
        for c in range(2):
            A(f"s_cmp_le_u32 s31, {32*c}")
            A(f"s_cselect_b32 s15, {1<<c}, 0")
            A(f"s_cmp_ge_u32 s16, {32*c+32}")
            A(f"s_cselect_b32 s15, s15, 0")
            A("s_or_b32 s30, s30, s15")
        A("s_mov_b32 s31, s16")
    A("s_barrier")

def poll_counter(A, tag, soff_reg, expected, only_wave0=True):
    if only_wave0:
        A("s_cmp_lg_u32 s13, 0")
        A(f"s_cbranch_scc1 L_pc_done_{tag}")
    A("s_mov_b32 s26, 0")
    A("v_mov_b32 v126, 0")
    A.label(f"L_pc_{tag}")
    A(f"buffer_load_dword v127, v126, s[4:7], {soff_reg} offen sc1")
    A("s_add_u32 s26, s26, 1")
    A(f"s_cmp_gt_u32 s26, {TMO}")
    A(f"s_cbranch_scc1 {END}")
    A("s_waitcnt vmcnt(0)")
    A("v_readfirstlane_b32 s27, v127")
    A(f"s_cmp_ge_u32 s27, {expected}")
    A(f"s_cbranch_scc1 L_pc_done_{tag}")
    A("s_sleep 4" if only_wave0 else "s_sleep 1")
    A(f"s_branch L_pc_{tag}")
    A.label(f"L_pc_done_{tag}")
    if only_wave0:
        A("s_barrier")
        if PROF:
            A("s_memrealtime s[76:77]")
            A("s_waitcnt lgkmcnt(0)")

def poll_counter2(A, tag, soffA, expA, soffB, expB):
    A("s_cmp_lg_u32 s13, 0")
    A(f"s_cbranch_scc1 L_pc_done_{tag}")
    A("s_mov_b32 s26, 0")
    A(f"s_sub_u32 s23, {soffB}, {soffA}")
    A("v_mov_b32 v126, 0")
    A("v_writelane_b32 v126, s23, 1")
    A.label(f"L_pc_{tag}")
    A(f"buffer_load_dword v127, v126, s[4:7], {soffA} offen sc1")
    A("s_add_u32 s26, s26, 1")
    A(f"s_cmp_gt_u32 s26, {TMO}")
    A(f"s_cbranch_scc1 {END}")
    A("s_waitcnt vmcnt(0)")
    A("v_readlane_b32 s27, v127, 0")
    A("v_readlane_b32 s23, v127, 1")
    A(f"s_cmp_ge_u32 s27, {expA}")
    A("s_cselect_b32 s27, 1, 0")
    A(f"s_cmp_ge_u32 s23, {expB}")
    A("s_cselect_b32 s23, 1, 0")
    A("s_and_b32 s27, s27, s23")
    A("s_cmp_eq_u32 s27, 1")
    A(f"s_cbranch_scc1 L_pc_done_{tag}")
    A("s_sleep 4")
    A(f"s_branch L_pc_{tag}")
    A.label(f"L_pc_done_{tag}")
    A("s_barrier")

PTR = dict(wq=84, wk=86, wv=88, wo=90, wg=92, wu=94, wd=96)
WBYTES = dict(wq=4*MB, wk=4*MB, wv=4*MB, wo=4*MB, wg=512*1792*2, wu=512*1792*2, wd=1792*512*2)

def raw_srd(A, key):
    srd(A, 8, PTR[key], WBYTES[key])

def tr_load(A, rs, nk, nt, dst, stage_sreg, VA, VB, C, post=None):
    pitch = nt * 32
    lpr = nt * 2
    rows_per = 64 // lpr
    nld = 32 // rows_per
    sh = lpr.bit_length() - 1
    A(f"v_lshrrev_b32 v2, {sh}, v14")
    A(f"s_mov_b32 s23, {rs}")
    A("v_mul_lo_u32 v2, s23, v2")
    A(f"v_and_b32 v3, {lpr-1}, v14")
    A("v_lshl_add_u32 v2, v3, 4, v2")
    A("v_lshlrev_b32 v3, 4, v14")
    A(f"v_add_u32 v3, {stage_sreg}, v3")
    A("v_lshrrev_b32 v5, 4, v14")
    A("v_bfe_u32 v6, v14, 2, 2")
    A("v_lshl_add_u32 v5, v5, 3, v6")
    A(f"v_mul_u32_u24 v5, {pitch}, v5")
    A("v_and_b32 v6, 3, v14")
    A("v_lshl_add_u32 v5, v6, 4, v5")
    A(f"v_add_u32 v5, {stage_sreg}, v5")
    chunks = [list(range(k, min(k + C, nk))) for k in range(0, nk, C)]
    def issue(ci):
        V = VA if ci % 2 == 0 else VB
        n = 0
        for kk in chunks[ci]:
            for i in range(nld):
                A(f"buffer_load_dwordx4 v[{V+4*n}:{V+4*n+3}], v2, s[8:11], s15 offen")
                A(f"s_add_u32 s15, s15, {rows_per*rs}")
                n += 1
        return n
    issue(0)
    for ci, ch in enumerate(chunks):
        V = VA if ci % 2 == 0 else VB
        nxt = issue(ci + 1) if ci + 1 < len(chunks) else 0
        A(f"s_waitcnt vmcnt({nxt})")
        for n in range(len(ch) * nld):
            A(f"ds_write_b128 v3, v[{V+4*n}:{V+4*n+3}] offset:{n*1024}")
        A("s_waitcnt lgkmcnt(0)")
        for q, kk in enumerate(ch):
            for t in range(nt):
                kind, r = dst(kk, t)
                off = q * nt * 1024 + 64 * (t >> 1) + 8 * (t & 1)
                A(f"ds_read_b64_tr_b16 {kind}[{r}:{r+1}], v5 offset:{off}")
                A(f"ds_read_b64_tr_b16 {kind}[{r+2}:{r+3}], v5 offset:{off + 4*pitch}")
        A("s_waitcnt lgkmcnt(0)")
        if post:
            for kk in ch:
                for t in range(nt): post(kk, t, dst(kk, t))
            A("s_waitcnt lgkmcnt(0)")

def gen_chain_role(A):
    MEMF = 16; ACC = 80; KX = 104; VX = 112; T = 120
    A("s_lshr_b32 s42, s12, 5")
    A("s_and_b32 s12, s12, 31")
    A(f"s_mul_i32 s43, s42, {LSTRIDE}")
    A("v_and_b32 v14, 63, v0")
    A("v_lshlrev_b32 v1, 4, v14")
    A("v_lshlrev_b32 v13, 3, v14")
    A("v_and_b32 v15, 15, v14")
    def wreg(ti, kk):
        if ti < 4: return a((ti * 16 + kk) * 4, 4)
        return v(128 + ((ti - 4) * 16 + kk) * 4, 4)
    A("s_mul_i32 s16, s13, 6144")
    A(f"s_add_u32 s16, s16, {MEML}")
    for region, key in enumerate(("wq", "wk", "wv")):
        raw_srd(A, key)
        A("s_lshl_b32 s15, s12, 8")
        A("s_lshl_b32 s14, s13, 6")
        A("s_add_u32 s15, s15, s14")
        def dst(kk, t, region=region):
            ti = region * 2 + t
            return ("a", (ti * 16 + kk) * 4) if ti < 4 else ("v", 128 + ((ti - 4) * 16 + kk) * 4)
        tr_load(A, 8192, 16, 2, dst, "s16", 16, 40, 3)
    A("s_lshl_b32 s15, s13, 15")
    A("v_add_u32 v9, s15, v1")
    raw_srd(A, "wo")
    for half in range(2):
        A("s_lshl_b32 s15, s12, 17")
        A("s_lshl_b32 s14, s13, 8")
        A("s_add_u32 s15, s15, s14")
        A(f"s_add_u32 s15, s15, {128*half}")
        def dst(kk, t): return ("v", 80 + 4 * t)
        def post(kk, t, r, half=half):
            A(f"ds_write_b128 v9, v[{r[1]}:{r[1]+3}] offset:{((half*4+t)*4+kk)*1024}")
        tr_load(A, 1024, 4, 4, dst, "s16", 16, 40, 1, post)
    A("s_barrier")
    for i in range(4): A(f"v_mov_b32 v{T+i}, 0")
    A(f"v_add_u32 v2, {ZROW}, v1")
    A(f"ds_write_b128 v2, v[{T}:{T+3}]")
    A("v_lshrrev_b32 v120, 4, v14")
    A("s_lshl_b32 s15, s13, 11")
    A("v_add_u32 v2, s15, v1")
    A("v_and_b32 v3, 3, v14")
    A(f"v_mul_u32_u24 v3, {2*MROW}, v3")
    A("v_lshrrev_b32 v4, 2, v14")
    A("v_lshl_add_u32 v3, v4, 3, v3")
    A("s_lshl_b32 s15, s13, 8")
    A(f"s_add_u32 s15, s15, {MEML}")
    A("v_add_u32 v3, s15, v3")
    A(f"v_mul_u32_u24 v4, {MROW}, v15")
    A(f"v_add_u32 v4, {MEML}, v4")
    A(f"v_mov_b32 v5, {ZROW}")
    A("v_cmp_gt_u32 vcc, 8, v15")
    A("v_cndmask_b32 v4, v5, v4, vcc")
    A("v_lshl_add_u32 v4, v120, 4, v4")
    A("s_mul_i32 s15, s13, 3072")
    A(f"s_add_u32 s15, s15, {SCL}")
    A("v_add_u32 v5, s15, v1")
    for (x, reg) in ((1, 6), (2, 122), (3, 123)):
        A(f"s_xor_b32 s15, s13, {x}")
        A("s_mul_i32 s15, s15, 3072")
        A(f"s_add_u32 s15, s15, {SCL}")
        A(f"v_add_u32 v{reg}, s15, v1")
    A("s_lshl_b32 s15, s13, 10")
    A(f"s_add_u32 s15, s15, {OL}")
    A("v_add_u32 v7, s15, v1")
    A(f"v_add_u32 v8, {OL}, v1")
    A("s_lshl_b32 s15, s13, 17")
    A("s_lshl_b32 s14, s12, 9")
    A("s_add_u32 s15, s15, s14")
    A("v_lshlrev_b32 v10, 7, v120")
    A("v_lshl_add_u32 v10, v15, 4, v10")
    A("v_add_u32 v10, s15, v10")
    A("s_lshl_b32 s15, s12, 14")
    A("s_lshl_b32 s14, s13, 7")
    A("s_add_u32 s15, s15, s14")
    A("v_lshrrev_b32 v11, 3, v14")
    A("v_lshlrev_b32 v11, 9, v11")
    A("v_and_b32 v12, 7, v14")
    A("v_lshl_add_u32 v11, v12, 4, v11")
    A("v_add_u32 v11, s15, v11")
    A("s_lshr_b32 s14, s12, 1")
    A("s_lshl_b32 s14, s14, 3")
    A("s_lshl_b32 s15, s13, 1")
    A("s_add_u32 s14, s14, s15")
    A("s_and_b32 s15, s12, 1")
    A("s_add_u32 s14, s14, s15")
    A("s_lshl_b32 s15, s14, 6")
    A("v_add_u32 v12, s15, v13")
    A(f"s_mul_i32 s16, s42, {MEMX_LAYER}")
    A(f"s_add_u32 s16, s16, {MEMX}")
    A("s_lshl_b32 s38, s42, 21")
    A(f"s_add_u32 s38, s38, {PART}")
    A("s_mov_b32 s17, s38")
    A("s_lshl_b32 s14, s12, 2")
    A("s_add_u32 s14, s14, s13")
    A("s_lshl_b32 s14, s14, 10")
    A("s_add_u32 s14, s14, s43")
    A(f"s_add_u32 s18, s14, {KF}")
    A(f"s_add_u32 s20, s14, {KM}")
    A(f"s_add_u32 s21, s14, {VM}")
    A("s_sub_u32 s14, s14, s43")
    A("s_lshl_b32 s15, s14, 1")
    A("s_add_u32 s15, s15, s43")
    A(f"s_add_u32 s19, s15, {VF}")
    A("s_lshl_b32 s39, s42, 12")
    A(f"s_add_u32 s39, s39, {CHAIN_CNT}")
    A("s_lshl_b32 s40, s42, 14")
    A(f"s_add_u32 s40, s40, {cnt_off(0, 7, 0)}")
    A("s_mov_b32 s24, 0x00ff00ff")
    A("s_mov_b32 s25, 0x00ff00ff")
    A(f"s_mov_b32 s28, {SCALE_HEX}")
    A(f"s_mov_b32 s29, {SCALE_HEX}")
    A(f"s_mov_b32 s33, {LOG2E_HEX}")
    A(f"s_mov_b32 s31, {LOG2E_HEX | 0x80000000}")
    A("s_mov_b32 s36, -1")
    A("s_mov_b32 s37, 0")
    A("v_mov_b32 v14, v122")
    A("v_mov_b32 v15, v123")
    A("v_mov_b32 v0, 0xf149f2ca")
    A("s_mov_b32 s14, 0")
    A("s_mov_b32 s48, 0")
    A("s_mov_b32 s41, s17")
    if PROF:
        for i in range(10): A(f"s_mov_b32 s{80+i}, 0")
        A("s_memtime s[44:45]")
        A("s_waitcnt lgkmcnt(0)")
        A("s_mov_b32 s47, s44")
    A("s_waitcnt vmcnt(0) lgkmcnt(0)")
    A("s_barrier")
    A("s_cmp_lg_u32 s13, 0")
    A("s_cbranch_scc1 L_ch_nosig")
    A(f"s_mov_b32 s15, {SETUP_CNT}")
    A("v_mov_b32 v120, 0")
    A("v_mov_b32 v121, 1")
    A("s_mov_b64 exec, 1")
    A("buffer_atomic_add v121, v120, s[4:7], s15 offen")
    A("s_mov_b64 exec, -1")
    A.label("L_ch_nosig")
    A("s_lshr_b32 s15, s30, s42")
    A("s_and_b32 s15, s15, 1")
    A("s_cmp_eq_u32 s15, 1")
    A("s_cbranch_scc1 L_step_loc")
    for mode in ("glb", "loc"):
        SC = " sc1" if mode == "glb" else ""
        L = lambda x: f"L_{x}_{mode}"
        def kvload():
            A(f"buffer_load_dwordx4 v[{KX}:{KX+3}], v1, s[4:7], s18 offen sc1")
            A("s_add_u32 s22, s18, 131072")
            A(f"buffer_load_dwordx4 v[{KX+4}:{KX+7}], v1, s[4:7], s22 offen sc1")
            A(f"buffer_load_dwordx4 v[{VX}:{VX+3}], v1, s[4:7], s19 offen sc1")
            A(f"buffer_load_dwordx4 v[{VX+4}:{VX+7}], v1, s[4:7], s19 offen offset:1024 sc1")
        A.label(L("step"))
        A("s_cmp_eq_u32 s48, 1")
        A(f"s_cbranch_scc1 {L('kvok')}")
        A("s_lshr_b32 s15, s14, 1")
        A("s_lshl_b32 s15, s15, 6")
        A("s_add_u32 s15, s15, s40")
        poll_counter(A, "kv_" + mode, "s15", 32, only_wave0=False)
        kvload()
        A.label(L("kvok"))
        A("s_add_u32 s15, s14, 1")
        A("s_lshr_b32 s15, s15, 1")
        A("s_min_u32 s15, s15, 31")
        A("s_lshl_b32 s15, s15, 6")
        A("s_add_u32 s15, s15, s40")
        A(f"v_mov_b32 v{ACC+1}, 0")
        A(f"buffer_load_dword v{ACC+2}, v{ACC+1}, s[4:7], s15 offen sc1")
        A("s_mov_b32 s26, 0")
        A.label(L("poll_mem"))
        A(f"buffer_load_dwordx4 v[{T}:{T+3}], v2, s[4:7], s16 offen sc1")
        A(f"buffer_load_dwordx4 v[{T+4}:{T+7}], v2, s[4:7], s16 offen offset:1024 sc1")
        A("s_add_u32 s26, s26, 1")
        A(f"s_cmp_gt_u32 s26, {TMO}")
        A(f"s_cbranch_scc1 {END}")
        A("s_waitcnt vmcnt(0)")
        A(f"v_max3_u32 v{ACC}, v{T}, v{T+1}, v{T+2}")
        A(f"v_max3_u32 v{ACC}, v{ACC}, v{T+3}, v{T+4}")
        A(f"v_max3_u32 v{ACC}, v{ACC}, v{T+5}, v{T+6}")
        A(f"v_max_u32 v{ACC}, v{ACC}, v{T+7}")
        A(f"v_cmp_eq_u32 vcc, -1, v{ACC}")
        A("s_nop 4")
        A(f"s_cbranch_vccnz {L('poll_mem')}")
        stamp(A, 0)
        if PROF:
            A("s_memrealtime s[44:45]")
            A("s_waitcnt lgkmcnt(0)")
            A(f"v_mov_b32 v{ACC+3}, s44")
            A("s_lshl_b32 s15, s42, 6")
            A("s_add_u32 s15, s15, s14")
            A("s_lshl_b32 s15, s15, 7")
            A("s_lshl_b32 s46, s12, 2")
            A("s_add_u32 s15, s15, s46")
            A(f"s_add_u32 s15, s15, {PROFB + 3*MB}")
            A(f"buffer_store_dword v{ACC+3}, v{ACC+1}, s[4:7], s15 offen")
        A(f"v_readfirstlane_b32 s49, v{ACC+2}")
        A(f"ds_write_b64 v3, v[{T}:{T+1}]")
        A(f"ds_write_b64 v3, v[{T+2}:{T+3}] offset:{MROW}")
        A(f"ds_write_b64 v3, v[{T+4}:{T+5}] offset:128")
        A(f"ds_write_b64 v3, v[{T+6}:{T+7}] offset:{MROW+128}")
        A("s_waitcnt lgkmcnt(0)")
        A("s_barrier")
        for kk in range(16):
            A(f"ds_read_b128 v[{MEMF+4*kk}:{MEMF+4*kk+3}], v4 offset:{kk*64}")
        def qkv_mfma(ti, kk):
            acc = v(ACC + 4 * ti, 4); m = v(MEMF + 4 * kk, 4); w = wreg(ti, kk)
            c = "0" if kk == 0 else acc
            if ti < 4: return f"v_mfma_f32_16x16x32_bf16 {acc}, {w}, {m}, {c}"
            else:      return f"v_mfma_f32_16x16x32_bf16 {acc}, {m}, {w}, {c}"
        for kk in range(16):
            A(f"s_waitcnt lgkmcnt({15-kk})")
            for ti in range(4): A(qkv_mfma(ti, kk))
            if kk == 3:
                A("s_cmp_eq_u32 s14, 0")
                A(f"s_cbranch_scc1 {L('nodefer')}")
                for i in range(4): A(f"v_mov_b32 v{T+i}, -1")
                A(f"v_mov_b32 v{T+4}, 1")
                A(f"v_mov_b32 v{T+5}, 0")
                for i in range(4):
                    A(f"s_add_u32 s22, s41, {i*4096}")
                    A(f"buffer_store_dwordx4 v[{T}:{T+3}], v11, s[4:7], s22 offen{SC}")
                A("s_mov_b64 exec, 1")
                A(f"buffer_atomic_add v{T+4}, v{T+5}, s[4:7], s39 offen")
                A("s_mov_b64 exec, -1")
                A("s_add_u32 s39, s39, 64")
                A.label(L("nodefer"))
        vm = [qkv_mfma(ti, kk) for kk in range(16) for ti in (4, 5)]
        stamp(A, 1)
        QP = 120; KP = 124; S = 80
        A(vm[0]); A(vm[1]); A(vm[2]); A(vm[3])
        for i, dst in enumerate((QP, KP)):
            for half in range(2):
                b = ACC + 8 * i + 4 * half
                A(f"v_cvt_pk_bf16_f32 v{dst+2*half}, v{b}, v{b+1}")
                A(f"v_cvt_pk_bf16_f32 v{dst+2*half+1}, v{b+2}, v{b+3}")
        A(f"v_mfma_f32_16x16x32_bf16 v[{S}:{S+3}], v[{KP}:{KP+3}], v[{QP}:{QP+3}], 0")
        A(f"v_mfma_f32_16x16x32_bf16 v[{S+4}:{S+7}], v[{KX}:{KX+3}], v[{QP}:{QP+3}], 0")
        A(f"v_mfma_f32_16x16x32_bf16 v[{S+8}:{S+11}], v[{KX+4}:{KX+7}], v[{QP}:{QP+3}], 0")
        A(f"buffer_store_dwordx4 v[{KP}:{KP+3}], v1, s[4:7], s20 offen sc1")
        for i in range(4, 8): A(vm[i])
        for i in range(3):
            A(f"ds_write_b128 v5, v[{S+4*i}:{S+4*i+3}] offset:{i*1024}")
        for i in range(8, 16): A(vm[i])
        A("s_waitcnt lgkmcnt(0)")
        A("s_barrier")
        stamp(A, 2)
        R1 = 16; R2 = 28; R3r = [40, 44, 92]
        for i in range(3): A(f"ds_read_b128 v[{R1+4*i}:{R1+4*i+3}], v6 offset:{i*1024}")
        for i in range(3): A(f"ds_read_b128 v[{R2+4*i}:{R2+4*i+3}], v14 offset:{i*1024}")
        for i in range(3): A(f"ds_read_b128 v[{R3r[i]}:{R3r[i]+3}], v15 offset:{i*1024}")
        for i in range(16, 22): A(vm[i])
        va = []
        va.append("s_waitcnt lgkmcnt(6)")
        for i in range(0, 12, 2): va.append(f"v_pk_add_f32 v[{S+i}:{S+i+1}], v[{S+i}:{S+i+1}], v[{R1+i}:{R1+i+1}]")
        va.append("s_waitcnt lgkmcnt(0)")
        for i in range(0, 12, 2):
            r3 = R3r[i // 4] + (i % 4)
            va.append(f"v_pk_add_f32 v[{R2+i}:{R2+i+1}], v[{R2+i}:{R2+i+1}], v[{r3}:{r3+1}]")
        for i in range(0, 12, 2): va.append(f"v_pk_add_f32 v[{S+i}:{S+i+1}], v[{S+i}:{S+i+1}], v[{R2+i}:{R2+i+1}]")
        TT = 16
        for i in range(0, 12, 2): va.append(f"v_cvt_pk_bf16_f32 v{TT+i//2}, v{S+i}, v{S+i+1}")
        for i in range(0, 12, 2):
            va.append(f"v_lshlrev_b32 v{S+i}, 16, v{TT+i//2}")
            va.append(f"v_and_b32 v{S+i+1}, 0xffff0000, v{TT+i//2}")
        for i in range(0, 12, 2): va.append(f"v_pk_mul_f32 v[{S+i}:{S+i+1}], v[{S+i}:{S+i+1}], s[28:29]")
        for i in range(0, 12, 2): va.append(f"v_cvt_pk_bf16_f32 v{TT+i//2}, v{S+i}, v{S+i+1}")
        for i in range(0, 12, 2):
            va.append(f"v_lshlrev_b32 v{S+i}, 16, v{TT+i//2}")
            va.append(f"v_and_b32 v{S+i+1}, 0xffff0000, v{TT+i//2}")
        for i in range(4): va.append(f"v_cndmask_b32 v{S+i}, v0, v{S+i}, s[36:37]")
        MX = 22; MT = 23
        va.append(f"v_max3_f32 v{MX}, v{S}, v{S+1}, v{S+2}")
        va.append(f"v_max3_f32 v{MT}, v{S+3}, v{S+4}, v{S+5}")
        va.append(f"v_max3_f32 v{MX}, v{MX}, v{S+6}, v{S+7}")
        va.append(f"v_max3_f32 v{MT}, v{MT}, v{S+8}, v{S+9}")
        va.append(f"v_max3_f32 v{MX}, v{MX}, v{S+10}, v{S+11}")
        va.append(f"v_max_f32 v{MX}, v{MX}, v{MT}")
        rest = vm[22:]
        k = 0
        for idx, ins in enumerate(va):
            A(ins)
            if idx % 3 == 2 and k < len(rest):
                A(rest[k]); k += 1
        while k < len(rest): A(rest[k]); k += 1
        xlane(A, MX, MT, ("p16", "p32"), "v_max_f32")
        A(f"v_mul_f32 v{MX}, s31, v{MX}")
        for i in range(12): A(f"v_fma_f32 v{S+i}, v{S+i}, s33, v{MX}")
        WOF = 32; VP = 24
        for half in range(2):
            b = ACC + 16 + 4 * half
            A(f"v_cvt_pk_bf16_f32 v{VP+2*half}, v{b}, v{b+1}")
            A(f"v_cvt_pk_bf16_f32 v{VP+2*half+1}, v{b+2}, v{b+3}")
        for i in range(12): A(f"v_exp_f32 v{S+i}, v{S+i}")
        for t in range(3):
            for j in range(4):
                A(f"ds_read_b128 v[{WOF+16*t+4*j}:{WOF+16*t+4*j+3}], v9 offset:{(t*4+j)*1024}")
        A(f"buffer_store_dwordx2 v[{VP}:{VP+1}], v13, s[4:7], s21 offen sc1")
        A(f"buffer_store_dwordx2 v[{VP+2}:{VP+3}], v13, s[4:7], s21 offen offset:512 sc1")
        for i in range(0, 12, 4):
            A(f"v_pk_add_f32 v[{TT+i//2}:{TT+i//2+1}], v[{S+i}:{S+i+1}], v[{S+i+2}:{S+i+3}]")
        A(f"v_pk_add_f32 v[{TT}:{TT+1}], v[{TT}:{TT+1}], v[{TT+2}:{TT+3}]")
        A(f"v_pk_add_f32 v[{TT}:{TT+1}], v[{TT}:{TT+1}], v[{TT+4}:{TT+5}]")
        A(f"v_add_f32 v{MX}, v{TT}, v{TT+1}")
        xlane(A, MX, MT, ("p16", "p32"))
        A(f"v_rcp_f32 v{MX}, v{MX}")
        A(f"v_mov_b32 v{MT}, v{MX}")
        for i in range(0, 12, 2): A(f"v_pk_mul_f32 v[{S+i}:{S+i+1}], v[{S+i}:{S+i+1}], v[{MX}:{MX+1}]")
        PM = 16; PT = 18
        A(f"v_cvt_pk_bf16_f32 v{PM}, v{S}, v{S+1}")
        A(f"v_cvt_pk_bf16_f32 v{PM+1}, v{S+2}, v{S+3}")
        for i in range(4): A(f"v_cvt_pk_bf16_f32 v{PT+i}, v{S+4+2*i}, v{S+5+2*i}")
        O = 96
        for t in range(2):
            A(f"v_mfma_f32_16x16x32_bf16 v[{O+4*t}:{O+4*t+3}], v[{VX+4*t}:{VX+4*t+3}], v[{PT}:{PT+3}], 0")
        for t in range(2):
            A(f"v_mfma_f32_16x16x16_bf16 v[{O+4*t}:{O+4*t+3}], v[{VP+2*t}:{VP+2*t+1}], v[{PM}:{PM+1}], v[{O+4*t}:{O+4*t+3}]")
        for j in range(4):
            A(f"ds_read_b128 v[{80+4*j}:{83+4*j}], v9 offset:{(3*4+j)*1024}")
        A("s_add_u32 s18, s18, 262144")
        A("s_add_u32 s19, s19, 262144")
        A("s_mov_b32 s48, 0")
        A("s_cmp_lt_u32 s49, 32")
        A(f"s_cbranch_scc1 {L('nopref')}")
        A("s_cmp_ge_u32 s14, 63")
        A(f"s_cbranch_scc1 {L('nopref')}")
        A("s_mov_b32 s48, 1")
        A("s_nop 4")
        kvload()
        A.label(L("nopref"))
        OP = 120
        for t in range(2):
            A(f"v_cvt_pk_bf16_f32 v{OP+2*t}, v{O+4*t}, v{O+4*t+1}")
            A(f"v_cvt_pk_bf16_f32 v{OP+2*t+1}, v{O+4*t+2}, v{O+4*t+3}")
        A(f"ds_write_b128 v7, v[{OP}:{OP+3}]")
        A("s_waitcnt lgkmcnt(0)")
        A("s_barrier")
        stamp(A, 3)
        OFR = 16
        for j in range(4):
            A(f"ds_read_b128 v[{OFR+4*j}:{OFR+4*j+3}], v8 offset:{j*1024}")
        wof = lambda t, j: (WOF + 16 * t + 4 * j) if t < 3 else (80 + 4 * j)
        RES = [96, 100, 120, 124]
        def store_part(t, reg):
            A(f"s_add_u32 s22, s17, {t*16384}")
            A(f"buffer_store_dwordx4 v[{reg}:{reg+3}], v10, s[4:7], s22 offen{SC}")
        for j in range(4):
            A(f"s_waitcnt lgkmcnt({3-j + 4*j})")
            for t in range(4):
                acc = v(RES[t], 4)
                A(f"v_mfma_f32_16x16x32_bf16 {acc}, v[{wof(t,j)}:{wof(t,j)+3}], v[{OFR+4*j}:{OFR+4*j+3}], {'0' if j==0 else acc}")
            for t in range(4):
                A(f"ds_read_b128 v[{wof(t,j)}:{wof(t,j)+3}], v9 offset:{((t+4)*4+j)*1024}")
        A("s_mov_b64 exec, s[24:25]")
        for t in range(4): store_part(t, RES[t])
        A("s_mov_b64 exec, -1")
        for j in range(4):
            A(f"s_waitcnt lgkmcnt({12-4*j})")
            for t in range(4):
                acc = v(RES[t], 4)
                A(f"v_mfma_f32_16x16x32_bf16 {acc}, v[{wof(t,j)}:{wof(t,j)+3}], v[{OFR+4*j}:{OFR+4*j+3}], {'0' if j==0 else acc}")
        A("s_mov_b64 exec, s[24:25]")
        for t in range(4): store_part(4 + t, RES[t])
        A("s_mov_b64 exec, -1")
        stamp(A, 4)
        P = 40
        A("s_mov_b32 s26, 0")
        A.label(L("poll_part"))
        for i in range(4):
            A(f"s_add_u32 s22, s17, {i*4096}")
            A(f"buffer_load_dwordx4 v[{P+4*i}:{P+4*i+3}], v11, s[4:7], s22 offen sc1")
        A("s_add_u32 s26, s26, 1")
        A(f"s_cmp_gt_u32 s26, {TMO}")
        A(f"s_cbranch_scc1 {END}")
        A("s_waitcnt vmcnt(0)")
        A(f"v_max3_u32 v{P+16}, v{P}, v{P+1}, v{P+2}")
        for i in range(3, 15, 2): A(f"v_max3_u32 v{P+16}, v{P+16}, v{P+i}, v{P+i+1}")
        A(f"v_max_u32 v{P+16}, v{P+16}, v{P+15}")
        A(f"v_cmp_eq_u32 vcc, -1, v{P+16}")
        A("s_nop 4")
        A(f"s_cbranch_vccnz {L('poll_part')}")
        stamp(A, 5)
        for c in range(4):
            A(f"v_add_f32 v{P+c}, v{P+c}, v{P+4+c}")
            A(f"v_add_f32 v{P+8+c}, v{P+8+c}, v{P+12+c}")
        for c in range(4): A(f"v_add_f32 v{P+c}, v{P+c}, v{P+8+c}")
        for c in range(4): xlane(A, P + c, P + 16 + c)
        A(f"v_cvt_pk_bf16_f32 v{P+20}, v{P}, v{P+1}")
        A(f"v_cvt_pk_bf16_f32 v{P+21}, v{P+2}, v{P+3}")
        A(f"v_min_u32 v{P+20}, -2, v{P+20}")
        A(f"v_min_u32 v{P+21}, -2, v{P+21}")
        A("s_add_u32 s16, s16, 8192")
        A("s_mov_b64 exec, 0xff")
        A(f"buffer_store_dwordx2 v[{P+20}:{P+21}], v12, s[4:7], s16 offen{SC}")
        A("s_mov_b64 exec, -1")
        A("s_mov_b32 s41, s17")
        A("s_add_u32 s14, s14, 1")
        A("s_and_b32 s15, s14, 3")
        A("s_lshl_b32 s15, s15, 19")
        A("s_add_u32 s17, s38, s15")
        A("s_add_u32 s20, s20, 131072")
        A("s_add_u32 s21, s21, 131072")
        stamp(A, 6)
        A("s_cmp_lt_u32 s14, 64")
        A(f"s_cbranch_scc1 {L('step')}")
        A(f"v_mov_b32 v{T+4}, 1")
        A(f"v_mov_b32 v{T+5}, 0")
        A("s_mov_b64 exec, 1")
        A(f"buffer_atomic_add v{T+4}, v{T+5}, s[4:7], s39 offen")
        A("s_mov_b64 exec, -1")
        if PROF:
            A("s_lshl_b32 s15, s12, 2")
            A("s_add_u32 s15, s15, s13")
            A("s_lshl_b32 s15, s15, 6")
            A("s_lshl_b32 s16, s42, 16")
            A("s_add_u32 s15, s15, s16")
            A(f"s_add_u32 s15, s15, {PROFB}")
            A("v_mov_b32 v1, 0")
            for i in range(8):
                A(f"v_mov_b32 v2, s{80+i}")
                A(f"buffer_store_dword v2, v1, s[4:7], s15 offen offset:{4*i}")
                A("s_nop 1")
            A("v_mov_b32 v2, s30")
            A(f"buffer_store_dword v2, v1, s[4:7], s15 offen offset:32")
        A("s_endpgm")

def cnt_addr(A, dst, stage, layer_reg="s42"):
    A(f"s_lshl_b32 s{dst}, {layer_reg}, 8")
    A(f"s_add_u32 s{dst}, s{dst}, s40")
    A(f"s_lshl_b32 s{dst}, s{dst}, 6")
    A(f"s_add_u32 s{dst}, s{dst}, {cnt_off(0, stage, 0)}")

def signal(A, stage):
    A("s_waitcnt vmcnt(0) lgkmcnt(0)")
    A("s_barrier")
    A("s_cmp_lg_u32 s13, 0")
    A("s_cbranch_scc1 L_wloop")
    if PROF:
        A("s_memrealtime s[78:79]")
        A("s_waitcnt lgkmcnt(0)")
        A("v_mov_b32 v120, s72")
        A("v_mov_b32 v121, s74")
        A("v_mov_b32 v122, s76")
        A("v_mov_b32 v123, s78")
        A("v_mov_b32 v126, 0")
        A("s_mov_b64 exec, 1")
        A("buffer_store_dwordx4 v[120:123], v126, s[4:7], s69 offen")
        A("s_mov_b64 exec, -1")
        A("s_add_u32 s69, s69, 16")
    cnt_addr(A, 22, stage)
    A("v_mov_b32 v126, 0")
    A("v_mov_b32 v127, 1")
    A("s_mov_b64 exec, 1")
    A("buffer_atomic_add v127, v126, s[4:7], s22 offen")
    A("s_mov_b64 exec, -1")
    A("s_branch L_wloop")

def flush_pending(A, tag):
    A("s_cmp_eq_u32 s68, 0")
    A(f"s_cbranch_scc1 L_fp_done_{tag}")
    A("s_barrier")
    A("s_cmp_lg_u32 s13, 0")
    A(f"s_cbranch_scc1 L_fp_skip_{tag}")
    A("v_mov_b32 v124, 0")
    A("v_mov_b32 v125, 1")
    A("s_mov_b64 exec, 1")
    A("buffer_atomic_add v125, v124, s[4:7], s68 offen")
    A("s_mov_b64 exec, -1")
    A.label(f"L_fp_skip_{tag}")
    A("s_mov_b32 s68, 0")
    A.label(f"L_fp_done_{tag}")

def stage_ln(A, which):
    tag = f"ln{which}"
    if which == 0:
        A("s_cmp_eq_u32 s42, 0")
        A(f"s_cbranch_scc1 L_{tag}_nodep")
        A("s_mov_b32 s23, 0")
        cnt_addr(A, 22, 6, "s23")
        poll_counter(A, tag, "s22", 32)
        A.label(f"L_{tag}_nodep")
    else:
        cnt_addr(A, 22, 3)
        poll_counter(A, tag, "s22", 32)
    A("s_lshl_b32 s23, s42, 1")
    A(f"s_add_u32 s23, s23, {which}")
    A("s_lshl_b32 s23, s23, 21")
    A(f"s_add_u32 s19, s23, {XR}")
    A(f"s_add_u32 s18, s23, {XFA}")
    A("v_lshrrev_b32 v1, 4, v0")
    A("s_lshl_b32 s3, s40, 6")
    A("s_lshl_b32 s15, s41, 5")
    A("s_add_u32 s3, s3, s15")
    A("v_add_u32 v1, s3, v1")
    A("v_and_b32 v2, 15, v0")
    A("v_lshlrev_b32 v3, 10, v1")
    A("v_lshl_add_u32 v3, v2, 4, v3")
    for q in range(4):
        A(f"buffer_load_dwordx4 v[{16+4*q}:{19+4*q}], v3, s[4:7], s19 offen offset:{q*256} sc1")
    A("s_add_u32 s19, s19, 16384")
    for q in range(4):
        A(f"buffer_load_dwordx4 v[{64+4*q}:{67+4*q}], v3, s[4:7], s19 offen offset:{q*256} sc1")
    A("v_bfe_u32 v4, v1, 3, 2")
    A("v_and_b32 v5, 3, v1")
    A("v_lshl_add_u32 v4, v4, 2, v5")
    A("v_and_b32 v5, 3, v2")
    A("v_lshl_add_u32 v4, v5, 4, v4")
    A("v_lshlrev_b32 v4, 4, v4")
    A("v_bfe_u32 v5, v1, 2, 1")
    A("v_bfe_u32 v6, v1, 5, 1")
    A("v_lshl_add_u32 v5, v6, 1, v5")
    A("v_lshl_add_u32 v4, v5, 10, v4")
    A("v_lshrrev_b32 v5, 6, v1")
    A("v_lshrrev_b32 v6, 2, v2")
    A("v_lshl_add_u32 v5, v5, 4, v6")
    A("v_lshl_add_u32 v4, v5, 12, v4")
    for it in range(2):
        A(f"s_waitcnt vmcnt({4 if it == 0 else 4})")
        if it == 1:
            for i in range(16): A(f"v_mov_b32 v{16+i}, v{64+i}")
        ln_math(A)
        for q in range(4):
            A(f"s_add_u32 s20, s18, {q*4*4096 + it*128}")
            A(f"buffer_store_dwordx4 v[{16+4*q}:{19+4*q}], v4, s[4:7], s20 offen sc1")
    signal(A, 0 if which == 0 else 4)

XB = 8; WB = 40; TMPX = 104; ACCW = 168

def ta_prologue(A, tag, which, dep_stage, preload):
    A("v_and_b32 v4, 63, v0")
    A("v_lshlrev_b32 v4, 4, v4")
    A("s_bitcmp0_b32 s72, 16")
    A(f"s_cbranch_scc1 L_{tag}_nopre")
    A(f"s_mov_b32 s22, {SETUP_CNT}")
    poll_counter(A, tag + "_su", "s22", 64)
    preload(A)
    A.label(f"L_{tag}_nopre")
    cnt_addr(A, 22, dep_stage)
    poll_counter(A, tag, "s22", 2)
    A("v_lshlrev_b32 v1, 4, v0")
    A("s_lshl_b32 s23, s42, 1")
    A(f"s_add_u32 s23, s23, {which}")
    A("s_lshl_b32 s23, s23, 21")
    A("s_lshl_b32 s19, s40, 16")
    A("s_add_u32 s19, s19, s23")
    A(f"s_add_u32 s19, s19, {XFA}")
    for i in range(16):
        A(f"buffer_load_dwordx4 v[{TMPX+4*i}:{TMPX+4*i+3}], v1, s[4:7], s19 offen sc1")
        if i < 15: A("s_add_u32 s19, s19, 4096")
    for i in range(16):
        A(f"s_waitcnt vmcnt({15-i})")
        A(f"ds_write_b128 v1, v[{TMPX+4*i}:{TMPX+4*i+3}] offset:{i*4096}")
    A("v_mov_b32 v5, v4")
    A("s_waitcnt lgkmcnt(0)")
    A("s_barrier")

def ta_xread(A, buf, koff):
    for mt in range(4):
        A(f"ds_read_b128 v[{XB+16*buf+4*mt}:{XB+16*buf+4*mt+3}], v5 offset:{koff*4096+mt*1024}")

def ta_kloop(A, vtype):
    NB = 3
    ta_xread(A, 0, 0); ta_xread(A, 1, 1)
    for kk in range(16):
        if kk + 2 < 16: ta_xread(A, (kk + 2) % NB, kk + 2)
        lg = min(8, 4 * (15 - kk))
        A(f"s_waitcnt lgkmcnt({lg})")
        for ct in range(4):
            for mt in range(4):
                w = a((kk * 4 + ct) * 4, 4); x = v(XB + 16 * (kk % NB) + 4 * mt, 4)
                acc = v(ACCW + (ct * 4 + mt) * 4, 4)
                c = "0" if kk == 0 else acc
                if vtype: A(f"v_mfma_f32_16x16x32_bf16 {acc}, {x}, {w}, {c}")
                else:     A(f"v_mfma_f32_16x16x32_bf16 {acc}, {w}, {x}, {c}")

def preload_qkv(A):
    A("v_and_b32 v14, 63, v0")
    A(f"s_mov_b32 s8, s{PTR['wq']}")
    A(f"s_mov_b32 s9, s{PTR['wq']+1}")
    A("s_cmp_eq_u32 s18, 1")
    A(f"s_cselect_b32 s8, s{PTR['wk']}, s8")
    A(f"s_cselect_b32 s9, s{PTR['wk']+1}, s9")
    A("s_cmp_eq_u32 s18, 2")
    A(f"s_cselect_b32 s8, s{PTR['wv']}, s8")
    A(f"s_cselect_b32 s9, s{PTR['wv']+1}, s9")
    A("s_and_b32 s9, s9, 0xffff")
    A(f"s_mov_b32 s10, {4*MB}")
    A("s_mov_b32 s11, 0x00020000")
    A("s_lshl_b32 s15, s16, 7")
    A("s_lshl_b32 s24, s13, 14")
    tr_load(A, 8192, 16, 4, lambda kk, t: ("a", (kk * 4 + t) * 4), "s24", 16, 80, 4)
    A("s_barrier")

def preload_gu(A):
    A("v_and_b32 v14, 63, v0")
    A("s_lshl_b32 s24, s13, 14")
    for gu, key in enumerate(("wg", "wu")):
        raw_srd(A, key)
        A("s_lshl_b32 s15, s16, 6")
        tr_load(A, 3584, 16, 2, lambda kk, t, gu=gu: ("a", (kk * 4 + 2 * gu + t) * 4), "s24", 16, 80, 8)
    A("s_barrier")

def stage_q(A):
    A("s_and_b32 s16, s41, 15")
    A("s_lshl_b32 s16, s16, 2")
    A("s_add_u32 s16, s16, s13")
    A("s_lshr_b32 s17, s41, 4")
    A("s_add_u32 s18, s17, 1")
    A("s_cmp_eq_u32 s17, 2")
    A("s_cselect_b32 s18, 0, s18")
    A("s_mul_i32 s15, s16, 3")
    A("s_add_u32 s15, s15, s18")
    A("s_lshl_b32 s15, s15, 16")
    A(f"s_add_u32 s15, s15, {WQKV_F}")
    ta_prologue(A, "q", 0, 0, preload_qkv)
    A("s_cmp_eq_u32 s17, 1")
    A("s_cbranch_scc1 L_q_v")
    ta_kloop(A, False)
    A("s_lshl_b32 s19, s40, 7")
    A("s_lshr_b32 s20, s16, 1")
    A("s_add_u32 s19, s19, s20")
    A("s_lshl_b32 s19, s19, 2")
    A("s_and_b32 s20, s16, 1")
    A("s_lshl_b32 s20, s20, 1")
    A("s_add_u32 s19, s19, s20")
    A("s_lshl_b32 s19, s19, 10")
    A("s_add_u32 s19, s19, s43")
    A(f"s_mov_b32 s20, {KF}")
    A("s_cmp_eq_u32 s17, 2")
    A(f"s_cselect_b32 s20, {QF}, s20")
    A("s_add_u32 s19, s19, s20")
    for mt in range(4):
        for cp in range(2):
            pk = TMPX + 4 * (mt * 2 + cp)
            for half in range(2):
                b = ACCW + ((2 * cp + half) * 4 + mt) * 4
                A(f"v_cvt_pk_bf16_f32 v{pk+2*half}, v{b}, v{b+1}")
                A(f"v_cvt_pk_bf16_f32 v{pk+2*half+1}, v{b+2}, v{b+3}")
            A(f"buffer_store_dwordx4 v[{pk}:{pk+3}], v4, s[4:7], s19 offen offset:{cp*1024} sc1")
        if mt < 3: A("s_add_u32 s19, s19, 131072")
    A("s_cmp_eq_u32 s17, 2")
    A("s_cbranch_scc1 L_q_sigq")
    signal(A, 7)
    A.label("L_q_sigq")
    signal(A, 1)
    A.label("L_q_v")
    ta_kloop(A, True)
    A("s_lshl_b32 s19, s40, 6")
    A("s_lshr_b32 s20, s16, 1")
    A("s_add_u32 s19, s19, s20")
    A("s_lshl_b32 s19, s19, 3")
    A("s_and_b32 s20, s16, 1")
    A("s_lshl_b32 s20, s20, 2")
    A("s_add_u32 s19, s19, s20")
    A("s_lshl_b32 s19, s19, 10")
    A("s_add_u32 s19, s19, s43")
    A(f"s_add_u32 s19, s19, {VF}")
    for sg in range(2):
        for ct in range(4):
            pk = TMPX + 4 * (sg * 4 + ct)
            for half in range(2):
                b = ACCW + (ct * 4 + 2 * sg + half) * 4
                A(f"v_cvt_pk_bf16_f32 v{pk+2*half}, v{b}, v{b+1}")
                A(f"v_cvt_pk_bf16_f32 v{pk+2*half+1}, v{b+2}, v{b+3}")
            A(f"buffer_store_dwordx4 v[{pk}:{pk+3}], v4, s[4:7], s19 offen offset:{ct*1024} sc1")
        if sg < 1: A("s_add_u32 s19, s19, 262144")
    signal(A, 7)

def stage_q1stream(A):
    PKR = 56
    A("s_and_b32 s16, s41, 15")
    A("s_lshl_b32 s16, s16, 2")
    A("s_add_u32 s16, s16, s13")
    A("s_lshr_b32 s17, s41, 4")
    A("s_add_u32 s18, s17, 1")
    A("s_cmp_eq_u32 s17, 2")
    A("s_cselect_b32 s18, 0, s18")
    A("s_mul_i32 s15, s16, 3")
    A("s_add_u32 s15, s15, s18")
    A("s_lshl_b32 s15, s15, 16")
    A(f"s_add_u32 s15, s15, {WQKV_F}")
    A("v_and_b32 v4, 63, v0")
    A("v_lshlrev_b32 v4, 4, v4")
    A("v_lshlrev_b32 v1, 4, v0")
    A(f"s_mov_b32 s19, {XFA}")
    def xloads():
        for i in range(16):
            A(f"buffer_load_dwordx4 v[{TMPX+4*i}:{TMPX+4*i+3}], v1, s[4:7], s19 offen")
            A("s_add_u32 s19, s19, 4096")
    preload_qkv(A)
    xloads()
    A("s_lshr_b32 s20, s16, 1")
    A("s_and_b32 s21, s16, 1")
    A("s_cmp_eq_u32 s17, 1")
    A("s_cbranch_scc1 L_q1_vaddr")
    A("s_lshl_b32 s20, s20, 2")
    A("s_lshl_b32 s21, s21, 1")
    A("s_add_u32 s20, s20, s21")
    A("s_lshl_b32 s20, s20, 10")
    A(f"s_mov_b32 s21, {KF}")
    A("s_cmp_eq_u32 s17, 2")
    A(f"s_cselect_b32 s21, {QF}, s21")
    A("s_add_u32 s20, s20, s21")
    A("s_branch L_q1_addr_done")
    A.label("L_q1_vaddr")
    A("s_lshl_b32 s20, s20, 3")
    A("s_lshl_b32 s21, s21, 2")
    A("s_add_u32 s20, s20, s21")
    A("s_lshl_b32 s20, s20, 10")
    A(f"s_add_u32 s20, s20, {VF}")
    A.label("L_q1_addr_done")
    A(f"s_mov_b32 s21, {cnt_off(0, 7, 0)}")
    A("s_cmp_eq_u32 s17, 2")
    A(f"s_cselect_b32 s21, {cnt_off(0, 1, 0)}, s21")
    A("s_mov_b32 s40, 0")
    A("v_mov_b32 v2, v1")
    A("v_mov_b32 v5, v4")
    A("s_waitcnt vmcnt(0)")
    for i in range(16):
        A(f"ds_write_b128 v2, v[{TMPX+4*i}:{TMPX+4*i+3}] offset:{i*4096}")
    A("s_waitcnt lgkmcnt(0)")
    xloads()
    A("s_barrier")
    A("s_cmp_eq_u32 s17, 1")
    A("s_cbranch_scc1 L_q1_loop_v")
    for vtype in (False, True):
        tg = "v" if vtype else "qk"
        A.label(f"L_q1_loop_{tg}")
        ta_kloop(A, vtype)
        A("s_waitcnt vmcnt(0)")
        A("v_xor_b32 v2, 0x10000, v2")
        A("v_xor_b32 v5, 0x10000, v5")
        for i in range(16):
            A(f"ds_write_b128 v2, v[{TMPX+4*i}:{TMPX+4*i+3}] offset:{i*4096}")
        A("s_waitcnt lgkmcnt(0)")
        A("s_barrier")
        A("s_cmp_le_u32 s40, 1")
        A(f"s_cbranch_scc1 L_q1_nosig_{tg}")
        A("s_cmp_lg_u32 s13, 0")
        A(f"s_cbranch_scc1 L_q1_nosig2_{tg}")
        A("v_mov_b32 v6, 0")
        A("v_mov_b32 v7, 1")
        A("s_mov_b64 exec, 1")
        A("buffer_atomic_add v7, v6, s[4:7], s21 offen")
        A("s_mov_b64 exec, -1")
        A.label(f"L_q1_nosig2_{tg}")
        A("s_add_u32 s21, s21, 64")
        A.label(f"L_q1_nosig_{tg}")
        A("s_cmp_ge_u32 s40, 30")
        A(f"s_cbranch_scc1 L_q1_nold_{tg}")
        xloads()
        A.label(f"L_q1_nold_{tg}")
        A("s_mov_b32 s22, s20")
        if not vtype:
            for mt in range(4):
                for cp in range(2):
                    pk = PKR + 4 * (mt * 2 + cp)
                    for half in range(2):
                        b = ACCW + ((2 * cp + half) * 4 + mt) * 4
                        A(f"v_cvt_pk_bf16_f32 v{pk+2*half}, v{b}, v{b+1}")
                        A(f"v_cvt_pk_bf16_f32 v{pk+2*half+1}, v{b+2}, v{b+3}")
                    A(f"buffer_store_dwordx4 v[{pk}:{pk+3}], v4, s[4:7], s22 offen offset:{cp*1024} sc1")
                if mt < 3: A("s_add_u32 s22, s22, 131072")
        else:
            for sg in range(2):
                for ct in range(4):
                    pk = PKR + 4 * (sg * 4 + ct)
                    for half in range(2):
                        b = ACCW + (ct * 4 + 2 * sg + half) * 4
                        A(f"v_cvt_pk_bf16_f32 v{pk+2*half}, v{b}, v{b+1}")
                        A(f"v_cvt_pk_bf16_f32 v{pk+2*half+1}, v{b+2}, v{b+3}")
                    A(f"buffer_store_dwordx4 v[{pk}:{pk+3}], v4, s[4:7], s22 offen offset:{ct*1024} sc1")
                if sg < 1: A("s_add_u32 s22, s22, 262144")
        A("s_cmp_lg_u32 s40, 0")
        A(f"s_cbranch_scc1 L_q1_noearly_{tg}")
        A("s_waitcnt vmcnt(0)")
        A("s_barrier")
        A("s_cmp_lg_u32 s13, 0")
        A(f"s_cbranch_scc1 L_q1_early2_{tg}")
        A("v_mov_b32 v6, 0")
        A("v_mov_b32 v7, 1")
        A("s_mov_b64 exec, 1")
        A("buffer_atomic_add v7, v6, s[4:7], s21 offen")
        A("s_mov_b64 exec, -1")
        A.label(f"L_q1_early2_{tg}")
        A("s_add_u32 s21, s21, 64")
        A.label(f"L_q1_noearly_{tg}")
        A("s_add_u32 s20, s20, 524288")
        A("s_add_u32 s40, s40, 1")
        A("s_cmp_lt_u32 s40, 32")
        A(f"s_cbranch_scc1 L_q1_loop_{tg}")
        A("s_branch L_q1_fin")
    A.label("L_q1_fin")
    A("s_waitcnt vmcnt(0) lgkmcnt(0)")
    A("s_barrier")
    A("s_cmp_lg_u32 s13, 0")
    A("s_cbranch_scc1 L_wloop")
    A("v_mov_b32 v6, 0")
    A("v_mov_b32 v7, 1")
    A("s_mov_b64 exec, 1")
    A("buffer_atomic_add v7, v6, s[4:7], s21 offen")
    A("s_mov_b64 exec, -1")
    A("s_branch L_wloop")

def stage_g(A):
    A("s_lshl_b32 s16, s41, 2")
    A("s_add_u32 s16, s16, s13")
    A("s_lshl_b32 s15, s16, 16")
    A(f"s_add_u32 s15, s15, {WGU_F}")
    ta_prologue(A, "g", 1, 4, preload_gu)
    ta_kloop(A, False)
    A("s_mul_i32 s19, s40, 56")
    A("s_add_u32 s19, s19, s16")
    A("s_lshl_b32 s19, s19, 12")
    A("s_add_u32 s19, s19, s43")
    A(f"s_add_u32 s19, s19, {HF}")
    c2 = struct.unpack("<I", struct.pack("<f", -2.0 * math.sqrt(2.0 / math.pi) * math.log2(math.e)))[0]
    A("s_mov_b32 s28, 0x3d372713")
    A(f"s_mov_b32 s29, {c2}")
    Tm = 8
    for mt in range(4):
        pk = TMPX + 4 * mt
        G = [ACCW + (half * 4 + mt) * 4 + i for half in range(2) for i in range(4)]
        U = [ACCW + ((2 + half) * 4 + mt) * 4 + i for half in range(2) for i in range(4)]
        for i in range(0, 8, 2):
            A(f"v_cvt_pk_bf16_f32 v{Tm}, v{G[i]}, v{G[i+1]}")
            A(f"v_lshlrev_b32 v{G[i]}, 16, v{Tm}")
            A(f"v_and_b32 v{G[i+1]}, 0xffff0000, v{Tm}")
            A(f"v_cvt_pk_bf16_f32 v{Tm}, v{U[i]}, v{U[i+1]}")
            A(f"v_lshlrev_b32 v{U[i]}, 16, v{Tm}")
            A(f"v_and_b32 v{U[i+1]}, 0xffff0000, v{Tm}")
        for i in range(8):
            t = Tm + 1 + i
            A(f"v_mul_f32 v{t}, v{G[i]}, v{G[i]}")
            A(f"v_mul_f32 v{t}, s28, v{t}")
            A(f"v_fma_f32 v{t}, v{t}, v{G[i]}, v{G[i]}")
            A(f"v_mul_f32 v{t}, s29, v{t}")
            A(f"v_exp_f32 v{t}, v{t}")
        for i in range(8):
            t = Tm + 1 + i
            A(f"v_add_f32 v{t}, 1.0, v{t}")
            A(f"v_rcp_f32 v{t}, v{t}")
        for i in range(8):
            A(f"v_mul_f32 v{G[i]}, v{G[i]}, v{Tm+1+i}")
        for i in range(0, 8, 2):
            A(f"v_cvt_pk_bf16_f32 v{Tm}, v{G[i]}, v{G[i+1]}")
            A(f"v_lshlrev_b32 v{G[i]}, 16, v{Tm}")
            A(f"v_and_b32 v{G[i+1]}, 0xffff0000, v{Tm}")
            A(f"v_mul_f32 v{G[i]}, v{G[i]}, v{U[i]}")
            A(f"v_mul_f32 v{G[i+1]}, v{G[i+1]}, v{U[i+1]}")
            A(f"v_cvt_pk_bf16_f32 v{pk+i//2}, v{G[i]}, v{G[i+1]}")
        A(f"buffer_store_dwordx4 v[{pk}:{pk+3}], v4, s[4:7], s19 offen offset:{mt*1024} sc1")
    signal(A, 5)

def stage_attn(A):
    A("s_lshl_b32 s12, s40, 1")
    A("s_lshr_b32 s14, s41, 2")
    A("s_add_u32 s12, s12, s14")
    A("s_and_b32 s14, s41, 3")
    A("s_lshl_b32 s14, s14, 3")
    A("s_lshl_b32 s15, s13, 1")
    A("s_add_u32 s14, s14, s15")
    cnt_addr(A, 22, 1)
    cnt_addr(A, 21, 7)
    A("s_lshl_b32 s20, s42, 6")
    A("s_add_u32 s20, s20, s12")
    A("s_lshl_b32 s20, s20, 6")
    A(f"s_add_u32 s20, s20, {CHAIN_CNT}")
    A("v_and_b32 v14, 63, v0")
    A("v_lshlrev_b32 v1, 4, v14")
    A("v_lshlrev_b32 v13, 3, v14")
    A("s_sub_u32 s23, s21, s22")
    A("v_mov_b32 v126, 0")
    A("v_writelane_b32 v126, s23, 1")
    A("s_sub_u32 s23, s20, s22")
    A("v_writelane_b32 v126, s23, 2")
    A("s_mov_b32 s26, 0")
    A("buffer_load_dword v127, v126, s[4:7], s22 offen sc1")
    A("s_waitcnt vmcnt(0)")
    flush_pending(A, "a")
    A("s_branch L_a_chk")
    A.label("L_a_poll")
    A("buffer_load_dword v127, v126, s[4:7], s22 offen sc1")
    A("s_add_u32 s26, s26, 1")
    A(f"s_cmp_gt_u32 s26, {TMO}")
    A(f"s_cbranch_scc1 {END}")
    A("s_waitcnt vmcnt(0)")
    A.label("L_a_chk")
    A("v_readlane_b32 s27, v127, 0")
    A("v_readlane_b32 s23, v127, 1")
    A("v_readlane_b32 s19, v127, 2")
    A("s_cmp_ge_u32 s27, 16")
    A("s_cselect_b32 s27, 1, 0")
    A("s_cmp_ge_u32 s23, 32")
    A("s_cselect_b32 s23, 1, 0")
    A("s_and_b32 s27, s27, s23")
    A("s_cmp_eq_u32 s27, 1")
    A("s_cbranch_scc1 L_a_polled")
    A("s_sleep 4")
    A("s_branch L_a_poll")
    A.label("L_a_polled")
    S = 144; T = 168; O = 176; BI = 244
    def R(hh, kind, i, n):
        base = {"Q": 16, "K": 48, "KM": 80, "V": 96, "VM": 128}[kind]
        if hh == 0:
            r = base + i
            if kind == "V" and i >= 28: r = 240 + (i - 28)
            return v(r, n)
        abase = {"Q": 0, "K": 32, "V": 64, "KM": 96, "VM": 112}[kind]
        return a(abase + i, n)
    for hh in range(2):
        A("s_lshl_b32 s15, s12, 6")
        A("s_add_u32 s15, s15, s14")
        A(f"s_add_u32 s15, s15, {hh}")
        A("s_lshl_b32 s15, s15, 12")
        A("s_add_u32 s15, s15, s43")
        A(f"s_add_u32 s16, s15, {QF}")
        A(f"s_add_u32 s17, s15, {KF}")
        for t in range(2):
            for j in range(4):
                A(f"buffer_load_dwordx4 {R(hh,'Q',16*t+4*j,4)}, v1, s[4:7], s16 offen offset:{j*1024} sc1")
                A(f"buffer_load_dwordx4 {R(hh,'K',16*t+4*j,4)}, v1, s[4:7], s17 offen offset:{j*1024} sc1")
            if t == 0:
                A("s_add_u32 s16, s16, 131072")
                A("s_add_u32 s17, s17, 131072")
        A("s_lshl_b32 s15, s12, 5")
        A("s_add_u32 s15, s15, s14")
        A(f"s_add_u32 s15, s15, {hh}")
        A("s_lshl_b32 s16, s15, 13")
        A("s_add_u32 s16, s16, s43")
        A(f"s_add_u32 s16, s16, {VF}")
        for et in range(8):
            if et == 4: A("s_add_u32 s16, s16, 4096")
            A(f"buffer_load_dwordx4 {R(hh,'V',4*et,4)}, v1, s[4:7], s16 offen offset:{(et&3)*1024} sc1")
    A("s_cmp_ge_u32 s19, 128")
    A("s_cbranch_scc1 L_a_chain_ok")
    poll_counter(A, "a2", "s20", 128, only_wave0=False)
    A.label("L_a_chain_ok")
    if PROF:
        A("s_memrealtime s[76:77]")
        A("s_waitcnt lgkmcnt(0)")
    for hh in range(2):
        A("s_lshl_b32 s15, s12, 5")
        A("s_add_u32 s15, s15, s14")
        A(f"s_add_u32 s15, s15, {hh}")
        A("s_lshl_b32 s16, s15, 12")
        A("s_add_u32 s16, s16, s43")
        A(f"s_add_u32 s18, s16, {VM}")
        A(f"s_add_u32 s16, s16, {KM}")
        for j in range(4):
            A(f"buffer_load_dwordx4 {R(hh,'KM',4*j,4)}, v1, s[4:7], s16 offen offset:{j*1024} sc1")
        for et in range(8):
            A(f"buffer_load_dwordx2 {R(hh,'VM',2*et,2)}, v13, s[4:7], s18 offen offset:{et*512} sc1")
    A(f"s_mov_b32 s28, {SCALE_HEX}")
    A(f"s_mov_b32 s29, {SCALE_HEX}")
    A(f"s_mov_b32 s30, {LOG2E_HEX}")
    A(f"s_mov_b32 s31, {LOG2E_HEX | 0x80000000}")
    A("v_and_b32 v15, 15, v14")
    A("v_lshrrev_b32 v2, 2, v15")
    A("v_and_b32 v3, 3, v15")
    A("v_lshl_add_u32 v2, v2, 3, v3")
    A("v_lshrrev_b32 v3, 4, v14")
    A("v_lshlrev_b32 v3, 3, v3")
    A("v_sub_u32 v2, v2, v3")
    A(f"v_mov_b32 v{T+7}, 0xf149f2ca")
    bias = {0: 244, 1: 8}
    A("v_cmp_gt_u32 vcc, 32, v14")
    A(f"v_cndmask_b32 v252, v{T+7}, 0, vcc")
    A("v_mov_b32 v253, v252")
    for tq in range(2):
        for tk in range(2):
            for r in range(4):
                A(f"v_cmp_le_i32 vcc, {r + 4*tk - 4*tq}, v2")
                A(f"v_cndmask_b32 v{bias[tq]+4*tk+r}, v{T+7}, 0, vcc")
    A("s_lshl_b32 s16, s40, 7")
    A("s_lshl_b32 s17, s14, 2")
    A("s_add_u32 s16, s16, s17")
    A("s_lshl_b32 s16, s16, 2")
    A("s_and_b32 s17, s12, 1")
    A("s_lshl_b32 s17, s17, 1")
    A("s_add_u32 s16, s16, s17")
    A("s_lshl_b32 s16, s16, 10")
    A("s_add_u32 s16, s16, s43")
    A(f"s_add_u32 s16, s16, {OF}")
    for hh in range(2):
        A(f"s_waitcnt vmcnt({20 if hh == 0 else 16})")
        for tq in range(2):
            for j in range(4):
                for kt in range(3):
                    src = R(hh, 'KM', 4 * j, 4) if kt == 0 else R(hh, 'K', 16 * (kt - 1) + 4 * j, 4)
                    acc = v(S + 12 * tq + 4 * kt, 4)
                    A(f"v_mfma_f32_16x16x32_bf16 {acc}, {src}, {R(hh,'Q',16*tq+4*j,4)}, {'0' if j==0 else acc}")
        A(f"s_waitcnt vmcnt({12 if hh == 0 else 8})")
        for tq in range(2):
            Sq = S + 12 * tq
            TT = T
            for i in range(0, 12, 2): A(f"v_cvt_pk_bf16_f32 v{TT+i//2}, v{Sq+i}, v{Sq+i+1}")
            for i in range(0, 12, 2):
                A(f"v_lshlrev_b32 v{Sq+i}, 16, v{TT+i//2}")
                A(f"v_and_b32 v{Sq+i+1}, 0xffff0000, v{TT+i//2}")
            for i in range(0, 12, 2): A(f"v_pk_mul_f32 v[{Sq+i}:{Sq+i+1}], v[{Sq+i}:{Sq+i+1}], s[28:29]")
            for i in range(0, 12, 2): A(f"v_cvt_pk_bf16_f32 v{TT+i//2}, v{Sq+i}, v{Sq+i+1}")
            for i in range(0, 12, 2):
                A(f"v_lshlrev_b32 v{Sq+i}, 16, v{TT+i//2}")
                A(f"v_and_b32 v{Sq+i+1}, 0xffff0000, v{TT+i//2}")
            for i in range(0, 4, 2): A(f"v_pk_add_f32 v[{Sq+i}:{Sq+i+1}], v[{Sq+i}:{Sq+i+1}], v[252:253]")
            for i in range(0, 8, 2): A(f"v_pk_add_f32 v[{Sq+4+i}:{Sq+5+i}], v[{Sq+4+i}:{Sq+5+i}], v[{bias[tq]+i}:{bias[tq]+i+1}]")
            MX = T + 4; MT = T + 5
            A(f"v_max3_f32 v{MX}, v{Sq}, v{Sq+1}, v{Sq+2}")
            A(f"v_max3_f32 v{MT}, v{Sq+3}, v{Sq+4}, v{Sq+5}")
            A(f"v_max3_f32 v{MX}, v{MX}, v{Sq+6}, v{Sq+7}")
            A(f"v_max3_f32 v{MT}, v{MT}, v{Sq+8}, v{Sq+9}")
            A(f"v_max3_f32 v{MX}, v{MX}, v{Sq+10}, v{Sq+11}")
            A(f"v_max_f32 v{MX}, v{MX}, v{MT}")
            xlane(A, MX, MT, ("p16", "p32"), "v_max_f32")
            A(f"v_mul_f32 v{MX}, s31, v{MX}")
            for i in range(12): A(f"v_fma_f32 v{Sq+i}, v{Sq+i}, s30, v{MX}")
            for i in range(12): A(f"v_exp_f32 v{Sq+i}, v{Sq+i}")
            A(f"v_pk_add_f32 v[{TT}:{TT+1}], v[{Sq}:{Sq+1}], v[{Sq+2}:{Sq+3}]")
            A(f"v_pk_add_f32 v[{TT+2}:{TT+3}], v[{Sq+4}:{Sq+5}], v[{Sq+6}:{Sq+7}]")
            A(f"v_pk_add_f32 v[{MX}:{MX+1}], v[{Sq+8}:{Sq+9}], v[{Sq+10}:{Sq+11}]")
            A(f"v_pk_add_f32 v[{TT}:{TT+1}], v[{TT}:{TT+1}], v[{TT+2}:{TT+3}]")
            A(f"v_pk_add_f32 v[{TT}:{TT+1}], v[{TT}:{TT+1}], v[{MX}:{MX+1}]")
            A(f"v_add_f32 v{MX}, v{TT}, v{TT+1}")
            xlane(A, MX, MT, ("p16", "p32"))
            A(f"v_rcp_f32 v{MX}, v{MX}")
            A(f"v_mov_b32 v{MT}, v{MX}")
            for i in range(0, 12, 2): A(f"v_pk_mul_f32 v[{Sq+i}:{Sq+i+1}], v[{Sq+i}:{Sq+i+1}], v[{MX}:{MX+1}]")
            PM = T + 2; PT = 4
            A(f"v_cvt_pk_bf16_f32 v{PM}, v{Sq}, v{Sq+1}")
            A(f"v_cvt_pk_bf16_f32 v{PM+1}, v{Sq+2}, v{Sq+3}")
            for i in range(4): A(f"v_cvt_pk_bf16_f32 v{PT+i}, v{Sq+4+2*i}, v{Sq+5+2*i}")
            for et in range(8):
                A(f"v_mfma_f32_16x16x32_bf16 v[{O+4*et}:{O+4*et+3}], {R(hh,'V',4*et,4)}, v[{PT}:{PT+3}], 0")
            for et in range(8):
                A(f"v_mfma_f32_16x16x16_bf16 v[{O+4*et}:{O+4*et+3}], {R(hh,'VM',2*et,2)}, v[{PM}:{PM+1}], v[{O+4*et}:{O+4*et+3}]")
            PKO = 208 + 16 * tq
            for j in range(4):
                for half in range(2):
                    b = O + 8 * j + 4 * half
                    A(f"v_cvt_pk_bf16_f32 v{PKO+4*j+2*half}, v{b}, v{b+1}")
                    A(f"v_cvt_pk_bf16_f32 v{PKO+4*j+2*half+1}, v{b+2}, v{b+3}")
                A(f"s_add_u32 s17, s16, {hh*16384 + j*4096 + tq*1024}")
                A(f"buffer_store_dwordx4 v[{PKO+4*j}:{PKO+4*j+3}], v1, s[4:7], s17 offen sc1")
    if PROF:
        signal(A, 2)
    else:
        cnt_addr(A, 68, 2)
        A("s_branch L_wloop")

def stage_tb(A, tag, WF, AFB, KS, dep_stage, dep_n, res_idx, sig_stage):
    KW = KS // 4
    RING = 8
    RB = 16; ACC = RB + 16 * RING
    A("v_and_b32 v14, 63, v0")
    A("v_lshlrev_b32 v1, 4, v14")
    A("s_lshr_b32 s12, s41, 4")
    A("s_and_b32 s14, s41, 15")
    A(f"s_mul_i32 s15, s13, {KW}")
    A("s_lshr_b32 s16, s14, 1")
    A(f"s_mul_i32 s16, s16, {KS}")
    A("s_add_u32 s16, s16, s15")
    A("s_lshl_b32 s16, s16, 12")
    A("s_and_b32 s18, s14, 1")
    A("s_lshl_b32 s18, s18, 11")
    A("s_add_u32 s16, s16, s18")
    A(f"s_add_u32 s16, s16, {WF}")
    A(f"s_mul_i32 s17, s40, {KS}")
    A("s_add_u32 s17, s17, s15")
    A("s_lshl_b32 s17, s17, 12")
    A("s_lshl_b32 s18, s12, 11")
    A("s_add_u32 s17, s17, s18")
    A("s_add_u32 s17, s17, s43")
    A(f"s_add_u32 s17, s17, {AFB}")
    RING = 16; ACC = RB + 8 * RING
    A("s_bitcmp0_b32 s72, 16")
    A(f"s_cbranch_scc1 L_{tag}_nopre")
    A(f"s_mov_b32 s22, {SETUP_CNT}")
    poll_counter(A, tag + "_su", "s22", 64)
    raw_srd(A, "wo" if KS == 128 else "wd")
    A(f"s_mul_i32 s15, s13, {KW*32*1024}")
    A("s_lshl_b32 s24, s14, 6")
    A("s_add_u32 s15, s15, s24")
    A("s_lshl_b32 s24, s13, 14")
    tr_load(A, 1024, KW, 2, lambda kk, t: ("a", (kk * 2 + t) * 4), "s24", 16, 80, 8)
    A("s_barrier")
    A.label(f"L_{tag}_nopre")
    def lda(si):
        for t in range(2):
            A(f"buffer_load_dwordx4 v[{RB+8*si+4*t}:{RB+8*si+4*t+3}], v1, s[4:7], s17 offen offset:{t*1024} sc1")
        A("s_add_u32 s17, s17, 4096")
    def mm(kk):
        si = kk % RING
        for ct in range(2):
            for tt in range(2):
                acc = v(ACC + (ct * 2 + tt) * 4, 4)
                A(f"v_mfma_f32_16x16x32_bf16 {acc}, a[{(kk*2+ct)*4}:{(kk*2+ct)*4+3}], v[{RB+8*si+4*tt}:{RB+8*si+4*tt+3}], {'0' if kk==0 else acc}")
    D = min(RING - 1, KW)
    cnt_addr(A, 22, dep_stage)
    A("v_mov_b32 v250, 0")
    poll_counter(A, tag, "s22", dep_n)
    for si in range(D): lda(si)
    for kk in range(KW):
        if kk + D < KW:
            lda((kk + D) % RING)
            A(f"s_waitcnt vmcnt({2*D})")
        else:
            A(f"s_waitcnt vmcnt({2*(KW-1-kk)})")
        mm(kk)
    A("s_lshl_b32 s15, s13, 12")
    A("v_add_u32 v2, s15, v1")
    for i in range(4):
        A(f"ds_write_b128 v2, v[{ACC+4*i}:{ACC+4*i+3}] offset:{i*1024}")
    A("s_and_b32 s15, s13, 1")
    A("s_lshl_b32 s15, s15, 10")
    A("v_add_u32 v3, s15, v1")
    A("v_and_b32 v4, 15, v14")
    A("v_lshrrev_b32 v5, 2, v4")
    A("v_and_b32 v4, 3, v4")
    A("v_lshl_add_u32 v4, v5, 3, v4")
    A("s_lshl_b32 s15, s40, 6")
    A("s_lshl_b32 s18, s12, 5")
    A("s_add_u32 s15, s15, s18")
    A("s_and_b32 s18, s13, 1")
    A("s_lshl_b32 s18, s18, 2")
    A("s_add_u32 s15, s15, s18")
    A("v_add_u32 v4, s15, v4")
    A("v_lshlrev_b32 v4, 10, v4")
    A("v_lshrrev_b32 v5, 4, v14")
    A("v_lshl_add_u32 v4, v5, 4, v4")
    A("s_lshl_b32 s15, s14, 6")
    A("v_add_u32 v4, s15, v4")
    A("s_lshl_b32 s18, s42, 1")
    A(f"s_add_u32 s18, s18, {res_idx}")
    A("s_lshl_b32 s18, s18, 21")
    A(f"s_add_u32 s18, s18, {XR}")
    A(f"buffer_load_dwordx4 v[8:11], v4, s[4:7], s18 offen sc1")
    A("s_waitcnt lgkmcnt(0)")
    A("s_barrier")
    A("s_cmp_ge_u32 s13, 2")
    A(f"s_cbranch_scc1 L_{tag}_done")
    R = 16
    for ww in range(4):
        for ct in range(2):
            A(f"ds_read_b128 v[{R+8*ww+4*ct}:{R+8*ww+4*ct+3}], v3 offset:{ww*4096+ct*2048}")
    A("s_waitcnt lgkmcnt(4)")
    for i in range(8): A(f"v_add_f32 v{R+i}, v{R+i}, v{R+8+i}")
    A("s_waitcnt lgkmcnt(2)")
    for i in range(8): A(f"v_add_f32 v{R+i}, v{R+i}, v{R+16+i}")
    A("s_waitcnt lgkmcnt(0) vmcnt(0)")
    for i in range(8): A(f"v_add_f32 v{R+i}, v{R+i}, v{R+24+i}")
    for i in range(4):
        A(f"v_cvt_pk_bf16_f32 v6, v{R+2*i}, v{R+2*i+1}")
        A(f"v_lshlrev_b32 v{R+2*i}, 16, v6")
        A(f"v_and_b32 v{R+2*i+1}, 0xffff0000, v6")
        A(f"v_lshlrev_b32 v6, 16, v{8+i}")
        A(f"v_and_b32 v7, 0xffff0000, v{8+i}")
        A(f"v_add_f32 v{R+2*i}, v{R+2*i}, v6")
        A(f"v_add_f32 v{R+2*i+1}, v{R+2*i+1}, v7")
        A(f"v_cvt_pk_bf16_f32 v{R+32+i}, v{R+2*i}, v{R+2*i+1}")
    if res_idx == 1:
        A("s_cmp_eq_u32 s42, 1")
        A(f"s_cbranch_scc1 L_{tag}_out")
    A(f"s_add_u32 s18, s18, {2*MB}")
    A(f"buffer_store_dwordx4 v[{R+32}:{R+35}], v4, s[4:7], s18 offen sc1")
    if res_idx == 1:
        A(f"s_branch L_{tag}_done")
        A.label(f"L_{tag}_out")
        A(f"buffer_store_dwordx4 v[{R+32}:{R+35}], v4, s[64:67], 0 offen")
    A.label(f"L_{tag}_done")
    signal(A, sig_stage)

NSUB = {0: 2, 1: 48, 2: 8, 3: 32, 4: 2, 5: 14, 6: 32}
TBL_STRIDE = 80

def schedule(nW=192, verbose=False):
    def word(layer, stage, blk, sub): return stage | (blk << 4) | (sub << 9) | (layer << 15)
    lists = []
    def new_worker():
        lists.append([]); return lists[-1]
    q1w = []
    for sub in range(48):
        w = new_worker()
        for b in range(32): w.append(word(1, 1, b, sub))
    WG = {}
    for l in range(2):
        for st, n in ((3, 32), (5, 14)):
            for sub in range(n):
                WG[(l, st, sub)] = new_worker()
                if l == 1: q1w.append(WG[(l, st, sub)])
    for l in range(2):
        for st, n in ((3, 32), (5, 14)):
            for sub in range(n):
                for b in range(32):
                    own = 0 if (l == 1 and b >= 29 and (b & 1)) else l
                    WG[(own, st, sub)].append(word(l, st, b, sub))
    P = 7.05
    for cg in range(16):
        for sb in range(2):
            w = new_worker()
            ev = [(27 + P * b, word(0, 6, b, sb * 16 + cg)) for b in range(32)]
            ev += [(max(72 + P * b, 117 + 5.3 * b) + 6, word(1, 6, b, sb * 16 + cg)) for b in range(32)]
            ev.sort()
            w.extend(e[1] for e in ev)
    A1 = [new_worker() for _ in range(8)]
    A2 = [new_worker() for _ in range(6)]
    for b in range(32):
        for sub in range(8): A1[sub].append(word(0, 2, b, sub))
    free = [0.0] * 6
    k = 0
    for b in range(32):
        for sub in range(8):
            if b >= 29:
                pool = A1 + A2
                pool[(k * 5) % 14].append(word(1, 2, b, sub)); k += 1
            else:
                t = 46 + P * b + 3.5 * (sub >> 2)
                i = min(range(6), key=lambda j: (max(free[j], t), j))
                free[i] = max(free[i], t) + 4.2
                A2[i].append(word(1, 2, b, sub))
    for (l, st) in ((0, 4), (1, 0), (1, 4)):
        ws = [new_worker() for _ in range(2)]
        for b in range(32):
            for sub in range(2): ws[sub].append(word(l, st, b, sub))
        if (l, st) == (1, 4): q1w += ws
    assert len(lists) == nW, len(lists)
    for w in lists: w[0] |= 1 << 16
    assert len(q1w) == 48
    for sub, w in enumerate(q1w): w.insert(0, word(0, 8, 0, sub))
    if verbose: print("maxlen", max(len(x) for x in lists))
    assert max(len(l) for l in lists) < TBL_STRIDE, max(len(l) for l in lists)
    return lists

def gen_mega():
    A = Asm()
    name = "mega_kernel"
    A.raw(kernel_header(name))
    A("s_cmp_ge_u32 s2, 256")
    A(f"s_cbranch_scc1 {END}")
    load_ptr_srd(A, "ws", 4, WS_BYTES, 20)
    load_ptr_srd(A, "out", 64, 2 * MB, 20)
    for key, r in PTR.items():
        A(f"s_load_dwordx2 s[{r}:{r+1}], s[0:1], {KA[key]}")
    A("s_waitcnt lgkmcnt(0)")
    rendezvous(A)
    A("s_cmp_ge_u32 s12, 64")
    A("s_cbranch_scc1 L_worker")
    gen_chain_role(A)
    A.label("L_worker")
    A("s_sub_u32 s12, s12, 64")
    A("s_mov_b32 s68, 0")
    A(f"s_mul_i32 s69, s12, {TBL_STRIDE*16}")
    A(f"s_add_u32 s69, s69, {PROFB + MB}")
    A("s_getpc_b64 s[70:71]")
    A.label("L_pcref")
    A(f"s_mul_i32 s15, s12, {TBL_STRIDE*4}")
    A("s_add_u32 s70, s70, s15")
    A("s_addc_u32 s71, s71, 0")
    A("s_add_u32 s70, s70, L_table-L_pcref")
    A("s_addc_u32 s71, s71, 0")
    A.label("L_wloop")
    A("s_load_dword s72, s[70:71], 0")
    A("s_add_u32 s70, s70, 4")
    A("s_addc_u32 s71, s71, 0")
    A("s_waitcnt lgkmcnt(0)")
    A("s_cmp_eq_u32 s72, -1")
    A(f"s_cbranch_scc1 L_wend")
    if PROF:
        A("s_memrealtime s[74:75]")
        A("s_waitcnt lgkmcnt(0)")
        A("s_mov_b32 s76, s74")
    A("s_and_b32 s73, s72, 15")
    A("s_bfe_u32 s40, s72, 0x50004")
    A("s_bfe_u32 s41, s72, 0x60009")
    A("s_bfe_u32 s42, s72, 0x1000f")
    A(f"s_mul_i32 s43, s42, {LSTRIDE}")
    for st in (0, 1, 2, 3, 4, 5, 6, 8):
        A(f"s_cmp_eq_u32 s73, {st}")
        A(f"s_cbranch_scc1 L_st{st}")
    A(f"s_branch {END}")
    A.label("L_st0"); stage_ln(A, 0)
    A.label("L_st1"); stage_q(A)
    A.label("L_st2"); stage_attn(A)
    A.label("L_st3"); stage_tb(A, "wo", WO_F, OF, 128, 2, 8, 0, 3)
    A.label("L_st4"); stage_ln(A, 1)
    A.label("L_st5"); stage_g(A)
    A.label("L_st6"); stage_tb(A, "dn", WD_F, HF, 56, 5, 14, 1, 6)
    A.label("L_st8"); stage_q1stream(A)
    A.label("L_wend")
    A("s_waitcnt vmcnt(0)")
    flush_pending(A, "end")
    A.label(END)
    A("s_endpgm")
    A.raw(".p2align 6")
    A.label("L_table")
    for l in schedule(verbose=True):
        ws_ = l + [0xFFFFFFFF] * (TBL_STRIDE - len(l))
        for i in range(0, TBL_STRIDE, 16):
            A.raw("    .long " + ", ".join(hex(x) for x in ws_[i:i+16]))
    return name, A, 256, (256, 256)

def copy_x_to_lds(A, mg_sreg, tmpv):
    A("v_lshlrev_b32 v1, 4, v0")
    A(f"s_lshl_b32 s19, s{mg_sreg}, 17")
    A(f"s_add_u32 s19, s19, {XFA}")
    for rnd in range(4):
        for i in range(8):
            A(f"buffer_load_dwordx4 v[{tmpv+4*i}:{tmpv+4*i+3}], v1, s[4:7], s19 offen")
            A("s_add_u32 s19, s19, 4096")
        for i in range(8):
            A(f"s_waitcnt vmcnt({7-i})")
            off = (rnd * 8 + i) * 4096
            if off < 65536:
                A(f"ds_write_b128 v1, v[{tmpv+4*i}:{tmpv+4*i+3}] offset:{off}")
            else:
                A(f"ds_write_b128 v2, v[{tmpv+4*i}:{tmpv+4*i+3}] offset:{off-65536}")
            if rnd == 0 and i < 2:
                A(f"ds_write_b128 v3, v[{tmpv+4*i}:{tmpv+4*i+3}] offset:{i*4096}")

def gen_qkv(name):
    A = Asm()
    A.raw(kernel_header(name))
    A("s_cmp_ge_u32 s2, 256")
    A("s_cbranch_scc1 L_end_" + name)
    load_ptr_srd(A, "ws", 4, WS_BYTES, 20)
    A("s_and_b32 s12, s2, 7")
    A("s_lshl_b32 s12, s12, 1")
    A("s_bfe_u32 s13, s2, 0x10003")
    A("s_add_u32 s12, s12, s13")
    A("s_lshr_b32 s13, s2, 4")
    A("v_lshlrev_b32 v1, 4, v0")
    A("v_add_u32 v2, 0x10000, v1")
    A("v_add_u32 v3, 0x20000, v1")
    ACC = 0 + 128
    XB = 8
    WB = 72
    XB = 8; WB = 64
    XB = 8; WB = 72; PK = 136
    copy_x_to_lds(A, 13, WB)
    A("v_lshrrev_b32 v4, 6, v0")
    A("v_readfirstlane_b32 s14, v4")
    A("v_and_b32 v4, 63, v0")
    A("v_lshlrev_b32 v4, 4, v4")
    A("v_mov_b32 v5, v4")
    A("s_lshl_b32 s15, s12, 2")
    A("s_add_u32 s15, s15, s14")
    A("s_mul_i32 s15, s15, 196608")
    A(f"s_add_u32 s15, s15, {WQKV_F}")
    A("s_waitcnt lgkmcnt(0)")
    A("s_barrier")
    def wload(setidx):
        for t in range(4):
            A(f"buffer_load_dwordx4 v[{WB+16*setidx+4*t}:{WB+16*setidx+4*t+3}], v4, s[4:7], s15 offen offset:{t*1024}")
        A("s_add_u32 s15, s15, 4096")
    def xread(buf, koff):
        for mt in range(8):
            A(f"ds_read_b128 v[{XB+32*buf+4*mt}:{XB+32*buf+4*mt+3}], v5 offset:{koff*8192+mt*1024}")
    for st in range(3): wload(st)
    xread(0, 0)
    A("s_lshl_b32 s16, s13, 3")
    A("s_lshl_b32 s16, s16, 5")
    A("s_lshl_b32 s17, s12, 1")
    A("s_lshr_b32 s18, s14, 1")
    A("s_add_u32 s17, s17, s18")
    A("s_add_u32 s16, s16, s17")
    A("s_lshl_b32 s16, s16, 2")
    A("s_and_b32 s18, s14, 1")
    A("s_lshl_b32 s18, s18, 1")
    A("s_add_u32 s16, s16, s18")
    A("s_lshl_b32 s16, s16, 10")
    A(f"s_add_u32 s16, s16, {QF}")
    A("s_lshl_b32 s20, s13, 2")
    A("s_lshl_b32 s20, s20, 5")
    A("s_add_u32 s20, s20, s17")
    A("s_lshl_b32 s20, s20, 3")
    A("s_lshl_b32 s18, s18, 1")
    A("s_add_u32 s20, s20, s18")
    A("s_lshl_b32 s20, s20, 10")
    A(f"s_add_u32 s20, s20, {VF}")
    A("s_mov_b32 s21, 0")
    def zero_acc():
        for i in range(128): A(f"v_accvgpr_write_b32 a{i}, 0")
    def kloop(tag, vtype):
        A("s_mov_b32 s22, 0")
        A.label(f"L_k_{tag}_{name}")
        for u in range(4):
            wload((u + 3) % 4)
            xread((u + 1) % 2, u + 1)
            A("s_waitcnt vmcnt(12) lgkmcnt(8)")
            for ct in range(4):
                for mt in range(8):
                    w = v(WB + 16 * u + 4 * ct, 4); x = v(XB + 32 * (u % 2) + 4 * mt, 4)
                    acc = a((ct * 8 + mt) * 4, 4)
                    if vtype: A(f"v_mfma_f32_16x16x32_bf16 {acc}, {x}, {w}, {acc}")
                    else:     A(f"v_mfma_f32_16x16x32_bf16 {acc}, {w}, {x}, {acc}")
        A("v_add_u32 v5, 0x8000, v5")
        A("v_and_b32 v5, 0x1ffff, v5")
        A("s_add_u32 s22, s22, 1")
        A("s_cmp_lt_u32 s22, 4")
        A(f"s_cbranch_scc1 L_k_{tag}_{name}")
    zero_acc()
    A.label(f"L_pass_{name}")
    kloop("qk", False)
    A.fence(10)
    A("s_mov_b32 s19, s16")
    n = 0
    for mt in range(8):
        for cp in range(2):
            pk = PK + 4 * (n % 8); n += 1
            for half in range(2):
                base = ((2 * cp + half) * 8 + mt) * 4
                for i in range(4): A(f"v_accvgpr_read_b32 v{168+i}, a{base+i}")
                A(f"v_cvt_pk_bf16_f32 v{pk+2*half}, v168, v169")
                A(f"v_cvt_pk_bf16_f32 v{pk+2*half+1}, v170, v171")
            A(f"buffer_store_dwordx4 v[{pk}:{pk+3}], v4, s[4:7], s19 offen offset:{cp*1024}")
        if mt < 7: A("s_add_u32 s19, s19, 131072")
    zero_acc()
    A(f"s_add_u32 s16, s16, {KF-QF}")
    A("s_add_u32 s21, s21, 1")
    A("s_cmp_lt_u32 s21, 2")
    A(f"s_cbranch_scc1 L_pass_{name}")
    kloop("v", True)
    A.fence(10)
    A("s_mov_b32 s19, s20")
    n = 0
    for sg in range(4):
        for ct in range(4):
            pk = PK + 4 * (n % 8); n += 1
            for half in range(2):
                base = (ct * 8 + 2 * sg + half) * 4
                for i in range(4): A(f"v_accvgpr_read_b32 v{168+i}, a{base+i}")
                A(f"v_cvt_pk_bf16_f32 v{pk+2*half}, v168, v169")
                A(f"v_cvt_pk_bf16_f32 v{pk+2*half+1}, v170, v171")
            A(f"buffer_store_dwordx4 v[{pk}:{pk+3}], v4, s[4:7], s19 offen offset:{ct*1024}")
        if sg < 3: A("s_add_u32 s19, s19, 262144")
    A.label("L_end_" + name)
    A("s_endpgm")
    return name, A, 256, (176, 128)

def build(kernels, launches):
    out = []
    hdr = open("cdna_kernels/" + NAME + ".s.ref").read().split("\n")
    for l in hdr:
        if l.startswith(";") and "@launch" not in l and "Override" not in l and "grid=ceil" not in l:
            out.append(l)
    for (k, g, lds) in launches:
        out.append(f"; @launch kernel={k} grid=({g},1,1) block=(256,1,1) lds={lds}")
    out.append('.amdgcn_target "amdgcn-amd-amdhsa--gfx950"')
    out.append(".text")
    for (name, A, g, regs) in kernels: out.append(A.text())
    out.append('.section .rodata,"a"')
    for (name, A, g, regs) in kernels:
        if isinstance(regs, tuple):
            nv, na = regs; acc = (nv + 3) // 4 * 4
            out.append(kernel_desc(name, acc + na, 102, acc))
        else:
            out.append(kernel_desc(name, regs, 102, (regs + 3) // 4 * 4))
    return "\n".join(out) + "\n"

if __name__ == "__main__":
    PROF = "prof" in sys.argv
    ks = [gen_prep(), gen_mega()]
    launches = [("prep_kernel", ks[0][2], 0), ("mega_kernel", 256, MEGA_LDS)]
    txt = build(ks, launches)
    dst = "prof.s" if PROF else "cdna_kernels/" + NAME + ".s"
    open(dst, "w").write(txt)
    print("bytes", len(txt))
```

```python
import sys, math, struct
from asmlib import *
from layout2 import *

NAME = "interleave_layers__memory_aug_recurrent_mem_tr__geglu_ffn__prompt"
KA = dict(x=0, mem0=8, wq=16, wk=24, wv=32, wo=40, seg=48, bx=56, wg=64, wu=72, wd=80, out=88, dbg=96, ws=104)
SCALE_HEX = 0x3db504f3
LOG2E_HEX = 0x3fb8aa3b
PROF = False

def srd(A, sd, sbase, nbytes):
    A(f"s_mov_b32 s{sd}, s{sbase}")
    A(f"s_and_b32 s{sd+1}, s{sbase+1}, 0xffff")
    A(f"s_mov_b32 s{sd+2}, {nbytes}")
    A(f"s_mov_b32 s{sd+3}, 0x00020000")

def load_ptr_srd(A, key, sd, nbytes, tmp):
    A(f"s_load_dwordx2 s[{tmp}:{tmp+1}], s[0:1], {KA[key]}")
    A("s_waitcnt lgkmcnt(0)")
    srd(A, sd, tmp, nbytes)

def magic_div(d, maxn):
    for sh in range(0, 32):
        m = -(-(1 << sh) // d)
        if m * maxn < (1 << 32) and all((n * m) >> sh == n // d for n in range(maxn)):
            return m, sh
    raise ValueError

def xlane(A, r, t, ops=("ror8", "p16", "p32"), op="v_add_f32"):
    for o in ops:
        if o == "ror8":
            A(f"{op}_dpp v{r}, v{r}, v{r} row_ror:8")
        else:
            A(f"v_mov_b32 v{t}, v{r}")
            A(f"v_permlane{'16' if o=='p16' else '32'}_swap_b32 v{r}, v{t}")
            A(f"{op} v{r}, v{r}, v{t}")

def bf16_round(A, dst, src, tmp):
    A(f"v_cvt_pk_bf16_f32 v{tmp}, v{src}, v{src}")
    A(f"v_lshlrev_b32 v{dst}, 16, v{tmp}")

def ln_math(A):
    for i in range(16):
        A(f"v_lshlrev_b32 v{32+2*i}, 16, v{16+i}")
        A(f"v_and_b32 v{33+2*i}, 0xffff0000, v{16+i}")
    A("v_add_f32 v7, v32, v33")
    for i in range(2, 32): A(f"v_add_f32 v7, v7, v{32+i}")
    for sh in (8, 4, 2, 1): A(f"v_add_f32_dpp v7, v7, v7 row_ror:{sh}")
    A("v_mul_f32 v7, 0x3b000000, v7")
    A("v_sub_f32 v8, v32, v7")
    A("v_mul_f32 v9, v8, v8")
    for i in range(1, 32):
        A(f"v_sub_f32 v8, v{32+i}, v7")
        A("v_fmac_f32 v9, v8, v8")
    for sh in (8, 4, 2, 1): A(f"v_add_f32_dpp v9, v9, v9 row_ror:{sh}")
    A("v_mul_f32 v9, 0x3b000000, v9")
    bf16_round(A, 7, 7, 10)
    bf16_round(A, 9, 9, 10)
    A("v_add_f32 v9, 0x3727c5ac, v9")
    bf16_round(A, 9, 9, 10)
    A("v_sqrt_f32 v9, v9")
    bf16_round(A, 9, 9, 10)
    A("v_rcp_f32 v9, v9")
    for i in range(16):
        A(f"v_sub_f32 v{32+2*i}, v{32+2*i}, v7")
        A(f"v_sub_f32 v{33+2*i}, v{33+2*i}, v7")
        A(f"v_cvt_pk_bf16_f32 v10, v{32+2*i}, v{33+2*i}")
        A(f"v_lshlrev_b32 v{32+2*i}, 16, v10")
        A(f"v_and_b32 v{33+2*i}, 0xffff0000, v10")
        A(f"v_mul_f32 v{32+2*i}, v{32+2*i}, v9")
        A(f"v_mul_f32 v{33+2*i}, v{33+2*i}, v9")
        A(f"v_cvt_pk_bf16_f32 v{16+i}, v{32+2*i}, v{33+2*i}")

def ln_body(A, sr, soff, sc1):
    A("v_lshrrev_b32 v1, 4, v0")
    A("s_lshl_b32 s3, s3, 4")
    A("v_add_u32 v1, s3, v1")
    A("v_and_b32 v2, 15, v0")
    A("v_lshlrev_b32 v3, 10, v1")
    A("v_lshl_add_u32 v3, v2, 4, v3")
    A(f"s_mov_b32 s19, {soff}")
    for q in range(4):
        A(f"buffer_load_dwordx4 v[{16+4*q}:{19+4*q}], v3, {sr}, s19 offen offset:{q*256}")
    A("v_bfe_u32 v4, v1, 3, 2")
    A("v_and_b32 v5, 3, v1")
    A("v_lshl_add_u32 v4, v4, 2, v5")
    A("v_and_b32 v5, 3, v2")
    A("v_lshl_add_u32 v4, v5, 4, v4")
    A("v_lshlrev_b32 v4, 4, v4")
    A("v_bfe_u32 v5, v1, 2, 1")
    A("v_bfe_u32 v6, v1, 5, 1")
    A("v_lshl_add_u32 v5, v6, 1, v5")
    A("v_lshl_add_u32 v4, v5, 10, v4")
    A("v_lshrrev_b32 v5, 6, v1")
    A("v_lshrrev_b32 v6, 2, v2")
    A("v_lshl_add_u32 v5, v5, 4, v6")
    A("v_lshl_add_u32 v4, v5, 12, v4")
    A("s_waitcnt vmcnt(0)")
    ln_math(A)
    A(f"s_mov_b32 s19, {XFA}")
    for q in range(4):
        if q: A(f"s_add_u32 s19, s19, {4*4096}")
        A(f"buffer_store_dwordx4 v[{16+4*q}:{19+4*q}], v4, s[4:7], s19 offen")

def gen_prep():
    A = Asm()
    name = "prep_kernel"
    A.raw(kernel_header(name))
    mats = []
    load_ptr_srd(A, "ws", 4, WS_BYTES, 20)
    A("s_mov_b32 s16, 0x05040100")
    A("s_mov_b32 s17, 0x07060302")
    start = 0; ranges = []
    for (key, K, N, kind) in mats:
        nwg = (K // 8) * (N // 8) // 256
        ranges.append((start, nwg)); start += nwg
    fill_start = start
    nfill = (4 * MB) // 65536
    memx_start = fill_start + nfill
    memx_total = 2 * MEMX_LAYER
    nmemx = -(-memx_total // 4096)
    xcopy_start = memx_start + nmemx
    nxcopy = (2 * MB) // 65536
    cnt_start = xcopy_start + nxcopy
    ln_start = cnt_start + 1
    total_wg = ln_start + 128
    for idx, (key, K, N, kind) in enumerate(mats):
        st, nwg = ranges[idx]
        A(f"s_cmp_lt_u32 s2, {st + nwg}")
        A(f"s_cbranch_scc1 L_prep_{key}")
    A(f"s_cmp_lt_u32 s2, {memx_start}")
    A("s_cbranch_scc1 L_prep_fill")
    A(f"s_cmp_lt_u32 s2, {xcopy_start}")
    A("s_cbranch_scc1 L_prep_memx")
    A(f"s_cmp_lt_u32 s2, {cnt_start}")
    A("s_cbranch_scc1 L_prep_xcopy")
    A(f"s_cmp_lt_u32 s2, {ln_start}")
    A("s_cbranch_scc1 L_prep_cnt")
    A(f"s_cmp_lt_u32 s2, {total_wg}")
    A("s_cbranch_scc1 L_prep_ln")
    A("s_endpgm")
    for idx, (key, K, N, kind) in enumerate(mats):
        st, nwg = ranges[idx]
        A.label(f"L_prep_{key}")
        load_ptr_srd(A, key, 8, K * N * 2, 20)
        NQ = N // 8
        A(f"s_sub_u32 s3, s2, {st}")
        A("s_lshl_b32 s3, s3, 8")
        A("v_add_u32 v1, s3, v0")
        if NQ & (NQ - 1) == 0:
            sh = NQ.bit_length() - 1
            A(f"v_lshrrev_b32 v2, {sh}, v1")
            A(f"v_and_b32 v3, {NQ-1}, v1")
        else:
            m, sh = magic_div(NQ, (K // 8) * NQ)
            A(f"s_mov_b32 s18, {m}")
            A("v_mul_lo_u32 v2, s18, v1")
            A(f"v_lshrrev_b32 v2, {sh}, v2")
            A(f"s_mov_b32 s18, {NQ}")
            A("v_mul_lo_u32 v3, s18, v2")
            A("v_sub_u32 v3, v1, v3")
        A(f"s_mov_b32 s18, {N*16}")
        A("v_mul_lo_u32 v4, s18, v2")
        A("v_lshl_add_u32 v4, v3, 4, v4")
        for j in range(8):
            A(f"s_mov_b32 s19, {j*N*2}")
            A(f"buffer_load_dwordx4 v[{16+4*j}:{19+4*j}], v4, s[8:11], s19 offen")
        A("v_lshrrev_b32 v5, 2, v2")
        A("v_and_b32 v6, 3, v2")
        A("v_lshrrev_b32 v7, 2, v3")
        A("v_and_b32 v9, 3, v3")
        A("v_lshlrev_b32 v10, 6, v9")
        A("v_lshl_add_u32 v10, v6, 8, v10")
        if kind.startswith("qkv"):
            region = int(kind[3])
            A("v_lshrrev_b32 v11, 1, v7")
            A("v_and_b32 v12, 1, v7")
            A("v_lshlrev_b32 v12, 1, v12")
            A("v_mul_u32_u24 v11, 3, v11")
            A(f"v_add_u32 v11, {region}, v11")
            A("v_lshl_add_u32 v11, v11, 4, v5")
            A("v_lshl_add_u32 v11, v11, 2, v12")
            base = WQKV_F
        elif kind in ("wo", "wd"):
            KS = K // 32
            A("v_lshrrev_b32 v11, 1, v7")
            A("v_and_b32 v12, 1, v7")
            A("v_lshlrev_b32 v12, 1, v12")
            A(f"v_mul_u32_u24 v11, {KS}, v11")
            A("v_add_u32 v11, v11, v5")
            A("v_lshl_add_u32 v11, v11, 2, v12")
            base = WO_F if kind == "wo" else WD_F
        else:
            gu = int(kind[2])
            A("v_lshl_add_u32 v11, v7, 4, v5")
            A("v_lshlrev_b32 v11, 2, v11")
            A(f"v_add_u32 v11, {2*gu}, v11")
            base = WGU_F
        A("v_lshl_add_u32 v10, v11, 10, v10")
        A(f"s_mov_b32 s19, {base}")
        A("s_waitcnt vmcnt(0)")
        for r in range(8):
            dw = r >> 1; sel = "s16" if (r & 1) == 0 else "s17"
            for d in range(4):
                lo = 16 + 4 * (2 * d) + dw; hi = 16 + 4 * (2 * d + 1) + dw
                A(f"v_perm_b32 v{48+4*r+d}, v{hi}, v{lo}, {sel}")
            A(f"buffer_store_dwordx4 v[{48+4*r}:{51+4*r}], v10, s[4:7], s19 offen offset:{(r>>2)*1024 + 16*(r&3)}")
        A("s_endpgm")
    A.label("L_prep_fill")
    A(f"s_sub_u32 s3, s2, {fill_start}")
    A("s_lshl_b32 s3, s3, 16")
    A(f"s_add_u32 s3, s3, {PART}")
    A("v_lshlrev_b32 v1, 4, v0")
    for i in range(4): A(f"v_mov_b32 v{4+i}, -1")
    for i in range(16):
        A(f"buffer_store_dwordx4 v[4:7], v1, s[4:7], s3 offen")
        if i < 15: A("s_add_u32 s3, s3, 4096")
    A("s_endpgm")
    A.label("L_prep_cnt")
    A(f"s_mov_b32 s3, {CNT}")
    A("v_lshlrev_b32 v1, 4, v0")
    for i in range(4): A(f"v_mov_b32 v{4+i}, 0")
    for i in range(16):
        A(f"buffer_store_dwordx4 v[4:7], v1, s[4:7], s3 offen")
        if i < 15: A("s_add_u32 s3, s3, 4096")
    A("s_endpgm")
    A.label("L_prep_ln")
    load_ptr_srd(A, "x", 8, 2 * MB, 20)
    A(f"s_sub_u32 s3, s2, {ln_start}")
    ln_body(A, "s[8:11]", 0, False)
    A("s_endpgm")
    A.label("L_prep_xcopy")
    load_ptr_srd(A, "x", 8, 2 * MB, 20)
    A(f"s_sub_u32 s3, s2, {xcopy_start}")
    A("s_lshl_b32 s3, s3, 16")
    A(f"s_add_u32 s18, s3, {XR}")
    A("v_lshlrev_b32 v1, 4, v0")
    for i in range(16):
        A(f"buffer_load_dwordx4 v[{4+4*i}:{7+4*i}], v1, s[8:11], s3 offen")
        if i < 15: A("s_add_u32 s3, s3, 4096")
    for i in range(16):
        A(f"s_waitcnt vmcnt({15-i})" if i == 0 else "s_nop 0")
        A(f"s_waitcnt vmcnt(15)")
        A(f"buffer_store_dwordx4 v[{4+4*i}:{7+4*i}], v1, s[4:7], s18 offen")
        if i < 15: A("s_add_u32 s18, s18, 4096")
    A("s_endpgm")
    A.label("L_prep_memx")
    load_ptr_srd(A, "mem0", 8, 8192, 20)
    A(f"s_sub_u32 s3, s2, {memx_start}")
    A("s_lshl_b32 s3, s3, 12")
    A("v_lshlrev_b32 v1, 4, v0")
    A("v_add_u32 v1, s3, v1")
    A(f"v_subrev_u32 v2, {MEMX_LAYER}, v1")
    A(f"v_cmp_gt_u32 vcc, {MEMX_LAYER}, v1")
    A("v_cndmask_b32 v2, v2, v1, vcc")
    A("v_lshrrev_b32 v3, 6, v2")
    A("v_bfe_u32 v4, v2, 3, 3")
    A("v_lshlrev_b32 v5, 10, v4")
    A("v_lshl_add_u32 v5, v3, 3, v5")
    A("buffer_load_dwordx2 v[8:9], v5, s[8:11], 0 offen")
    A("buffer_load_dwordx2 v[10:11], v5, s[8:11], 0 offen offset:1024")
    A("s_waitcnt vmcnt(0)")
    A(f"v_cmp_gt_u32 vcc, 8192, v2")
    for i in range(4):
        A(f"v_min_u32 v{8+i}, -2, v{8+i}")
        A(f"v_cndmask_b32 v{8+i}, -1, v{8+i}, vcc")
    A(f"v_cmp_gt_u32 vcc, {memx_total}, v1")
    A("s_and_saveexec_b64 s[22:23], vcc")
    A("s_cbranch_execz L_prep_end")
    A(f"s_mov_b32 s19, {MEMX}")
    A("buffer_store_dwordx4 v[8:11], v1, s[4:7], s19 offen")
    A.label("L_prep_end")
    A("s_endpgm")
    return name, A, total_wg, 80

WOL = 0
MEML = 131072
MROW = 1088
ZROW = MEML + 8 * MROW
SCL = ZROW + 1024
OL = SCL + 12288
MEGA_LDS = OL + 4096
assert MEGA_LDS <= 163840
END = "L_mega_end"
RDV = CNT + 0xC000
SETUP_CNT = CNT + 0xE000
TMO = 0x400000

def stamp(A, idx):
    if not PROF: return
    A("s_memtime s[44:45]")
    A("s_waitcnt lgkmcnt(0)")
    A("s_sub_u32 s46, s44, s47")
    A(f"s_add_u32 s{80+idx}, s{80+idx}, s46")
    A("s_mov_b32 s47, s44")

def rendezvous(A, nwg=256):
    A(f"s_mov_b32 s17, {RDV}")
    A("s_getreg_b32 s14, hwreg(HW_REG_XCC_ID)")
    A("s_and_b32 s14, s14, 7")
    A("v_lshrrev_b32 v1, 6, v0")
    A("v_readfirstlane_b32 s13, v1")
    A("s_cmp_lg_u32 s13, 0")
    A("s_cbranch_scc1 L_rv_wait")
    A("s_lshl_b32 s15, s14, 8")
    A("v_mov_b32 v1, s15")
    A("v_mov_b32 v2, 1")
    A("s_mov_b64 exec, 1")
    A("buffer_atomic_add v2, v1, s[4:7], s17 offen sc0")
    A("s_waitcnt vmcnt(0)")
    A("v_mov_b32 v1, 0")
    A("ds_write_b32 v1, v2")
    A("s_mov_b64 exec, -1")
    A("s_waitcnt lgkmcnt(0)")
    A.label("L_rv_wait")
    A("s_barrier")
    A("v_mov_b32 v1, 0")
    A("ds_read_b32 v3, v1")
    A("v_and_b32 v4, 7, v0")
    A("v_lshlrev_b32 v4, 8, v4")
    A("s_mov_b32 s26, 0")
    A.label("L_rv_poll")
    A("buffer_load_dword v5, v4, s[4:7], s17 offen sc1")
    A("s_add_u32 s26, s26, 1")
    A(f"s_cmp_gt_u32 s26, {TMO}")
    A(f"s_cbranch_scc1 {END}")
    A("s_waitcnt vmcnt(0) lgkmcnt(0)")
    for x in range(8): A(f"v_readlane_b32 s{32+x}, v5, {x}")
    A("s_add_u32 s15, s32, s33")
    for x in range(2, 8): A(f"s_add_u32 s15, s15, s{32+x}")
    A(f"s_cmp_lg_u32 s15, {nwg}")
    A("s_cbranch_scc1 L_rv_poll")
    A("v_readfirstlane_b32 s12, v3")
    A("s_mov_b32 s30, 0")
    A("s_mov_b32 s31, 0")
    for x in range(8):
        A(f"s_cmp_lt_u32 {x}, s14")
        A(f"s_cselect_b32 s15, s{32+x}, 0")
        A("s_add_u32 s12, s12, s15")
        A(f"s_add_u32 s16, s31, s{32+x}")
        for c in range(2):
            A(f"s_cmp_le_u32 s31, {32*c}")
            A(f"s_cselect_b32 s15, {1<<c}, 0")
            A(f"s_cmp_ge_u32 s16, {32*c+32}")
            A(f"s_cselect_b32 s15, s15, 0")
            A("s_or_b32 s30, s30, s15")
        A("s_mov_b32 s31, s16")
    A("s_barrier")

def poll_counter(A, tag, soff_reg, expected, only_wave0=True):
    if only_wave0:
        A("s_cmp_lg_u32 s13, 0")
        A(f"s_cbranch_scc1 L_pc_done_{tag}")
    A("s_mov_b32 s26, 0")
    A("v_mov_b32 v126, 0")
    A.label(f"L_pc_{tag}")
    A(f"buffer_load_dword v127, v126, s[4:7], {soff_reg} offen sc1")
    A("s_add_u32 s26, s26, 1")
    A(f"s_cmp_gt_u32 s26, {TMO}")
    A(f"s_cbranch_scc1 {END}")
    A("s_waitcnt vmcnt(0)")
    A("v_readfirstlane_b32 s27, v127")
    A(f"s_cmp_ge_u32 s27, {expected}")
    A(f"s_cbranch_scc1 L_pc_done_{tag}")
    A("s_sleep 4" if only_wave0 else "s_sleep 1")
    A(f"s_branch L_pc_{tag}")
    A.label(f"L_pc_done_{tag}")
    if only_wave0:
        A("s_barrier")
        if PROF:
            A("s_memrealtime s[76:77]")
            A("s_waitcnt lgkmcnt(0)")

def poll_counter2(A, tag, soffA, expA, soffB, expB):
    A("s_cmp_lg_u32 s13, 0")
    A(f"s_cbranch_scc1 L_pc_done_{tag}")
    A("s_mov_b32 s26, 0")
    A(f"s_sub_u32 s23, {soffB}, {soffA}")
    A("v_mov_b32 v126, 0")
    A("v_writelane_b32 v126, s23, 1")
    A.label(f"L_pc_{tag}")
    A(f"buffer_load_dword v127, v126, s[4:7], {soffA} offen sc1")
    A("s_add_u32 s26, s26, 1")
    A(f"s_cmp_gt_u32 s26, {TMO}")
    A(f"s_cbranch_scc1 {END}")
    A("s_waitcnt vmcnt(0)")
    A("v_readlane_b32 s27, v127, 0")
    A("v_readlane_b32 s23, v127, 1")
    A(f"s_cmp_ge_u32 s27, {expA}")
    A("s_cselect_b32 s27, 1, 0")
    A(f"s_cmp_ge_u32 s23, {expB}")
    A("s_cselect_b32 s23, 1, 0")
    A("s_and_b32 s27, s27, s23")
    A("s_cmp_eq_u32 s27, 1")
    A(f"s_cbranch_scc1 L_pc_done_{tag}")
    A("s_sleep 4")
    A(f"s_branch L_pc_{tag}")
    A.label(f"L_pc_done_{tag}")
    A("s_barrier")

PTR = dict(wq=84, wk=86, wv=88, wo=90, wg=92, wu=94, wd=96)
WBYTES = dict(wq=4*MB, wk=4*MB, wv=4*MB, wo=4*MB, wg=512*1792*2, wu=512*1792*2, wd=1792*512*2)

def raw_srd(A, key):
    srd(A, 8, PTR[key], WBYTES[key])

def tr_load(A, rs, nk, nt, dst, stage_sreg, VA, VB, C, post=None):
    pitch = nt * 32
    lpr = nt * 2
    rows_per = 64 // lpr
    nld = 32 // rows_per
    sh = lpr.bit_length() - 1
    A(f"v_lshrrev_b32 v2, {sh}, v14")
    A(f"s_mov_b32 s23, {rs}")
    A("v_mul_lo_u32 v2, s23, v2")
    A(f"v_and_b32 v3, {lpr-1}, v14")
    A("v_lshl_add_u32 v2, v3, 4, v2")
    A("v_lshlrev_b32 v3, 4, v14")
    A(f"v_add_u32 v3, {stage_sreg}, v3")
    A("v_lshrrev_b32 v5, 4, v14")
    A("v_bfe_u32 v6, v14, 2, 2")
    A("v_lshl_add_u32 v5, v5, 3, v6")
    A(f"v_mul_u32_u24 v5, {pitch}, v5")
    A("v_and_b32 v6, 3, v14")
    A("v_lshl_add_u32 v5, v6, 4, v5")
    A(f"v_add_u32 v5, {stage_sreg}, v5")
    chunks = [list(range(k, min(k + C, nk))) for k in range(0, nk, C)]
    def issue(ci):
        V = VA if ci % 2 == 0 else VB
        n = 0
        for kk in chunks[ci]:
            for i in range(nld):
                A(f"buffer_load_dwordx4 v[{V+4*n}:{V+4*n+3}], v2, s[8:11], s15 offen")
                A(f"s_add_u32 s15, s15, {rows_per*rs}")
                n += 1
        return n
    issue(0)
    for ci, ch in enumerate(chunks):
        V = VA if ci % 2 == 0 else VB
        nxt = issue(ci + 1) if ci + 1 < len(chunks) else 0
        A(f"s_waitcnt vmcnt({nxt})")
        for n in range(len(ch) * nld):
            A(f"ds_write_b128 v3, v[{V+4*n}:{V+4*n+3}] offset:{n*1024}")
        A("s_waitcnt lgkmcnt(0)")
        for q, kk in enumerate(ch):
            for t in range(nt):
                kind, r = dst(kk, t)
                off = q * nt * 1024 + 64 * (t >> 1) + 8 * (t & 1)
                A(f"ds_read_b64_tr_b16 {kind}[{r}:{r+1}], v5 offset:{off}")
                A(f"ds_read_b64_tr_b16 {kind}[{r+2}:{r+3}], v5 offset:{off + 4*pitch}")
        A("s_waitcnt lgkmcnt(0)")
        if post:
            for kk in ch:
                for t in range(nt): post(kk, t, dst(kk, t))
            A("s_waitcnt lgkmcnt(0)")

def gen_chain_role(A):
    MEMF = 16; ACC = 80; KX = 104; VX = 112; T = 120
    A("s_lshr_b32 s42, s12, 5")
    A("s_and_b32 s12, s12, 31")
    A(f"s_mul_i32 s43, s42, {LSTRIDE}")
    A("v_and_b32 v14, 63, v0")
    A("v_lshlrev_b32 v1, 4, v14")
    A("v_lshlrev_b32 v13, 3, v14")
    A("v_and_b32 v15, 15, v14")
    def wreg(ti, kk):
        if ti < 4: return a((ti * 16 + kk) * 4, 4)
        return v(128 + ((ti - 4) * 16 + kk) * 4, 4)
    A("s_mul_i32 s16, s13, 6144")
    A(f"s_add_u32 s16, s16, {MEML}")
    for region, key in enumerate(("wq", "wk", "wv")):
        raw_srd(A, key)
        A("s_lshl_b32 s15, s12, 8")
        A("s_lshl_b32 s14, s13, 6")
        A("s_add_u32 s15, s15, s14")
        def dst(kk, t, region=region):
            ti = region * 2 + t
            return ("a", (ti * 16 + kk) * 4) if ti < 4 else ("v", 128 + ((ti - 4) * 16 + kk) * 4)
        tr_load(A, 8192, 16, 2, dst, "s16", 16, 40, 3)
    A("s_lshl_b32 s15, s13, 15")
    A("v_add_u32 v9, s15, v1")
    raw_srd(A, "wo")
    for half in range(2):
        A("s_lshl_b32 s15, s12, 17")
        A("s_lshl_b32 s14, s13, 8")
        A("s_add_u32 s15, s15, s14")
        A(f"s_add_u32 s15, s15, {128*half}")
        def dst(kk, t): return ("v", 80 + 4 * t)
        def post(kk, t, r, half=half):
            A(f"ds_write_b128 v9, v[{r[1]}:{r[1]+3}] offset:{((half*4+t)*4+kk)*1024}")
        tr_load(A, 1024, 4, 4, dst, "s16", 16, 40, 1, post)
    A("s_barrier")
    for i in range(4): A(f"v_mov_b32 v{T+i}, 0")
    A(f"v_add_u32 v2, {ZROW}, v1")
    A(f"ds_write_b128 v2, v[{T}:{T+3}]")
    A("v_lshrrev_b32 v120, 4, v14")
    A("s_lshl_b32 s15, s13, 11")
    A("v_add_u32 v2, s15, v1")
    A("v_and_b32 v3, 3, v14")
    A(f"v_mul_u32_u24 v3, {2*MROW}, v3")
    A("v_lshrrev_b32 v4, 2, v14")
    A("v_lshl_add_u32 v3, v4, 3, v3")
    A("s_lshl_b32 s15, s13, 8")
    A(f"s_add_u32 s15, s15, {MEML}")
    A("v_add_u32 v3, s15, v3")
    A(f"v_mul_u32_u24 v4, {MROW}, v15")
    A(f"v_add_u32 v4, {MEML}, v4")
    A(f"v_mov_b32 v5, {ZROW}")
    A("v_cmp_gt_u32 vcc, 8, v15")
    A("v_cndmask_b32 v4, v5, v4, vcc")
    A("v_lshl_add_u32 v4, v120, 4, v4")
    A("s_mul_i32 s15, s13, 3072")
    A(f"s_add_u32 s15, s15, {SCL}")
    A("v_add_u32 v5, s15, v1")
    for (x, reg) in ((1, 6), (2, 122), (3, 123)):
        A(f"s_xor_b32 s15, s13, {x}")
        A("s_mul_i32 s15, s15, 3072")
        A(f"s_add_u32 s15, s15, {SCL}")
        A(f"v_add_u32 v{reg}, s15, v1")
    A("s_lshl_b32 s15, s13, 10")
    A(f"s_add_u32 s15, s15, {OL}")
    A("v_add_u32 v7, s15, v1")
    A(f"v_add_u32 v8, {OL}, v1")
    A("s_lshl_b32 s15, s13, 17")
    A("s_lshl_b32 s14, s12, 9")
    A("s_add_u32 s15, s15, s14")
    A("v_lshlrev_b32 v10, 7, v120")
    A("v_lshl_add_u32 v10, v15, 4, v10")
    A("v_add_u32 v10, s15, v10")
    A("s_lshl_b32 s15, s12, 14")
    A("s_lshl_b32 s14, s13, 7")
    A("s_add_u32 s15, s15, s14")
    A("v_lshrrev_b32 v11, 3, v14")
    A("v_lshlrev_b32 v11, 9, v11")
    A("v_and_b32 v12, 7, v14")
    A("v_lshl_add_u32 v11, v12, 4, v11")
    A("v_add_u32 v11, s15, v11")
    A("s_lshr_b32 s14, s12, 1")
    A("s_lshl_b32 s14, s14, 3")
    A("s_lshl_b32 s15, s13, 1")
    A("s_add_u32 s14, s14, s15")
    A("s_and_b32 s15, s12, 1")
    A("s_add_u32 s14, s14, s15")
    A("s_lshl_b32 s15, s14, 6")
    A("v_add_u32 v12, s15, v13")
    A(f"s_mul_i32 s16, s42, {MEMX_LAYER}")
    A(f"s_add_u32 s16, s16, {MEMX}")
    A("s_lshl_b32 s38, s42, 21")
    A(f"s_add_u32 s38, s38, {PART}")
    A("s_mov_b32 s17, s38")
    A("s_lshl_b32 s14, s12, 2")
    A("s_add_u32 s14, s14, s13")
    A("s_lshl_b32 s14, s14, 10")
    A("s_add_u32 s14, s14, s43")
    A(f"s_add_u32 s18, s14, {KF}")
    A(f"s_add_u32 s20, s14, {KM}")
    A(f"s_add_u32 s21, s14, {VM}")
    A("s_sub_u32 s14, s14, s43")
    A("s_lshl_b32 s15, s14, 1")
    A("s_add_u32 s15, s15, s43")
    A(f"s_add_u32 s19, s15, {VF}")
    A("s_lshl_b32 s39, s42, 12")
    A(f"s_add_u32 s39, s39, {CHAIN_CNT}")
    A("s_lshl_b32 s40, s42, 14")
    A(f"s_add_u32 s40, s40, {cnt_off(0, 7, 0)}")
    A("s_mov_b32 s24, 0x00ff00ff")
    A("s_mov_b32 s25, 0x00ff00ff")
    A(f"s_mov_b32 s28, {SCALE_HEX}")
    A(f"s_mov_b32 s29, {SCALE_HEX}")
    A(f"s_mov_b32 s33, {LOG2E_HEX}")
    A(f"s_mov_b32 s31, {LOG2E_HEX | 0x80000000}")
    A("s_mov_b32 s36, -1")
    A("s_mov_b32 s37, 0")
    A("v_mov_b32 v14, v122")
    A("v_mov_b32 v15, v123")
    A("v_mov_b32 v0, 0xf149f2ca")
    A("s_mov_b32 s14, 0")
    A("s_mov_b32 s48, 0")
    A("s_mov_b32 s41, s17")
    if PROF:
        for i in range(10): A(f"s_mov_b32 s{80+i}, 0")
        A("s_memtime s[44:45]")
        A("s_waitcnt lgkmcnt(0)")
        A("s_mov_b32 s47, s44")
    A("s_waitcnt vmcnt(0) lgkmcnt(0)")
    A("s_barrier")
    A("s_cmp_lg_u32 s13, 0")
    A("s_cbranch_scc1 L_ch_nosig")
    A(f"s_mov_b32 s15, {SETUP_CNT}")
    A("v_mov_b32 v120, 0")
    A("v_mov_b32 v121, 1")
    A("s_mov_b64 exec, 1")
    A("buffer_atomic_add v121, v120, s[4:7], s15 offen")
    A("s_mov_b64 exec, -1")
    A.label("L_ch_nosig")
    A("s_lshr_b32 s15, s30, s42")
    A("s_and_b32 s15, s15, 1")
    A("s_cmp_eq_u32 s15, 1")
    A("s_cbranch_scc1 L_step_loc")
    for mode in ("glb", "loc"):
        SC = " sc1" if mode == "glb" else ""
        L = lambda x: f"L_{x}_{mode}"
        def kvload():
            A(f"buffer_load_dwordx4 v[{KX}:{KX+3}], v1, s[4:7], s18 offen sc1")
            A("s_add_u32 s22, s18, 131072")
            A(f"buffer_load_dwordx4 v[{KX+4}:{KX+7}], v1, s[4:7], s22 offen sc1")
            A(f"buffer_load_dwordx4 v[{VX}:{VX+3}], v1, s[4:7], s19 offen sc1")
            A(f"buffer_load_dwordx4 v[{VX+4}:{VX+7}], v1, s[4:7], s19 offen offset:1024 sc1")
        A.label(L("step"))
        A("s_cmp_eq_u32 s48, 1")
        A(f"s_cbranch_scc1 {L('kvok')}")
        A("s_lshr_b32 s15, s14, 1")
        A("s_lshl_b32 s15, s15, 6")
        A("s_add_u32 s15, s15, s40")
        poll_counter(A, "kv_" + mode, "s15", 32, only_wave0=False)
        kvload()
        A.label(L("kvok"))
        A("s_add_u32 s15, s14, 1")
        A("s_lshr_b32 s15, s15, 1")
        A("s_min_u32 s15, s15, 31")
        A("s_lshl_b32 s15, s15, 6")
        A("s_add_u32 s15, s15, s40")
        A(f"v_mov_b32 v{ACC+1}, 0")
        A(f"buffer_load_dword v{ACC+2}, v{ACC+1}, s[4:7], s15 offen sc1")
        A("s_mov_b32 s26, 0")
        A.label(L("poll_mem"))
        A(f"buffer_load_dwordx4 v[{T}:{T+3}], v2, s[4:7], s16 offen sc1")
        A(f"buffer_load_dwordx4 v[{T+4}:{T+7}], v2, s[4:7], s16 offen offset:1024 sc1")
        A("s_add_u32 s26, s26, 1")
        A(f"s_cmp_gt_u32 s26, {TMO}")
        A(f"s_cbranch_scc1 {END}")
        A("s_waitcnt vmcnt(0)")
        A(f"v_max3_u32 v{ACC}, v{T}, v{T+1}, v{T+2}")
        A(f"v_max3_u32 v{ACC}, v{ACC}, v{T+3}, v{T+4}")
        A(f"v_max3_u32 v{ACC}, v{ACC}, v{T+5}, v{T+6}")
        A(f"v_max_u32 v{ACC}, v{ACC}, v{T+7}")
        A(f"v_cmp_eq_u32 vcc, -1, v{ACC}")
        A("s_nop 4")
        A(f"s_cbranch_vccnz {L('poll_mem')}")
        stamp(A, 0)
        if PROF:
            A("s_memrealtime s[44:45]")
            A("s_waitcnt lgkmcnt(0)")
            A(f"v_mov_b32 v{ACC+3}, s44")
            A("s_lshl_b32 s15, s42, 6")
            A("s_add_u32 s15, s15, s14")
            A("s_lshl_b32 s15, s15, 7")
            A("s_lshl_b32 s46, s12, 2")
            A("s_add_u32 s15, s15, s46")
            A(f"s_add_u32 s15, s15, {PROFB + 3*MB}")
            A(f"buffer_store_dword v{ACC+3}, v{ACC+1}, s[4:7], s15 offen")
        A(f"v_readfirstlane_b32 s49, v{ACC+2}")
        A(f"ds_write_b64 v3, v[{T}:{T+1}]")
        A(f"ds_write_b64 v3, v[{T+2}:{T+3}] offset:{MROW}")
        A(f"ds_write_b64 v3, v[{T+4}:{T+5}] offset:128")
        A(f"ds_write_b64 v3, v[{T+6}:{T+7}] offset:{MROW+128}")
        A("s_waitcnt lgkmcnt(0)")
        A("s_barrier")
        for kk in range(16):
            A(f"ds_read_b128 v[{MEMF+4*kk}:{MEMF+4*kk+3}], v4 offset:{kk*64}")
        def qkv_mfma(ti, kk):
            acc = v(ACC + 4 * ti, 4); m = v(MEMF + 4 * kk, 4); w = wreg(ti, kk)
            c = "0" if kk == 0 else acc
            if ti < 4: return f"v_mfma_f32_16x16x32_bf16 {acc}, {w}, {m}, {c}"
            else:      return f"v_mfma_f32_16x16x32_bf16 {acc}, {m}, {w}, {c}"
        for kk in range(16):
            A(f"s_waitcnt lgkmcnt({15-kk})")
            for ti in range(4): A(qkv_mfma(ti, kk))
            if kk == 3:
                A("s_cmp_eq_u32 s14, 0")
                A(f"s_cbranch_scc1 {L('nodefer')}")
                for i in range(4): A(f"v_mov_b32 v{T+i}, -1")
                A(f"v_mov_b32 v{T+4}, 1")
                A(f"v_mov_b32 v{T+5}, 0")
                for i in range(4):
                    A(f"s_add_u32 s22, s41, {i*4096}")
                    A(f"buffer_store_dwordx4 v[{T}:{T+3}], v11, s[4:7], s22 offen{SC}")
                A("s_mov_b64 exec, 1")
                A(f"buffer_atomic_add v{T+4}, v{T+5}, s[4:7], s39 offen")
                A("s_mov_b64 exec, -1")
                A("s_add_u32 s39, s39, 64")
                A.label(L("nodefer"))
        vm = [qkv_mfma(ti, kk) for kk in range(16) for ti in (4, 5)]
        stamp(A, 1)
        QP = 120; KP = 124; S = 80
        A(vm[0]); A(vm[1]); A(vm[2]); A(vm[3])
        for i, dst in enumerate((QP, KP)):
            for half in range(2):
                b = ACC + 8 * i + 4 * half
                A(f"v_cvt_pk_bf16_f32 v{dst+2*half}, v{b}, v{b+1}")
                A(f"v_cvt_pk_bf16_f32 v{dst+2*half+1}, v{b+2}, v{b+3}")
        A(f"v_mfma_f32_16x16x32_bf16 v[{S}:{S+3}], v[{KP}:{KP+3}], v[{QP}:{QP+3}], 0")
        A(f"v_mfma_f32_16x16x32_bf16 v[{S+4}:{S+7}], v[{KX}:{KX+3}], v[{QP}:{QP+3}], 0")
        A(f"v_mfma_f32_16x16x32_bf16 v[{S+8}:{S+11}], v[{KX+4}:{KX+7}], v[{QP}:{QP+3}], 0")
        A(f"buffer_store_dwordx4 v[{KP}:{KP+3}], v1, s[4:7], s20 offen sc1")
        for i in range(4, 8): A(vm[i])
        for i in range(3):
            A(f"ds_write_b128 v5, v[{S+4*i}:{S+4*i+3}] offset:{i*1024}")
        for i in range(8, 12): A(vm[i])
        A("s_add_u32 s18, s18, 262144")
        A("s_add_u32 s19, s19, 262144")
        A("s_mov_b32 s48, 0")
        A("s_cmp_lt_u32 s49, 32")
        A(f"s_cbranch_scc1 {L('noprefk')}")
        A("s_cmp_ge_u32 s14, 63")
        A(f"s_cbranch_scc1 {L('noprefk')}")
        A("s_mov_b32 s48, 1")
        A(f"buffer_load_dwordx4 v[{KX}:{KX+3}], v1, s[4:7], s18 offen sc1")
        A("s_add_u32 s22, s18, 131072")
        A(f"buffer_load_dwordx4 v[{KX+4}:{KX+7}], v1, s[4:7], s22 offen sc1")
        A.label(L("noprefk"))
        for i in range(12, 16): A(vm[i])
        A("s_waitcnt lgkmcnt(0)")
        A("s_barrier")
        stamp(A, 2)
        R1 = 16; R2 = 28; R3r = [40, 44, 92]
        for i in range(3): A(f"ds_read_b128 v[{R1+4*i}:{R1+4*i+3}], v6 offset:{i*1024}")
        for i in range(3): A(f"ds_read_b128 v[{R2+4*i}:{R2+4*i+3}], v14 offset:{i*1024}")
        for i in range(3): A(f"ds_read_b128 v[{R3r[i]}:{R3r[i]+3}], v15 offset:{i*1024}")
        for i in range(16, 22): A(vm[i])
        va = []
        va.append("s_waitcnt lgkmcnt(6)")
        for i in range(0, 12, 2): va.append(f"v_pk_add_f32 v[{S+i}:{S+i+1}], v[{S+i}:{S+i+1}], v[{R1+i}:{R1+i+1}]")
        va.append("s_waitcnt lgkmcnt(0)")
        for i in range(0, 12, 2):
            r3 = R3r[i // 4] + (i % 4)
            va.append(f"v_pk_add_f32 v[{R2+i}:{R2+i+1}], v[{R2+i}:{R2+i+1}], v[{r3}:{r3+1}]")
        for i in range(0, 12, 2): va.append(f"v_pk_add_f32 v[{S+i}:{S+i+1}], v[{S+i}:{S+i+1}], v[{R2+i}:{R2+i+1}]")
        TT = 16
        for i in range(0, 12, 2): va.append(f"v_cvt_pk_bf16_f32 v{TT+i//2}, v{S+i}, v{S+i+1}")
        for i in range(0, 12, 2):
            va.append(f"v_lshlrev_b32 v{S+i}, 16, v{TT+i//2}")
            va.append(f"v_and_b32 v{S+i+1}, 0xffff0000, v{TT+i//2}")
        for i in range(0, 12, 2): va.append(f"v_pk_mul_f32 v[{S+i}:{S+i+1}], v[{S+i}:{S+i+1}], s[28:29]")
        for i in range(0, 12, 2): va.append(f"v_cvt_pk_bf16_f32 v{TT+i//2}, v{S+i}, v{S+i+1}")
        for i in range(0, 12, 2):
            va.append(f"v_lshlrev_b32 v{S+i}, 16, v{TT+i//2}")
            va.append(f"v_and_b32 v{S+i+1}, 0xffff0000, v{TT+i//2}")
        for i in range(4): va.append(f"v_cndmask_b32 v{S+i}, v0, v{S+i}, s[36:37]")
        MX = 22; MT = 23
        va.append(f"v_max3_f32 v{MX}, v{S}, v{S+1}, v{S+2}")
        va.append(f"v_max3_f32 v{MT}, v{S+3}, v{S+4}, v{S+5}")
        va.append(f"v_max3_f32 v{MX}, v{MX}, v{S+6}, v{S+7}")
        va.append(f"v_max3_f32 v{MT}, v{MT}, v{S+8}, v{S+9}")
        va.append(f"v_max3_f32 v{MX}, v{MX}, v{S+10}, v{S+11}")
        va.append(f"v_max_f32 v{MX}, v{MX}, v{MT}")
        rest = vm[22:]
        k = 0
        for idx, ins in enumerate(va):
            A(ins)
            if idx % 3 == 2 and k < len(rest):
                A(rest[k]); k += 1
        while k < len(rest): A(rest[k]); k += 1
        xlane(A, MX, MT, ("p16", "p32"), "v_max_f32")
        A(f"v_mul_f32 v{MX}, s31, v{MX}")
        for i in range(12): A(f"v_fma_f32 v{S+i}, v{S+i}, s33, v{MX}")
        WOF = 32; VP = 24
        for half in range(2):
            b = ACC + 16 + 4 * half
            A(f"v_cvt_pk_bf16_f32 v{VP+2*half}, v{b}, v{b+1}")
            A(f"v_cvt_pk_bf16_f32 v{VP+2*half+1}, v{b+2}, v{b+3}")
        for i in range(12): A(f"v_exp_f32 v{S+i}, v{S+i}")
        for t in range(3):
            for j in range(4):
                A(f"ds_read_b128 v[{WOF+16*t+4*j}:{WOF+16*t+4*j+3}], v9 offset:{(t*4+j)*1024}")
        A(f"buffer_store_dwordx2 v[{VP}:{VP+1}], v13, s[4:7], s21 offen sc1")
        A(f"buffer_store_dwordx2 v[{VP+2}:{VP+3}], v13, s[4:7], s21 offen offset:512 sc1")
        for i in range(0, 12, 4):
            A(f"v_pk_add_f32 v[{TT+i//2}:{TT+i//2+1}], v[{S+i}:{S+i+1}], v[{S+i+2}:{S+i+3}]")
        A(f"v_pk_add_f32 v[{TT}:{TT+1}], v[{TT}:{TT+1}], v[{TT+2}:{TT+3}]")
        A(f"v_pk_add_f32 v[{TT}:{TT+1}], v[{TT}:{TT+1}], v[{TT+4}:{TT+5}]")
        A(f"v_add_f32 v{MX}, v{TT}, v{TT+1}")
        xlane(A, MX, MT, ("p16", "p32"))
        A(f"v_rcp_f32 v{MX}, v{MX}")
        A(f"v_mov_b32 v{MT}, v{MX}")
        for i in range(0, 12, 2): A(f"v_pk_mul_f32 v[{S+i}:{S+i+1}], v[{S+i}:{S+i+1}], v[{MX}:{MX+1}]")
        PM = 16; PT = 18
        A(f"v_cvt_pk_bf16_f32 v{PM}, v{S}, v{S+1}")
        A(f"v_cvt_pk_bf16_f32 v{PM+1}, v{S+2}, v{S+3}")
        for i in range(4): A(f"v_cvt_pk_bf16_f32 v{PT+i}, v{S+4+2*i}, v{S+5+2*i}")
        O = 96
        for t in range(2):
            A(f"v_mfma_f32_16x16x32_bf16 v[{O+4*t}:{O+4*t+3}], v[{VX+4*t}:{VX+4*t+3}], v[{PT}:{PT+3}], 0")
        for t in range(2):
            A(f"v_mfma_f32_16x16x16_bf16 v[{O+4*t}:{O+4*t+3}], v[{VP+2*t}:{VP+2*t+1}], v[{PM}:{PM+1}], v[{O+4*t}:{O+4*t+3}]")
        for j in range(4):
            A(f"ds_read_b128 v[{80+4*j}:{83+4*j}], v9 offset:{(3*4+j)*1024}")
        A("s_cmp_eq_u32 s48, 0")
        A(f"s_cbranch_scc1 {L('nopref')}")
        A("s_nop 4")
        A(f"buffer_load_dwordx4 v[{VX}:{VX+3}], v1, s[4:7], s19 offen sc1")
        A(f"buffer_load_dwordx4 v[{VX+4}:{VX+7}], v1, s[4:7], s19 offen offset:1024 sc1")
        A.label(L("nopref"))
        OP = 120
        for t in range(2):
            A(f"v_cvt_pk_bf16_f32 v{OP+2*t}, v{O+4*t}, v{O+4*t+1}")
            A(f"v_cvt_pk_bf16_f32 v{OP+2*t+1}, v{O+4*t+2}, v{O+4*t+3}")
        A(f"ds_write_b128 v7, v[{OP}:{OP+3}]")
        A("s_waitcnt lgkmcnt(0)")
        A("s_barrier")
        stamp(A, 3)
        OFR = 16
        for j in range(4):
            A(f"ds_read_b128 v[{OFR+4*j}:{OFR+4*j+3}], v8 offset:{j*1024}")
        wof = lambda t, j: (WOF + 16 * t + 4 * j) if t < 3 else (80 + 4 * j)
        RES = [96, 100, 120, 124]
        def store_part(t, reg):
            A(f"s_add_u32 s22, s17, {t*16384}")
            A(f"buffer_store_dwordx4 v[{reg}:{reg+3}], v10, s[4:7], s22 offen{SC}")
        for j in range(4):
            A(f"s_waitcnt lgkmcnt({3-j + 4*j})")
            for t in range(4):
                acc = v(RES[t], 4)
                A(f"v_mfma_f32_16x16x32_bf16 {acc}, v[{wof(t,j)}:{wof(t,j)+3}], v[{OFR+4*j}:{OFR+4*j+3}], {'0' if j==0 else acc}")
            for t in range(4):
                A(f"ds_read_b128 v[{wof(t,j)}:{wof(t,j)+3}], v9 offset:{((t+4)*4+j)*1024}")
        A("s_mov_b64 exec, s[24:25]")
        for t in range(4): store_part(t, RES[t])
        A("s_mov_b64 exec, -1")
        for j in range(4):
            A(f"s_waitcnt lgkmcnt({12-4*j})")
            for t in range(4):
                acc = v(RES[t], 4)
                A(f"v_mfma_f32_16x16x32_bf16 {acc}, v[{wof(t,j)}:{wof(t,j)+3}], v[{OFR+4*j}:{OFR+4*j+3}], {'0' if j==0 else acc}")
        A("s_mov_b64 exec, s[24:25]")
        for t in range(4): store_part(4 + t, RES[t])
        A("s_mov_b64 exec, -1")
        stamp(A, 4)
        P = 40
        A("s_mov_b32 s26, 0")
        A.label(L("poll_part"))
        for i in range(4):
            A(f"s_add_u32 s22, s17, {i*4096}")
            A(f"buffer_load_dwordx4 v[{P+4*i}:{P+4*i+3}], v11, s[4:7], s22 offen sc1")
        A("s_add_u32 s26, s26, 1")
        A(f"s_cmp_gt_u32 s26, {TMO}")
        A(f"s_cbranch_scc1 {END}")
        A("s_waitcnt vmcnt(0)")
        A(f"v_max3_u32 v{P+16}, v{P}, v{P+1}, v{P+2}")
        for i in range(3, 15, 2): A(f"v_max3_u32 v{P+16}, v{P+16}, v{P+i}, v{P+i+1}")
        A(f"v_max_u32 v{P+16}, v{P+16}, v{P+15}")
        A(f"v_cmp_eq_u32 vcc, -1, v{P+16}")
        A("s_nop 4")
        A(f"s_cbranch_vccnz {L('poll_part')}")
        stamp(A, 5)
        for c in range(4):
            A(f"v_add_f32 v{P+c}, v{P+c}, v{P+4+c}")
            A(f"v_add_f32 v{P+8+c}, v{P+8+c}, v{P+12+c}")
        for c in range(4): A(f"v_add_f32 v{P+c}, v{P+c}, v{P+8+c}")
        for c in range(4): xlane(A, P + c, P + 16 + c)
        A(f"v_cvt_pk_bf16_f32 v{P+20}, v{P}, v{P+1}")
        A(f"v_cvt_pk_bf16_f32 v{P+21}, v{P+2}, v{P+3}")
        A(f"v_min_u32 v{P+20}, -2, v{P+20}")
        A(f"v_min_u32 v{P+21}, -2, v{P+21}")
        A("s_add_u32 s16, s16, 8192")
        A("s_mov_b64 exec, 0xff")
        A(f"buffer_store_dwordx2 v[{P+20}:{P+21}], v12, s[4:7], s16 offen{SC}")
        A("s_mov_b64 exec, -1")
        A("s_mov_b32 s41, s17")
        A("s_add_u32 s14, s14, 1")
        A("s_and_b32 s15, s14, 3")
        A("s_lshl_b32 s15, s15, 19")
        A("s_add_u32 s17, s38, s15")
        A("s_add_u32 s20, s20, 131072")
        A("s_add_u32 s21, s21, 131072")
        stamp(A, 6)
        A("s_cmp_lt_u32 s14, 64")
        A(f"s_cbranch_scc1 {L('step')}")
        A(f"v_mov_b32 v{T+4}, 1")
        A(f"v_mov_b32 v{T+5}, 0")
        A("s_mov_b64 exec, 1")
        A(f"buffer_atomic_add v{T+4}, v{T+5}, s[4:7], s39 offen")
        A("s_mov_b64 exec, -1")
        if PROF:
            A("s_lshl_b32 s15, s12, 2")
            A("s_add_u32 s15, s15, s13")
            A("s_lshl_b32 s15, s15, 6")
            A("s_lshl_b32 s16, s42, 16")
            A("s_add_u32 s15, s15, s16")
            A(f"s_add_u32 s15, s15, {PROFB}")
            A("v_mov_b32 v1, 0")
            for i in range(8):
                A(f"v_mov_b32 v2, s{80+i}")
                A(f"buffer_store_dword v2, v1, s[4:7], s15 offen offset:{4*i}")
                A("s_nop 1")
            A("v_mov_b32 v2, s30")
            A(f"buffer_store_dword v2, v1, s[4:7], s15 offen offset:32")
        A("s_endpgm")

def cnt_addr(A, dst, stage, layer_reg="s42"):
    A(f"s_lshl_b32 s{dst}, {layer_reg}, 8")
    A(f"s_add_u32 s{dst}, s{dst}, s40")
    A(f"s_lshl_b32 s{dst}, s{dst}, 6")
    A(f"s_add_u32 s{dst}, s{dst}, {cnt_off(0, stage, 0)}")

def signal(A, stage):
    A("s_waitcnt vmcnt(0) lgkmcnt(0)")
    A("s_barrier")
    A("s_cmp_lg_u32 s13, 0")
    A("s_cbranch_scc1 L_wloop")
    if PROF:
        A("s_memrealtime s[78:79]")
        A("s_waitcnt lgkmcnt(0)")
        A("v_mov_b32 v120, s72")
        A("v_mov_b32 v121, s74")
        A("v_mov_b32 v122, s76")
        A("v_mov_b32 v123, s78")
        A("v_mov_b32 v126, 0")
        A("s_mov_b64 exec, 1")
        A("buffer_store_dwordx4 v[120:123], v126, s[4:7], s69 offen")
        A("s_mov_b64 exec, -1")
        A("s_add_u32 s69, s69, 16")
    cnt_addr(A, 22, stage)
    A("v_mov_b32 v126, 0")
    A("v_mov_b32 v127, 1")
    A("s_mov_b64 exec, 1")
    A("buffer_atomic_add v127, v126, s[4:7], s22 offen")
    A("s_mov_b64 exec, -1")
    A("s_branch L_wloop")

def flush_pending(A, tag):
    A("s_cmp_eq_u32 s68, 0")
    A(f"s_cbranch_scc1 L_fp_done_{tag}")
    A("s_barrier")
    A("s_cmp_lg_u32 s13, 0")
    A(f"s_cbranch_scc1 L_fp_skip_{tag}")
    A("v_mov_b32 v124, 0")
    A("v_mov_b32 v125, 1")
    A("s_mov_b64 exec, 1")
    A("buffer_atomic_add v125, v124, s[4:7], s68 offen")
    A("s_mov_b64 exec, -1")
    A.label(f"L_fp_skip_{tag}")
    A("s_mov_b32 s68, 0")
    A.label(f"L_fp_done_{tag}")

def stage_ln(A, which):
    tag = f"ln{which}"
    if which == 0:
        A("s_cmp_eq_u32 s42, 0")
        A(f"s_cbranch_scc1 L_{tag}_nodep")
        A("s_mov_b32 s23, 0")
        cnt_addr(A, 22, 6, "s23")
        poll_counter(A, tag, "s22", 32)
        A.label(f"L_{tag}_nodep")
    else:
        cnt_addr(A, 22, 3)
        poll_counter(A, tag, "s22", 32)
    A("s_lshl_b32 s23, s42, 1")
    A(f"s_add_u32 s23, s23, {which}")
    A("s_lshl_b32 s23, s23, 21")
    A(f"s_add_u32 s19, s23, {XR}")
    A(f"s_add_u32 s18, s23, {XFA}")
    A("v_lshrrev_b32 v1, 4, v0")
    A("s_lshl_b32 s3, s40, 6")
    A("s_lshl_b32 s15, s41, 5")
    A("s_add_u32 s3, s3, s15")
    A("v_add_u32 v1, s3, v1")
    A("v_and_b32 v2, 15, v0")
    A("v_lshlrev_b32 v3, 10, v1")
    A("v_lshl_add_u32 v3, v2, 4, v3")
    for q in range(4):
        A(f"buffer_load_dwordx4 v[{16+4*q}:{19+4*q}], v3, s[4:7], s19 offen offset:{q*256} sc1")
    A("s_add_u32 s19, s19, 16384")
    for q in range(4):
        A(f"buffer_load_dwordx4 v[{64+4*q}:{67+4*q}], v3, s[4:7], s19 offen offset:{q*256} sc1")
    A("v_bfe_u32 v4, v1, 3, 2")
    A("v_and_b32 v5, 3, v1")
    A("v_lshl_add_u32 v4, v4, 2, v5")
    A("v_and_b32 v5, 3, v2")
    A("v_lshl_add_u32 v4, v5, 4, v4")
    A("v_lshlrev_b32 v4, 4, v4")
    A("v_bfe_u32 v5, v1, 2, 1")
    A("v_bfe_u32 v6, v1, 5, 1")
    A("v_lshl_add_u32 v5, v6, 1, v5")
    A("v_lshl_add_u32 v4, v5, 10, v4")
    A("v_lshrrev_b32 v5, 6, v1")
    A("v_lshrrev_b32 v6, 2, v2")
    A("v_lshl_add_u32 v5, v5, 4, v6")
    A("v_lshl_add_u32 v4, v5, 12, v4")
    for it in range(2):
        A(f"s_waitcnt vmcnt({4 if it == 0 else 4})")
        if it == 1:
            for i in range(16): A(f"v_mov_b32 v{16+i}, v{64+i}")
        ln_math(A)
        for q in range(4):
            A(f"s_add_u32 s20, s18, {q*4*4096 + it*128}")
            A(f"buffer_store_dwordx4 v[{16+4*q}:{19+4*q}], v4, s[4:7], s20 offen sc1")
    signal(A, 0 if which == 0 else 4)

XB = 8; WB = 40; TMPX = 104; ACCW = 168

def ta_prologue(A, tag, which, dep_stage, preload):
    A("v_and_b32 v4, 63, v0")
    A("v_lshlrev_b32 v4, 4, v4")
    A("s_bitcmp0_b32 s72, 16")
    A(f"s_cbranch_scc1 L_{tag}_nopre")
    A(f"s_mov_b32 s22, {SETUP_CNT}")
    poll_counter(A, tag + "_su", "s22", 64)
    preload(A)
    A.label(f"L_{tag}_nopre")
    cnt_addr(A, 22, dep_stage)
    poll_counter(A, tag, "s22", 2)
    A("v_lshlrev_b32 v1, 4, v0")
    A("s_lshl_b32 s23, s42, 1")
    A(f"s_add_u32 s23, s23, {which}")
    A("s_lshl_b32 s23, s23, 21")
    A("s_lshl_b32 s19, s40, 16")
    A("s_add_u32 s19, s19, s23")
    A(f"s_add_u32 s19, s19, {XFA}")
    for i in range(16):
        A(f"buffer_load_dwordx4 v[{TMPX+4*i}:{TMPX+4*i+3}], v1, s[4:7], s19 offen sc1")
        if i < 15: A("s_add_u32 s19, s19, 4096")
    for i in range(16):
        A(f"s_waitcnt vmcnt({15-i})")
        A(f"ds_write_b128 v1, v[{TMPX+4*i}:{TMPX+4*i+3}] offset:{i*4096}")
    A("v_mov_b32 v5, v4")
    A("s_waitcnt lgkmcnt(0)")
    A("s_barrier")

def ta_xread(A, buf, koff):
    for mt in range(4):
        A(f"ds_read_b128 v[{XB+16*buf+4*mt}:{XB+16*buf+4*mt+3}], v5 offset:{koff*4096+mt*1024}")

def ta_kloop(A, vtype):
    NB = 3
    ta_xread(A, 0, 0); ta_xread(A, 1, 1)
    for kk in range(16):
        if kk + 2 < 16: ta_xread(A, (kk + 2) % NB, kk + 2)
        lg = min(8, 4 * (15 - kk))
        A(f"s_waitcnt lgkmcnt({lg})")
        for ct in range(4):
            for mt in range(4):
                w = a((kk * 4 + ct) * 4, 4); x = v(XB + 16 * (kk % NB) + 4 * mt, 4)
                acc = v(ACCW + (ct * 4 + mt) * 4, 4)
                c = "0" if kk == 0 else acc
                if vtype: A(f"v_mfma_f32_16x16x32_bf16 {acc}, {x}, {w}, {c}")
                else:     A(f"v_mfma_f32_16x16x32_bf16 {acc}, {w}, {x}, {c}")

def preload_qkv(A):
    A("v_and_b32 v14, 63, v0")
    A(f"s_mov_b32 s8, s{PTR['wq']}")
    A(f"s_mov_b32 s9, s{PTR['wq']+1}")
    A("s_cmp_eq_u32 s18, 1")
    A(f"s_cselect_b32 s8, s{PTR['wk']}, s8")
    A(f"s_cselect_b32 s9, s{PTR['wk']+1}, s9")
    A("s_cmp_eq_u32 s18, 2")
    A(f"s_cselect_b32 s8, s{PTR['wv']}, s8")
    A(f"s_cselect_b32 s9, s{PTR['wv']+1}, s9")
    A("s_and_b32 s9, s9, 0xffff")
    A(f"s_mov_b32 s10, {4*MB}")
    A("s_mov_b32 s11, 0x00020000")
    A("s_lshl_b32 s15, s16, 7")
    A("s_lshl_b32 s24, s13, 14")
    tr_load(A, 8192, 16, 4, lambda kk, t: ("a", (kk * 4 + t) * 4), "s24", 16, 80, 4)
    A("s_barrier")

def preload_gu(A):
    A("v_and_b32 v14, 63, v0")
    A("s_lshl_b32 s24, s13, 14")
    for gu, key in enumerate(("wg", "wu")):
        raw_srd(A, key)
        A("s_lshl_b32 s15, s16, 6")
        tr_load(A, 3584, 16, 2, lambda kk, t, gu=gu: ("a", (kk * 4 + 2 * gu + t) * 4), "s24", 16, 80, 8)
    A("s_barrier")

def stage_q(A):
    A("s_and_b32 s16, s41, 15")
    A("s_lshl_b32 s16, s16, 2")
    A("s_add_u32 s16, s16, s13")
    A("s_lshr_b32 s17, s41, 4")
    A("s_add_u32 s18, s17, 1")
    A("s_cmp_eq_u32 s17, 2")
    A("s_cselect_b32 s18, 0, s18")
    A("s_mul_i32 s15, s16, 3")
    A("s_add_u32 s15, s15, s18")
    A("s_lshl_b32 s15, s15, 16")
    A(f"s_add_u32 s15, s15, {WQKV_F}")
    ta_prologue(A, "q", 0, 0, preload_qkv)
    A("s_cmp_eq_u32 s17, 1")
    A("s_cbranch_scc1 L_q_v")
    ta_kloop(A, False)
    A("s_lshl_b32 s19, s40, 7")
    A("s_lshr_b32 s20, s16, 1")
    A("s_add_u32 s19, s19, s20")
    A("s_lshl_b32 s19, s19, 2")
    A("s_and_b32 s20, s16, 1")
    A("s_lshl_b32 s20, s20, 1")
    A("s_add_u32 s19, s19, s20")
    A("s_lshl_b32 s19, s19, 10")
    A("s_add_u32 s19, s19, s43")
    A(f"s_mov_b32 s20, {KF}")
    A("s_cmp_eq_u32 s17, 2")
    A(f"s_cselect_b32 s20, {QF}, s20")
    A("s_add_u32 s19, s19, s20")
    for mt in range(4):
        for cp in range(2):
            pk = TMPX + 4 * (mt * 2 + cp)
            for half in range(2):
                b = ACCW + ((2 * cp + half) * 4 + mt) * 4
                A(f"v_cvt_pk_bf16_f32 v{pk+2*half}, v{b}, v{b+1}")
                A(f"v_cvt_pk_bf16_f32 v{pk+2*half+1}, v{b+2}, v{b+3}")
            A(f"buffer_store_dwordx4 v[{pk}:{pk+3}], v4, s[4:7], s19 offen offset:{cp*1024} sc1")
        if mt < 3: A("s_add_u32 s19, s19, 131072")
    A("s_cmp_eq_u32 s17, 2")
    A("s_cbranch_scc1 L_q_sigq")
    signal(A, 7)
    A.label("L_q_sigq")
    signal(A, 1)
    A.label("L_q_v")
    ta_kloop(A, True)
    A("s_lshl_b32 s19, s40, 6")
    A("s_lshr_b32 s20, s16, 1")
    A("s_add_u32 s19, s19, s20")
    A("s_lshl_b32 s19, s19, 3")
    A("s_and_b32 s20, s16, 1")
    A("s_lshl_b32 s20, s20, 2")
    A("s_add_u32 s19, s19, s20")
    A("s_lshl_b32 s19, s19, 10")
    A("s_add_u32 s19, s19, s43")
    A(f"s_add_u32 s19, s19, {VF}")
    for sg in range(2):
        for ct in range(4):
            pk = TMPX + 4 * (sg * 4 + ct)
            for half in range(2):
                b = ACCW + (ct * 4 + 2 * sg + half) * 4
                A(f"v_cvt_pk_bf16_f32 v{pk+2*half}, v{b}, v{b+1}")
                A(f"v_cvt_pk_bf16_f32 v{pk+2*half+1}, v{b+2}, v{b+3}")
            A(f"buffer_store_dwordx4 v[{pk}:{pk+3}], v4, s[4:7], s19 offen offset:{ct*1024} sc1")
        if sg < 1: A("s_add_u32 s19, s19, 262144")
    signal(A, 7)

def stage_q1stream(A):
    PKR = 56
    A("s_and_b32 s16, s41, 15")
    A("s_lshl_b32 s16, s16, 2")
    A("s_add_u32 s16, s16, s13")
    A("s_lshr_b32 s17, s41, 4")
    A("s_add_u32 s18, s17, 1")
    A("s_cmp_eq_u32 s17, 2")
    A("s_cselect_b32 s18, 0, s18")
    A("s_mul_i32 s15, s16, 3")
    A("s_add_u32 s15, s15, s18")
    A("s_lshl_b32 s15, s15, 16")
    A(f"s_add_u32 s15, s15, {WQKV_F}")
    A("v_and_b32 v4, 63, v0")
    A("v_lshlrev_b32 v4, 4, v4")
    A("v_lshlrev_b32 v1, 4, v0")
    A(f"s_mov_b32 s19, {XFA}")
    def xloads():
        for i in range(16):
            A(f"buffer_load_dwordx4 v[{TMPX+4*i}:{TMPX+4*i+3}], v1, s[4:7], s19 offen")
            A("s_add_u32 s19, s19, 4096")
    preload_qkv(A)
    xloads()
    A("s_lshr_b32 s20, s16, 1")
    A("s_and_b32 s21, s16, 1")
    A("s_cmp_eq_u32 s17, 1")
    A("s_cbranch_scc1 L_q1_vaddr")
    A("s_lshl_b32 s20, s20, 2")
    A("s_lshl_b32 s21, s21, 1")
    A("s_add_u32 s20, s20, s21")
    A("s_lshl_b32 s20, s20, 10")
    A(f"s_mov_b32 s21, {KF}")
    A("s_cmp_eq_u32 s17, 2")
    A(f"s_cselect_b32 s21, {QF}, s21")
    A("s_add_u32 s20, s20, s21")
    A("s_branch L_q1_addr_done")
    A.label("L_q1_vaddr")
    A("s_lshl_b32 s20, s20, 3")
    A("s_lshl_b32 s21, s21, 2")
    A("s_add_u32 s20, s20, s21")
    A("s_lshl_b32 s20, s20, 10")
    A(f"s_add_u32 s20, s20, {VF}")
    A.label("L_q1_addr_done")
    A(f"s_mov_b32 s21, {cnt_off(0, 7, 0)}")
    A("s_cmp_eq_u32 s17, 2")
    A(f"s_cselect_b32 s21, {cnt_off(0, 1, 0)}, s21")
    A("s_mov_b32 s40, 0")
    A("v_mov_b32 v2, v1")
    A("v_mov_b32 v5, v4")
    A("s_waitcnt vmcnt(0)")
    for i in range(16):
        A(f"ds_write_b128 v2, v[{TMPX+4*i}:{TMPX+4*i+3}] offset:{i*4096}")
    A("s_waitcnt lgkmcnt(0)")
    xloads()
    A("s_barrier")
    A("s_cmp_eq_u32 s17, 1")
    A("s_cbranch_scc1 L_q1_loop_v")
    for vtype in (False, True):
        tg = "v" if vtype else "qk"
        A.label(f"L_q1_loop_{tg}")
        ta_kloop(A, vtype)
        A("s_waitcnt vmcnt(0)")
        A("v_xor_b32 v2, 0x10000, v2")
        A("v_xor_b32 v5, 0x10000, v5")
        for i in range(16):
            A(f"ds_write_b128 v2, v[{TMPX+4*i}:{TMPX+4*i+3}] offset:{i*4096}")
        A("s_waitcnt lgkmcnt(0)")
        A("s_barrier")
        A("s_cmp_le_u32 s40, 1")
        A(f"s_cbranch_scc1 L_q1_nosig_{tg}")
        A("s_cmp_lg_u32 s13, 0")
        A(f"s_cbranch_scc1 L_q1_nosig2_{tg}")
        A("v_mov_b32 v6, 0")
        A("v_mov_b32 v7, 1")
        A("s_mov_b64 exec, 1")
        A("buffer_atomic_add v7, v6, s[4:7], s21 offen")
        A("s_mov_b64 exec, -1")
        A.label(f"L_q1_nosig2_{tg}")
        A("s_add_u32 s21, s21, 64")
        A.label(f"L_q1_nosig_{tg}")
        A("s_cmp_ge_u32 s40, 30")
        A(f"s_cbranch_scc1 L_q1_nold_{tg}")
        xloads()
        A.label(f"L_q1_nold_{tg}")
        A("s_mov_b32 s22, s20")
        if not vtype:
            for mt in range(4):
                for cp in range(2):
                    pk = PKR + 4 * (mt * 2 + cp)
                    for half in range(2):
                        b = ACCW + ((2 * cp + half) * 4 + mt) * 4
                        A(f"v_cvt_pk_bf16_f32 v{pk+2*half}, v{b}, v{b+1}")
                        A(f"v_cvt_pk_bf16_f32 v{pk+2*half+1}, v{b+2}, v{b+3}")
                    A(f"buffer_store_dwordx4 v[{pk}:{pk+3}], v4, s[4:7], s22 offen offset:{cp*1024} sc1")
                if mt < 3: A("s_add_u32 s22, s22, 131072")
        else:
            for sg in range(2):
                for ct in range(4):
                    pk = PKR + 4 * (sg * 4 + ct)
                    for half in range(2):
                        b = ACCW + (ct * 4 + 2 * sg + half) * 4
                        A(f"v_cvt_pk_bf16_f32 v{pk+2*half}, v{b}, v{b+1}")
                        A(f"v_cvt_pk_bf16_f32 v{pk+2*half+1}, v{b+2}, v{b+3}")
                    A(f"buffer_store_dwordx4 v[{pk}:{pk+3}], v4, s[4:7], s22 offen offset:{ct*1024} sc1")
                if sg < 1: A("s_add_u32 s22, s22, 262144")
        A("s_cmp_lg_u32 s40, 0")
        A(f"s_cbranch_scc1 L_q1_noearly_{tg}")
        A("s_waitcnt vmcnt(0)")
        A("s_barrier")
        A("s_cmp_lg_u32 s13, 0")
        A(f"s_cbranch_scc1 L_q1_early2_{tg}")
        A("v_mov_b32 v6, 0")
        A("v_mov_b32 v7, 1")
        A("s_mov_b64 exec, 1")
        A("buffer_atomic_add v7, v6, s[4:7], s21 offen")
        A("s_mov_b64 exec, -1")
        A.label(f"L_q1_early2_{tg}")
        A("s_add_u32 s21, s21, 64")
        A.label(f"L_q1_noearly_{tg}")
        A("s_add_u32 s20, s20, 524288")
        A("s_add_u32 s40, s40, 1")
        A("s_cmp_lt_u32 s40, 32")
        A(f"s_cbranch_scc1 L_q1_loop_{tg}")
        A("s_branch L_q1_fin")
    A.label("L_q1_fin")
    A("s_waitcnt vmcnt(0) lgkmcnt(0)")
    A("s_barrier")
    A("s_cmp_lg_u32 s13, 0")
    A("s_cbranch_scc1 L_wloop")
    A("v_mov_b32 v6, 0")
    A("v_mov_b32 v7, 1")
    A("s_mov_b64 exec, 1")
    A("buffer_atomic_add v7, v6, s[4:7], s21 offen")
    A("s_mov_b64 exec, -1")
    A("s_branch L_wloop")

def stage_g(A):
    A("s_lshl_b32 s16, s41, 2")
    A("s_add_u32 s16, s16, s13")
    A("s_lshl_b32 s15, s16, 16")
    A(f"s_add_u32 s15, s15, {WGU_F}")
    ta_prologue(A, "g", 1, 4, preload_gu)
    ta_kloop(A, False)
    A("s_mul_i32 s19, s40, 56")
    A("s_add_u32 s19, s19, s16")
    A("s_lshl_b32 s19, s19, 12")
    A("s_add_u32 s19, s19, s43")
    A(f"s_add_u32 s19, s19, {HF}")
    c2 = struct.unpack("<I", struct.pack("<f", -2.0 * math.sqrt(2.0 / math.pi) * math.log2(math.e)))[0]
    A("s_mov_b32 s28, 0x3d372713")
    A(f"s_mov_b32 s29, {c2}")
    Tm = 8
    for mt in range(4):
        pk = TMPX + 4 * mt
        G = [ACCW + (half * 4 + mt) * 4 + i for half in range(2) for i in range(4)]
        U = [ACCW + ((2 + half) * 4 + mt) * 4 + i for half in range(2) for i in range(4)]
        for i in range(0, 8, 2):
            A(f"v_cvt_pk_bf16_f32 v{Tm}, v{G[i]}, v{G[i+1]}")
            A(f"v_lshlrev_b32 v{G[i]}, 16, v{Tm}")
            A(f"v_and_b32 v{G[i+1]}, 0xffff0000, v{Tm}")
            A(f"v_cvt_pk_bf16_f32 v{Tm}, v{U[i]}, v{U[i+1]}")
            A(f"v_lshlrev_b32 v{U[i]}, 16, v{Tm}")
            A(f"v_and_b32 v{U[i+1]}, 0xffff0000, v{Tm}")
        for i in range(8):
            t = Tm + 1 + i
            A(f"v_mul_f32 v{t}, v{G[i]}, v{G[i]}")
            A(f"v_mul_f32 v{t}, s28, v{t}")
            A(f"v_fma_f32 v{t}, v{t}, v{G[i]}, v{G[i]}")
            A(f"v_mul_f32 v{t}, s29, v{t}")
            A(f"v_exp_f32 v{t}, v{t}")
        for i in range(8):
            t = Tm + 1 + i
            A(f"v_add_f32 v{t}, 1.0, v{t}")
            A(f"v_rcp_f32 v{t}, v{t}")
        for i in range(8):
            A(f"v_mul_f32 v{G[i]}, v{G[i]}, v{Tm+1+i}")
        for i in range(0, 8, 2):
            A(f"v_cvt_pk_bf16_f32 v{Tm}, v{G[i]}, v{G[i+1]}")
            A(f"v_lshlrev_b32 v{G[i]}, 16, v{Tm}")
            A(f"v_and_b32 v{G[i+1]}, 0xffff0000, v{Tm}")
            A(f"v_mul_f32 v{G[i]}, v{G[i]}, v{U[i]}")
            A(f"v_mul_f32 v{G[i+1]}, v{G[i+1]}, v{U[i+1]}")
            A(f"v_cvt_pk_bf16_f32 v{pk+i//2}, v{G[i]}, v{G[i+1]}")
        A(f"buffer_store_dwordx4 v[{pk}:{pk+3}], v4, s[4:7], s19 offen offset:{mt*1024} sc1")
    signal(A, 5)

def stage_attn(A):
    A("s_lshl_b32 s12, s40, 1")
    A("s_lshr_b32 s14, s41, 2")
    A("s_add_u32 s12, s12, s14")
    A("s_and_b32 s14, s41, 3")
    A("s_lshl_b32 s14, s14, 3")
    A("s_lshl_b32 s15, s13, 1")
    A("s_add_u32 s14, s14, s15")
    cnt_addr(A, 22, 1)
    cnt_addr(A, 21, 7)
    A("s_lshl_b32 s20, s42, 6")
    A("s_add_u32 s20, s20, s12")
    A("s_lshl_b32 s20, s20, 6")
    A(f"s_add_u32 s20, s20, {CHAIN_CNT}")
    A("v_and_b32 v14, 63, v0")
    A("v_lshlrev_b32 v1, 4, v14")
    A("v_lshlrev_b32 v13, 3, v14")
    A("s_sub_u32 s23, s21, s22")
    A("v_mov_b32 v126, 0")
    A("v_writelane_b32 v126, s23, 1")
    A("s_sub_u32 s23, s20, s22")
    A("v_writelane_b32 v126, s23, 2")
    A("s_mov_b32 s26, 0")
    A("buffer_load_dword v127, v126, s[4:7], s22 offen sc1")
    A("s_waitcnt vmcnt(0)")
    flush_pending(A, "a")
    A("s_branch L_a_chk")
    A.label("L_a_poll")
    A("buffer_load_dword v127, v126, s[4:7], s22 offen sc1")
    A("s_add_u32 s26, s26, 1")
    A(f"s_cmp_gt_u32 s26, {TMO}")
    A(f"s_cbranch_scc1 {END}")
    A("s_waitcnt vmcnt(0)")
    A.label("L_a_chk")
    A("v_readlane_b32 s27, v127, 0")
    A("v_readlane_b32 s23, v127, 1")
    A("v_readlane_b32 s19, v127, 2")
    A("s_cmp_ge_u32 s27, 16")
    A("s_cselect_b32 s27, 1, 0")
    A("s_cmp_ge_u32 s23, 32")
    A("s_cselect_b32 s23, 1, 0")
    A("s_and_b32 s27, s27, s23")
    A("s_cmp_eq_u32 s27, 1")
    A("s_cbranch_scc1 L_a_polled")
    A("s_sleep 4")
    A("s_branch L_a_poll")
    A.label("L_a_polled")
    S = 144; T = 168; O = 176; BI = 244
    def R(hh, kind, i, n):
        base = {"Q": 16, "K": 48, "KM": 80, "V": 96, "VM": 128}[kind]
        if hh == 0:
            r = base + i
            if kind == "V" and i >= 28: r = 240 + (i - 28)
            return v(r, n)
        abase = {"Q": 0, "K": 32, "V": 64, "KM": 96, "VM": 112}[kind]
        return a(abase + i, n)
    for hh in range(2):
        A("s_lshl_b32 s15, s12, 6")
        A("s_add_u32 s15, s15, s14")
        A(f"s_add_u32 s15, s15, {hh}")
        A("s_lshl_b32 s15, s15, 12")
        A("s_add_u32 s15, s15, s43")
        A(f"s_add_u32 s16, s15, {QF}")
        A(f"s_add_u32 s17, s15, {KF}")
        for t in range(2):
            for j in range(4):
                A(f"buffer_load_dwordx4 {R(hh,'Q',16*t+4*j,4)}, v1, s[4:7], s16 offen offset:{j*1024} sc1")
                A(f"buffer_load_dwordx4 {R(hh,'K',16*t+4*j,4)}, v1, s[4:7], s17 offen offset:{j*1024} sc1")
            if t == 0:
                A("s_add_u32 s16, s16, 131072")
                A("s_add_u32 s17, s17, 131072")
        A("s_lshl_b32 s15, s12, 5")
        A("s_add_u32 s15, s15, s14")
        A(f"s_add_u32 s15, s15, {hh}")
        A("s_lshl_b32 s16, s15, 13")
        A("s_add_u32 s16, s16, s43")
        A(f"s_add_u32 s16, s16, {VF}")
        for et in range(8):
            if et == 4: A("s_add_u32 s16, s16, 4096")
            A(f"buffer_load_dwordx4 {R(hh,'V',4*et,4)}, v1, s[4:7], s16 offen offset:{(et&3)*1024} sc1")
    A("s_cmp_ge_u32 s19, 128")
    A("s_cbranch_scc1 L_a_chain_ok")
    poll_counter(A, "a2", "s20", 128, only_wave0=False)
    A.label("L_a_chain_ok")
    if PROF:
        A("s_memrealtime s[76:77]")
        A("s_waitcnt lgkmcnt(0)")
    for hh in range(2):
        A("s_lshl_b32 s15, s12, 5")
        A("s_add_u32 s15, s15, s14")
        A(f"s_add_u32 s15, s15, {hh}")
        A("s_lshl_b32 s16, s15, 12")
        A("s_add_u32 s16, s16, s43")
        A(f"s_add_u32 s18, s16, {VM}")
        A(f"s_add_u32 s16, s16, {KM}")
        for j in range(4):
            A(f"buffer_load_dwordx4 {R(hh,'KM',4*j,4)}, v1, s[4:7], s16 offen offset:{j*1024} sc1")
        for et in range(8):
            A(f"buffer_load_dwordx2 {R(hh,'VM',2*et,2)}, v13, s[4:7], s18 offen offset:{et*512} sc1")
    A(f"s_mov_b32 s28, {SCALE_HEX}")
    A(f"s_mov_b32 s29, {SCALE_HEX}")
    A(f"s_mov_b32 s30, {LOG2E_HEX}")
    A(f"s_mov_b32 s31, {LOG2E_HEX | 0x80000000}")
    A("v_and_b32 v15, 15, v14")
    A("v_lshrrev_b32 v2, 2, v15")
    A("v_and_b32 v3, 3, v15")
    A("v_lshl_add_u32 v2, v2, 3, v3")
    A("v_lshrrev_b32 v3, 4, v14")
    A("v_lshlrev_b32 v3, 3, v3")
    A("v_sub_u32 v2, v2, v3")
    A(f"v_mov_b32 v{T+7}, 0xf149f2ca")
    bias = {0: 244, 1: 8}
    A("v_cmp_gt_u32 vcc, 32, v14")
    A(f"v_cndmask_b32 v252, v{T+7}, 0, vcc")
    A("v_mov_b32 v253, v252")
    for tq in range(2):
        for tk in range(2):
            for r in range(4):
                A(f"v_cmp_le_i32 vcc, {r + 4*tk - 4*tq}, v2")
                A(f"v_cndmask_b32 v{bias[tq]+4*tk+r}, v{T+7}, 0, vcc")
    A("s_lshl_b32 s16, s40, 7")
    A("s_lshl_b32 s17, s14, 2")
    A("s_add_u32 s16, s16, s17")
    A("s_lshl_b32 s16, s16, 2")
    A("s_and_b32 s17, s12, 1")
    A("s_lshl_b32 s17, s17, 1")
    A("s_add_u32 s16, s16, s17")
    A("s_lshl_b32 s16, s16, 10")
    A("s_add_u32 s16, s16, s43")
    A(f"s_add_u32 s16, s16, {OF}")
    for hh in range(2):
        A(f"s_waitcnt vmcnt({20 if hh == 0 else 16})")
        for tq in range(2):
            for j in range(4):
                for kt in range(3):
                    src = R(hh, 'KM', 4 * j, 4) if kt == 0 else R(hh, 'K', 16 * (kt - 1) + 4 * j, 4)
                    acc = v(S + 12 * tq + 4 * kt, 4)
                    A(f"v_mfma_f32_16x16x32_bf16 {acc}, {src}, {R(hh,'Q',16*tq+4*j,4)}, {'0' if j==0 else acc}")
        A(f"s_waitcnt vmcnt({12 if hh == 0 else 8})")
        for tq in range(2):
            Sq = S + 12 * tq
            TT = T
            for i in range(0, 12, 2): A(f"v_cvt_pk_bf16_f32 v{TT+i//2}, v{Sq+i}, v{Sq+i+1}")
            for i in range(0, 12, 2):
                A(f"v_lshlrev_b32 v{Sq+i}, 16, v{TT+i//2}")
                A(f"v_and_b32 v{Sq+i+1}, 0xffff0000, v{TT+i//2}")
            for i in range(0, 12, 2): A(f"v_pk_mul_f32 v[{Sq+i}:{Sq+i+1}], v[{Sq+i}:{Sq+i+1}], s[28:29]")
            for i in range(0, 12, 2): A(f"v_cvt_pk_bf16_f32 v{TT+i//2}, v{Sq+i}, v{Sq+i+1}")
            for i in range(0, 12, 2):
                A(f"v_lshlrev_b32 v{Sq+i}, 16, v{TT+i//2}")
                A(f"v_and_b32 v{Sq+i+1}, 0xffff0000, v{TT+i//2}")
            for i in range(0, 4, 2): A(f"v_pk_add_f32 v[{Sq+i}:{Sq+i+1}], v[{Sq+i}:{Sq+i+1}], v[252:253]")
            for i in range(0, 8, 2): A(f"v_pk_add_f32 v[{Sq+4+i}:{Sq+5+i}], v[{Sq+4+i}:{Sq+5+i}], v[{bias[tq]+i}:{bias[tq]+i+1}]")
            MX = T + 4; MT = T + 5
            A(f"v_max3_f32 v{MX}, v{Sq}, v{Sq+1}, v{Sq+2}")
            A(f"v_max3_f32 v{MT}, v{Sq+3}, v{Sq+4}, v{Sq+5}")
            A(f"v_max3_f32 v{MX}, v{MX}, v{Sq+6}, v{Sq+7}")
            A(f"v_max3_f32 v{MT}, v{MT}, v{Sq+8}, v{Sq+9}")
            A(f"v_max3_f32 v{MX}, v{MX}, v{Sq+10}, v{Sq+11}")
            A(f"v_max_f32 v{MX}, v{MX}, v{MT}")
            xlane(A, MX, MT, ("p16", "p32"), "v_max_f32")
            A(f"v_mul_f32 v{MX}, s31, v{MX}")
            for i in range(12): A(f"v_fma_f32 v{Sq+i}, v{Sq+i}, s30, v{MX}")
            for i in range(12): A(f"v_exp_f32 v{Sq+i}, v{Sq+i}")
            A(f"v_pk_add_f32 v[{TT}:{TT+1}], v[{Sq}:{Sq+1}], v[{Sq+2}:{Sq+3}]")
            A(f"v_pk_add_f32 v[{TT+2}:{TT+3}], v[{Sq+4}:{Sq+5}], v[{Sq+6}:{Sq+7}]")
            A(f"v_pk_add_f32 v[{MX}:{MX+1}], v[{Sq+8}:{Sq+9}], v[{Sq+10}:{Sq+11}]")
            A(f"v_pk_add_f32 v[{TT}:{TT+1}], v[{TT}:{TT+1}], v[{TT+2}:{TT+3}]")
            A(f"v_pk_add_f32 v[{TT}:{TT+1}], v[{TT}:{TT+1}], v[{MX}:{MX+1}]")
            A(f"v_add_f32 v{MX}, v{TT}, v{TT+1}")
            xlane(A, MX, MT, ("p16", "p32"))
            A(f"v_rcp_f32 v{MX}, v{MX}")
            A(f"v_mov_b32 v{MT}, v{MX}")
            for i in range(0, 12, 2): A(f"v_pk_mul_f32 v[{Sq+i}:{Sq+i+1}], v[{Sq+i}:{Sq+i+1}], v[{MX}:{MX+1}]")
            PM = T + 2; PT = 4
            A(f"v_cvt_pk_bf16_f32 v{PM}, v{Sq}, v{Sq+1}")
            A(f"v_cvt_pk_bf16_f32 v{PM+1}, v{Sq+2}, v{Sq+3}")
            for i in range(4): A(f"v_cvt_pk_bf16_f32 v{PT+i}, v{Sq+4+2*i}, v{Sq+5+2*i}")
            for et in range(8):
                A(f"v_mfma_f32_16x16x32_bf16 v[{O+4*et}:{O+4*et+3}], {R(hh,'V',4*et,4)}, v[{PT}:{PT+3}], 0")
            for et in range(8):
                A(f"v_mfma_f32_16x16x16_bf16 v[{O+4*et}:{O+4*et+3}], {R(hh,'VM',2*et,2)}, v[{PM}:{PM+1}], v[{O+4*et}:{O+4*et+3}]")
            PKO = 208 + 16 * tq
            for j in range(4):
                for half in range(2):
                    b = O + 8 * j + 4 * half
                    A(f"v_cvt_pk_bf16_f32 v{PKO+4*j+2*half}, v{b}, v{b+1}")
                    A(f"v_cvt_pk_bf16_f32 v{PKO+4*j+2*half+1}, v{b+2}, v{b+3}")
                A(f"s_add_u32 s17, s16, {hh*16384 + j*4096 + tq*1024}")
                A(f"buffer_store_dwordx4 v[{PKO+4*j}:{PKO+4*j+3}], v1, s[4:7], s17 offen sc1")
    if PROF:
        signal(A, 2)
    else:
        cnt_addr(A, 68, 2)
        A("s_branch L_wloop")

def stage_tb(A, tag, WF, AFB, KS, dep_stage, dep_n, res_idx, sig_stage):
    KW = KS // 4
    RING = 8
    RB = 16; ACC = RB + 16 * RING
    A("v_and_b32 v14, 63, v0")
    A("v_lshlrev_b32 v1, 4, v14")
    A("s_lshr_b32 s12, s41, 4")
    A("s_and_b32 s14, s41, 15")
    A(f"s_mul_i32 s15, s13, {KW}")
    A("s_lshr_b32 s16, s14, 1")
    A(f"s_mul_i32 s16, s16, {KS}")
    A("s_add_u32 s16, s16, s15")
    A("s_lshl_b32 s16, s16, 12")
    A("s_and_b32 s18, s14, 1")
    A("s_lshl_b32 s18, s18, 11")
    A("s_add_u32 s16, s16, s18")
    A(f"s_add_u32 s16, s16, {WF}")
    A(f"s_mul_i32 s17, s40, {KS}")
    A("s_add_u32 s17, s17, s15")
    A("s_lshl_b32 s17, s17, 12")
    A("s_lshl_b32 s18, s12, 11")
    A("s_add_u32 s17, s17, s18")
    A("s_add_u32 s17, s17, s43")
    A(f"s_add_u32 s17, s17, {AFB}")
    RING = 16; ACC = RB + 8 * RING
    A("s_bitcmp0_b32 s72, 16")
    A(f"s_cbranch_scc1 L_{tag}_nopre")
    A(f"s_mov_b32 s22, {SETUP_CNT}")
    poll_counter(A, tag + "_su", "s22", 64)
    raw_srd(A, "wo" if KS == 128 else "wd")
    A(f"s_mul_i32 s15, s13, {KW*32*1024}")
    A("s_lshl_b32 s24, s14, 6")
    A("s_add_u32 s15, s15, s24")
    A("s_lshl_b32 s24, s13, 14")
    tr_load(A, 1024, KW, 2, lambda kk, t: ("a", (kk * 2 + t) * 4), "s24", 16, 80, 8)
    A("s_barrier")
    A.label(f"L_{tag}_nopre")
    def lda(si):
        for t in range(2):
            A(f"buffer_load_dwordx4 v[{RB+8*si+4*t}:{RB+8*si+4*t+3}], v1, s[4:7], s17 offen offset:{t*1024} sc1")
        A("s_add_u32 s17, s17, 4096")
    def mm(kk):
        si = kk % RING
        for ct in range(2):
            for tt in range(2):
                acc = v(ACC + (ct * 2 + tt) * 4, 4)
                A(f"v_mfma_f32_16x16x32_bf16 {acc}, a[{(kk*2+ct)*4}:{(kk*2+ct)*4+3}], v[{RB+8*si+4*tt}:{RB+8*si+4*tt+3}], {'0' if kk==0 else acc}")
    D = min(RING - 1, KW)
    cnt_addr(A, 22, dep_stage)
    A("v_mov_b32 v250, 0")
    poll_counter(A, tag, "s22", dep_n)
    for si in range(D): lda(si)
    for kk in range(KW):
        if kk + D < KW:
            lda((kk + D) % RING)
            A(f"s_waitcnt vmcnt({2*D})")
        else:
            A(f"s_waitcnt vmcnt({2*(KW-1-kk)})")
        mm(kk)
    A("s_lshl_b32 s15, s13, 12")
    A("v_add_u32 v2, s15, v1")
    for i in range(4):
        A(f"ds_write_b128 v2, v[{ACC+4*i}:{ACC+4*i+3}] offset:{i*1024}")
    A("s_and_b32 s15, s13, 1")
    A("s_lshl_b32 s15, s15, 10")
    A("v_add_u32 v3, s15, v1")
    A("v_and_b32 v4, 15, v14")
    A("v_lshrrev_b32 v5, 2, v4")
    A("v_and_b32 v4, 3, v4")
    A("v_lshl_add_u32 v4, v5, 3, v4")
    A("s_lshl_b32 s15, s40, 6")
    A("s_lshl_b32 s18, s12, 5")
    A("s_add_u32 s15, s15, s18")
    A("s_and_b32 s18, s13, 1")
    A("s_lshl_b32 s18, s18, 2")
    A("s_add_u32 s15, s15, s18")
    A("v_add_u32 v4, s15, v4")
    A("v_lshlrev_b32 v4, 10, v4")
    A("v_lshrrev_b32 v5, 4, v14")
    A("v_lshl_add_u32 v4, v5, 4, v4")
    A("s_lshl_b32 s15, s14, 6")
    A("v_add_u32 v4, s15, v4")
    A("s_lshl_b32 s18, s42, 1")
    A(f"s_add_u32 s18, s18, {res_idx}")
    A("s_lshl_b32 s18, s18, 21")
    A(f"s_add_u32 s18, s18, {XR}")
    A(f"buffer_load_dwordx4 v[8:11], v4, s[4:7], s18 offen sc1")
    A("s_waitcnt lgkmcnt(0)")
    A("s_barrier")
    A("s_cmp_ge_u32 s13, 2")
    A(f"s_cbranch_scc1 L_{tag}_done")
    R = 16
    for ww in range(4):
        for ct in range(2):
            A(f"ds_read_b128 v[{R+8*ww+4*ct}:{R+8*ww+4*ct+3}], v3 offset:{ww*4096+ct*2048}")
    A("s_waitcnt lgkmcnt(4)")
    for i in range(8): A(f"v_add_f32 v{R+i}, v{R+i}, v{R+8+i}")
    A("s_waitcnt lgkmcnt(2)")
    for i in range(8): A(f"v_add_f32 v{R+i}, v{R+i}, v{R+16+i}")
    A("s_waitcnt lgkmcnt(0) vmcnt(0)")
    for i in range(8): A(f"v_add_f32 v{R+i}, v{R+i}, v{R+24+i}")
    for i in range(4):
        A(f"v_cvt_pk_bf16_f32 v6, v{R+2*i}, v{R+2*i+1}")
        A(f"v_lshlrev_b32 v{R+2*i}, 16, v6")
        A(f"v_and_b32 v{R+2*i+1}, 0xffff0000, v6")
        A(f"v_lshlrev_b32 v6, 16, v{8+i}")
        A(f"v_and_b32 v7, 0xffff0000, v{8+i}")
        A(f"v_add_f32 v{R+2*i}, v{R+2*i}, v6")
        A(f"v_add_f32 v{R+2*i+1}, v{R+2*i+1}, v7")
        A(f"v_cvt_pk_bf16_f32 v{R+32+i}, v{R+2*i}, v{R+2*i+1}")
    if res_idx == 1:
        A("s_cmp_eq_u32 s42, 1")
        A(f"s_cbranch_scc1 L_{tag}_out")
    A(f"s_add_u32 s18, s18, {2*MB}")
    A(f"buffer_store_dwordx4 v[{R+32}:{R+35}], v4, s[4:7], s18 offen sc1")
    if res_idx == 1:
        A(f"s_branch L_{tag}_done")
        A.label(f"L_{tag}_out")
        A(f"buffer_store_dwordx4 v[{R+32}:{R+35}], v4, s[64:67], 0 offen")
    A.label(f"L_{tag}_done")
    signal(A, sig_stage)

NSUB = {0: 2, 1: 48, 2: 8, 3: 32, 4: 2, 5: 14, 6: 32}
TBL_STRIDE = 80

def schedule(nW=192, verbose=False):
    def word(layer, stage, blk, sub): return stage | (blk << 4) | (sub << 9) | (layer << 15)
    lists = []
    def new_worker():
        lists.append([]); return lists[-1]
    q1w = []
    for sub in range(48):
        w = new_worker()
        for b in range(32): w.append(word(1, 1, b, sub))
    WG = {}
    for l in range(2):
        for st, n in ((3, 32), (5, 14)):
            for sub in range(n):
                WG[(l, st, sub)] = new_worker()
                if l == 1: q1w.append(WG[(l, st, sub)])
    for l in range(2):
        for st, n in ((3, 32), (5, 14)):
            for sub in range(n):
                for b in range(32):
                    own = 0 if (l == 1 and b >= 29 and (b & 1)) else l
                    WG[(own, st, sub)].append(word(l, st, b, sub))
    P = 7.05
    for cg in range(16):
        for sb in range(2):
            w = new_worker()
            ev = [(27 + P * b, word(0, 6, b, sb * 16 + cg)) for b in range(32)]
            ev += [(max(72 + P * b, 117 + 5.3 * b) + 6, word(1, 6, b, sb * 16 + cg)) for b in range(32)]
            ev.sort()
            w.extend(e[1] for e in ev)
    A1 = [new_worker() for _ in range(8)]
    A2 = [new_worker() for _ in range(6)]
    for b in range(32):
        for sub in range(8): A1[sub].append(word(0, 2, b, sub))
    free = [0.0] * 6
    k = 0
    for b in range(32):
        for sub in range(8):
            if b >= 29:
                pool = A1 + A2
                pool[(k * 5) % 14].append(word(1, 2, b, sub)); k += 1
            else:
                t = 46 + P * b + 3.5 * (sub >> 2)
                i = min(range(6), key=lambda j: (max(free[j], t), j))
                free[i] = max(free[i], t) + 4.2
                A2[i].append(word(1, 2, b, sub))
    for (l, st) in ((0, 4), (1, 0), (1, 4)):
        ws = [new_worker() for _ in range(2)]
        for b in range(32):
            for sub in range(2): ws[sub].append(word(l, st, b, sub))
        if (l, st) == (1, 4): q1w += ws
    assert len(lists) == nW, len(lists)
    for w in lists: w[0] |= 1 << 16
    assert len(q1w) == 48
    for sub, w in enumerate(q1w): w.insert(0, word(0, 8, 0, sub))
    if verbose: print("maxlen", max(len(x) for x in lists))
    assert max(len(l) for l in lists) < TBL_STRIDE, max(len(l) for l in lists)
    return lists

def gen_mega():
    A = Asm()
    name = "mega_kernel"
    A.raw(kernel_header(name))
    A("s_cmp_ge_u32 s2, 256")
    A(f"s_cbranch_scc1 {END}")
    load_ptr_srd(A, "ws", 4, WS_BYTES, 20)
    load_ptr_srd(A, "out", 64, 2 * MB, 20)
    for key, r in PTR.items():
        A(f"s_load_dwordx2 s[{r}:{r+1}], s[0:1], {KA[key]}")
    A("s_waitcnt lgkmcnt(0)")
    rendezvous(A)
    A("s_cmp_ge_u32 s12, 64")
    A("s_cbranch_scc1 L_worker")
    gen_chain_role(A)
    A.label("L_worker")
    A("s_sub_u32 s12, s12, 64")
    A("s_mov_b32 s68, 0")
    A(f"s_mul_i32 s69, s12, {TBL_STRIDE*16}")
    A(f"s_add_u32 s69, s69, {PROFB + MB}")
    A("s_getpc_b64 s[70:71]")
    A.label("L_pcref")
    A(f"s_mul_i32 s15, s12, {TBL_STRIDE*4}")
    A("s_add_u32 s70, s70, s15")
    A("s_addc_u32 s71, s71, 0")
    A("s_add_u32 s70, s70, L_table-L_pcref")
    A("s_addc_u32 s71, s71, 0")
    A.label("L_wloop")
    A("s_load_dword s72, s[70:71], 0")
    A("s_add_u32 s70, s70, 4")
    A("s_addc_u32 s71, s71, 0")
    A("s_waitcnt lgkmcnt(0)")
    A("s_cmp_eq_u32 s72, -1")
    A(f"s_cbranch_scc1 L_wend")
    if PROF:
        A("s_memrealtime s[74:75]")
        A("s_waitcnt lgkmcnt(0)")
        A("s_mov_b32 s76, s74")
    A("s_and_b32 s73, s72, 15")
    A("s_bfe_u32 s40, s72, 0x50004")
    A("s_bfe_u32 s41, s72, 0x60009")
    A("s_bfe_u32 s42, s72, 0x1000f")
    A(f"s_mul_i32 s43, s42, {LSTRIDE}")
    for st in (0, 1, 2, 3, 4, 5, 6, 8):
        A(f"s_cmp_eq_u32 s73, {st}")
        A(f"s_cbranch_scc1 L_st{st}")
    A(f"s_branch {END}")
    A.label("L_st0"); stage_ln(A, 0)
    A.label("L_st1"); stage_q(A)
    A.label("L_st2"); stage_attn(A)
    A.label("L_st3"); stage_tb(A, "wo", WO_F, OF, 128, 2, 8, 0, 3)
    A.label("L_st4"); stage_ln(A, 1)
    A.label("L_st5"); stage_g(A)
    A.label("L_st6"); stage_tb(A, "dn", WD_F, HF, 56, 5, 14, 1, 6)
    A.label("L_st8"); stage_q1stream(A)
    A.label("L_wend")
    A("s_waitcnt vmcnt(0)")
    flush_pending(A, "end")
    A.label(END)
    A("s_endpgm")
    A.raw(".p2align 6")
    A.label("L_table")
    for l in schedule(verbose=True):
        ws_ = l + [0xFFFFFFFF] * (TBL_STRIDE - len(l))
        for i in range(0, TBL_STRIDE, 16):
            A.raw("    .long " + ", ".join(hex(x) for x in ws_[i:i+16]))
    return name, A, 256, (256, 256)

def copy_x_to_lds(A, mg_sreg, tmpv):
    A("v_lshlrev_b32 v1, 4, v0")
    A(f"s_lshl_b32 s19, s{mg_sreg}, 17")
    A(f"s_add_u32 s19, s19, {XFA}")
    for rnd in range(4):
        for i in range(8):
            A(f"buffer_load_dwordx4 v[{tmpv+4*i}:{tmpv+4*i+3}], v1, s[4:7], s19 offen")
            A("s_add_u32 s19, s19, 4096")
        for i in range(8):
            A(f"s_waitcnt vmcnt({7-i})")
            off = (rnd * 8 + i) * 4096
            if off < 65536:
                A(f"ds_write_b128 v1, v[{tmpv+4*i}:{tmpv+4*i+3}] offset:{off}")
            else:
                A(f"ds_write_b128 v2, v[{tmpv+4*i}:{tmpv+4*i+3}] offset:{off-65536}")
            if rnd == 0 and i < 2:
                A(f"ds_write_b128 v3, v[{tmpv+4*i}:{tmpv+4*i+3}] offset:{i*4096}")

def gen_qkv(name):
    A = Asm()
    A.raw(kernel_header(name))
    A("s_cmp_ge_u32 s2, 256")
    A("s_cbranch_scc1 L_end_" + name)
    load_ptr_srd(A, "ws", 4, WS_BYTES, 20)
    A("s_and_b32 s12, s2, 7")
    A("s_lshl_b32 s12, s12, 1")
    A("s_bfe_u32 s13, s2, 0x10003")
    A("s_add_u32 s12, s12, s13")
    A("s_lshr_b32 s13, s2, 4")
    A("v_lshlrev_b32 v1, 4, v0")
    A("v_add_u32 v2, 0x10000, v1")
    A("v_add_u32 v3, 0x20000, v1")
    ACC = 0 + 128
    XB = 8
    WB = 72
    XB = 8; WB = 64
    XB = 8; WB = 72; PK = 136
    copy_x_to_lds(A, 13, WB)
    A("v_lshrrev_b32 v4, 6, v0")
    A("v_readfirstlane_b32 s14, v4")
    A("v_and_b32 v4, 63, v0")
    A("v_lshlrev_b32 v4, 4, v4")
    A("v_mov_b32 v5, v4")
    A("s_lshl_b32 s15, s12, 2")
    A("s_add_u32 s15, s15, s14")
    A("s_mul_i32 s15, s15, 196608")
    A(f"s_add_u32 s15, s15, {WQKV_F}")
    A("s_waitcnt lgkmcnt(0)")
    A("s_barrier")
    def wload(setidx):
        for t in range(4):
            A(f"buffer_load_dwordx4 v[{WB+16*setidx+4*t}:{WB+16*setidx+4*t+3}], v4, s[4:7], s15 offen offset:{t*1024}")
        A("s_add_u32 s15, s15, 4096")
    def xread(buf, koff):
        for mt in range(8):
            A(f"ds_read_b128 v[{XB+32*buf+4*mt}:{XB+32*buf+4*mt+3}], v5 offset:{koff*8192+mt*1024}")
    for st in range(3): wload(st)
    xread(0, 0)
    A("s_lshl_b32 s16, s13, 3")
    A("s_lshl_b32 s16, s16, 5")
    A("s_lshl_b32 s17, s12, 1")
    A("s_lshr_b32 s18, s14, 1")
    A("s_add_u32 s17, s17, s18")
    A("s_add_u32 s16, s16, s17")
    A("s_lshl_b32 s16, s16, 2")
    A("s_and_b32 s18, s14, 1")
    A("s_lshl_b32 s18, s18, 1")
    A("s_add_u32 s16, s16, s18")
    A("s_lshl_b32 s16, s16, 10")
    A(f"s_add_u32 s16, s16, {QF}")
    A("s_lshl_b32 s20, s13, 2")
    A("s_lshl_b32 s20, s20, 5")
    A("s_add_u32 s20, s20, s17")
    A("s_lshl_b32 s20, s20, 3")
    A("s_lshl_b32 s18, s18, 1")
    A("s_add_u32 s20, s20, s18")
    A("s_lshl_b32 s20, s20, 10")
    A(f"s_add_u32 s20, s20, {VF}")
    A("s_mov_b32 s21, 0")
    def zero_acc():
        for i in range(128): A(f"v_accvgpr_write_b32 a{i}, 0")
    def kloop(tag, vtype):
        A("s_mov_b32 s22, 0")
        A.label(f"L_k_{tag}_{name}")
        for u in range(4):
            wload((u + 3) % 4)
            xread((u + 1) % 2, u + 1)
            A("s_waitcnt vmcnt(12) lgkmcnt(8)")
            for ct in range(4):
                for mt in range(8):
                    w = v(WB + 16 * u + 4 * ct, 4); x = v(XB + 32 * (u % 2) + 4 * mt, 4)
                    acc = a((ct * 8 + mt) * 4, 4)
                    if vtype: A(f"v_mfma_f32_16x16x32_bf16 {acc}, {x}, {w}, {acc}")
                    else:     A(f"v_mfma_f32_16x16x32_bf16 {acc}, {w}, {x}, {acc}")
        A("v_add_u32 v5, 0x8000, v5")
        A("v_and_b32 v5, 0x1ffff, v5")
        A("s_add_u32 s22, s22, 1")
        A("s_cmp_lt_u32 s22, 4")
        A(f"s_cbranch_scc1 L_k_{tag}_{name}")
    zero_acc()
    A.label(f"L_pass_{name}")
    kloop("qk", False)
    A.fence(10)
    A("s_mov_b32 s19, s16")
    n = 0
    for mt in range(8):
        for cp in range(2):
            pk = PK + 4 * (n % 8); n += 1
            for half in range(2):
                base = ((2 * cp + half) * 8 + mt) * 4
                for i in range(4): A(f"v_accvgpr_read_b32 v{168+i}, a{base+i}")
                A(f"v_cvt_pk_bf16_f32 v{pk+2*half}, v168, v169")
                A(f"v_cvt_pk_bf16_f32 v{pk+2*half+1}, v170, v171")
            A(f"buffer_store_dwordx4 v[{pk}:{pk+3}], v4, s[4:7], s19 offen offset:{cp*1024}")
        if mt < 7: A("s_add_u32 s19, s19, 131072")
    zero_acc()
    A(f"s_add_u32 s16, s16, {KF-QF}")
    A("s_add_u32 s21, s21, 1")
    A("s_cmp_lt_u32 s21, 2")
    A(f"s_cbranch_scc1 L_pass_{name}")
    kloop("v", True)
    A.fence(10)
    A("s_mov_b32 s19, s20")
    n = 0
    for sg in range(4):
        for ct in range(4):
            pk = PK + 4 * (n % 8); n += 1
            for half in range(2):
                base = (ct * 8 + 2 * sg + half) * 4
                for i in range(4): A(f"v_accvgpr_read_b32 v{168+i}, a{base+i}")
                A(f"v_cvt_pk_bf16_f32 v{pk+2*half}, v168, v169")
                A(f"v_cvt_pk_bf16_f32 v{pk+2*half+1}, v170, v171")
            A(f"buffer_store_dwordx4 v[{pk}:{pk+3}], v4, s[4:7], s19 offen offset:{ct*1024}")
        if sg < 3: A("s_add_u32 s19, s19, 262144")
    A.label("L_end_" + name)
    A("s_endpgm")
    return name, A, 256, (176, 128)

def build(kernels, launches):
    out = []
    hdr = open("cdna_kernels/" + NAME + ".s.ref").read().split("\n")
    for l in hdr:
        if l.startswith(";") and "@launch" not in l and "Override" not in l and "grid=ceil" not in l:
            out.append(l)
    for (k, g, lds) in launches:
        out.append(f"; @launch kernel={k} grid=({g},1,1) block=(256,1,1) lds={lds}")
    out.append('.amdgcn_target "amdgcn-amd-amdhsa--gfx950"')
    out.append(".text")
    for (name, A, g, regs) in kernels: out.append(A.text())
    out.append('.section .rodata,"a"')
    for (name, A, g, regs) in kernels:
        if isinstance(regs, tuple):
            nv, na = regs; acc = (nv + 3) // 4 * 4
            out.append(kernel_desc(name, acc + na, 102, acc))
        else:
            out.append(kernel_desc(name, regs, 102, (regs + 3) // 4 * 4))
    return "\n".join(out) + "\n"

if __name__ == "__main__":
    PROF = "prof" in sys.argv
    ks = [gen_prep(), gen_mega()]
    launches = [("prep_kernel", ks[0][2], 0), ("mega_kernel", 256, MEGA_LDS)]
    txt = build(ks, launches)
    dst = "prof.s" if PROF else "cdna_kernels/" + NAME + ".s"
    open(dst, "w").write(txt)
    print("bytes", len(txt))
```

```python
import sys, math, struct
from asmlib import *
from layout2 import *

NAME = "interleave_layers__memory_aug_recurrent_mem_tr__geglu_ffn__prompt"
KA = dict(x=0, mem0=8, wq=16, wk=24, wv=32, wo=40, seg=48, bx=56, wg=64, wu=72, wd=80, out=88, dbg=96, ws=104)
SCALE_HEX = 0x3db504f3
LOG2E_HEX = 0x3fb8aa3b
PROF = False

def srd(A, sd, sbase, nbytes):
    A(f"s_mov_b32 s{sd}, s{sbase}")
    A(f"s_and_b32 s{sd+1}, s{sbase+1}, 0xffff")
    A(f"s_mov_b32 s{sd+2}, {nbytes}")
    A(f"s_mov_b32 s{sd+3}, 0x00020000")

def load_ptr_srd(A, key, sd, nbytes, tmp):
    A(f"s_load_dwordx2 s[{tmp}:{tmp+1}], s[0:1], {KA[key]}")
    A("s_waitcnt lgkmcnt(0)")
    srd(A, sd, tmp, nbytes)

def magic_div(d, maxn):
    for sh in range(0, 32):
        m = -(-(1 << sh) // d)
        if m * maxn < (1 << 32) and all((n * m) >> sh == n // d for n in range(maxn)):
            return m, sh
    raise ValueError

def xlane(A, r, t, ops=("ror8", "p16", "p32"), op="v_add_f32"):
    for o in ops:
        if o == "ror8":
            A(f"{op}_dpp v{r}, v{r}, v{r} row_ror:8")
        else:
            A(f"v_mov_b32 v{t}, v{r}")
            A(f"v_permlane{'16' if o=='p16' else '32'}_swap_b32 v{r}, v{t}")
            A(f"{op} v{r}, v{r}, v{t}")

def bf16_round(A, dst, src, tmp):
    A(f"v_cvt_pk_bf16_f32 v{tmp}, v{src}, v{src}")
    A(f"v_lshlrev_b32 v{dst}, 16, v{tmp}")

def ln_math(A):
    for i in range(16):
        A(f"v_lshlrev_b32 v{32+2*i}, 16, v{16+i}")
        A(f"v_and_b32 v{33+2*i}, 0xffff0000, v{16+i}")
    A("v_add_f32 v7, v32, v33")
    for i in range(2, 32): A(f"v_add_f32 v7, v7, v{32+i}")
    for sh in (8, 4, 2, 1): A(f"v_add_f32_dpp v7, v7, v7 row_ror:{sh}")
    A("v_mul_f32 v7, 0x3b000000, v7")
    A("v_sub_f32 v8, v32, v7")
    A("v_mul_f32 v9, v8, v8")
    for i in range(1, 32):
        A(f"v_sub_f32 v8, v{32+i}, v7")
        A("v_fmac_f32 v9, v8, v8")
    for sh in (8, 4, 2, 1): A(f"v_add_f32_dpp v9, v9, v9 row_ror:{sh}")
    A("v_mul_f32 v9, 0x3b000000, v9")
    bf16_round(A, 7, 7, 10)
    bf16_round(A, 9, 9, 10)
    A("v_add_f32 v9, 0x3727c5ac, v9")
    bf16_round(A, 9, 9, 10)
    A("v_sqrt_f32 v9, v9")
    bf16_round(A, 9, 9, 10)
    A("v_rcp_f32 v9, v9")
    for i in range(16):
        A(f"v_sub_f32 v{32+2*i}, v{32+2*i}, v7")
        A(f"v_sub_f32 v{33+2*i}, v{33+2*i}, v7")
        A(f"v_cvt_pk_bf16_f32 v10, v{32+2*i}, v{33+2*i}")
        A(f"v_lshlrev_b32 v{32+2*i}, 16, v10")
        A(f"v_and_b32 v{33+2*i}, 0xffff0000, v10")
        A(f"v_mul_f32 v{32+2*i}, v{32+2*i}, v9")
        A(f"v_mul_f32 v{33+2*i}, v{33+2*i}, v9")
        A(f"v_cvt_pk_bf16_f32 v{16+i}, v{32+2*i}, v{33+2*i}")

def ln_body(A, sr, soff, sc1):
    A("v_lshrrev_b32 v1, 4, v0")
    A("s_lshl_b32 s3, s3, 4")
    A("v_add_u32 v1, s3, v1")
    A("v_and_b32 v2, 15, v0")
    A("v_lshlrev_b32 v3, 10, v1")
    A("v_lshl_add_u32 v3, v2, 4, v3")
    A(f"s_mov_b32 s19, {soff}")
    for q in range(4):
        A(f"buffer_load_dwordx4 v[{16+4*q}:{19+4*q}], v3, {sr}, s19 offen offset:{q*256}")
    A("v_bfe_u32 v4, v1, 3, 2")
    A("v_and_b32 v5, 3, v1")
    A("v_lshl_add_u32 v4, v4, 2, v5")
    A("v_and_b32 v5, 3, v2")
    A("v_lshl_add_u32 v4, v5, 4, v4")
    A("v_lshlrev_b32 v4, 4, v4")
    A("v_bfe_u32 v5, v1, 2, 1")
    A("v_bfe_u32 v6, v1, 5, 1")
    A("v_lshl_add_u32 v5, v6, 1, v5")
    A("v_lshl_add_u32 v4, v5, 10, v4")
    A("v_lshrrev_b32 v5, 6, v1")
    A("v_lshrrev_b32 v6, 2, v2")
    A("v_lshl_add_u32 v5, v5, 4, v6")
    A("v_lshl_add_u32 v4, v5, 12, v4")
    A("s_waitcnt vmcnt(0)")
    ln_math(A)
    A(f"s_mov_b32 s19, {XFA}")
    for q in range(4):
        if q: A(f"s_add_u32 s19, s19, {4*4096}")
        A(f"buffer_store_dwordx4 v[{16+4*q}:{19+4*q}], v4, s[4:7], s19 offen")

def gen_prep():
    A = Asm()
    name = "prep_kernel"
    A.raw(kernel_header(name))
    mats = []
    load_ptr_srd(A, "ws", 4, WS_BYTES, 20)
    A("s_mov_b32 s16, 0x05040100")
    A("s_mov_b32 s17, 0x07060302")
    start = 0; ranges = []
    for (key, K, N, kind) in mats:
        nwg = (K // 8) * (N // 8) // 256
        ranges.append((start, nwg)); start += nwg
    fill_start = start
    nfill = (4 * MB) // 65536
    memx_start = fill_start + nfill
    memx_total = 2 * MEMX_LAYER
    nmemx = -(-memx_total // 4096)
    xcopy_start = memx_start + nmemx
    nxcopy = (2 * MB) // 65536
    cnt_start = xcopy_start + nxcopy
    ln_start = cnt_start + 1
    total_wg = ln_start + 128
    for idx, (key, K, N, kind) in enumerate(mats):
        st, nwg = ranges[idx]
        A(f"s_cmp_lt_u32 s2, {st + nwg}")
        A(f"s_cbranch_scc1 L_prep_{key}")
    A(f"s_cmp_lt_u32 s2, {memx_start}")
    A("s_cbranch_scc1 L_prep_fill")
    A(f"s_cmp_lt_u32 s2, {xcopy_start}")
    A("s_cbranch_scc1 L_prep_memx")
    A(f"s_cmp_lt_u32 s2, {cnt_start}")
    A("s_cbranch_scc1 L_prep_xcopy")
    A(f"s_cmp_lt_u32 s2, {ln_start}")
    A("s_cbranch_scc1 L_prep_cnt")
    A(f"s_cmp_lt_u32 s2, {total_wg}")
    A("s_cbranch_scc1 L_prep_ln")
    A("s_endpgm")
    for idx, (key, K, N, kind) in enumerate(mats):
        st, nwg = ranges[idx]
        A.label(f"L_prep_{key}")
        load_ptr_srd(A, key, 8, K * N * 2, 20)
        NQ = N // 8
        A(f"s_sub_u32 s3, s2, {st}")
        A("s_lshl_b32 s3, s3, 8")
        A("v_add_u32 v1, s3, v0")
        if NQ & (NQ - 1) == 0:
            sh = NQ.bit_length() - 1
            A(f"v_lshrrev_b32 v2, {sh}, v1")
            A(f"v_and_b32 v3, {NQ-1}, v1")
        else:
            m, sh = magic_div(NQ, (K // 8) * NQ)
            A(f"s_mov_b32 s18, {m}")
            A("v_mul_lo_u32 v2, s18, v1")
            A(f"v_lshrrev_b32 v2, {sh}, v2")
            A(f"s_mov_b32 s18, {NQ}")
            A("v_mul_lo_u32 v3, s18, v2")
            A("v_sub_u32 v3, v1, v3")
        A(f"s_mov_b32 s18, {N*16}")
        A("v_mul_lo_u32 v4, s18, v2")
        A("v_lshl_add_u32 v4, v3, 4, v4")
        for j in range(8):
            A(f"s_mov_b32 s19, {j*N*2}")
            A(f"buffer_load_dwordx4 v[{16+4*j}:{19+4*j}], v4, s[8:11], s19 offen")
        A("v_lshrrev_b32 v5, 2, v2")
        A("v_and_b32 v6, 3, v2")
        A("v_lshrrev_b32 v7, 2, v3")
        A("v_and_b32 v9, 3, v3")
        A("v_lshlrev_b32 v10, 6, v9")
        A("v_lshl_add_u32 v10, v6, 8, v10")
        if kind.startswith("qkv"):
            region = int(kind[3])
            A("v_lshrrev_b32 v11, 1, v7")
            A("v_and_b32 v12, 1, v7")
            A("v_lshlrev_b32 v12, 1, v12")
            A("v_mul_u32_u24 v11, 3, v11")
            A(f"v_add_u32 v11, {region}, v11")
            A("v_lshl_add_u32 v11, v11, 4, v5")
            A("v_lshl_add_u32 v11, v11, 2, v12")
            base = WQKV_F
        elif kind in ("wo", "wd"):
            KS = K // 32
            A("v_lshrrev_b32 v11, 1, v7")
            A("v_and_b32 v12, 1, v7")
            A("v_lshlrev_b32 v12, 1, v12")
            A(f"v_mul_u32_u24 v11, {KS}, v11")
            A("v_add_u32 v11, v11, v5")
            A("v_lshl_add_u32 v11, v11, 2, v12")
            base = WO_F if kind == "wo" else WD_F
        else:
            gu = int(kind[2])
            A("v_lshl_add_u32 v11, v7, 4, v5")
            A("v_lshlrev_b32 v11, 2, v11")
            A(f"v_add_u32 v11, {2*gu}, v11")
            base = WGU_F
        A("v_lshl_add_u32 v10, v11, 10, v10")
        A(f"s_mov_b32 s19, {base}")
        A("s_waitcnt vmcnt(0)")
        for r in range(8):
            dw = r >> 1; sel = "s16" if (r & 1) == 0 else "s17"
            for d in range(4):
                lo = 16 + 4 * (2 * d) + dw; hi = 16 + 4 * (2 * d + 1) + dw
                A(f"v_perm_b32 v{48+4*r+d}, v{hi}, v{lo}, {sel}")
            A(f"buffer_store_dwordx4 v[{48+4*r}:{51+4*r}], v10, s[4:7], s19 offen offset:{(r>>2)*1024 + 16*(r&3)}")
        A("s_endpgm")
    A.label("L_prep_fill")
    A(f"s_sub_u32 s3, s2, {fill_start}")
    A("s_lshl_b32 s3, s3, 16")
    A(f"s_add_u32 s3, s3, {PART}")
    A("v_lshlrev_b32 v1, 4, v0")
    for i in range(4): A(f"v_mov_b32 v{4+i}, -1")
    for i in range(16):
        A(f"buffer_store_dwordx4 v[4:7], v1, s[4:7], s3 offen")
        if i < 15: A("s_add_u32 s3, s3, 4096")
    A("s_endpgm")
    A.label("L_prep_cnt")
    A(f"s_mov_b32 s3, {CNT}")
    A("v_lshlrev_b32 v1, 4, v0")
    for i in range(4): A(f"v_mov_b32 v{4+i}, 0")
    for i in range(16):
        A(f"buffer_store_dwordx4 v[4:7], v1, s[4:7], s3 offen")
        if i < 15: A("s_add_u32 s3, s3, 4096")
    A("s_endpgm")
    A.label("L_prep_ln")
    load_ptr_srd(A, "x", 8, 2 * MB, 20)
    A(f"s_sub_u32 s3, s2, {ln_start}")
    ln_body(A, "s[8:11]", 0, False)
    A("s_endpgm")
    A.label("L_prep_xcopy")
    load_ptr_srd(A, "x", 8, 2 * MB, 20)
    A(f"s_sub_u32 s3, s2, {xcopy_start}")
    A("s_lshl_b32 s3, s3, 16")
    A(f"s_add_u32 s18, s3, {XR}")
    A("v_lshlrev_b32 v1, 4, v0")
    for i in range(16):
        A(f"buffer_load_dwordx4 v[{4+4*i}:{7+4*i}], v1, s[8:11], s3 offen")
        if i < 15: A("s_add_u32 s3, s3, 4096")
    for i in range(16):
        A(f"s_waitcnt vmcnt({15-i})" if i == 0 else "s_nop 0")
        A(f"s_waitcnt vmcnt(15)")
        A(f"buffer_store_dwordx4 v[{4+4*i}:{7+4*i}], v1, s[4:7], s18 offen")
        if i < 15: A("s_add_u32 s18, s18, 4096")
    A("s_endpgm")
    A.label("L_prep_memx")
    load_ptr_srd(A, "mem0", 8, 8192, 20)
    A(f"s_sub_u32 s3, s2, {memx_start}")
    A("s_lshl_b32 s3, s3, 12")
    A("v_lshlrev_b32 v1, 4, v0")
    A("v_add_u32 v1, s3, v1")
    A(f"v_subrev_u32 v2, {MEMX_LAYER}, v1")
    A(f"v_cmp_gt_u32 vcc, {MEMX_LAYER}, v1")
    A("v_cndmask_b32 v2, v2, v1, vcc")
    A("v_lshrrev_b32 v3, 6, v2")
    A("v_bfe_u32 v4, v2, 3, 3")
    A("v_lshlrev_b32 v5, 10, v4")
    A("v_lshl_add_u32 v5, v3, 3, v5")
    A("buffer_load_dwordx2 v[8:9], v5, s[8:11], 0 offen")
    A("buffer_load_dwordx2 v[10:11], v5, s[8:11], 0 offen offset:1024")
    A("s_waitcnt vmcnt(0)")
    A(f"v_cmp_gt_u32 vcc, 8192, v2")
    for i in range(4):
        A(f"v_min_u32 v{8+i}, -2, v{8+i}")
        A(f"v_cndmask_b32 v{8+i}, -1, v{8+i}, vcc")
    A(f"v_cmp_gt_u32 vcc, {memx_total}, v1")
    A("s_and_saveexec_b64 s[22:23], vcc")
    A("s_cbranch_execz L_prep_end")
    A(f"s_mov_b32 s19, {MEMX}")
    A("buffer_store_dwordx4 v[8:11], v1, s[4:7], s19 offen")
    A.label("L_prep_end")
    A("s_endpgm")
    return name, A, total_wg, 80

WOL = 0
MEML = 131072
MROW = 1088
ZROW = MEML + 8 * MROW
SCL = ZROW + 1024
OL = SCL + 12288
MEGA_LDS = OL + 4096
assert MEGA_LDS <= 163840
END = "L_mega_end"
RDV = CNT + 0xC000
SETUP_CNT = CNT + 0xE000
TMO = 0x400000

def stamp(A, idx):
    if not PROF: return
    A("s_memtime s[44:45]")
    A("s_waitcnt lgkmcnt(0)")
    A("s_sub_u32 s46, s44, s47")
    A(f"s_add_u32 s{80+idx}, s{80+idx}, s46")
    A("s_mov_b32 s47, s44")

def rendezvous(A, nwg=256):
    A(f"s_mov_b32 s17, {RDV}")
    A("s_getreg_b32 s14, hwreg(HW_REG_XCC_ID)")
    A("s_and_b32 s14, s14, 7")
    A("v_lshrrev_b32 v1, 6, v0")
    A("v_readfirstlane_b32 s13, v1")
    A("s_cmp_lg_u32 s13, 0")
    A("s_cbranch_scc1 L_rv_wait")
    A("s_lshl_b32 s15, s14, 8")
    A("v_mov_b32 v1, s15")
    A("v_mov_b32 v2, 1")
    A("s_mov_b64 exec, 1")
    A("buffer_atomic_add v2, v1, s[4:7], s17 offen sc0")
    A("s_waitcnt vmcnt(0)")
    A("v_mov_b32 v1, 0")
    A("ds_write_b32 v1, v2")
    A("s_mov_b64 exec, -1")
    A("s_waitcnt lgkmcnt(0)")
    A.label("L_rv_wait")
    A("s_barrier")
    A("v_mov_b32 v1, 0")
    A("ds_read_b32 v3, v1")
    A("v_and_b32 v4, 7, v0")
    A("v_lshlrev_b32 v4, 8, v4")
    A("s_mov_b32 s26, 0")
    A.label("L_rv_poll")
    A("buffer_load_dword v5, v4, s[4:7], s17 offen sc1")
    A("s_add_u32 s26, s26, 1")
    A(f"s_cmp_gt_u32 s26, {TMO}")
    A(f"s_cbranch_scc1 {END}")
    A("s_waitcnt vmcnt(0) lgkmcnt(0)")
    for x in range(8): A(f"v_readlane_b32 s{32+x}, v5, {x}")
    A("s_add_u32 s15, s32, s33")
    for x in range(2, 8): A(f"s_add_u32 s15, s15, s{32+x}")
    A(f"s_cmp_lg_u32 s15, {nwg}")
    A("s_cbranch_scc1 L_rv_poll")
    A("v_readfirstlane_b32 s12, v3")
    A("s_mov_b32 s30, 0")
    A("s_mov_b32 s31, 0")
    for x in range(8):
        A(f"s_cmp_lt_u32 {x}, s14")
        A(f"s_cselect_b32 s15, s{32+x}, 0")
        A("s_add_u32 s12, s12, s15")
        A(f"s_add_u32 s16, s31, s{32+x}")
        for c in range(2):
            A(f"s_cmp_le_u32 s31, {32*c}")
            A(f"s_cselect_b32 s15, {1<<c}, 0")
            A(f"s_cmp_ge_u32 s16, {32*c+32}")
            A(f"s_cselect_b32 s15, s15, 0")
            A("s_or_b32 s30, s30, s15")
        A("s_mov_b32 s31, s16")
    A("s_barrier")

def poll_counter(A, tag, soff_reg, expected, only_wave0=True):
    if only_wave0:
        A("s_cmp_lg_u32 s13, 0")
        A(f"s_cbranch_scc1 L_pc_done_{tag}")
    A("s_mov_b32 s26, 0")
    A("v_mov_b32 v126, 0")
    A.label(f"L_pc_{tag}")
    A(f"buffer_load_dword v127, v126, s[4:7], {soff_reg} offen sc1")
    A("s_add_u32 s26, s26, 1")
    A(f"s_cmp_gt_u32 s26, {TMO}")
    A(f"s_cbranch_scc1 {END}")
    A("s_waitcnt vmcnt(0)")
    A("v_readfirstlane_b32 s27, v127")
    A(f"s_cmp_ge_u32 s27, {expected}")
    A(f"s_cbranch_scc1 L_pc_done_{tag}")
    A("s_sleep 4" if only_wave0 else "s_sleep 1")
    A(f"s_branch L_pc_{tag}")
    A.label(f"L_pc_done_{tag}")
    if only_wave0:
        A("s_barrier")
        if PROF:
            A("s_memrealtime s[76:77]")
            A("s_waitcnt lgkmcnt(0)")

def poll_counter2(A, tag, soffA, expA, soffB, expB):
    A("s_cmp_lg_u32 s13, 0")
    A(f"s_cbranch_scc1 L_pc_done_{tag}")
    A("s_mov_b32 s26, 0")
    A(f"s_sub_u32 s23, {soffB}, {soffA}")
    A("v_mov_b32 v126, 0")
    A("v_writelane_b32 v126, s23, 1")
    A.label(f"L_pc_{tag}")
    A(f"buffer_load_dword v127, v126, s[4:7], {soffA} offen sc1")
    A("s_add_u32 s26, s26, 1")
    A(f"s_cmp_gt_u32 s26, {TMO}")
    A(f"s_cbranch_scc1 {END}")
    A("s_waitcnt vmcnt(0)")
    A("v_readlane_b32 s27, v127, 0")
    A("v_readlane_b32 s23, v127, 1")
    A(f"s_cmp_ge_u32 s27, {expA}")
    A("s_cselect_b32 s27, 1, 0")
    A(f"s_cmp_ge_u32 s23, {expB}")
    A("s_cselect_b32 s23, 1, 0")
    A("s_and_b32 s27, s27, s23")
    A("s_cmp_eq_u32 s27, 1")
    A(f"s_cbranch_scc1 L_pc_done_{tag}")
    A("s_sleep 4")
    A(f"s_branch L_pc_{tag}")
    A.label(f"L_pc_done_{tag}")
    A("s_barrier")

PTR = dict(wq=84, wk=86, wv=88, wo=90, wg=92, wu=94, wd=96)
WBYTES = dict(wq=4*MB, wk=4*MB, wv=4*MB, wo=4*MB, wg=512*1792*2, wu=512*1792*2, wd=1792*512*2)

def raw_srd(A, key):
    srd(A, 8, PTR[key], WBYTES[key])

def tr_load(A, rs, nk, nt, dst, stage_sreg, VA, VB, C, post=None):
    pitch = nt * 32
    lpr = nt * 2
    rows_per = 64 // lpr
    nld = 32 // rows_per
    sh = lpr.bit_length() - 1
    A(f"v_lshrrev_b32 v2, {sh}, v14")
    A(f"s_mov_b32 s23, {rs}")
    A("v_mul_lo_u32 v2, s23, v2")
    A(f"v_and_b32 v3, {lpr-1}, v14")
    A("v_lshl_add_u32 v2, v3, 4, v2")
    A("v_lshlrev_b32 v3, 4, v14")
    A(f"v_add_u32 v3, {stage_sreg}, v3")
    A("v_lshrrev_b32 v5, 4, v14")
    A("v_bfe_u32 v6, v14, 2, 2")
    A("v_lshl_add_u32 v5, v5, 3, v6")
    A(f"v_mul_u32_u24 v5, {pitch}, v5")
    A("v_and_b32 v6, 3, v14")
    A("v_lshl_add_u32 v5, v6, 4, v5")
    A(f"v_add_u32 v5, {stage_sreg}, v5")
    chunks = [list(range(k, min(k + C, nk))) for k in range(0, nk, C)]
    def issue(ci):
        V = VA if ci % 2 == 0 else VB
        n = 0
        for kk in chunks[ci]:
            for i in range(nld):
                A(f"buffer_load_dwordx4 v[{V+4*n}:{V+4*n+3}], v2, s[8:11], s15 offen")
                A(f"s_add_u32 s15, s15, {rows_per*rs}")
                n += 1
        return n
    issue(0)
    for ci, ch in enumerate(chunks):
        V = VA if ci % 2 == 0 else VB
        nxt = issue(ci + 1) if ci + 1 < len(chunks) else 0
        A(f"s_waitcnt vmcnt({nxt})")
        for n in range(len(ch) * nld):
            A(f"ds_write_b128 v3, v[{V+4*n}:{V+4*n+3}] offset:{n*1024}")
        A("s_waitcnt lgkmcnt(0)")
        for q, kk in enumerate(ch):
            for t in range(nt):
                kind, r = dst(kk, t)
                off = q * nt * 1024 + 64 * (t >> 1) + 8 * (t & 1)
                A(f"ds_read_b64_tr_b16 {kind}[{r}:{r+1}], v5 offset:{off}")
                A(f"ds_read_b64_tr_b16 {kind}[{r+2}:{r+3}], v5 offset:{off + 4*pitch}")
        A("s_waitcnt lgkmcnt(0)")
        if post:
            for kk in ch:
                for t in range(nt): post(kk, t, dst(kk, t))
            A("s_waitcnt lgkmcnt(0)")

def gen_chain_role(A):
    MEMF = 16; ACC = 80; KX = 104; VX = 112; T = 120
    A("s_lshr_b32 s42, s12, 5")
    A("s_and_b32 s12, s12, 31")
    A(f"s_mul_i32 s43, s42, {LSTRIDE}")
    A("v_and_b32 v14, 63, v0")
    A("v_lshlrev_b32 v1, 4, v14")
    A("v_lshlrev_b32 v13, 3, v14")
    A("v_and_b32 v15, 15, v14")
    def wreg(ti, kk):
        if ti < 4: return a((ti * 16 + kk) * 4, 4)
        return v(128 + ((ti - 4) * 16 + kk) * 4, 4)
    A("s_mul_i32 s16, s13, 6144")
    A(f"s_add_u32 s16, s16, {MEML}")
    for region, key in enumerate(("wq", "wk", "wv")):
        raw_srd(A, key)
        A("s_lshl_b32 s15, s12, 8")
        A("s_lshl_b32 s14, s13, 6")
        A("s_add_u32 s15, s15, s14")
        def dst(kk, t, region=region):
            ti = region * 2 + t
            return ("a", (ti * 16 + kk) * 4) if ti < 4 else ("v", 128 + ((ti - 4) * 16 + kk) * 4)
        tr_load(A, 8192, 16, 2, dst, "s16", 16, 40, 3)
    A("s_lshl_b32 s15, s13, 15")
    A("v_add_u32 v9, s15, v1")
    raw_srd(A, "wo")
    for half in range(2):
        A("s_lshl_b32 s15, s12, 17")
        A("s_lshl_b32 s14, s13, 8")
        A("s_add_u32 s15, s15, s14")
        A(f"s_add_u32 s15, s15, {128*half}")
        def dst(kk, t): return ("v", 80 + 4 * t)
        def post(kk, t, r, half=half):
            A(f"ds_write_b128 v9, v[{r[1]}:{r[1]+3}] offset:{((half*4+t)*4+kk)*1024}")
        tr_load(A, 1024, 4, 4, dst, "s16", 16, 40, 1, post)
    A("s_barrier")
    for i in range(4): A(f"v_mov_b32 v{T+i}, 0")
    A(f"v_add_u32 v2, {ZROW}, v1")
    A(f"ds_write_b128 v2, v[{T}:{T+3}]")
    A("v_lshrrev_b32 v120, 4, v14")
    A("s_lshl_b32 s15, s13, 11")
    A("v_add_u32 v2, s15, v1")
    A("v_and_b32 v3, 3, v14")
    A(f"v_mul_u32_u24 v3, {2*MROW}, v3")
    A("v_lshrrev_b32 v4, 2, v14")
    A("v_lshl_add_u32 v3, v4, 3, v3")
    A("s_lshl_b32 s15, s13, 8")
    A(f"s_add_u32 s15, s15, {MEML}")
    A("v_add_u32 v3, s15, v3")
    A(f"v_mul_u32_u24 v4, {MROW}, v15")
    A(f"v_add_u32 v4, {MEML}, v4")
    A(f"v_mov_b32 v5, {ZROW}")
    A("v_cmp_gt_u32 vcc, 8, v15")
    A("v_cndmask_b32 v4, v5, v4, vcc")
    A("v_lshl_add_u32 v4, v120, 4, v4")
    A("s_mul_i32 s15, s13, 3072")
    A(f"s_add_u32 s15, s15, {SCL}")
    A("v_add_u32 v5, s15, v1")
    for (x, reg) in ((1, 6), (2, 122), (3, 123)):
        A(f"s_xor_b32 s15, s13, {x}")
        A("s_mul_i32 s15, s15, 3072")
        A(f"s_add_u32 s15, s15, {SCL}")
        A(f"v_add_u32 v{reg}, s15, v1")
    A("s_lshl_b32 s15, s13, 10")
    A(f"s_add_u32 s15, s15, {OL}")
    A("v_add_u32 v7, s15, v1")
    A(f"v_add_u32 v8, {OL}, v1")
    A("s_lshl_b32 s15, s13, 17")
    A("s_lshl_b32 s14, s12, 9")
    A("s_add_u32 s15, s15, s14")
    A("v_lshlrev_b32 v10, 7, v120")
    A("v_lshl_add_u32 v10, v15, 4, v10")
    A("v_add_u32 v10, s15, v10")
    A("s_lshl_b32 s15, s12, 14")
    A("s_lshl_b32 s14, s13, 7")
    A("s_add_u32 s15, s15, s14")
    A("v_lshrrev_b32 v11, 3, v14")
    A("v_lshlrev_b32 v11, 9, v11")
    A("v_and_b32 v12, 7, v14")
    A("v_lshl_add_u32 v11, v12, 4, v11")
    A("v_add_u32 v11, s15, v11")
    A("s_lshr_b32 s14, s12, 1")
    A("s_lshl_b32 s14, s14, 3")
    A("s_lshl_b32 s15, s13, 1")
    A("s_add_u32 s14, s14, s15")
    A("s_and_b32 s15, s12, 1")
    A("s_add_u32 s14, s14, s15")
    A("s_lshl_b32 s15, s14, 6")
    A("v_add_u32 v12, s15, v13")
    A(f"s_mul_i32 s16, s42, {MEMX_LAYER}")
    A(f"s_add_u32 s16, s16, {MEMX}")
    A("s_lshl_b32 s38, s42, 21")
    A(f"s_add_u32 s38, s38, {PART}")
    A("s_mov_b32 s17, s38")
    A("s_lshl_b32 s14, s12, 2")
    A("s_add_u32 s14, s14, s13")
    A("s_lshl_b32 s14, s14, 10")
    A("s_add_u32 s14, s14, s43")
    A(f"s_add_u32 s18, s14, {KF}")
    A(f"s_add_u32 s20, s14, {KM}")
    A(f"s_add_u32 s21, s14, {VM}")
    A("s_sub_u32 s14, s14, s43")
    A("s_lshl_b32 s15, s14, 1")
    A("s_add_u32 s15, s15, s43")
    A(f"s_add_u32 s19, s15, {VF}")
    A("s_lshl_b32 s39, s42, 12")
    A(f"s_add_u32 s39, s39, {CHAIN_CNT}")
    A("s_lshl_b32 s40, s42, 14")
    A(f"s_add_u32 s40, s40, {cnt_off(0, 7, 0)}")
    A("s_mov_b32 s24, 0x00ff00ff")
    A("s_mov_b32 s25, 0x00ff00ff")
    A(f"s_mov_b32 s28, {SCALE_HEX}")
    A(f"s_mov_b32 s29, {SCALE_HEX}")
    A(f"s_mov_b32 s33, {LOG2E_HEX}")
    A(f"s_mov_b32 s31, {LOG2E_HEX | 0x80000000}")
    A("s_mov_b32 s36, -1")
    A("s_mov_b32 s37, 0")
    A("v_mov_b32 v14, v122")
    A("v_mov_b32 v15, v123")
    A("v_mov_b32 v0, 0xf149f2ca")
    A("s_mov_b32 s14, 0")
    A("s_mov_b32 s48, 0")
    A("s_mov_b32 s41, s17")
    if PROF:
        for i in range(10): A(f"s_mov_b32 s{80+i}, 0")
        A("s_memtime s[44:45]")
        A("s_waitcnt lgkmcnt(0)")
        A("s_mov_b32 s47, s44")
    A("s_waitcnt vmcnt(0) lgkmcnt(0)")
    A("s_barrier")
    A("s_cmp_lg_u32 s13, 0")
    A("s_cbranch_scc1 L_ch_nosig")
    A(f"s_mov_b32 s15, {SETUP_CNT}")
    A("v_mov_b32 v120, 0")
    A("v_mov_b32 v121, 1")
    A("s_mov_b64 exec, 1")
    A("buffer_atomic_add v121, v120, s[4:7], s15 offen")
    A("s_mov_b64 exec, -1")
    A.label("L_ch_nosig")
    A("s_lshr_b32 s15, s30, s42")
    A("s_and_b32 s15, s15, 1")
    A("s_cmp_eq_u32 s15, 1")
    A("s_cbranch_scc1 L_step_loc")
    for mode in ("glb", "loc"):
        SC = " sc1" if mode == "glb" else ""
        L = lambda x: f"L_{x}_{mode}"
        def kvload():
            A(f"buffer_load_dwordx4 v[{KX}:{KX+3}], v1, s[4:7], s18 offen sc1")
            A("s_add_u32 s22, s18, 131072")
            A(f"buffer_load_dwordx4 v[{KX+4}:{KX+7}], v1, s[4:7], s22 offen sc1")
            A(f"buffer_load_dwordx4 v[{VX}:{VX+3}], v1, s[4:7], s19 offen sc1")
            A(f"buffer_load_dwordx4 v[{VX+4}:{VX+7}], v1, s[4:7], s19 offen offset:1024 sc1")
        A.label(L("step"))
        A("s_cmp_eq_u32 s48, 1")
        A(f"s_cbranch_scc1 {L('kvok')}")
        A("s_lshr_b32 s15, s14, 1")
        A("s_lshl_b32 s15, s15, 6")
        A("s_add_u32 s15, s15, s40")
        poll_counter(A, "kv_" + mode, "s15", 32, only_wave0=False)
        kvload()
        A.label(L("kvok"))
        A("s_add_u32 s15, s14, 1")
        A("s_lshr_b32 s15, s15, 1")
        A("s_min_u32 s15, s15, 31")
        A("s_lshl_b32 s15, s15, 6")
        A("s_add_u32 s15, s15, s40")
        A(f"v_mov_b32 v{ACC+1}, 0")
        A(f"buffer_load_dword v{ACC+2}, v{ACC+1}, s[4:7], s15 offen sc1")
        A("s_mov_b32 s26, 0")
        A.label(L("poll_mem"))
        A(f"buffer_load_dwordx4 v[{T}:{T+3}], v2, s[4:7], s16 offen sc1")
        A(f"buffer_load_dwordx4 v[{T+4}:{T+7}], v2, s[4:7], s16 offen offset:1024 sc1")
        A("s_add_u32 s26, s26, 1")
        A(f"s_cmp_gt_u32 s26, {TMO}")
        A(f"s_cbranch_scc1 {END}")
        A("s_waitcnt vmcnt(0)")
        A(f"v_max3_u32 v{ACC}, v{T}, v{T+1}, v{T+2}")
        A(f"v_max3_u32 v{ACC}, v{ACC}, v{T+3}, v{T+4}")
        A(f"v_max3_u32 v{ACC}, v{ACC}, v{T+5}, v{T+6}")
        A(f"v_max_u32 v{ACC}, v{ACC}, v{T+7}")
        A(f"v_cmp_eq_u32 vcc, -1, v{ACC}")
        A("s_nop 4")
        A(f"s_cbranch_vccnz {L('poll_mem')}")
        stamp(A, 0)
        if PROF:
            A("s_memrealtime s[44:45]")
            A("s_waitcnt lgkmcnt(0)")
            A(f"v_mov_b32 v{ACC+3}, s44")
            A("s_lshl_b32 s15, s42, 6")
            A("s_add_u32 s15, s15, s14")
            A("s_lshl_b32 s15, s15, 7")
            A("s_lshl_b32 s46, s12, 2")
            A("s_add_u32 s15, s15, s46")
            A(f"s_add_u32 s15, s15, {PROFB + 3*MB}")
            A(f"buffer_store_dword v{ACC+3}, v{ACC+1}, s[4:7], s15 offen")
        A(f"v_readfirstlane_b32 s49, v{ACC+2}")
        A(f"ds_write_b64 v3, v[{T}:{T+1}]")
        A(f"ds_write_b64 v3, v[{T+2}:{T+3}] offset:{MROW}")
        A(f"ds_write_b64 v3, v[{T+4}:{T+5}] offset:128")
        A(f"ds_write_b64 v3, v[{T+6}:{T+7}] offset:{MROW+128}")
        A("s_waitcnt lgkmcnt(0)")
        A("s_barrier")
        for kk in range(16):
            A(f"ds_read_b128 v[{MEMF+4*kk}:{MEMF+4*kk+3}], v4 offset:{kk*64}")
        def qkv_mfma(ti, kk):
            acc = v(ACC + 4 * ti, 4); m = v(MEMF + 4 * kk, 4); w = wreg(ti, kk)
            c = "0" if kk == 0 else acc
            if ti < 4: return f"v_mfma_f32_16x16x32_bf16 {acc}, {w}, {m}, {c}"
            else:      return f"v_mfma_f32_16x16x32_bf16 {acc}, {m}, {w}, {c}"
        for kk in range(16):
            A(f"s_waitcnt lgkmcnt({15-kk})")
            for ti in range(4): A(qkv_mfma(ti, kk))
            if kk == 3:
                A("s_cmp_eq_u32 s14, 0")
                A(f"s_cbranch_scc1 {L('nodefer')}")
                for i in range(4): A(f"v_mov_b32 v{T+i}, -1")
                A(f"v_mov_b32 v{T+4}, 1")
                A(f"v_mov_b32 v{T+5}, 0")
                for i in range(4):
                    A(f"s_add_u32 s22, s41, {i*4096}")
                    A(f"buffer_store_dwordx4 v[{T}:{T+3}], v11, s[4:7], s22 offen{SC}")
                A("s_mov_b64 exec, 1")
                A(f"buffer_atomic_add v{T+4}, v{T+5}, s[4:7], s39 offen")
                A("s_mov_b64 exec, -1")
                A("s_add_u32 s39, s39, 64")
                A.label(L("nodefer"))
        vm = [qkv_mfma(ti, kk) for kk in range(16) for ti in (4, 5)]
        stamp(A, 1)
        QP = 120; KP = 124; S = 80
        A(vm[0]); A(vm[1]); A(vm[2]); A(vm[3])
        for i, dst in enumerate((QP, KP)):
            for half in range(2):
                b = ACC + 8 * i + 4 * half
                A(f"v_cvt_pk_bf16_f32 v{dst+2*half}, v{b}, v{b+1}")
                A(f"v_cvt_pk_bf16_f32 v{dst+2*half+1}, v{b+2}, v{b+3}")
        A(f"v_mfma_f32_16x16x32_bf16 v[{S}:{S+3}], v[{KP}:{KP+3}], v[{QP}:{QP+3}], 0")
        A(f"v_mfma_f32_16x16x32_bf16 v[{S+4}:{S+7}], v[{KX}:{KX+3}], v[{QP}:{QP+3}], 0")
        A(f"v_mfma_f32_16x16x32_bf16 v[{S+8}:{S+11}], v[{KX+4}:{KX+7}], v[{QP}:{QP+3}], 0")
        A(f"buffer_store_dwordx4 v[{KP}:{KP+3}], v1, s[4:7], s20 offen sc1")
        for i in range(4, 8): A(vm[i])
        for i in range(3):
            A(f"ds_write_b128 v5, v[{S+4*i}:{S+4*i+3}] offset:{i*1024}")
        for i in range(8, 12): A(vm[i])
        A("s_add_u32 s18, s18, 262144")
        A("s_add_u32 s19, s19, 262144")
        A("s_mov_b32 s48, 0")
        A("s_cmp_lt_u32 s49, 32")
        A(f"s_cbranch_scc1 {L('noprefk')}")
        A("s_cmp_ge_u32 s14, 63")
        A(f"s_cbranch_scc1 {L('noprefk')}")
        A("s_mov_b32 s48, 1")
        A(f"buffer_load_dwordx4 v[{KX}:{KX+3}], v1, s[4:7], s18 offen sc1")
        A("s_add_u32 s22, s18, 131072")
        A(f"buffer_load_dwordx4 v[{KX+4}:{KX+7}], v1, s[4:7], s22 offen sc1")
        A.label(L("noprefk"))
        for i in range(12, 16): A(vm[i])
        A("s_waitcnt lgkmcnt(0)")
        A("s_barrier")
        stamp(A, 2)
        R1 = 16; R2 = 28; R3r = [40, 44, 92]
        for i in range(3): A(f"ds_read_b128 v[{R1+4*i}:{R1+4*i+3}], v6 offset:{i*1024}")
        for i in range(3): A(f"ds_read_b128 v[{R2+4*i}:{R2+4*i+3}], v14 offset:{i*1024}")
        for i in range(3): A(f"ds_read_b128 v[{R3r[i]}:{R3r[i]+3}], v15 offset:{i*1024}")
        for i in range(16, 22): A(vm[i])
        va = []
        va.append("s_waitcnt lgkmcnt(6)")
        for i in range(0, 12, 2): va.append(f"v_pk_add_f32 v[{S+i}:{S+i+1}], v[{S+i}:{S+i+1}], v[{R1+i}:{R1+i+1}]")
        va.append("s_waitcnt lgkmcnt(0)")
        for i in range(0, 12, 2):
            r3 = R3r[i // 4] + (i % 4)
            va.append(f"v_pk_add_f32 v[{R2+i}:{R2+i+1}], v[{R2+i}:{R2+i+1}], v[{r3}:{r3+1}]")
        for i in range(0, 12, 2): va.append(f"v_pk_add_f32 v[{S+i}:{S+i+1}], v[{S+i}:{S+i+1}], v[{R2+i}:{R2+i+1}]")
        TT = 16
        for i in range(0, 12, 2): va.append(f"v_cvt_pk_bf16_f32 v{TT+i//2}, v{S+i}, v{S+i+1}")
        for i in range(0, 12, 2):
            va.append(f"v_lshlrev_b32 v{S+i}, 16, v{TT+i//2}")
            va.append(f"v_and_b32 v{S+i+1}, 0xffff0000, v{TT+i//2}")
        for i in range(0, 12, 2): va.append(f"v_pk_mul_f32 v[{S+i}:{S+i+1}], v[{S+i}:{S+i+1}], s[28:29]")
        for i in range(0, 12, 2): va.append(f"v_cvt_pk_bf16_f32 v{TT+i//2}, v{S+i}, v{S+i+1}")
        for i in range(0, 12, 2):
            va.append(f"v_lshlrev_b32 v{S+i}, 16, v{TT+i//2}")
            va.append(f"v_and_b32 v{S+i+1}, 0xffff0000, v{TT+i//2}")
        for i in range(4): va.append(f"v_cndmask_b32 v{S+i}, v0, v{S+i}, s[36:37]")
        MX = 22; MT = 23
        va.append(f"v_max3_f32 v{MX}, v{S}, v{S+1}, v{S+2}")
        va.append(f"v_max3_f32 v{MT}, v{S+3}, v{S+4}, v{S+5}")
        va.append(f"v_max3_f32 v{MX}, v{MX}, v{S+6}, v{S+7}")
        va.append(f"v_max3_f32 v{MT}, v{MT}, v{S+8}, v{S+9}")
        va.append(f"v_max3_f32 v{MX}, v{MX}, v{S+10}, v{S+11}")
        va.append(f"v_max_f32 v{MX}, v{MX}, v{MT}")
        rest = vm[22:]
        k = 0
        for idx, ins in enumerate(va):
            A(ins)
            if idx % 3 == 2 and k < len(rest):
                A(rest[k]); k += 1
        while k < len(rest): A(rest[k]); k += 1
        xlane(A, MX, MT, ("p16", "p32"), "v_max_f32")
        A(f"v_mul_f32 v{MX}, s31, v{MX}")
        for i in range(12): A(f"v_fma_f32 v{S+i}, v{S+i}, s33, v{MX}")
        WOF = 32; VP = 24
        for half in range(2):
            b = ACC + 16 + 4 * half
            A(f"v_cvt_pk_bf16_f32 v{VP+2*half}, v{b}, v{b+1}")
            A(f"v_cvt_pk_bf16_f32 v{VP+2*half+1}, v{b+2}, v{b+3}")
        for i in range(12): A(f"v_exp_f32 v{S+i}, v{S+i}")
        for t in range(3):
            for j in range(4):
                A(f"ds_read_b128 v[{WOF+16*t+4*j}:{WOF+16*t+4*j+3}], v9 offset:{(t*4+j)*1024}")
        A(f"buffer_store_dwordx2 v[{VP}:{VP+1}], v13, s[4:7], s21 offen sc1")
        A(f"buffer_store_dwordx2 v[{VP+2}:{VP+3}], v13, s[4:7], s21 offen offset:512 sc1")
        for i in range(0, 12, 4):
            A(f"v_pk_add_f32 v[{TT+i//2}:{TT+i//2+1}], v[{S+i}:{S+i+1}], v[{S+i+2}:{S+i+3}]")
        A(f"v_pk_add_f32 v[{TT}:{TT+1}], v[{TT}:{TT+1}], v[{TT+2}:{TT+3}]")
        A(f"v_pk_add_f32 v[{TT}:{TT+1}], v[{TT}:{TT+1}], v[{TT+4}:{TT+5}]")
        A(f"v_add_f32 v{MX}, v{TT}, v{TT+1}")
        xlane(A, MX, MT, ("p16", "p32"))
        A(f"v_rcp_f32 v{MX}, v{MX}")
        A(f"v_mov_b32 v{MT}, v{MX}")
        for i in range(0, 12, 2): A(f"v_pk_mul_f32 v[{S+i}:{S+i+1}], v[{S+i}:{S+i+1}], v[{MX}:{MX+1}]")
        PM = 16; PT = 18
        A(f"v_cvt_pk_bf16_f32 v{PM}, v{S}, v{S+1}")
        A(f"v_cvt_pk_bf16_f32 v{PM+1}, v{S+2}, v{S+3}")
        for i in range(4): A(f"v_cvt_pk_bf16_f32 v{PT+i}, v{S+4+2*i}, v{S+5+2*i}")
        O = 96
        for t in range(2):
            A(f"v_mfma_f32_16x16x32_bf16 v[{O+4*t}:{O+4*t+3}], v[{VX+4*t}:{VX+4*t+3}], v[{PT}:{PT+3}], 0")
        for t in range(2):
            A(f"v_mfma_f32_16x16x16_bf16 v[{O+4*t}:{O+4*t+3}], v[{VP+2*t}:{VP+2*t+1}], v[{PM}:{PM+1}], v[{O+4*t}:{O+4*t+3}]")
        for j in range(4):
            A(f"ds_read_b128 v[{80+4*j}:{83+4*j}], v9 offset:{(3*4+j)*1024}")
        A("s_cmp_eq_u32 s48, 0")
        A(f"s_cbranch_scc1 {L('nopref')}")
        A("s_nop 4")
        A(f"buffer_load_dwordx4 v[{VX}:{VX+3}], v1, s[4:7], s19 offen sc1")
        A(f"buffer_load_dwordx4 v[{VX+4}:{VX+7}], v1, s[4:7], s19 offen offset:1024 sc1")
        A.label(L("nopref"))
        OP = 120
        for t in range(2):
            A(f"v_cvt_pk_bf16_f32 v{OP+2*t}, v{O+4*t}, v{O+4*t+1}")
            A(f"v_cvt_pk_bf16_f32 v{OP+2*t+1}, v{O+4*t+2}, v{O+4*t+3}")
        A(f"ds_write_b128 v7, v[{OP}:{OP+3}]")
        A("s_waitcnt lgkmcnt(0)")
        A("s_barrier")
        stamp(A, 3)
        OFR = 16
        for j in range(4):
            A(f"ds_read_b128 v[{OFR+4*j}:{OFR+4*j+3}], v8 offset:{j*1024}")
        wof = lambda t, j: (WOF + 16 * t + 4 * j) if t < 3 else (80 + 4 * j)
        RES = [96, 100, 120, 124]
        def store_part(t, reg):
            A(f"s_add_u32 s22, s17, {t*16384}")
            A(f"buffer_store_dwordx4 v[{reg}:{reg+3}], v10, s[4:7], s22 offen{SC}")
        for j in range(4):
            A(f"s_waitcnt lgkmcnt({3-j + 4*j})")
            for t in range(4):
                acc = v(RES[t], 4)
                A(f"v_mfma_f32_16x16x32_bf16 {acc}, v[{wof(t,j)}:{wof(t,j)+3}], v[{OFR+4*j}:{OFR+4*j+3}], {'0' if j==0 else acc}")
            for t in range(4):
                A(f"ds_read_b128 v[{wof(t,j)}:{wof(t,j)+3}], v9 offset:{((t+4)*4+j)*1024}")
        A("s_mov_b64 exec, s[24:25]")
        for t in range(4): store_part(t, RES[t])
        A("s_mov_b64 exec, -1")
        for j in range(4):
            A(f"s_waitcnt lgkmcnt({12-4*j})")
            for t in range(4):
                acc = v(RES[t], 4)
                A(f"v_mfma_f32_16x16x32_bf16 {acc}, v[{wof(t,j)}:{wof(t,j)+3}], v[{OFR+4*j}:{OFR+4*j+3}], {'0' if j==0 else acc}")
        A("s_mov_b64 exec, s[24:25]")
        for t in range(4): store_part(4 + t, RES[t])
        A("s_mov_b64 exec, -1")
        stamp(A, 4)
        P = 40
        A("s_mov_b32 s26, 0")
        A.label(L("poll_part"))
        for i in range(4):
            A(f"s_add_u32 s22, s17, {i*4096}")
            A(f"buffer_load_dwordx4 v[{P+4*i}:{P+4*i+3}], v11, s[4:7], s22 offen sc1")
        A("s_add_u32 s26, s26, 1")
        A(f"s_cmp_gt_u32 s26, {TMO}")
        A(f"s_cbranch_scc1 {END}")
        A("s_waitcnt vmcnt(0)")
        A(f"v_max3_u32 v{P+16}, v{P}, v{P+1}, v{P+2}")
        for i in range(3, 15, 2): A(f"v_max3_u32 v{P+16}, v{P+16}, v{P+i}, v{P+i+1}")
        A(f"v_max_u32 v{P+16}, v{P+16}, v{P+15}")
        A(f"v_cmp_eq_u32 vcc, -1, v{P+16}")
        A("s_nop 4")
        A(f"s_cbranch_vccnz {L('poll_part')}")
        stamp(A, 5)
        for c in range(4):
            A(f"v_add_f32 v{P+c}, v{P+c}, v{P+4+c}")
            A(f"v_add_f32 v{P+8+c}, v{P+8+c}, v{P+12+c}")
        for c in range(4): A(f"v_add_f32 v{P+c}, v{P+c}, v{P+8+c}")
        for c in range(4): xlane(A, P + c, P + 16 + c)
        A(f"v_cvt_pk_bf16_f32 v{P+20}, v{P}, v{P+1}")
        A(f"v_cvt_pk_bf16_f32 v{P+21}, v{P+2}, v{P+3}")
        A(f"v_min_u32 v{P+20}, -2, v{P+20}")
        A(f"v_min_u32 v{P+21}, -2, v{P+21}")
        A("s_add_u32 s16, s16, 8192")
        A("s_mov_b64 exec, 0xff")
        A(f"buffer_store_dwordx2 v[{P+20}:{P+21}], v12, s[4:7], s16 offen{SC}")
        A("s_mov_b64 exec, -1")
        A("s_mov_b32 s41, s17")
        A("s_add_u32 s14, s14, 1")
        A("s_and_b32 s15, s14, 3")
        A("s_lshl_b32 s15, s15, 19")
        A("s_add_u32 s17, s38, s15")
        A("s_add_u32 s20, s20, 131072")
        A("s_add_u32 s21, s21, 131072")
        stamp(A, 6)
        A("s_cmp_lt_u32 s14, 64")
        A(f"s_cbranch_scc1 {L('step')}")
        A(f"v_mov_b32 v{T+4}, 1")
        A(f"v_mov_b32 v{T+5}, 0")
        A("s_mov_b64 exec, 1")
        A(f"buffer_atomic_add v{T+4}, v{T+5}, s[4:7], s39 offen")
        A("s_mov_b64 exec, -1")
        if PROF:
            A("s_lshl_b32 s15, s12, 2")
            A("s_add_u32 s15, s15, s13")
            A("s_lshl_b32 s15, s15, 6")
            A("s_lshl_b32 s16, s42, 16")
            A("s_add_u32 s15, s15, s16")
            A(f"s_add_u32 s15, s15, {PROFB}")
            A("v_mov_b32 v1, 0")
            for i in range(8):
                A(f"v_mov_b32 v2, s{80+i}")
                A(f"buffer_store_dword v2, v1, s[4:7], s15 offen offset:{4*i}")
                A("s_nop 1")
            A("v_mov_b32 v2, s30")
            A(f"buffer_store_dword v2, v1, s[4:7], s15 offen offset:32")
        A("s_endpgm")

def cnt_addr(A, dst, stage, layer_reg="s42"):
    A(f"s_lshl_b32 s{dst}, {layer_reg}, 8")
    A(f"s_add_u32 s{dst}, s{dst}, s40")
    A(f"s_lshl_b32 s{dst}, s{dst}, 6")
    A(f"s_add_u32 s{dst}, s{dst}, {cnt_off(0, stage, 0)}")

def signal(A, stage):
    A("s_waitcnt vmcnt(0) lgkmcnt(0)")
    A("s_barrier")
    A("s_cmp_lg_u32 s13, 0")
    A("s_cbranch_scc1 L_wloop")
    if PROF:
        A("s_memrealtime s[78:79]")
        A("s_waitcnt lgkmcnt(0)")
        A("v_mov_b32 v120, s72")
        A("v_mov_b32 v121, s74")
        A("v_mov_b32 v122, s76")
        A("v_mov_b32 v123, s78")
        A("v_mov_b32 v126, 0")
        A("s_mov_b64 exec, 1")
        A("buffer_store_dwordx4 v[120:123], v126, s[4:7], s69 offen")
        A("s_mov_b64 exec, -1")
        A("s_add_u32 s69, s69, 16")
    cnt_addr(A, 22, stage)
    A("v_mov_b32 v126, 0")
    A("v_mov_b32 v127, 1")
    A("s_mov_b64 exec, 1")
    A("buffer_atomic_add v127, v126, s[4:7], s22 offen")
    A("s_mov_b64 exec, -1")
    A("s_branch L_wloop")

def flush_pending(A, tag):
    A("s_cmp_eq_u32 s68, 0")
    A(f"s_cbranch_scc1 L_fp_done_{tag}")
    A("s_barrier")
    A("s_cmp_lg_u32 s13, 0")
    A(f"s_cbranch_scc1 L_fp_skip_{tag}")
    A("v_mov_b32 v124, 0")
    A("v_mov_b32 v125, 1")
    A("s_mov_b64 exec, 1")
    A("buffer_atomic_add v125, v124, s[4:7], s68 offen")
    A("s_mov_b64 exec, -1")
    A.label(f"L_fp_skip_{tag}")
    A("s_mov_b32 s68, 0")
    A.label(f"L_fp_done_{tag}")

def stage_ln(A, which):
    tag = f"ln{which}"
    if which == 0:
        A("s_cmp_eq_u32 s42, 0")
        A(f"s_cbranch_scc1 L_{tag}_nodep")
        A("s_mov_b32 s23, 0")
        cnt_addr(A, 22, 6, "s23")
        poll_counter(A, tag, "s22", 32)
        A.label(f"L_{tag}_nodep")
    else:
        cnt_addr(A, 22, 3)
        poll_counter(A, tag, "s22", 32)
    A("s_lshl_b32 s23, s42, 1")
    A(f"s_add_u32 s23, s23, {which}")
    A("s_lshl_b32 s23, s23, 21")
    A(f"s_add_u32 s19, s23, {XR}")
    A(f"s_add_u32 s18, s23, {XFA}")
    A("v_lshrrev_b32 v1, 4, v0")
    A("s_lshl_b32 s3, s40, 6")
    A("s_lshl_b32 s15, s41, 5")
    A("s_add_u32 s3, s3, s15")
    A("v_add_u32 v1, s3, v1")
    A("v_and_b32 v2, 15, v0")
    A("v_lshlrev_b32 v3, 10, v1")
    A("v_lshl_add_u32 v3, v2, 4, v3")
    for q in range(4):
        A(f"buffer_load_dwordx4 v[{16+4*q}:{19+4*q}], v3, s[4:7], s19 offen offset:{q*256} sc1")
    A("s_add_u32 s19, s19, 16384")
    for q in range(4):
        A(f"buffer_load_dwordx4 v[{64+4*q}:{67+4*q}], v3, s[4:7], s19 offen offset:{q*256} sc1")
    A("v_bfe_u32 v4, v1, 3, 2")
    A("v_and_b32 v5, 3, v1")
    A("v_lshl_add_u32 v4, v4, 2, v5")
    A("v_and_b32 v5, 3, v2")
    A("v_lshl_add_u32 v4, v5, 4, v4")
    A("v_lshlrev_b32 v4, 4, v4")
    A("v_bfe_u32 v5, v1, 2, 1")
    A("v_bfe_u32 v6, v1, 5, 1")
    A("v_lshl_add_u32 v5, v6, 1, v5")
    A("v_lshl_add_u32 v4, v5, 10, v4")
    A("v_lshrrev_b32 v5, 6, v1")
    A("v_lshrrev_b32 v6, 2, v2")
    A("v_lshl_add_u32 v5, v5, 4, v6")
    A("v_lshl_add_u32 v4, v5, 12, v4")
    for it in range(2):
        A(f"s_waitcnt vmcnt({4 if it == 0 else 4})")
        if it == 1:
            for i in range(16): A(f"v_mov_b32 v{16+i}, v{64+i}")
        ln_math(A)
        for q in range(4):
            A(f"s_add_u32 s20, s18, {q*4*4096 + it*128}")
            A(f"buffer_store_dwordx4 v[{16+4*q}:{19+4*q}], v4, s[4:7], s20 offen sc1")
    signal(A, 0 if which == 0 else 4)

XB = 8; WB = 40; TMPX = 104; ACCW = 168

def ta_prologue(A, tag, which, dep_stage, preload):
    A("v_and_b32 v4, 63, v0")
    A("v_lshlrev_b32 v4, 4, v4")
    A("s_bitcmp0_b32 s72, 16")
    A(f"s_cbranch_scc1 L_{tag}_nopre")
    A(f"s_mov_b32 s22, {SETUP_CNT}")
    poll_counter(A, tag + "_su", "s22", 64)
    preload(A)
    A.label(f"L_{tag}_nopre")
    cnt_addr(A, 22, dep_stage)
    poll_counter(A, tag, "s22", 2)
    A("v_lshlrev_b32 v1, 4, v0")
    A("s_lshl_b32 s23, s42, 1")
    A(f"s_add_u32 s23, s23, {which}")
    A("s_lshl_b32 s23, s23, 21")
    A("s_lshl_b32 s19, s40, 16")
    A("s_add_u32 s19, s19, s23")
    A(f"s_add_u32 s19, s19, {XFA}")
    for i in range(16):
        A(f"buffer_load_dwordx4 v[{TMPX+4*i}:{TMPX+4*i+3}], v1, s[4:7], s19 offen sc1")
        if i < 15: A("s_add_u32 s19, s19, 4096")
    for i in range(16):
        A(f"s_waitcnt vmcnt({15-i})")
        A(f"ds_write_b128 v1, v[{TMPX+4*i}:{TMPX+4*i+3}] offset:{i*4096}")
    A("v_mov_b32 v5, v4")
    A("s_waitcnt lgkmcnt(0)")
    A("s_barrier")

def ta_xread(A, buf, koff):
    for mt in range(4):
        A(f"ds_read_b128 v[{XB+16*buf+4*mt}:{XB+16*buf+4*mt+3}], v5 offset:{koff*4096+mt*1024}")

def ta_kloop(A, vtype):
    NB = 3
    ta_xread(A, 0, 0); ta_xread(A, 1, 1)
    for kk in range(16):
        if kk + 2 < 16: ta_xread(A, (kk + 2) % NB, kk + 2)
        lg = min(8, 4 * (15 - kk))
        A(f"s_waitcnt lgkmcnt({lg})")
        for ct in range(4):
            for mt in range(4):
                w = a((kk * 4 + ct) * 4, 4); x = v(XB + 16 * (kk % NB) + 4 * mt, 4)
                acc = v(ACCW + (ct * 4 + mt) * 4, 4)
                c = "0" if kk == 0 else acc
                if vtype: A(f"v_mfma_f32_16x16x32_bf16 {acc}, {x}, {w}, {c}")
                else:     A(f"v_mfma_f32_16x16x32_bf16 {acc}, {w}, {x}, {c}")

def preload_qkv(A):
    A("v_and_b32 v14, 63, v0")
    A(f"s_mov_b32 s8, s{PTR['wq']}")
    A(f"s_mov_b32 s9, s{PTR['wq']+1}")
    A("s_cmp_eq_u32 s18, 1")
    A(f"s_cselect_b32 s8, s{PTR['wk']}, s8")
    A(f"s_cselect_b32 s9, s{PTR['wk']+1}, s9")
    A("s_cmp_eq_u32 s18, 2")
    A(f"s_cselect_b32 s8, s{PTR['wv']}, s8")
    A(f"s_cselect_b32 s9, s{PTR['wv']+1}, s9")
    A("s_and_b32 s9, s9, 0xffff")
    A(f"s_mov_b32 s10, {4*MB}")
    A("s_mov_b32 s11, 0x00020000")
    A("s_lshl_b32 s15, s16, 7")
    A("s_lshl_b32 s24, s13, 14")
    tr_load(A, 8192, 16, 4, lambda kk, t: ("a", (kk * 4 + t) * 4), "s24", 16, 80, 4)
    A("s_barrier")

def preload_gu(A):
    A("v_and_b32 v14, 63, v0")
    A("s_lshl_b32 s24, s13, 14")
    for gu, key in enumerate(("wg", "wu")):
        raw_srd(A, key)
        A("s_lshl_b32 s15, s16, 6")
        tr_load(A, 3584, 16, 2, lambda kk, t, gu=gu: ("a", (kk * 4 + 2 * gu + t) * 4), "s24", 16, 80, 8)
    A("s_barrier")

def stage_q(A):
    A("s_and_b32 s16, s41, 15")
    A("s_lshl_b32 s16, s16, 2")
    A("s_add_u32 s16, s16, s13")
    A("s_lshr_b32 s17, s41, 4")
    A("s_add_u32 s18, s17, 1")
    A("s_cmp_eq_u32 s17, 2")
    A("s_cselect_b32 s18, 0, s18")
    A("s_mul_i32 s15, s16, 3")
    A("s_add_u32 s15, s15, s18")
    A("s_lshl_b32 s15, s15, 16")
    A(f"s_add_u32 s15, s15, {WQKV_F}")
    ta_prologue(A, "q", 0, 0, preload_qkv)
    A("s_cmp_eq_u32 s17, 1")
    A("s_cbranch_scc1 L_q_v")
    ta_kloop(A, False)
    A("s_lshl_b32 s19, s40, 7")
    A("s_lshr_b32 s20, s16, 1")
    A("s_add_u32 s19, s19, s20")
    A("s_lshl_b32 s19, s19, 2")
    A("s_and_b32 s20, s16, 1")
    A("s_lshl_b32 s20, s20, 1")
    A("s_add_u32 s19, s19, s20")
    A("s_lshl_b32 s19, s19, 10")
    A("s_add_u32 s19, s19, s43")
    A(f"s_mov_b32 s20, {KF}")
    A("s_cmp_eq_u32 s17, 2")
    A(f"s_cselect_b32 s20, {QF}, s20")
    A("s_add_u32 s19, s19, s20")
    for mt in range(4):
        for cp in range(2):
            pk = TMPX + 4 * (mt * 2 + cp)
            for half in range(2):
                b = ACCW + ((2 * cp + half) * 4 + mt) * 4
                A(f"v_cvt_pk_bf16_f32 v{pk+2*half}, v{b}, v{b+1}")
                A(f"v_cvt_pk_bf16_f32 v{pk+2*half+1}, v{b+2}, v{b+3}")
            A(f"buffer_store_dwordx4 v[{pk}:{pk+3}], v4, s[4:7], s19 offen offset:{cp*1024} sc1")
        if mt < 3: A("s_add_u32 s19, s19, 131072")
    A("s_cmp_eq_u32 s17, 2")
    A("s_cbranch_scc1 L_q_sigq")
    signal(A, 7)
    A.label("L_q_sigq")
    signal(A, 1)
    A.label("L_q_v")
    ta_kloop(A, True)
    A("s_lshl_b32 s19, s40, 6")
    A("s_lshr_b32 s20, s16, 1")
    A("s_add_u32 s19, s19, s20")
    A("s_lshl_b32 s19, s19, 3")
    A("s_and_b32 s20, s16, 1")
    A("s_lshl_b32 s20, s20, 2")
    A("s_add_u32 s19, s19, s20")
    A("s_lshl_b32 s19, s19, 10")
    A("s_add_u32 s19, s19, s43")
    A(f"s_add_u32 s19, s19, {VF}")
    for sg in range(2):
        for ct in range(4):
            pk = TMPX + 4 * (sg * 4 + ct)
            for half in range(2):
                b = ACCW + (ct * 4 + 2 * sg + half) * 4
                A(f"v_cvt_pk_bf16_f32 v{pk+2*half}, v{b}, v{b+1}")
                A(f"v_cvt_pk_bf16_f32 v{pk+2*half+1}, v{b+2}, v{b+3}")
            A(f"buffer_store_dwordx4 v[{pk}:{pk+3}], v4, s[4:7], s19 offen offset:{ct*1024} sc1")
        if sg < 1: A("s_add_u32 s19, s19, 262144")
    signal(A, 7)

def stage_q1stream(A):
    PKR = 56
    A("s_and_b32 s16, s41, 15")
    A("s_lshl_b32 s16, s16, 2")
    A("s_add_u32 s16, s16, s13")
    A("s_lshr_b32 s17, s41, 4")
    A("s_add_u32 s18, s17, 1")
    A("s_cmp_eq_u32 s17, 2")
    A("s_cselect_b32 s18, 0, s18")
    A("s_mul_i32 s15, s16, 3")
    A("s_add_u32 s15, s15, s18")
    A("s_lshl_b32 s15, s15, 16")
    A(f"s_add_u32 s15, s15, {WQKV_F}")
    A("v_and_b32 v4, 63, v0")
    A("v_lshlrev_b32 v4, 4, v4")
    A("v_lshlrev_b32 v1, 4, v0")
    A(f"s_mov_b32 s19, {XFA}")
    def xloads():
        for i in range(16):
            A(f"buffer_load_dwordx4 v[{TMPX+4*i}:{TMPX+4*i+3}], v1, s[4:7], s19 offen")
            A("s_add_u32 s19, s19, 4096")
    preload_qkv(A)
    xloads()
    A("s_lshr_b32 s20, s16, 1")
    A("s_and_b32 s21, s16, 1")
    A("s_cmp_eq_u32 s17, 1")
    A("s_cbranch_scc1 L_q1_vaddr")
    A("s_lshl_b32 s20, s20, 2")
    A("s_lshl_b32 s21, s21, 1")
    A("s_add_u32 s20, s20, s21")
    A("s_lshl_b32 s20, s20, 10")
    A(f"s_mov_b32 s21, {KF}")
    A("s_cmp_eq_u32 s17, 2")
    A(f"s_cselect_b32 s21, {QF}, s21")
    A("s_add_u32 s20, s20, s21")
    A("s_branch L_q1_addr_done")
    A.label("L_q1_vaddr")
    A("s_lshl_b32 s20, s20, 3")
    A("s_lshl_b32 s21, s21, 2")
    A("s_add_u32 s20, s20, s21")
    A("s_lshl_b32 s20, s20, 10")
    A(f"s_add_u32 s20, s20, {VF}")
    A.label("L_q1_addr_done")
    A(f"s_mov_b32 s21, {cnt_off(0, 7, 0)}")
    A("s_cmp_eq_u32 s17, 2")
    A(f"s_cselect_b32 s21, {cnt_off(0, 1, 0)}, s21")
    A("s_mov_b32 s40, 0")
    A("v_mov_b32 v2, v1")
    A("v_mov_b32 v5, v4")
    A("s_waitcnt vmcnt(0)")
    for i in range(16):
        A(f"ds_write_b128 v2, v[{TMPX+4*i}:{TMPX+4*i+3}] offset:{i*4096}")
    A("s_waitcnt lgkmcnt(0)")
    xloads()
    A("s_barrier")
    A("s_cmp_eq_u32 s17, 1")
    A("s_cbranch_scc1 L_q1_loop_v")
    for vtype in (False, True):
        tg = "v" if vtype else "qk"
        A.label(f"L_q1_loop_{tg}")
        ta_kloop(A, vtype)
        A("s_waitcnt vmcnt(0)")
        A("v_xor_b32 v2, 0x10000, v2")
        A("v_xor_b32 v5, 0x10000, v5")
        for i in range(16):
            A(f"ds_write_b128 v2, v[{TMPX+4*i}:{TMPX+4*i+3}] offset:{i*4096}")
        A("s_waitcnt lgkmcnt(0)")
        A("s_barrier")
        A("s_cmp_le_u32 s40, 1")
        A(f"s_cbranch_scc1 L_q1_nosig_{tg}")
        A("s_cmp_lg_u32 s13, 0")
        A(f"s_cbranch_scc1 L_q1_nosig2_{tg}")
        A("v_mov_b32 v6, 0")
        A("v_mov_b32 v7, 1")
        A("s_mov_b64 exec, 1")
        A("buffer_atomic_add v7, v6, s[4:7], s21 offen")
        A("s_mov_b64 exec, -1")
        A.label(f"L_q1_nosig2_{tg}")
        A("s_add_u32 s21, s21, 64")
        A.label(f"L_q1_nosig_{tg}")
        A("s_cmp_ge_u32 s40, 30")
        A(f"s_cbranch_scc1 L_q1_nold_{tg}")
        xloads()
        A.label(f"L_q1_nold_{tg}")
        A("s_mov_b32 s22, s20")
        if not vtype:
            for mt in range(4):
                for cp in range(2):
                    pk = PKR + 4 * (mt * 2 + cp)
                    for half in range(2):
                        b = ACCW + ((2 * cp + half) * 4 + mt) * 4
                        A(f"v_cvt_pk_bf16_f32 v{pk+2*half}, v{b}, v{b+1}")
                        A(f"v_cvt_pk_bf16_f32 v{pk+2*half+1}, v{b+2}, v{b+3}")
                    A(f"buffer_store_dwordx4 v[{pk}:{pk+3}], v4, s[4:7], s22 offen offset:{cp*1024} sc1")
                if mt < 3: A("s_add_u32 s22, s22, 131072")
        else:
            for sg in range(2):
                for ct in range(4):
                    pk = PKR + 4 * (sg * 4 + ct)
                    for half in range(2):
                        b = ACCW + (ct * 4 + 2 * sg + half) * 4
                        A(f"v_cvt_pk_bf16_f32 v{pk+2*half}, v{b}, v{b+1}")
                        A(f"v_cvt_pk_bf16_f32 v{pk+2*half+1}, v{b+2}, v{b+3}")
                    A(f"buffer_store_dwordx4 v[{pk}:{pk+3}], v4, s[4:7], s22 offen offset:{ct*1024} sc1")
                if sg < 1: A("s_add_u32 s22, s22, 262144")
        A("s_cmp_lg_u32 s40, 0")
        A(f"s_cbranch_scc1 L_q1_noearly_{tg}")
        A("s_waitcnt vmcnt(0)")
        A("s_barrier")
        A("s_cmp_lg_u32 s13, 0")
        A(f"s_cbranch_scc1 L_q1_early2_{tg}")
        A("v_mov_b32 v6, 0")
        A("v_mov_b32 v7, 1")
        A("s_mov_b64 exec, 1")
        A("buffer_atomic_add v7, v6, s[4:7], s21 offen")
        A("s_mov_b64 exec, -1")
        A.label(f"L_q1_early2_{tg}")
        A("s_add_u32 s21, s21, 64")
        A.label(f"L_q1_noearly_{tg}")
        A("s_add_u32 s20, s20, 524288")
        A("s_add_u32 s40, s40, 1")
        A("s_cmp_lt_u32 s40, 32")
        A(f"s_cbranch_scc1 L_q1_loop_{tg}")
        A("s_branch L_q1_fin")
    A.label("L_q1_fin")
    A("s_waitcnt vmcnt(0) lgkmcnt(0)")
    A("s_barrier")
    A("s_cmp_lg_u32 s13, 0")
    A("s_cbranch_scc1 L_wloop")
    A("v_mov_b32 v6, 0")
    A("v_mov_b32 v7, 1")
    A("s_mov_b64 exec, 1")
    A("buffer_atomic_add v7, v6, s[4:7], s21 offen")
    A("s_mov_b64 exec, -1")
    A("s_branch L_wloop")

def stage_g(A):
    A("s_lshl_b32 s16, s41, 2")
    A("s_add_u32 s16, s16, s13")
    A("s_lshl_b32 s15, s16, 16")
    A(f"s_add_u32 s15, s15, {WGU_F}")
    ta_prologue(A, "g", 1, 4, preload_gu)
    ta_kloop(A, False)
    A("s_mul_i32 s19, s40, 56")
    A("s_add_u32 s19, s19, s16")
    A("s_lshl_b32 s19, s19, 12")
    A("s_add_u32 s19, s19, s43")
    A(f"s_add_u32 s19, s19, {HF}")
    c2 = struct.unpack("<I", struct.pack("<f", -2.0 * math.sqrt(2.0 / math.pi) * math.log2(math.e)))[0]
    A("s_mov_b32 s28, 0x3d372713")
    A(f"s_mov_b32 s29, {c2}")
    Tm = 8
    for mt in range(4):
        pk = TMPX + 4 * mt
        G = [ACCW + (half * 4 + mt) * 4 + i for half in range(2) for i in range(4)]
        U = [ACCW + ((2 + half) * 4 + mt) * 4 + i for half in range(2) for i in range(4)]
        for i in range(0, 8, 2):
            A(f"v_cvt_pk_bf16_f32 v{Tm}, v{G[i]}, v{G[i+1]}")
            A(f"v_lshlrev_b32 v{G[i]}, 16, v{Tm}")
            A(f"v_and_b32 v{G[i+1]}, 0xffff0000, v{Tm}")
            A(f"v_cvt_pk_bf16_f32 v{Tm}, v{U[i]}, v{U[i+1]}")
            A(f"v_lshlrev_b32 v{U[i]}, 16, v{Tm}")
            A(f"v_and_b32 v{U[i+1]}, 0xffff0000, v{Tm}")
        for i in range(8):
            t = Tm + 1 + i
            A(f"v_mul_f32 v{t}, v{G[i]}, v{G[i]}")
            A(f"v_mul_f32 v{t}, s28, v{t}")
            A(f"v_fma_f32 v{t}, v{t}, v{G[i]}, v{G[i]}")
            A(f"v_mul_f32 v{t}, s29, v{t}")
            A(f"v_exp_f32 v{t}, v{t}")
        for i in range(8):
            t = Tm + 1 + i
            A(f"v_add_f32 v{t}, 1.0, v{t}")
            A(f"v_rcp_f32 v{t}, v{t}")
        for i in range(8):
            A(f"v_mul_f32 v{G[i]}, v{G[i]}, v{Tm+1+i}")
        for i in range(0, 8, 2):
            A(f"v_cvt_pk_bf16_f32 v{Tm}, v{G[i]}, v{G[i+1]}")
            A(f"v_lshlrev_b32 v{G[i]}, 16, v{Tm}")
            A(f"v_and_b32 v{G[i+1]}, 0xffff0000, v{Tm}")
            A(f"v_mul_f32 v{G[i]}, v{G[i]}, v{U[i]}")
            A(f"v_mul_f32 v{G[i+1]}, v{G[i+1]}, v{U[i+1]}")
            A(f"v_cvt_pk_bf16_f32 v{pk+i//2}, v{G[i]}, v{G[i+1]}")
        A(f"buffer_store_dwordx4 v[{pk}:{pk+3}], v4, s[4:7], s19 offen offset:{mt*1024} sc1")
    signal(A, 5)

def stage_attn(A):
    A("s_lshl_b32 s12, s40, 1")
    A("s_lshr_b32 s14, s41, 2")
    A("s_add_u32 s12, s12, s14")
    A("s_and_b32 s14, s41, 3")
    A("s_lshl_b32 s14, s14, 3")
    A("s_lshl_b32 s15, s13, 1")
    A("s_add_u32 s14, s14, s15")
    cnt_addr(A, 22, 1)
    cnt_addr(A, 21, 7)
    A("s_lshl_b32 s20, s42, 6")
    A("s_add_u32 s20, s20, s12")
    A("s_lshl_b32 s20, s20, 6")
    A(f"s_add_u32 s20, s20, {CHAIN_CNT}")
    A("v_and_b32 v14, 63, v0")
    A("v_lshlrev_b32 v1, 4, v14")
    A("v_lshlrev_b32 v13, 3, v14")
    A("s_sub_u32 s23, s21, s22")
    A("v_mov_b32 v126, 0")
    A("v_writelane_b32 v126, s23, 1")
    A("s_sub_u32 s23, s20, s22")
    A("v_writelane_b32 v126, s23, 2")
    A("s_mov_b32 s26, 0")
    A("buffer_load_dword v127, v126, s[4:7], s22 offen sc1")
    A("s_waitcnt vmcnt(0)")
    flush_pending(A, "a")
    A("s_branch L_a_chk")
    A.label("L_a_poll")
    A("buffer_load_dword v127, v126, s[4:7], s22 offen sc1")
    A("s_add_u32 s26, s26, 1")
    A(f"s_cmp_gt_u32 s26, {TMO}")
    A(f"s_cbranch_scc1 {END}")
    A("s_waitcnt vmcnt(0)")
    A.label("L_a_chk")
    A("v_readlane_b32 s27, v127, 0")
    A("v_readlane_b32 s23, v127, 1")
    A("v_readlane_b32 s19, v127, 2")
    A("s_cmp_ge_u32 s27, 16")
    A("s_cselect_b32 s27, 1, 0")
    A("s_cmp_ge_u32 s23, 32")
    A("s_cselect_b32 s23, 1, 0")
    A("s_and_b32 s27, s27, s23")
    A("s_cmp_eq_u32 s27, 1")
    A("s_cbranch_scc1 L_a_polled")
    A("s_sleep 4")
    A("s_branch L_a_poll")
    A.label("L_a_polled")
    S = 144; T = 168; O = 176; BI = 244
    def R(hh, kind, i, n):
        base = {"Q": 16, "K": 48, "KM": 80, "V": 96, "VM": 128}[kind]
        if hh == 0:
            r = base + i
            if kind == "V" and i >= 28: r = 240 + (i - 28)
            return v(r, n)
        abase = {"Q": 0, "K": 32, "V": 64, "KM": 96, "VM": 112}[kind]
        return a(abase + i, n)
    for hh in range(2):
        A("s_lshl_b32 s15, s12, 6")
        A("s_add_u32 s15, s15, s14")
        A(f"s_add_u32 s15, s15, {hh}")
        A("s_lshl_b32 s15, s15, 12")
        A("s_add_u32 s15, s15, s43")
        A(f"s_add_u32 s16, s15, {QF}")
        A(f"s_add_u32 s17, s15, {KF}")
        for t in range(2):
            for j in range(4):
                A(f"buffer_load_dwordx4 {R(hh,'Q',16*t+4*j,4)}, v1, s[4:7], s16 offen offset:{j*1024} sc1")
                A(f"buffer_load_dwordx4 {R(hh,'K',16*t+4*j,4)}, v1, s[4:7], s17 offen offset:{j*1024} sc1")
            if t == 0:
                A("s_add_u32 s16, s16, 131072")
                A("s_add_u32 s17, s17, 131072")
        A("s_lshl_b32 s15, s12, 5")
        A("s_add_u32 s15, s15, s14")
        A(f"s_add_u32 s15, s15, {hh}")
        A("s_lshl_b32 s16, s15, 13")
        A("s_add_u32 s16, s16, s43")
        A(f"s_add_u32 s16, s16, {VF}")
        for et in range(8):
            if et == 4: A("s_add_u32 s16, s16, 4096")
            A(f"buffer_load_dwordx4 {R(hh,'V',4*et,4)}, v1, s[4:7], s16 offen offset:{(et&3)*1024} sc1")
    A("s_cmp_ge_u32 s19, 128")
    A("s_cbranch_scc1 L_a_chain_ok")
    poll_counter(A, "a2", "s20", 128, only_wave0=False)
    A.label("L_a_chain_ok")
    if PROF:
        A("s_memrealtime s[76:77]")
        A("s_waitcnt lgkmcnt(0)")
    for hh in range(2):
        A("s_lshl_b32 s15, s12, 5")
        A("s_add_u32 s15, s15, s14")
        A(f"s_add_u32 s15, s15, {hh}")
        A("s_lshl_b32 s16, s15, 12")
        A("s_add_u32 s16, s16, s43")
        A(f"s_add_u32 s18, s16, {VM}")
        A(f"s_add_u32 s16, s16, {KM}")
        for j in range(4):
            A(f"buffer_load_dwordx4 {R(hh,'KM',4*j,4)}, v1, s[4:7], s16 offen offset:{j*1024} sc1")
        for et in range(8):
            A(f"buffer_load_dwordx2 {R(hh,'VM',2*et,2)}, v13, s[4:7], s18 offen offset:{et*512} sc1")
    A(f"s_mov_b32 s28, {SCALE_HEX}")
    A(f"s_mov_b32 s29, {SCALE_HEX}")
    A(f"s_mov_b32 s30, {LOG2E_HEX}")
    A(f"s_mov_b32 s31, {LOG2E_HEX | 0x80000000}")
    A("v_and_b32 v15, 15, v14")
    A("v_lshrrev_b32 v2, 2, v15")
    A("v_and_b32 v3, 3, v15")
    A("v_lshl_add_u32 v2, v2, 3, v3")
    A("v_lshrrev_b32 v3, 4, v14")
    A("v_lshlrev_b32 v3, 3, v3")
    A("v_sub_u32 v2, v2, v3")
    A(f"v_mov_b32 v{T+7}, 0xf149f2ca")
    bias = {0: 244, 1: 8}
    A("v_cmp_gt_u32 vcc, 32, v14")
    A(f"v_cndmask_b32 v252, v{T+7}, 0, vcc")
    A("v_mov_b32 v253, v252")
    for tq in range(2):
        for tk in range(2):
            for r in range(4):
                A(f"v_cmp_le_i32 vcc, {r + 4*tk - 4*tq}, v2")
                A(f"v_cndmask_b32 v{bias[tq]+4*tk+r}, v{T+7}, 0, vcc")
    A("s_lshl_b32 s16, s40, 7")
    A("s_lshl_b32 s17, s14, 2")
    A("s_add_u32 s16, s16, s17")
    A("s_lshl_b32 s16, s16, 2")
    A("s_and_b32 s17, s12, 1")
    A("s_lshl_b32 s17, s17, 1")
    A("s_add_u32 s16, s16, s17")
    A("s_lshl_b32 s16, s16, 10")
    A("s_add_u32 s16, s16, s43")
    A(f"s_add_u32 s16, s16, {OF}")
    for hh in range(2):
        A(f"s_waitcnt vmcnt({20 if hh == 0 else 16})")
        for tq in range(2):
            for j in range(4):
                for kt in range(3):
                    src = R(hh, 'KM', 4 * j, 4) if kt == 0 else R(hh, 'K', 16 * (kt - 1) + 4 * j, 4)
                    acc = v(S + 12 * tq + 4 * kt, 4)
                    A(f"v_mfma_f32_16x16x32_bf16 {acc}, {src}, {R(hh,'Q',16*tq+4*j,4)}, {'0' if j==0 else acc}")
        A(f"s_waitcnt vmcnt({12 if hh == 0 else 8})")
        for tq in range(2):
            Sq = S + 12 * tq
            TT = T
            for i in range(0, 12, 2): A(f"v_cvt_pk_bf16_f32 v{TT+i//2}, v{Sq+i}, v{Sq+i+1}")
            for i in range(0, 12, 2):
                A(f"v_lshlrev_b32 v{Sq+i}, 16, v{TT+i//2}")
                A(f"v_and_b32 v{Sq+i+1}, 0xffff0000, v{TT+i//2}")
            for i in range(0, 12, 2): A(f"v_pk_mul_f32 v[{Sq+i}:{Sq+i+1}], v[{Sq+i}:{Sq+i+1}], s[28:29]")
            for i in range(0, 12, 2): A(f"v_cvt_pk_bf16_f32 v{TT+i//2}, v{Sq+i}, v{Sq+i+1}")
            for i in range(0, 12, 2):
                A(f"v_lshlrev_b32 v{Sq+i}, 16, v{TT+i//2}")
                A(f"v_and_b32 v{Sq+i+1}, 0xffff0000, v{TT+i//2}")
            for i in range(0, 4, 2): A(f"v_pk_add_f32 v[{Sq+i}:{Sq+i+1}], v[{Sq+i}:{Sq+i+1}], v[252:253]")
            for i in range(0, 8, 2): A(f"v_pk_add_f32 v[{Sq+4+i}:{Sq+5+i}], v[{Sq+4+i}:{Sq+5+i}], v[{bias[tq]+i}:{bias[tq]+i+1}]")
            MX = T + 4; MT = T + 5
            A(f"v_max3_f32 v{MX}, v{Sq}, v{Sq+1}, v{Sq+2}")
            A(f"v_max3_f32 v{MT}, v{Sq+3}, v{Sq+4}, v{Sq+5}")
            A(f"v_max3_f32 v{MX}, v{MX}, v{Sq+6}, v{Sq+7}")
            A(f"v_max3_f32 v{MT}, v{MT}, v{Sq+8}, v{Sq+9}")
            A(f"v_max3_f32 v{MX}, v{MX}, v{Sq+10}, v{Sq+11}")
            A(f"v_max_f32 v{MX}, v{MX}, v{MT}")
            xlane(A, MX, MT, ("p16", "p32"), "v_max_f32")
            A(f"v_mul_f32 v{MX}, s31, v{MX}")
            for i in range(12): A(f"v_fma_f32 v{Sq+i}, v{Sq+i}, s30, v{MX}")
            for i in range(12): A(f"v_exp_f32 v{Sq+i}, v{Sq+i}")
            A(f"v_pk_add_f32 v[{TT}:{TT+1}], v[{Sq}:{Sq+1}], v[{Sq+2}:{Sq+3}]")
            A(f"v_pk_add_f32 v[{TT+2}:{TT+3}], v[{Sq+4}:{Sq+5}], v[{Sq+6}:{Sq+7}]")
            A(f"v_pk_add_f32 v[{MX}:{MX+1}], v[{Sq+8}:{Sq+9}], v[{Sq+10}:{Sq+11}]")
            A(f"v_pk_add_f32 v[{TT}:{TT+1}], v[{TT}:{TT+1}], v[{TT+2}:{TT+3}]")
            A(f"v_pk_add_f32 v[{TT}:{TT+1}], v[{TT}:{TT+1}], v[{MX}:{MX+1}]")
            A(f"v_add_f32 v{MX}, v{TT}, v{TT+1}")
            xlane(A, MX, MT, ("p16", "p32"))
            A(f"v_rcp_f32 v{MX}, v{MX}")
            A(f"v_mov_b32 v{MT}, v{MX}")
            for i in range(0, 12, 2): A(f"v_pk_mul_f32 v[{Sq+i}:{Sq+i+1}], v[{Sq+i}:{Sq+i+1}], v[{MX}:{MX+1}]")
            PM = T + 2; PT = 4
            A(f"v_cvt_pk_bf16_f32 v{PM}, v{Sq}, v{Sq+1}")
            A(f"v_cvt_pk_bf16_f32 v{PM+1}, v{Sq+2}, v{Sq+3}")
            for i in range(4): A(f"v_cvt_pk_bf16_f32 v{PT+i}, v{Sq+4+2*i}, v{Sq+5+2*i}")
            for et in range(8):
                A(f"v_mfma_f32_16x16x32_bf16 v[{O+4*et}:{O+4*et+3}], {R(hh,'V',4*et,4)}, v[{PT}:{PT+3}], 0")
            for et in range(8):
                A(f"v_mfma_f32_16x16x16_bf16 v[{O+4*et}:{O+4*et+3}], {R(hh,'VM',2*et,2)}, v[{PM}:{PM+1}], v[{O+4*et}:{O+4*et+3}]")
            PKO = 208 + 16 * tq
            for j in range(4):
                for half in range(2):
                    b = O + 8 * j + 4 * half
                    A(f"v_cvt_pk_bf16_f32 v{PKO+4*j+2*half}, v{b}, v{b+1}")
                    A(f"v_cvt_pk_bf16_f32 v{PKO+4*j+2*half+1}, v{b+2}, v{b+3}")
                A(f"s_add_u32 s17, s16, {hh*16384 + j*4096 + tq*1024}")
                A(f"buffer_store_dwordx4 v[{PKO+4*j}:{PKO+4*j+3}], v1, s[4:7], s17 offen sc1")
    if PROF:
        signal(A, 2)
    else:
        cnt_addr(A, 68, 2)
        A("s_branch L_wloop")

def stage_tb(A, tag, WF, AFB, KS, dep_stage, dep_n, res_idx, sig_stage):
    KW = KS // 4
    RING = 8
    RB = 16; ACC = RB + 16 * RING
    A("v_and_b32 v14, 63, v0")
    A("v_lshlrev_b32 v1, 4, v14")
    A("s_lshr_b32 s12, s41, 4")
    A("s_and_b32 s14, s41, 15")
    A(f"s_mul_i32 s15, s13, {KW}")
    A("s_lshr_b32 s16, s14, 1")
    A(f"s_mul_i32 s16, s16, {KS}")
    A("s_add_u32 s16, s16, s15")
    A("s_lshl_b32 s16, s16, 12")
    A("s_and_b32 s18, s14, 1")
    A("s_lshl_b32 s18, s18, 11")
    A("s_add_u32 s16, s16, s18")
    A(f"s_add_u32 s16, s16, {WF}")
    A(f"s_mul_i32 s17, s40, {KS}")
    A("s_add_u32 s17, s17, s15")
    A("s_lshl_b32 s17, s17, 12")
    A("s_lshl_b32 s18, s12, 11")
    A("s_add_u32 s17, s17, s18")
    A("s_add_u32 s17, s17, s43")
    A(f"s_add_u32 s17, s17, {AFB}")
    RING = 16; ACC = RB + 8 * RING
    A("s_bitcmp0_b32 s72, 16")
    A(f"s_cbranch_scc1 L_{tag}_nopre")
    A(f"s_mov_b32 s22, {SETUP_CNT}")
    poll_counter(A, tag + "_su", "s22", 64)
    raw_srd(A, "wo" if KS == 128 else "wd")
    A(f"s_mul_i32 s15, s13, {KW*32*1024}")
    A("s_lshl_b32 s24, s14, 6")
    A("s_add_u32 s15, s15, s24")
    A("s_lshl_b32 s24, s13, 14")
    tr_load(A, 1024, KW, 2, lambda kk, t: ("a", (kk * 2 + t) * 4), "s24", 16, 80, 8)
    A("s_barrier")
    A.label(f"L_{tag}_nopre")
    def lda(si):
        for t in range(2):
            A(f"buffer_load_dwordx4 v[{RB+8*si+4*t}:{RB+8*si+4*t+3}], v1, s[4:7], s17 offen offset:{t*1024} sc1")
        A("s_add_u32 s17, s17, 4096")
    def mm(kk):
        si = kk % RING
        for ct in range(2):
            for tt in range(2):
                acc = v(ACC + (ct * 2 + tt) * 4, 4)
                A(f"v_mfma_f32_16x16x32_bf16 {acc}, a[{(kk*2+ct)*4}:{(kk*2+ct)*4+3}], v[{RB+8*si+4*tt}:{RB+8*si+4*tt+3}], {'0' if kk==0 else acc}")
    D = min(RING - 1, KW)
    cnt_addr(A, 22, dep_stage)
    A("v_mov_b32 v250, 0")
    poll_counter(A, tag, "s22", dep_n)
    for si in range(D): lda(si)
    for kk in range(KW):
        if kk + D < KW:
            lda((kk + D) % RING)
            A(f"s_waitcnt vmcnt({2*D})")
        else:
            A(f"s_waitcnt vmcnt({2*(KW-1-kk)})")
        mm(kk)
    A("s_lshl_b32 s15, s13, 12")
    A("v_add_u32 v2, s15, v1")
    for i in range(4):
        A(f"ds_write_b128 v2, v[{ACC+4*i}:{ACC+4*i+3}] offset:{i*1024}")
    A("s_and_b32 s15, s13, 1")
    A("s_lshl_b32 s15, s15, 10")
    A("v_add_u32 v3, s15, v1")
    A("v_and_b32 v4, 15, v14")
    A("v_lshrrev_b32 v5, 2, v4")
    A("v_and_b32 v4, 3, v4")
    A("v_lshl_add_u32 v4, v5, 3, v4")
    A("s_lshl_b32 s15, s40, 6")
    A("s_lshl_b32 s18, s12, 5")
    A("s_add_u32 s15, s15, s18")
    A("s_and_b32 s18, s13, 1")
    A("s_lshl_b32 s18, s18, 2")
    A("s_add_u32 s15, s15, s18")
    A("v_add_u32 v4, s15, v4")
    A("v_lshlrev_b32 v4, 10, v4")
    A("v_lshrrev_b32 v5, 4, v14")
    A("v_lshl_add_u32 v4, v5, 4, v4")
    A("s_lshl_b32 s15, s14, 6")
    A("v_add_u32 v4, s15, v4")
    A("s_lshl_b32 s18, s42, 1")
    A(f"s_add_u32 s18, s18, {res_idx}")
    A("s_lshl_b32 s18, s18, 21")
    A(f"s_add_u32 s18, s18, {XR}")
    A(f"buffer_load_dwordx4 v[8:11], v4, s[4:7], s18 offen sc1")
    A("s_waitcnt lgkmcnt(0)")
    A("s_barrier")
    A("s_cmp_ge_u32 s13, 2")
    A(f"s_cbranch_scc1 L_{tag}_done")
    R = 16
    for ww in range(4):
        for ct in range(2):
            A(f"ds_read_b128 v[{R+8*ww+4*ct}:{R+8*ww+4*ct+3}], v3 offset:{ww*4096+ct*2048}")
    A("s_waitcnt lgkmcnt(4)")
    for i in range(8): A(f"v_add_f32 v{R+i}, v{R+i}, v{R+8+i}")
    A("s_waitcnt lgkmcnt(2)")
    for i in range(8): A(f"v_add_f32 v{R+i}, v{R+i}, v{R+16+i}")
    A("s_waitcnt lgkmcnt(0) vmcnt(0)")
    for i in range(8): A(f"v_add_f32 v{R+i}, v{R+i}, v{R+24+i}")
    for i in range(4):
        A(f"v_cvt_pk_bf16_f32 v6, v{R+2*i}, v{R+2*i+1}")
        A(f"v_lshlrev_b32 v{R+2*i}, 16, v6")
        A(f"v_and_b32 v{R+2*i+1}, 0xffff0000, v6")
        A(f"v_lshlrev_b32 v6, 16, v{8+i}")
        A(f"v_and_b32 v7, 0xffff0000, v{8+i}")
        A(f"v_add_f32 v{R+2*i}, v{R+2*i}, v6")
        A(f"v_add_f32 v{R+2*i+1}, v{R+2*i+1}, v7")
        A(f"v_cvt_pk_bf16_f32 v{R+32+i}, v{R+2*i}, v{R+2*i+1}")
    if res_idx == 1:
        A("s_cmp_eq_u32 s42, 1")
        A(f"s_cbranch_scc1 L_{tag}_out")
    A(f"s_add_u32 s18, s18, {2*MB}")
    A(f"buffer_store_dwordx4 v[{R+32}:{R+35}], v4, s[4:7], s18 offen sc1")
    if res_idx == 1:
        A(f"s_branch L_{tag}_done")
        A.label(f"L_{tag}_out")
        A(f"buffer_store_dwordx4 v[{R+32}:{R+35}], v4, s[64:67], 0 offen")
    A.label(f"L_{tag}_done")
    signal(A, sig_stage)

NSUB = {0: 2, 1: 48, 2: 8, 3: 32, 4: 2, 5: 14, 6: 32}
TBL_STRIDE = 80

def schedule(nW=192, verbose=False):
    def word(layer, stage, blk, sub): return stage | (blk << 4) | (sub << 9) | (layer << 15)
    lists = []
    def new_worker():
        lists.append([]); return lists[-1]
    q1w = []
    for sub in range(48):
        w = new_worker()
        for b in range(32): w.append(word(1, 1, b, sub))
    WG = {}
    for l in range(2):
        for st, n in ((3, 32), (5, 14)):
            for sub in range(n):
                WG[(l, st, sub)] = new_worker()
                if l == 1: q1w.append(WG[(l, st, sub)])
    for l in range(2):
        for st, n in ((3, 32), (5, 14)):
            for sub in range(n):
                for b in range(32):
                    own = 0 if (l == 1 and b >= 29 and (b & 1)) else l
                    WG[(own, st, sub)].append(word(l, st, b, sub))
    P = 7.05
    for cg in range(16):
        for sb in range(2):
            w = new_worker()
            ev = [(27 + P * b, word(0, 6, b, sb * 16 + cg)) for b in range(32)]
            ev += [(max(72 + P * b, 117 + 5.3 * b) + 6, word(1, 6, b, sb * 16 + cg)) for b in range(32)]
            ev.sort()
            w.extend(e[1] for e in ev)
    A1 = [new_worker() for _ in range(8)]
    A2 = [new_worker() for _ in range(6)]
    for b in range(32):
        for sub in range(8): A1[sub].append(word(0, 2, b, sub))
    free = [0.0] * 6
    k = 0
    for b in range(32):
        for sub in range(8):
            if b >= 29:
                pool = A1 + A2
                pool[(k * 5) % 14].append(word(1, 2, b, sub)); k += 1
            else:
                t = 46 + P * b + 3.5 * (sub >> 2)
                i = min(range(6), key=lambda j: (max(free[j], t), j))
                free[i] = max(free[i], t) + 4.2
                A2[i].append(word(1, 2, b, sub))
    for (l, st) in ((0, 4), (1, 0), (1, 4)):
        ws = [new_worker() for _ in range(2)]
        for b in range(32):
            for sub in range(2): ws[sub].append(word(l, st, b, sub))
        if (l, st) == (1, 4): q1w += ws
    assert len(lists) == nW, len(lists)
    for w in lists: w[0] |= 1 << 16
    assert len(q1w) == 48
    for sub, w in enumerate(q1w): w.insert(0, word(0, 8, 0, sub))
    if verbose: print("maxlen", max(len(x) for x in lists))
    assert max(len(l) for l in lists) < TBL_STRIDE, max(len(l) for l in lists)
    return lists

def gen_mega():
    A = Asm()
    name = "mega_kernel"
    A.raw(kernel_header(name))
    A("s_cmp_ge_u32 s2, 256")
    A(f"s_cbranch_scc1 {END}")
    load_ptr_srd(A, "ws", 4, WS_BYTES, 20)
    load_ptr_srd(A, "out", 64, 2 * MB, 20)
    for key, r in PTR.items():
        A(f"s_load_dwordx2 s[{r}:{r+1}], s[0:1], {KA[key]}")
    A("s_waitcnt lgkmcnt(0)")
    A("s_getpc_b64 s[70:71]")
    A.label("L_pf_ref")
    A("s_sub_u32 s70, s70, L_pf_ref-mega_kernel")
    A("s_subb_u32 s71, s71, 0")
    A("s_lshr_b32 s15, s2, 3")
    A("s_and_b32 s15, s15, 7")
    A("s_mul_i32 s15, s15, ((L_code_end-mega_kernel+32767)>>15)<<12")
    A("v_lshlrev_b32 v1, 4, v0")
    A("v_add_u32 v1, s15, v1")
    A("s_mov_b32 s16, (L_code_end-mega_kernel+32767)>>15")
    A("s_mov_b32 s17, L_code_end-mega_kernel-16")
    A.label("L_pf_loop")
    A("v_min_u32 v2, s17, v1")
    A("global_load_dwordx4 v[200:203], v2, s[70:71]")
    A("v_add_u32 v1, 0x1000, v1")
    A("s_sub_u32 s16, s16, 1")
    A("s_cmp_gt_u32 s16, 0")
    A("s_cbranch_scc1 L_pf_loop")
    rendezvous(A)
    A("s_cmp_ge_u32 s12, 64")
    A("s_cbranch_scc1 L_worker")
    gen_chain_role(A)
    A.label("L_worker")
    A("s_sub_u32 s12, s12, 64")
    A("s_mov_b32 s68, 0")
    A(f"s_mul_i32 s69, s12, {TBL_STRIDE*16}")
    A(f"s_add_u32 s69, s69, {PROFB + MB}")
    A("s_getpc_b64 s[70:71]")
    A.label("L_pcref")
    A(f"s_mul_i32 s15, s12, {TBL_STRIDE*4}")
    A("s_add_u32 s70, s70, s15")
    A("s_addc_u32 s71, s71, 0")
    A("s_add_u32 s70, s70, L_table-L_pcref")
    A("s_addc_u32 s71, s71, 0")
    A.label("L_wloop")
    A("s_load_dword s72, s[70:71], 0")
    A("s_add_u32 s70, s70, 4")
    A("s_addc_u32 s71, s71, 0")
    A("s_waitcnt lgkmcnt(0)")
    A("s_cmp_eq_u32 s72, -1")
    A(f"s_cbranch_scc1 L_wend")
    if PROF:
        A("s_memrealtime s[74:75]")
        A("s_waitcnt lgkmcnt(0)")
        A("s_mov_b32 s76, s74")
    A("s_and_b32 s73, s72, 15")
    A("s_bfe_u32 s40, s72, 0x50004")
    A("s_bfe_u32 s41, s72, 0x60009")
    A("s_bfe_u32 s42, s72, 0x1000f")
    A(f"s_mul_i32 s43, s42, {LSTRIDE}")
    for st in (0, 1, 2, 3, 4, 5, 6, 8):
        A(f"s_cmp_eq_u32 s73, {st}")
        A(f"s_cbranch_scc1 L_st{st}")
    A(f"s_branch {END}")
    A.label("L_st0"); stage_ln(A, 0)
    A.label("L_st1"); stage_q(A)
    A.label("L_st2"); stage_attn(A)
    A.label("L_st3"); stage_tb(A, "wo", WO_F, OF, 128, 2, 8, 0, 3)
    A.label("L_st4"); stage_ln(A, 1)
    A.label("L_st5"); stage_g(A)
    A.label("L_st6"); stage_tb(A, "dn", WD_F, HF, 56, 5, 14, 1, 6)
    A.label("L_st8"); stage_q1stream(A)
    A.label("L_wend")
    A("s_waitcnt vmcnt(0)")
    flush_pending(A, "end")
    A.label(END)
    A("s_endpgm")
    A.raw(".p2align 6")
    A.label("L_table")
    for l in schedule(verbose=True):
        ws_ = l + [0xFFFFFFFF] * (TBL_STRIDE - len(l))
        for i in range(0, TBL_STRIDE, 16):
            A.raw("    .long " + ", ".join(hex(x) for x in ws_[i:i+16]))
    A.label("L_code_end")
    return name, A, 256, (256, 256)

def copy_x_to_lds(A, mg_sreg, tmpv):
    A("v_lshlrev_b32 v1, 4, v0")
    A(f"s_lshl_b32 s19, s{mg_sreg}, 17")
    A(f"s_add_u32 s19, s19, {XFA}")
    for rnd in range(4):
        for i in range(8):
            A(f"buffer_load_dwordx4 v[{tmpv+4*i}:{tmpv+4*i+3}], v1, s[4:7], s19 offen")
            A("s_add_u32 s19, s19, 4096")
        for i in range(8):
            A(f"s_waitcnt vmcnt({7-i})")
            off = (rnd * 8 + i) * 4096
            if off < 65536:
                A(f"ds_write_b128 v1, v[{tmpv+4*i}:{tmpv+4*i+3}] offset:{off}")
            else:
                A(f"ds_write_b128 v2, v[{tmpv+4*i}:{tmpv+4*i+3}] offset:{off-65536}")
            if rnd == 0 and i < 2:
                A(f"ds_write_b128 v3, v[{tmpv+4*i}:{tmpv+4*i+3}] offset:{i*4096}")

def gen_qkv(name):
    A = Asm()
    A.raw(kernel_header(name))
    A("s_cmp_ge_u32 s2, 256")
    A("s_cbranch_scc1 L_end_" + name)
    load_ptr_srd(A, "ws", 4, WS_BYTES, 20)
    A("s_and_b32 s12, s2, 7")
    A("s_lshl_b32 s12, s12, 1")
    A("s_bfe_u32 s13, s2, 0x10003")
    A("s_add_u32 s12, s12, s13")
    A("s_lshr_b32 s13, s2, 4")
    A("v_lshlrev_b32 v1, 4, v0")
    A("v_add_u32 v2, 0x10000, v1")
    A("v_add_u32 v3, 0x20000, v1")
    ACC = 0 + 128
    XB = 8
    WB = 72
    XB = 8; WB = 64
    XB = 8; WB = 72; PK = 136
    copy_x_to_lds(A, 13, WB)
    A("v_lshrrev_b32 v4, 6, v0")
    A("v_readfirstlane_b32 s14, v4")
    A("v_and_b32 v4, 63, v0")
    A("v_lshlrev_b32 v4, 4, v4")
    A("v_mov_b32 v5, v4")
    A("s_lshl_b32 s15, s12, 2")
    A("s_add_u32 s15, s15, s14")
    A("s_mul_i32 s15, s15, 196608")
    A(f"s_add_u32 s15, s15, {WQKV_F}")
    A("s_waitcnt lgkmcnt(0)")
    A("s_barrier")
    def wload(setidx):
        for t in range(4):
            A(f"buffer_load_dwordx4 v[{WB+16*setidx+4*t}:{WB+16*setidx+4*t+3}], v4, s[4:7], s15 offen offset:{t*1024}")
        A("s_add_u32 s15, s15, 4096")
    def xread(buf, koff):
        for mt in range(8):
            A(f"ds_read_b128 v[{XB+32*buf+4*mt}:{XB+32*buf+4*mt+3}], v5 offset:{koff*8192+mt*1024}")
    for st in range(3): wload(st)
    xread(0, 0)
    A("s_lshl_b32 s16, s13, 3")
    A("s_lshl_b32 s16, s16, 5")
    A("s_lshl_b32 s17, s12, 1")
    A("s_lshr_b32 s18, s14, 1")
    A("s_add_u32 s17, s17, s18")
    A("s_add_u32 s16, s16, s17")
    A("s_lshl_b32 s16, s16, 2")
    A("s_and_b32 s18, s14, 1")
    A("s_lshl_b32 s18, s18, 1")
    A("s_add_u32 s16, s16, s18")
    A("s_lshl_b32 s16, s16, 10")
    A(f"s_add_u32 s16, s16, {QF}")
    A("s_lshl_b32 s20, s13, 2")
    A("s_lshl_b32 s20, s20, 5")
    A("s_add_u32 s20, s20, s17")
    A("s_lshl_b32 s20, s20, 3")
    A("s_lshl_b32 s18, s18, 1")
    A("s_add_u32 s20, s20, s18")
    A("s_lshl_b32 s20, s20, 10")
    A(f"s_add_u32 s20, s20, {VF}")
    A("s_mov_b32 s21, 0")
    def zero_acc():
        for i in range(128): A(f"v_accvgpr_write_b32 a{i}, 0")
    def kloop(tag, vtype):
        A("s_mov_b32 s22, 0")
        A.label(f"L_k_{tag}_{name}")
        for u in range(4):
            wload((u + 3) % 4)
            xread((u + 1) % 2, u + 1)
            A("s_waitcnt vmcnt(12) lgkmcnt(8)")
            for ct in range(4):
                for mt in range(8):
                    w = v(WB + 16 * u + 4 * ct, 4); x = v(XB + 32 * (u % 2) + 4 * mt, 4)
                    acc = a((ct * 8 + mt) * 4, 4)
                    if vtype: A(f"v_mfma_f32_16x16x32_bf16 {acc}, {x}, {w}, {acc}")
                    else:     A(f"v_mfma_f32_16x16x32_bf16 {acc}, {w}, {x}, {acc}")
        A("v_add_u32 v5, 0x8000, v5")
        A("v_and_b32 v5, 0x1ffff, v5")
        A("s_add_u32 s22, s22, 1")
        A("s_cmp_lt_u32 s22, 4")
        A(f"s_cbranch_scc1 L_k_{tag}_{name}")
    zero_acc()
    A.label(f"L_pass_{name}")
    kloop("qk", False)
    A.fence(10)
    A("s_mov_b32 s19, s16")
    n = 0
    for mt in range(8):
        for cp in range(2):
            pk = PK + 4 * (n % 8); n += 1
            for half in range(2):
                base = ((2 * cp + half) * 8 + mt) * 4
                for i in range(4): A(f"v_accvgpr_read_b32 v{168+i}, a{base+i}")
                A(f"v_cvt_pk_bf16_f32 v{pk+2*half}, v168, v169")
                A(f"v_cvt_pk_bf16_f32 v{pk+2*half+1}, v170, v171")
            A(f"buffer_store_dwordx4 v[{pk}:{pk+3}], v4, s[4:7], s19 offen offset:{cp*1024}")
        if mt < 7: A("s_add_u32 s19, s19, 131072")
    zero_acc()
    A(f"s_add_u32 s16, s16, {KF-QF}")
    A("s_add_u32 s21, s21, 1")
    A("s_cmp_lt_u32 s21, 2")
    A(f"s_cbranch_scc1 L_pass_{name}")
    kloop("v", True)
    A.fence(10)
    A("s_mov_b32 s19, s20")
    n = 0
    for sg in range(4):
        for ct in range(4):
            pk = PK + 4 * (n % 8); n += 1
            for half in range(2):
                base = (ct * 8 + 2 * sg + half) * 4
                for i in range(4): A(f"v_accvgpr_read_b32 v{168+i}, a{base+i}")
                A(f"v_cvt_pk_bf16_f32 v{pk+2*half}, v168, v169")
                A(f"v_cvt_pk_bf16_f32 v{pk+2*half+1}, v170, v171")
            A(f"buffer_store_dwordx4 v[{pk}:{pk+3}], v4, s[4:7], s19 offen offset:{ct*1024}")
        if sg < 3: A("s_add_u32 s19, s19, 262144")
    A.label("L_end_" + name)
    A("s_endpgm")
    return name, A, 256, (176, 128)

def build(kernels, launches):
    out = []
    hdr = open("cdna_kernels/" + NAME + ".s.ref").read().split("\n")
    for l in hdr:
        if l.startswith(";") and "@launch" not in l and "Override" not in l and "grid=ceil" not in l:
            out.append(l)
    for (k, g, lds) in launches:
        out.append(f"; @launch kernel={k} grid=({g},1,1) block=(256,1,1) lds={lds}")
    out.append('.amdgcn_target "amdgcn-amd-amdhsa--gfx950"')
    out.append(".text")
    for (name, A, g, regs) in kernels: out.append(A.text())
    out.append('.section .rodata,"a"')
    for (name, A, g, regs) in kernels:
        if isinstance(regs, tuple):
            nv, na = regs; acc = (nv + 3) // 4 * 4
            out.append(kernel_desc(name, acc + na, 102, acc))
        else:
            out.append(kernel_desc(name, regs, 102, (regs + 3) // 4 * 4))
    return "\n".join(out) + "\n"

if __name__ == "__main__":
    PROF = "prof" in sys.argv
    ks = [gen_prep(), gen_mega()]
    launches = [("prep_kernel", ks[0][2], 0), ("mega_kernel", 256, MEGA_LDS)]
    txt = build(ks, launches)
    dst = "prof.s" if PROF else "cdna_kernels/" + NAME + ".s"
    open(dst, "w").write(txt)
    print("bytes", len(txt))
```
